```python
import torch

def _softmax(x, axis=-1):
    return torch.softmax(x, dim=axis)
def _gelu(x):
    return torch.nn.functional.gelu(x, approximate="tanh")
def _silu(x):
    return torch.nn.functional.silu(x)
def _sigmoid(x):
    return torch.sigmoid(x)
def _layernorm(x, axis=-1, eps=1e-5):
    m = x.mean(dim=axis, keepdim=True)
    v = x.var(dim=axis, keepdim=True, unbiased=False)
    return (x - m) / torch.sqrt(v + eps)
def _scatter_add(tgt, idx, src, axis=0):
    return tgt.clone().index_add_(axis, idx, src)
def _segment_sum(src, seg, n):
    out = torch.zeros((n,) + src.shape[1:], dtype=src.dtype)
    return out.index_add_(0, seg, src)
def _pad(x, pw):
    flat = tuple(v for pair in reversed(pw) for v in pair)
    return torch.nn.functional.pad(x, flat)

kernel_name = 'concat_heads__linear_kernel_hedgehog__softmax_full_mha__prompt'

def setup_inputs():

    _w = (lambda a: (lambda t: t.to(torch.bfloat16) if t.is_floating_point() else t)(torch.as_tensor(a)))
    def _A_setup():
        B, S, D, H = 1, 2048, 512, 32
        Dh = D // H
        return {
            "x": _w((lambda *s: torch.randn(*s, dtype=torch.bfloat16) * 0.8)(B, S, D)),
            "wqkv": _w((lambda *s: torch.randn(*s, dtype=torch.bfloat16) * 1.6)(D, 3 * D)),
            "w_phi": _w((lambda *s: torch.randn(*s, dtype=torch.bfloat16) * 1.6)(H, Dh, Dh) * (Dh ** -0.5)),
            "wo": _w((lambda *s: torch.randn(*s, dtype=torch.bfloat16) * 0.1)(D, D)),
        }
    _A_in = _A_setup()

    def _B_setup():
        B, S, D = 1, 2048, 512
        return {
            "x": _w((lambda *s: torch.randn(*s, dtype=torch.bfloat16) * 0.4)(B, S, D)),
            "wqkv": _w((lambda *s: torch.randn(*s, dtype=torch.bfloat16) * 0.4)(D, 3 * D)),
            "wo": _w((lambda *s: torch.randn(*s, dtype=torch.bfloat16) * 0.05)(D, D)),
        }
    _B_in = _B_setup()

    return {
        "A_x": _A_in["x"],
        "A_wqkv": _A_in["wqkv"],
        "A_w_phi": _A_in["w_phi"],
        "A_wo": _A_in["wo"],
        "B_x": _B_in["x"],
        "B_wqkv": _B_in["wqkv"],
        "B_wo": _B_in["wo"],
    }

def reference(A_x, A_wqkv, A_w_phi, A_wo, B_x, B_wqkv, B_wo):
    def _A_ref(x, wqkv, w_phi, wo):
        B, S, D = x.shape
        H = 32; Dh = D // H
        qkv = (lambda x, *d: x.permute(*d))((x @ wqkv).reshape(B, S, 3, H, Dh), 2, 0, 3, 1, 4)
        q, k, v = qkv[0], qkv[1], qkv[2]
        pq = torch.einsum("bhsd,hdf->bhsf", q, w_phi)
        pk = torch.einsum("bhsd,hdf->bhsf", k, w_phi)
        phi_q = torch.concatenate([_softmax(pq, axis=-1), _softmax(-pq, axis=-1)], axis=-1)
        phi_k = torch.concatenate([_softmax(pk, axis=-1), _softmax(-pk, axis=-1)], axis=-1)
        kv = torch.einsum("bhsf,bhsd->bhfd", phi_k, v)
        z  = torch.einsum("bhsf->bhf", phi_k)
        num = torch.einsum("bhqf,bhfd->bhqd", phi_q, kv)
        den = torch.einsum("bhqf,bhf->bhq", phi_q, z)[..., None] + 1e-6
        o = num / den
        return (lambda x, *d: x.permute(*d))(o, 0, 2, 1, 3).reshape(B, S, D) @ wo

    def _B_ref(x, wqkv, wo):
        B, S, D = x.shape
        H = 32; Dh = D // H
        qkv = (lambda x, *d: x.permute(*d))((x @ wqkv).reshape(B, S, 3, H, Dh), 2, 0, 3, 1, 4)
        q, k, v = qkv[0], qkv[1], qkv[2]
        scale = Dh ** -0.5
        scores = torch.einsum("bhqd,bhkd->bhqk", q, k) * scale
        p = _softmax(scores, axis=-1)
        o = torch.einsum("bhqk,bhkd->bhqd", p, v)
        return (lambda x, *d: x.permute(*d))(o, 0, 2, 1, 3).reshape(B, S, D) @ wo

    a = _A_ref(A_x, A_wqkv, A_w_phi, A_wo)
    b = _B_ref(B_x, B_wqkv, B_wo)
    return torch.concatenate([a, b], axis=-1)
```

```python
import re

TRANS = ("v_exp_f32", "v_log_f32", "v_rcp_f32", "v_rsq_f32", "v_sqrt_f32", "v_sin_f32", "v_cos_f32")

def _regs(tok):
    tok = tok.strip()
    tok = tok.lstrip("-")
    m = re.fullmatch(r"abs\((.*)\)", tok) or re.fullmatch(r"\|(.*)\|", tok)
    if m:
        tok = m.group(1)
    m = re.fullmatch(r"([vsa])(\d+)", tok)
    if m:
        return {(m.group(1), int(m.group(2)))}
    m = re.fullmatch(r"([vsa])\[(\d+):(\d+)\]", tok)
    if m:
        return {(m.group(1), i) for i in range(int(m.group(2)), int(m.group(3)) + 1)}
    if tok in ("vcc", "vcc_lo", "vcc_hi"):
        return {("s", "vcc")}
    if tok in ("exec", "exec_lo", "exec_hi"):
        return {("s", "exec")}
    if tok == "m0":
        return {("s", "m0")}
    return set()

class Ins:
    __slots__ = ("text", "op", "kind", "w", "r", "ab", "c", "passes", "ws", "data", "lds_dma", "label", "target")
    def __init__(self, text):
        self.text = text
        self.label = None
        self.target = None
        t = text.split(";")[0].strip()
        self.w = set(); self.r = set(); self.ab = set(); self.c = set(); self.data = set()
        self.passes = 0; self.ws = 1; self.lds_dma = False
        if not t or t.startswith("."):
            self.op = ""; self.kind = "none"; self.ws = 0
            return
        if t.endswith(":"):
            self.op = ""; self.kind = "label"; self.label = t[:-1]; self.ws = 0
            return
        parts = t.split(None, 1)
        op = self.op = parts[0]
        rest = parts[1] if len(parts) > 1 else ""
        ops = []; cur = ""; depth = 0
        for ch in rest:
            if ch in "[(": depth += 1
            if ch in "])": depth -= 1
            if ch == "," and depth == 0:
                ops.append(cur); cur = ""
            else:
                cur += ch
        if cur.strip(): ops.append(cur)
        mods = ""
        if ops:
            last = ops[-1].strip().split(None, 1)
            ops[-1] = last[0]
            mods = last[1] if len(last) > 1 else ""
        R = [_regs(o) for o in ops]
        if op == "s_nop":
            self.kind = "salu"; self.ws = int(ops[0], 0) + 1
        elif op.startswith("v_mfma"):
            self.kind = "mfma"; self.w = R[0]; self.ab = R[1] | R[2]; self.c = R[3]; self.r = self.ab | self.c
            self.passes = 8 if "32x32" in op else 4
        elif op.startswith("v_smfmac"):
            self.kind = "mfma"; self.w = R[0]; self.ab = R[1] | R[2] | R[3]; self.c = R[0]; self.r = self.ab | self.c
            self.passes = 8 if "32x32" in op else 4
        elif op.startswith("v_"):
            self.kind = "valu"
            if op.startswith("v_permlane") and "swap" in op:
                self.w = R[0] | R[1]; self.r = R[0] | R[1]
            elif op.startswith(("v_add_co", "v_sub_co", "v_addc_co", "v_subb_co")):
                self.w = R[0] | R[1]; self.r = set().union(*R[2:])
            else:
                self.w = R[0]; self.r = set().union(*R[1:]) if len(R) > 1 else set()
                if op.startswith(("v_fmac", "v_pk_fmac")): self.r |= R[0]
                if op.startswith("v_cmpx"): self.w |= {("s", "exec")}
        elif op.startswith("ds_"):
            self.kind = "ds"
            if op.startswith("ds_read") or "_rtn" in op or op.startswith(("ds_bpermute", "ds_permute", "ds_swizzle")):
                self.w = R[0]; self.r = set().union(*R[1:])
            else:
                self.r = set().union(*R)
        elif op.startswith(("buffer_", "global_")):
            self.kind = "vmem"
            ismod = mods.split()
            if "lds" in ismod or "_lds_" in op:
                self.lds_dma = True; self.r = set().union(*R) | {("s", "m0")}
            elif "_load" in op:
                self.w = R[0]; self.r = set().union(*R[1:])
                if "d16" in op: self.r |= R[0]
            elif "_store" in op or "_atomic" in op:
                self.r = set().union(*R) if R else set()
                if op.endswith(("x4", "x3")):
                    self.data = R[0] if op.startswith("buffer_") else R[1]
            else:
                pass
        elif op.startswith("s_"):
            self.kind = "salu"
            if op.startswith(("s_cbranch", "s_branch")):
                self.target = ops[0].strip()
                if "vcc" in op: self.r = {("s", "vcc")}
            elif op.startswith(("s_cmp", "s_waitcnt", "s_barrier", "s_setprio", "s_sleep", "s_endpgm", "s_bitcmp")):
                self.r = set().union(*R) if R else set()
            else:
                self.w = R[0] if R else set(); self.r = set().union(*R[1:]) if len(R) > 1 else set()
                if "saveexec" in op: self.w |= {("s", "exec")}
        else:
            raise ValueError("unknown instruction: " + text)

def need(p, c):
    n = 0
    vw = {x for x in p.w if x[0] in "va"}
    sw = {x for x in p.w if x[0] == "s"}
    if p.kind == "valu":
        if c.kind == "mfma" and vw & c.r: n = max(n, 2)
        if c.kind == "valu":
            if p.op.startswith(TRANS) and not c.op.startswith(TRANS) and vw & c.r: n = max(n, 1)
            if (c.op.startswith("v_permlane") or "_dpp" in c.op or "row_" in c.text or "quad_perm" in c.text) and vw & c.r: n = max(n, 2)
            if c.op.startswith(("v_readlane", "v_readfirstlane")) and vw & c.r: n = max(n, 1)
            if sw & c.r: n = max(n, 4 if c.op.startswith(("v_readlane", "v_writelane")) else 2)
            if ("s", "vcc") in sw and c.op.startswith("v_cndmask") and "vcc" in c.text: n = max(n, 2)
        if c.kind == "vmem" and sw & c.r: n = max(n, 5)
        if c.kind == "salu" and sw & c.r: n = max(n, 1)
        if ("s", "exec") in sw: n = max(n, 5)
    if p.kind == "mfma":
        big = {8: 12, 4: 8}[p.passes]
        if c.kind == "mfma":
            if vw & c.ab: n = max(n, big)
            if vw & c.c:
                if not (c.c == p.w and c.passes == p.passes): n = max(n, {8: 10, 4: 6}[p.passes])
        elif c.kind == "valu":
            if vw & (c.r | c.w): n = max(n, big)
            if p.c & c.w: n = max(n, {8: 7, 4: 3}[p.passes])
        elif c.kind in ("ds", "vmem"):
            if vw & (c.r | c.w): n = max(n, big)
            if p.c & c.w: n = max(n, {8: 7, 4: 3}[p.passes])
    if p.kind == "salu" and ("s", "m0") in p.w and c.kind == "vmem" and c.lds_dma: n = max(n, 1)
    if p.kind == "vmem" and p.data and (p.data & c.w): n = max(n, 2 if c.kind == "valu" else 1)
    return n

WINDOW = 14

class Asm:
    def __init__(self):
        self.ins = []
    def __call__(self, text):
        for line in text.split("\n"):
            if line.strip():
                self.ins.append(Ins(line.strip()))
    def label(self, name):
        self.ins.append(Ins(name + ":"))
    def pad(self, verbose=False):
        total = 0
        for _ in range(50):
            ins = self.ins
            labels = {x.label: i for i, x in enumerate(ins) if x.kind == "label"}
            preds = {}
            for i, x in enumerate(ins):
                if x.target is not None and x.target in labels:
                    preds.setdefault(labels[x.target], []).append(i)
            fixes = {}
            for i, c in enumerate(ins):
                if c.kind in ("none", "label"): continue
                worst = 0
                stack = [(i - 1, 0)]
                seen = set()
                while stack:
                    k, dist = stack.pop()
                    while k >= 0 and dist < WINDOW:
                        if (k, dist) in seen: break
                        seen.add((k, dist))
                        p = ins[k]
                        if p.kind == "label":
                            for q in preds.get(k, []):
                                stack.append((q, dist))
                            kk = k - 1
                            while kk >= 0 and ins[kk].kind in ("none",): kk -= 1
                            if kk >= 0 and ins[kk].op in ("s_branch", "s_endpgm"): break
                            k -= 1
                            continue
                        if p.kind != "none":
                            nd = need(p, c)
                            if nd > dist: worst = max(worst, nd - dist)
                            dist += p.ws
                        k -= 1
                if worst: fixes[i] = worst
            if not fixes: break
            out = []; last = -100
            for i, x in enumerate(ins):
                if i in fixes and i - last > WINDOW:
                    n = fixes[i]
                    if verbose: print("pad", n, "before", x.text)
                    out.append(Ins(f"s_nop {n-1}")); total += n; last = i
                out.append(x)
            self.ins = out
        else:
            raise RuntimeError("padding did not converge")
        return total
    def text(self):
        out = []
        for x in self.ins:
            out.append(x.text if x.kind in ("label", "none") else "    " + x.text)
        return "\n".join(out) + "\n"

def vr(a, n=1):
    return f"v{a}" if n == 1 else f"v[{a}:{a+n-1}]"
def sr(a, n=1):
    return f"s{a}" if n == 1 else f"s[{a}:{a+n-1}]"
```

```python
import math, struct, sys
from asmlib import Asm, vr, sr

NAME = "concat_heads__linear_kernel_hedgehog__softmax_full_mha__prompt"

def f2u(x):
    return struct.unpack("<I", struct.pack("<f", x))[0]

class Cfg:
    prof = False
    stop = 99
    mapping = "R"
    force_redo = False
    nrep = 8
    bias = 24.0
    out_sc = ""
    prio = True
    spin = 1 << 18
    def __init__(self, **kw):
        for k, v in kw.items():
            assert hasattr(self, k), k
            setattr(self, k, v)

WS_KV = 0
WS_OA = 4 << 20
WS_OB = 6 << 20
WS_P = 8 << 20
WS_F = 11 << 20
WS_FL = (11 << 20) + 65536
FL_KV = WS_FL
FL_P = WS_FL + 8192
FL_F = WS_FL + 12288
FL_OA = WS_FL + 16384
FL_OB = WS_FL + 32768
WS_PROF = 12 << 20
WS_DBG = 13 << 20
WS_SIZE = 16 << 20

L_WA = 0
L_WB = 65536
L_X = 131072
L_XM = L_X + 8192
L_XC = L_X + 10240
L_BAD = L_X + 30720
LDS_SIZE = 163840

sW, sJ, sRB, sHG, sH = 3, 4, 5, 6, 7
rXB, rWB, rXA, rWA, rWS, rOUT, rMISC, rDBG = 8, 12, 16, 20, 24, 28, 32, 36
kAX, kAW, kAP, kAO, kBX, kBW, kBO, kOUT, kDBG, kWS = range(40, 60, 2)
sM, sO0, sO1, sO2 = 60, 61, 62, 63
sC = 64
sVM = 66
sCNT, sKV, sKVMAX, sWO, sWOM, sREDO = 68, 69, 70, 71, 72, 73
sT0, sT1, sT2, sT3 = 74, 75, 76, 77
sSPIN = 78
sKV0 = 79
sPROF = 80

vL16, vLANE = 0, 1
vT = 2
vX0, vX1, vWq, vWk, vWv = 3, 4, 5, 6, 7
vXA = 8
vQK, vV = 12, 13
vXB = 24
vT1, vT2 = 14, 15
vOFFV, vIDX = 3, 4
vWOA = 5
Qf = 16
PHI = 24
NM = 40
O = 72
S = 104
RING = 136
SCR = 184
FR = 104
ACC = 184

def gen(cfg):
    a = Asm()
    uid = [0]
    def lab(p):
        uid[0] += 1
        return f"L_{p}_{uid[0]}"
    nstamp = [0]
    def stamp(idx):
        if cfg.prof:
            a(f"s_memrealtime {sr(sPROF + 2 * idx, 2)}\ns_waitcnt lgkmcnt(0)")
    def srd(r, k, size):
        a(f"s_mov_b32 s{r}, s{k}\ns_mov_b32 s{r+1}, s{k+1}\ns_mov_b32 s{r+2}, {size}\ns_mov_b32 s{r+3}, 0x00020000")
    def mfma(d, x, y, c):
        cc = c if isinstance(c, str) else vr(c, 16)
        a(f"v_mfma_f32_32x32x16_bf16 {vr(d,16)}, {vr(x,4)}, {vr(y,4)}, {cc}")
    def cvt(d, s0, n):
        for i in range(n):
            a(f"v_cvt_pk_bf16_f32 v{d+i}, v{s0+2*i}, v{s0+2*i+1}")
    def poll(vaddr, vdst, mask, srdr=rWS, soff="0", first_issued=False):
        lp, dn = lab("poll"), lab("polld")
        a(f"s_mov_b64 exec, {mask}" if isinstance(mask, str) else f"s_mov_b32 exec_lo, {mask & 0xffffffff}\ns_mov_b32 exec_hi, {mask >> 32}")
        a(f"s_mov_b32 s{sSPIN}, {cfg.spin}")
        if first_issued:
            a(f"v_cmp_eq_u32 vcc, 0, v{vdst}\ns_cbranch_vccz {dn}")
        a.label(lp)
        a(f"buffer_load_dword v{vdst}, v{vaddr}, {sr(srdr,4)}, {soff} offen sc1")
        a(f"s_sub_u32 s{sSPIN}, s{sSPIN}, 1\ns_cbranch_scc1 {dn}")
        a(f"s_waitcnt vmcnt(0)\nv_cmp_eq_u32 vcc, 0, v{vdst}\ns_cbranch_vccnz {lp}")
        a.label(dn)
        a("s_mov_b64 exec, -1")
    def flag(vaddr, mask, soff="0", srdr=rWS):
        a(f"v_mov_b32 v{vT2}, 1")
        mask = int(mask, 0)
        a(f"s_mov_b32 exec_lo, {mask & 0xffffffff}\ns_mov_b32 exec_hi, {mask >> 32}")
        a(f"buffer_store_dword v{vT2}, v{vaddr}, {sr(srdr,4)}, {soff} offen sc1")
        a("s_mov_b64 exec, -1")

    a(f"s_cmp_ge_u32 s2, 256\ns_cbranch_scc1 L_end")
    a(f"s_load_dwordx16 s[40:55], s[0:1], 0\ns_load_dwordx4 s[56:59], s[0:1], 64")
    if cfg.prof:
        a(f"s_memrealtime {sr(sPROF,2)}")
    a(f"s_getpc_b64 s[{sT0}:{sT1}]")
    a.label("L_pc")
    a(f"v_lshlrev_b32 v{vT}, 7, v0\nv_min_u32 v{vT}, L_end-L_pc, v{vT}")
    a(f"global_load_dword v255, v{vT}, s[{sT0}:{sT1}]")
    a(f"v_lshrrev_b32 v{vT}, 6, v0\nv_and_b32 v{vLANE}, 63, v0\nv_readfirstlane_b32 s{sW}, v{vT}")
    a(f"v_lshlrev_b32 v{vL16}, 4, v{vLANE}")
    if cfg.mapping == "R":
        a(f"s_and_b32 s{sT0}, s2, 7\ns_lshl_b32 s{sT0}, s{sT0}, 2\ns_bfe_u32 s{sT1}, s2, 0x20003\ns_add_u32 s{sRB}, s{sT0}, s{sT1}\ns_lshr_b32 s{sHG}, s2, 5")
    elif cfg.mapping == "H":
        a(f"s_and_b32 s{sHG}, s2, 7\ns_lshr_b32 s{sRB}, s2, 3")
    elif cfg.mapping == "M":
        a(f"s_and_b32 s{sT0}, s2, 3\ns_lshl_b32 s{sT0}, s{sT0}, 1\ns_bfe_u32 s{sT1}, s2, 0x10003\ns_add_u32 s{sHG}, s{sT0}, s{sT1}")
        a(f"s_bfe_u32 s{sT0}, s2, 0x10002\ns_lshl_b32 s{sT0}, s{sT0}, 4\ns_lshr_b32 s{sT1}, s2, 4\ns_add_u32 s{sRB}, s{sT0}, s{sT1}")
    elif cfg.mapping == "N":
        a(f"s_and_b32 s{sT0}, s2, 1\ns_lshl_b32 s{sT0}, s{sT0}, 2\ns_bfe_u32 s{sT1}, s2, 0x20003\ns_add_u32 s{sHG}, s{sT0}, s{sT1}")
        a(f"s_bfe_u32 s{sT0}, s2, 0x20001\ns_lshl_b32 s{sT0}, s{sT0}, 3\ns_lshr_b32 s{sT1}, s2, 5\ns_add_u32 s{sRB}, s{sT0}, s{sT1}")
    a(f"s_and_b32 s{sJ}, s{sW}, 3\ns_lshl_b32 s{sH}, s{sHG}, 2\ns_add_u32 s{sH}, s{sH}, s{sJ}")
    a(f"s_lshl_b32 s{sM}, s{sJ}, 11")
    a(f"""
    v_lshrrev_b32 v{vT1}, 3, v{vLANE}
    v_and_b32 v{vT2}, 7, v{vLANE}
    s_lshl_b32 s{sT0}, s{sRB}, 6
    s_lshl_b32 s{sT1}, s{sJ}, 4
    s_add_u32 s{sT0}, s{sT0}, s{sT1}
    v_add_u32 v{vT}, s{sT0}, v{vT1}
    v_lshlrev_b32 v{vT}, 10, v{vT}
    v_lshrrev_b32 v{vX0}, 1, v{vT1}
    v_xor_b32 v{vX0}, v{vX0}, v{vT2}
    v_lshl_add_u32 v{vX0}, v{vX0}, 4, v{vT}
    v_add_u32 v{vX1}, 0x2000, v{vX0}
    v_xor_b32 v{vX1}, 64, v{vX1}
    v_add_u32 v{vT}, s{sT1}, v{vT1}
    v_mul_u32_u24 v{vT}, 0xc00, v{vT}
    s_lshl_b32 s{sT2}, s{sHG}, 7
    v_add_u32 v{vT}, s{sT2}, v{vT}
    v_bfe_u32 v{vT1}, v{vLANE}, 4, 1
    v_lshlrev_b32 v{vWq}, 1, v{vT1}
    v_xor_b32 v{vWq}, v{vWq}, v{vT2}
    v_xor_b32 v{vWk}, 4, v{vWq}
    v_lshlrev_b32 v{vWv}, 2, v{vT1}
    v_xor_b32 v{vWv}, v{vWv}, v{vT2}
    v_lshl_add_u32 v{vWq}, v{vWq}, 4, v{vT}
    v_lshl_add_u32 v{vWk}, v{vWk}, 4, v{vT}
    v_lshl_add_u32 v{vWv}, v{vWv}, 4, v{vT}
    v_add_u32 v{vWk}, 0x400, v{vWk}
    v_add_u32 v{vWv}, 0x800, v{vWv}
    s_waitcnt lgkmcnt(0)
    """)
    srd(rXB, kBX, 2048 * 1024)
    srd(rWB, kBW, 512 * 3072)
    a(f"s_cmp_lt_u32 s{sW}, 4\ns_cbranch_scc1 L_roleB")

    def issue_chunk(c):
        rx, rw = (rXB, rWB) if c < 8 else (rXA, rWA)
        cc = c % 8
        slot = (c % 4) * 32768
        a(f"s_mov_b32 s{sO0}, {128*cc}\ns_mov_b32 s{sO1}, {cc*64*3072}\ns_mov_b32 s{sO2}, {cc*64*3072+8*3072}")
        for par in range(2):
            a(f"s_add_u32 m0, s{sM}, {slot + par*1024}")
            a(f"buffer_load_dwordx4 v{vX0+par}, {sr(rx,4)}, s{sO0} offen lds")
            for seg in range(3):
                a(f"s_add_u32 m0, s{sM}, {slot + 8192*(1+seg) + par*1024}")
                a(f"buffer_load_dwordx4 v{vWq+seg}, {sr(rw,4)}, s{sO1+par} offen lds")

    def compute_addrs(role):
        a(f"""
        v_and_b32 v{vT}, 31, v{vLANE}
        v_lshrrev_b32 v{vT1}, 5, v{vLANE}
        v_bfe_u32 v{vT2}, v{vLANE}, 1, 3
        v_xor_b32 v{vT2}, v{vT2}, v{vT1}
        v_lshlrev_b32 v{vT2}, 4, v{vT2}
        v_lshl_add_u32 v{vXA}, v{vT}, 7, v{vT2}
        v_xor_b32 v{vXA+1}, 32, v{vXA}
        v_xor_b32 v{vXA+2}, 64, v{vXA}
        v_xor_b32 v{vXA+3}, 0x60, v{vXA}
        v_bfe_u32 v{vT}, v{vLANE}, 2, 2
        v_lshl_add_u32 v{vT}, v{vT1}, 3, v{vT}
        v_lshlrev_b32 v{vT}, 7, v{vT}
        v_and_b32 v{vT1}, 3, v{vLANE}
        v_lshl_add_u32 v{vT}, v{vT1}, 3, v{vT}
        v_bfe_u32 v{vT1}, v{vLANE}, 4, 1
        v_bfe_u32 v{vT2}, v{vLANE}, 3, 1
        v_lshl_add_u32 v{vQK}, v{vT1}, 1, v{vT2}
        v_xor_b32 v{vQK}, s{sJ}, v{vQK}
        v_lshl_add_u32 v{vQK}, v{vQK}, 5, v{vT}
        v_lshl_add_u32 v{vQK}, v{vT1}, 13, v{vQK}
        v_add_u32 v{vQK}, 0x2000, v{vQK}
        v_lshlrev_b32 v{vT2}, 1, v{vT2}
        """)
        if role == "B":
            a(f"s_and_b32 s{sT0}, s{sJ}, 2\nv_add_u32 v{vT1}, s{sT0}, v{vT1}\nv_xor_b32 v{vV}, v{vT1}, v{vT2}")
        else:
            a(f"v_xor_b32 v{vV}, s{sJ}, v{vT2}")
        a(f"v_lshl_add_u32 v{vV}, v{vV}, 5, v{vT}\nv_add_u32 v{vV}, 0x6000, v{vV}")

    def gemm(role, pre_barrier, post_barrier):
        c0 = 0 if role == "B" else 8
        def fr(buf):
            b = FR + 16 * buf
            return dict(x0=b, x1=b + 4, qk=b + 8, v=b + 12)
        def reads(n, part):
            c, kk, f = c0 + n // 4, n % 4, fr(n % 2)
            so = (c % 2) * 32768
            if part == 0:
                a(f"ds_read_b64_tr_b16 {vr(f['qk'],2)}, v{vQK} offset:{so + kk*2048}")
                a(f"ds_read_b64_tr_b16 {vr(f['qk']+2,2)}, v{vQK} offset:{so + kk*2048 + 512}")
                a(f"ds_read_b128 {vr(f['x0'],4)}, v{vXA+kk} offset:{so}")
            else:
                if role == "B":
                    a(f"ds_read_b128 {vr(f['x1'],4)}, v{vXB+kk} offset:{so}")
                else:
                    a(f"ds_read_b128 {vr(f['x1'],4)}, v{vXA+kk} offset:{so + 4096}")
                a(f"ds_read_b64_tr_b16 {vr(f['v'],2)}, v{vV} offset:{so + kk*2048}")
                a(f"ds_read_b64_tr_b16 {vr(f['v']+2,2)}, v{vV} offset:{so + kk*2048 + 512}")
        pre_barrier(c0)
        a("s_barrier")
        post_barrier(c0)
        reads(0, 0); reads(0, 1)
        for n in range(32):
            c, kk, f = c0 + n // 4, n % 4, fr(n % 2)
            cz = (lambda r: "0") if n == 0 else (lambda r: r)
            if kk == 3:
                a("s_waitcnt lgkmcnt(0)")
                pre_barrier(c + 1)
                a("s_barrier")
                post_barrier(c + 1)
                if (c + 1) % 2 == 0 and n < 31:
                    for r in [vQK, vXA, vV, vXA + 1, vXA + 2, vXA + 3] + ([vXB + i for i in range(4)] if role == "B" else []):
                        a(f"v_xor_b32 v{r}, 0x10000, v{r}")
            else:
                a("s_waitcnt lgkmcnt(3)")
            mfma(ACC, f["qk"], f["x0"], cz(ACC))
            if n < 31: reads(n + 1, 0)
            if kk != 3: a("s_waitcnt lgkmcnt(3)")
            mfma(ACC + 16, f["qk"], f["x1"], cz(ACC + 16))
            if n < 31: reads(n + 1, 1)
            if role == "B":
                mfma(ACC + 32, f["x0"], f["v"], cz(ACC + 32))
            else:
                mfma(ACC + 32, f["x0"], f["v"], cz(ACC + 32))
                mfma(ACC + 48, f["x1"], f["v"], cz(ACC + 48))

    for c in range(4):
        issue_chunk(c)
    srd(rXA, kAX, 2048 * 1024)
    srd(rWA, kAW, 512 * 3072)
    srd(rWS, kWS, WS_SIZE)
    srd(rOUT, kOUT, 2048 * 2048)
    srd(rMISC, kAP, 32 * 512)
    WP, IDP = 248, 40
    vMASK = 252
    a(f"""
    v_lshrrev_b32 v{vT}, 5, v{vLANE}
    v_and_b32 v{vT1}, 15, v{vLANE}
    v_lshlrev_b32 v{vT1}, 1, v{vT1}
    v_lshl_add_u32 v{vT}, v{vT}, 7, v{vT1}
    s_lshl_b32 s{sT0}, s{sH}, 9
    """)
    for jj in range(8):
        a(f"buffer_load_ushort v{48+jj}, v{vT}, {sr(rMISC,4)}, s{sT0} offen offset:{(8*(jj>>2)+(jj&3))*32}")
    compute_addrs("A")
    a(f"""
    v_bfe_u32 v{vT}, v{vLANE}, 2, 1
    v_lshrrev_b32 v{vT1}, 5, v{vLANE}
    v_xor_b32 v{vT}, v{vT}, v{vT1}
    v_lshlrev_b32 v{vT}, 3, v{vT}
    v_bfe_u32 v{vT1}, v{vLANE}, 3, 2
    v_lshl_add_u32 v{vT}, v{vT1}, 1, v{vT}
    v_bfe_u32 v{vT1}, v{vLANE}, 1, 1
    v_add_u32 v{vT}, v{vT}, v{vT1}
    v_and_b32 v{vT1}, 1, v{vLANE}
    v_lshlrev_b32 v{vT1}, 4, v{vT1}
    v_mov_b32 v{vT2}, 0x3f80
    v_lshlrev_b32 v{vT1}, v{vT1}, v{vT2}
    """)
    for q in range(8):
        a(f"v_cmp_eq_u32 vcc, {q}, v{vT}\nv_cndmask_b32 v{IDP+q}, 0, v{vT1}, vcc")
    a(f"v_bfe_u32 v{vT}, v{vLANE}, 4, 1\nv_add_u32 v{vMASK}, -1, v{vT}")
    for c in range(8):
        if c == 0: n = 8 + 24
        elif c <= 3: n = 8 + 8 * (3 - c) + 8 * (c - 1)
        else: n = 16
        a(f"s_waitcnt vmcnt({n})\ns_barrier")
        if c >= 1:
            issue_chunk(c + 3)
        if c == 4:
            a(f"v_bfe_u32 v{vT}, v{vLANE}, 4, 1\nv_lshlrev_b32 v{vT1}, 15, v{vT}\nv_lshl_or_b32 v{vT}, v{vT}, 31, v{vT1}")
            for q in range(4):
                a(f"v_lshl_or_b32 v{WP+q}, v{49+2*q}, 16, v{48+2*q}\nv_xor_b32 v{WP+q}, v{WP+q}, v{vT}")
    def preA(c):
        if c in (8, 9, 10):
            a(f"s_waitcnt vmcnt({8*(10-c)})")
    stamp(1)
    gemm("A", preA, lambda c: None)
    stamp(2)
    if cfg.prio: a("s_setprio 3")
    vPOLL = 253
    a(f"""
    s_mul_i32 s{sT0}, s{sHG}, {128*cfg.nrep}
    s_and_b32 s{sT1}, s{sRB}, {cfg.nrep-1}
    s_lshl_b32 s{sT1}, s{sT1}, 7
    s_add_u32 s{sT0}, s{sT0}, s{sT1}
    s_add_u32 s{sT0}, s{sT0}, {FL_KV}
    v_lshl_add_u32 v254, v{vLANE}, 2, s{sT0}
    s_mov_b32 exec_hi, 0
    buffer_load_dword v{vPOLL}, v254, {sr(rWS,4)}, 0 offen sc1
    s_mov_b64 exec, -1
    """)
    X = [48, 64, 80, 96]
    KF, QF2, VP, PK, TT, PT, TM = 112, 120, 128, 144, 152, 168, 176
    L2E = math.log2(math.e)
    a(f"s_mov_b32 s{sC}, {f2u(L2E)}\ns_mov_b32 s{sC+1}, {f2u(L2E)}\ns_mov_b32 s{sT3}, 0x3f803f80")
    for ri in range(2):
        cvt(KF + 4 * ri, ACC + 16 * ri + 8, 4)
    for ri in range(2):
        mfma(X[ri], WP, KF + 4 * ri, "0")
    for ri in range(2):
        cvt(QF2 + 4 * ri, ACC + 16 * ri, 4)
    for ri in range(2):
        mfma(X[2 + ri], WP, QF2 + 4 * ri, "0")
    for ri in range(2):
        cvt(VP + 8 * ri, ACC + 32 + 16 * ri, 8)
        for i in range(8):
            a(f"v_bfi_b32 v{VP+8*ri+i}, v{vMASK}, v{VP+8*ri+i}, s{sT3}")
    def softmax2(x, dst):
        t, u = TM, TM + 1
        for base, r in ((x, t), (x + 8, u)):
            a(f"v_max3_f32 v{r}, v{base}, v{base+1}, v{base+2}\nv_max3_f32 v{r}, v{r}, v{base+3}, v{base+4}")
            a(f"v_max3_f32 v{r}, v{r}, v{base+5}, v{base+6}\nv_max_f32 v{r}, v{r}, v{base+7}")
        a(f"v_permlane32_swap_b32 v{t}, v{u}\nv_max_f32 v{t}, v{t}, v{u}")
        a(f"v_mul_f32 v{t}, {f2u(-L2E)}, v{t}\nv_mov_b32 v{u}, v{t}\nv_permlane32_swap_b32 v{t}, v{u}")
        for i in range(8):
            sel = "op_sel:[0,0,0] op_sel_hi:[1,1,0]" if i < 4 else "op_sel:[0,0,1] op_sel_hi:[1,1,1]"
            a(f"v_pk_fma_f32 {vr(x+2*i,2)}, {vr(x+2*i,2)}, {sr(sC,2)}, {vr(t,2)} {sel}")
        for i in range(16):
            a(f"v_exp_f32 v{x+i}, v{x+i}")
        p, q = TM + 2, TM + 4
        a(f"v_pk_add_f32 {vr(p,2)}, {vr(x,2)}, {vr(x+2,2)}\nv_pk_add_f32 {vr(q,2)}, {vr(x+8,2)}, {vr(x+10,2)}")
        a(f"v_pk_add_f32 {vr(p,2)}, {vr(p,2)}, {vr(x+4,2)}\nv_pk_add_f32 {vr(q,2)}, {vr(q,2)}, {vr(x+12,2)}")
        a(f"v_pk_add_f32 {vr(p,2)}, {vr(p,2)}, {vr(x+6,2)}\nv_pk_add_f32 {vr(q,2)}, {vr(q,2)}, {vr(x+14,2)}")
        a(f"v_add_f32 v{t}, v{p}, v{p+1}\nv_add_f32 v{u}, v{q}, v{q+1}")
        a(f"v_permlane32_swap_b32 v{t}, v{u}\nv_add_f32 v{t}, v{t}, v{u}\nv_rcp_f32 v{t}, v{t}")
        a(f"v_mov_b32 v{u}, v{t}\nv_permlane32_swap_b32 v{t}, v{u}")
        for i in range(8):
            sel = "op_sel:[0,0] op_sel_hi:[1,0]" if i < 4 else "op_sel:[0,1] op_sel_hi:[1,1]"
            a(f"v_pk_mul_f32 {vr(x+2*i,2)}, {vr(x+2*i,2)}, {vr(t,2)} {sel}")
        cvt(dst, x, 8)
    KVA = ACC
    softmax2(X[0], PK)
    mfma(TT, PK, IDP, "0")
    mfma(TT, PK + 4, IDP + 4, TT)
    softmax2(X[1], PK)
    cvt(PT, TT, 8)
    mfma(TT, PK, IDP, "0")
    mfma(TT, PK + 4, IDP + 4, TT)
    mfma(KVA, PT, VP, "0")
    mfma(KVA, PT + 4, VP + 4, KVA)
    softmax2(X[2], PHI)
    cvt(PT, TT, 8)
    mfma(KVA, PT, VP + 8, KVA)
    mfma(KVA, PT + 4, VP + 12, KVA)
    a(f"""
    v_lshrrev_b32 v{vT}, 5, v{vLANE}
    v_mul_u32_u24 v{vT}, {32*384}, v{vT}
    v_and_b32 v{vT1}, 31, v{vLANE}
    v_lshl_add_u32 v{vT}, v{vT1}, 4, v{vT}
    s_mul_i32 s{sT0}, s{sH}, {8*32*384}
    s_mul_i32 s{sT1}, s{sRB}, 384
    s_add_u32 s{sT0}, s{sT0}, s{sT1}
    s_add_u32 s{sT0}, s{sT0}, {WS_P}
    s_mov_b32 exec_lo, 0x1ffff
    s_mov_b32 exec_hi, 0x1ffff
    """)
    for r4 in range(4):
        a(f"buffer_store_dwordx4 {vr(KVA+4*r4,4)}, v{vT}, {sr(rWS,4)}, s{sT0} offen sc1")
        if r4 < 3: a(f"s_add_u32 s{sT0}, s{sT0}, {2*32*384}")
    a("s_mov_b64 exec, -1")
    softmax2(X[3], PHI + 8)
    a(f"""
    s_lshl_b32 s{sT0}, s{sJ}, 11
    s_add_u32 s{sT0}, s{sT0}, {L_X}
    v_add_u32 v{vT}, s{sT0}, v{vL16}
    ds_read_b128 {vr(Qf,4)}, v{vT}
    ds_read_b128 {vr(Qf+4,4)}, v{vT} offset:1024
    s_lshl_b32 s{sT0}, s{sJ}, 9
    s_add_u32 s{sT0}, s{sT0}, {L_XM}
    v_lshl_add_u32 v{vT}, v{vLANE}, 3, s{sT0}
    ds_read_b64 {vr(TM,2)}, v{vT}
    s_waitcnt vmcnt(0)
    """)
    a(f"s_lshl_b32 s{sT0}, s{sH}, 7\ns_lshl_b32 s{sT1}, s{sRB}, 2\ns_add_u32 s{sT0}, s{sT0}, s{sT1}\ns_add_u32 s{sT0}, s{sT0}, {FL_P}\nv_mov_b32 v{vT}, s{sT0}")
    flag(vT, "1")
    poll(254, vPOLL, 0xffffffff, first_issued=True)
    a(f"s_waitcnt lgkmcnt(0)")
    for i in range(16):
        a(f"v_mov_b32 v{NM+i}, v{TM}\nv_mov_b32 v{NM+16+i}, v{TM+1}")
    a(f"s_lshl_b32 s{sKV0}, s{sH}, 17\ns_add_u32 s{sKV0}, s{sKV0}, {WS_KV + 32*2048}")
    stamp(3)
    a("s_branch L_att")

    a.label("L_roleB")
    srd(rXA, kAX, 2048 * 1024)
    srd(rWA, kAW, 512 * 3072)
    srd(rWS, kWS, WS_SIZE)
    srd(rOUT, kOUT, 2048 * 2048)
    srd(rDBG, kDBG, 256)
    compute_addrs("B")
    a(f"s_and_b32 s{sT0}, s{sJ}, 1\ns_lshl_b32 s{sT0}, s{sT0}, 12")
    for i in range(4):
        a(f"v_add_u32 v{vXA+i}, s{sT0}, v{vXA+i}\nv_xor_b32 v{vXB+i}, 0x1000, v{vXA+i}")
    a(f"s_cmp_lt_u32 s2, 8\ns_cselect_b32 s{sREDO}, s{sW}, 0")
    a(f"s_cmp_lg_u32 s{sREDO}, 1\ns_cbranch_scc1 L_noreset")
    a(f"v_mov_b32 v16, 0\nv_mov_b32 v17, 0\nv_mov_b32 v18, 0\nv_mov_b32 v19, 0")
    a(f"s_lshl_b32 s{sT1}, s2, 13\ns_add_u32 s{sT1}, s{sT1}, {WS_FL}\ns_add_u32 s{sT2}, s{sT1}, 4096")
    for i in range(8):
        a(f"buffer_store_dwordx4 v[16:19], v{vL16}, {sr(rWS,4)}, s{sT1 if i < 4 else sT2} offen offset:{(i%4)*1024} sc1")
    a.label("L_noreset")
    a(f"v_mov_b32 v{vT}, {L_BAD}\nv_mov_b32 v{vT1}, 0\nds_write_b32 v{vT}, v{vT1}")
    vKST, vVST = 28, 29
    a(f"""
    v_and_b32 v{vKST}, 0x33, v{vLANE}
    v_and_b32 v{vT}, 4, v{vLANE}
    v_lshl_or_b32 v{vKST}, v{vT}, 1, v{vKST}
    v_bfe_u32 v{vT}, v{vLANE}, 3, 1
    v_lshl_or_b32 v{vKST}, v{vT}, 2, v{vKST}
    v_lshlrev_b32 v{vKST}, 4, v{vKST}
    v_bfe_u32 v{vT}, v{vLANE}, 4, 1
    v_lshlrev_b32 v{vVST}, 17, v{vT}
    v_lshrrev_b32 v{vT}, 5, v{vLANE}
    v_lshl_add_u32 v{vVST}, v{vT}, 8, v{vVST}
    v_and_b32 v{vT}, 15, v{vLANE}
    v_lshl_add_u32 v{vVST}, v{vT}, 4, v{vVST}
    s_waitcnt lgkmcnt(0)
    """)
    def postB(c):
        if c == 3:
            l = lab("nogate")
            a(f"s_cmp_lg_u32 s{sREDO}, 1\ns_cbranch_scc1 {l}")
            a(f"s_lshl_b32 s{sT0}, s2, 2\nv_mov_b32 v{vT}, s{sT0}\ns_waitcnt vmcnt(0)")
            flag(vT, "1", srdr=rDBG)
            a.label(l)
        if c == 0: stamp(1)
    gemm("B", lambda c: None, postB)
    stamp(2)
    KOWN, VPK = 232, 240
    a(f"""
    s_and_b32 s{sT2}, s{sJ}, 1
    s_lshl_b32 s{sT0}, s{sRB}, 1
    s_add_u32 s{sT0}, s{sT0}, s{sT2}
    s_lshl_b32 s{sT0}, s{sT0}, 11
    s_lshl_b32 s{sT1}, s{sH}, 17
    s_add_u32 s{sT1}, s{sT1}, s{sT0}
    s_xor_b32 s{sT2}, s{sT1}, 0x800
    s_and_b32 s{sT3}, s{sH}, -2
    s_lshl_b32 s{sT3}, s{sT3}, 17
    s_add_u32 s{sT3}, s{sT3}, s{sT0}
    """)
    assert WS_KV == 0
    cvt(KOWN, ACC + 8, 4)
    a(f"buffer_store_dwordx4 {vr(KOWN,4)}, v{vKST}, {sr(rWS,4)}, s{sT1} offen sc1")
    cvt(KOWN + 4, ACC + 16 + 8, 4)
    a(f"buffer_store_dwordx4 {vr(KOWN+4,4)}, v{vKST}, {sr(rWS,4)}, s{sT2} offen sc1")
    cvt(VPK, ACC + 32, 4)
    a(f"buffer_store_dwordx4 {vr(VPK,4)}, v{vVST}, {sr(rWS,4)}, s{sT3} offen offset:1024 sc1")
    cvt(VPK + 4, ACC + 40, 4)
    a(f"buffer_store_dwordx4 {vr(VPK+4,4)}, v{vVST}, {sr(rWS,4)}, s{sT3} offen offset:1536 sc1")
    issue_chunk(11)
    qs = 0.25 * math.log2(math.e)
    a(f"s_mov_b32 s{sC}, {f2u(qs)}\ns_mov_b32 s{sC+1}, {f2u(qs)}")
    for qb in range(2):
        for i in range(4):
            a(f"v_pk_mul_f32 {vr(ACC+16*qb+2*i,2)}, {vr(ACC+16*qb+2*i,2)}, {sr(sC,2)}")
        cvt(Qf + 4 * qb, ACC + 16 * qb, 4)
    a(f"""
    s_lshl_b32 s{sT0}, s{sJ}, 11
    s_add_u32 s{sT0}, s{sT0}, {L_X}
    v_add_u32 v{vT}, s{sT0}, v{vL16}
    ds_write_b128 v{vT}, {vr(Qf,4)}
    ds_write_b128 v{vT}, {vr(Qf+4,4)} offset:1024
    """)
    a("s_barrier")
    issue_chunk(12)
    vG, vGA = 30, 31
    a(f"v_lshlrev_b32 v{vGA}, 2, v{vLANE}\ns_mov_b64 exec, 0xff\nbuffer_load_dword v{vG}, v{vGA}, {sr(rDBG,4)}, 0 offen sc1\ns_mov_b64 exec, -1")
    for qb in range(2):
        mfma(72 + 32 * qb, KOWN, Qf + 4 * qb, "0")
        mfma(88 + 32 * qb, KOWN + 4, Qf + 4 * qb, "0")
    TMB = 32
    def maxtree(dst, base, n, init=None):
        i = 0
        if init is None:
            a(f"v_max3_f32 v{dst}, v{base}, v{base+1}, v{base+2}"); i = 3
        while i + 1 < n:
            a(f"v_max3_f32 v{dst}, v{dst}, v{base+i}, v{base+i+1}"); i += 2
        if i < n:
            a(f"v_max_f32 v{dst}, v{dst}, v{base+i}")
    maxtree(TMB, 72, 32)
    maxtree(TMB + 1, 104, 32)
    def crossmax(t):
        a(f"v_permlane32_swap_b32 v{t}, v{t+1}\nv_max_f32 v{t}, v{t}, v{t+1}")
    crossmax(TMB)
    a(f"v_sub_f32 v{TMB}, {f2u(-cfg.bias)}, v{TMB}\nv_mov_b32 v{TMB+1}, v{TMB}\nv_permlane32_swap_b32 v{TMB}, v{TMB+1}")
    a(f"""
    s_lshl_b32 s{sT0}, s{sJ}, 9
    s_add_u32 s{sT0}, s{sT0}, {L_XM}
    v_lshl_add_u32 v{vT}, v{vLANE}, 3, s{sT0}
    ds_write_b64 v{vT}, {vr(TMB,2)}
    """)
    a("s_barrier")
    issue_chunk(13)
    for i in range(16):
        a(f"v_mov_b32 v{NM+i}, v{TMB}\nv_mov_b32 v{NM+16+i}, v{TMB+1}")
    a("s_waitcnt vmcnt(17) lgkmcnt(0)\ns_barrier")
    stamp(3)
    l = lab("noflag")
    a(f"s_cmp_lg_u32 s{sW}, 0\ns_cbranch_scc1 {l}")
    a("s_waitcnt vmcnt(8)")
    poll(vGA, vG, 0xff, srdr=rDBG, first_issued=True)
    a(f"""
    s_mul_i32 s{sT0}, s{sHG}, {128*cfg.nrep}
    s_lshl_b32 s{sT1}, s{sRB}, 2
    s_add_u32 s{sT0}, s{sT0}, s{sT1}
    s_add_u32 s{sT0}, s{sT0}, {FL_KV}
    v_lshl_add_u32 v{vT}, v{vLANE}, 7, s{sT0}
    """)
    flag(vT, str((1 << cfg.nrep) - 1))
    a.label(l)
    issue_chunk(14)
    a("s_waitcnt vmcnt(16)\ns_barrier")
    issue_chunk(15)
    a("s_waitcnt vmcnt(16)\ns_barrier")
    a("s_waitcnt vmcnt(8)\ns_barrier")
    a(f"""
    s_mul_i32 s{sT0}, s{sHG}, {128*cfg.nrep}
    s_and_b32 s{sT1}, s{sRB}, {cfg.nrep-1}
    s_lshl_b32 s{sT1}, s{sT1}, 7
    s_add_u32 s{sT0}, s{sT0}, s{sT1}
    s_add_u32 s{sT0}, s{sT0}, {FL_KV}
    v_lshl_add_u32 v{vGA}, v{vLANE}, 2, s{sT0}
    s_mov_b32 exec_hi, 0
    buffer_load_dword v{vG}, v{vGA}, {sr(rWS,4)}, 0 offen sc1
    s_mov_b64 exec, -1
    """)
    a("s_waitcnt vmcnt(0)\ns_barrier")
    stamp(4)
    poll(vGA, vG, 0xffffffff, first_issued=True)
    a(f"s_lshl_b32 s{sKV0}, s{sH}, 17")
    stamp(5)

    a.label("L_att")
    a(f"s_mov_b32 s{sREDO}, 0")
    a(f"""
    v_lshrrev_b32 v{vT}, 5, v{vLANE}
    v_and_b32 v{vT1}, 15, v{vLANE}
    v_lshlrev_b32 v{vT1}, 4, v{vT1}
    v_lshl_add_u32 v{vOFFV}, v{vT}, 8, v{vT1}
    v_mov_b32 v{vIDX}, 0xdddd
    s_mov_b32 s{sVM}, 0xffff
    s_mov_b32 s{sVM+1}, 0xffff
    v_lshrrev_b32 v{vT}, 3, v{vLANE}
    v_bfe_u32 v{vT1}, v{vLANE}, 4, 1
    v_lshlrev_b32 v{vT1}, 2, v{vT1}
    v_and_b32 v{vT2}, 7, v{vLANE}
    v_xor_b32 v{vT1}, v{vT1}, v{vT2}
    v_lshlrev_b32 v{vT1}, 4, v{vT1}
    v_lshl_add_u32 v{vWOA}, v{vT}, 10, v{vT1}
    s_lshl_b32 s{sWO}, s{sW}, 16
    s_lshl_b32 s{sT0}, s{sHG}, 7
    s_add_u32 s{sWO}, s{sWO}, s{sT0}
    s_lshl_b32 s{sWOM}, s{sW}, 13
    """)
    srd(rMISC, kAO, 512 * 1024)
    a.label("L_att_redo")
    def ring(t):
        b = RING + 12 * (t % 4)
        return b, b + 4, b + 8
    def kvload(t):
        k, v0, v1 = ring(t)
        a(f"buffer_load_dwordx4 {vr(k,4)}, v{vL16}, {sr(rWS,4)}, s{sKV} offen sc1")
        a(f"s_mov_b64 exec, {sr(sVM,2)}")
        a(f"buffer_load_dwordx4 {vr(v0,4)}, v{vOFFV}, {sr(rWS,4)}, s{sKV} offen offset:1024 sc1")
        a(f"buffer_load_dwordx4 {vr(v1,4)}, v{vOFFV}, {sr(rWS,4)}, s{sKV} offen offset:1536 sc1")
        a(f"s_mov_b64 exec, -1")
        a(f"s_add_u32 s{sKV}, s{sKV}, 2048\ns_min_u32 s{sKV}, s{sKV}, s{sKVMAX}")
    a(f"s_mov_b32 s{sKV}, s{sKV0}\ns_add_u32 s{sKVMAX}, s{sKV0}, {31*2048}")
    for t in range(4):
        for i in range(4, 12):
            a(f"v_mov_b32 v{RING+12*t+i}, 0x3f803f80")
    for t in range(3):
        kvload(t)
    for i in range(32):
        a(f"v_mov_b32 v{O+i}, 0")
    for i in range(8):
        a(f"v_mov_b32 v{S+16+8+i}, 0")
    l = lab("nob16")
    a(f"s_cmp_lt_u32 s{sW}, 4\ns_cselect_b32 s{sT0}, s{sREDO}, 1\ns_cmp_lg_u32 s{sT0}, 0\ns_cbranch_scc1 {l}\ns_barrier")
    a.label(l)
    a("s_waitcnt vmcnt(6)")
    mfma(S, ring(0)[0], Qf, NM)
    a("s_nop 7")
    if cfg.prio: a("s_setprio 2")
    def smf(d, va, p):
        a(f"v_smfmac_f32_32x32x32_bf16 {vr(d,16)}, {vr(va,4)}, {vr(p,8)}, v{vIDX}")
    def att_iter(dma):
        for t in range(4):
            k, v0, v1 = ring(t)
            for qb in range(2):
                cur, oth = S + 16 * qb, S + 16 * (1 - qb)
                def ex(i): a(f"v_exp_f32 v{cur+i}, v{cur+i}")
                ex(0); ex(1)
                if qb == 0:
                    smf(O + 16, ring(t - 1)[2], oth + 8)
                    ex(2)
                    kvload(t + 3)
                    if dma:
                        a(f"s_mov_b32 m0, s{sWOM}\ns_add_u32 s{sWOM}, s{sWOM}, 1024")
                        a(f"buffer_load_dwordx4 v{vWOA}, {sr(rMISC,4)}, s{sWO} offen lds\ns_add_u32 s{sWO}, s{sWO}, 8192")
                    ex(3); ex(4)
                    mfma(oth, k, Qf + 4, NM + 16)
                else:
                    smf(O, v1, oth + 8)
                    ex(2); ex(3)
                    a(f"s_waitcnt vmcnt({7 if dma else 6})")
                    ex(4)
                    mfma(oth, ring(t + 1)[0], Qf, NM)
                for i in range(5, 10): ex(i)
                smf(O + 16 * qb, v0, cur)
                for i in range(10, 16): ex(i)
    def loop(n, dma):
        l = lab("att")
        a(f"s_mov_b32 s{sCNT}, {n}")
        a(".p2align 3")
        a.label(l)
        att_iter(dma)
        if dma:
            l2 = lab("nosw")
            a(f"s_cmp_lg_u32 s{sCNT}, 3\ns_cbranch_scc1 {l2}")
            a(f"s_mov_b32 s{rMISC}, s{kBO}\ns_mov_b32 s{rMISC+1}, s{kBO+1}")
            a(f"s_sub_u32 s{sWO}, s{sWO}, 65536\ns_add_u32 s{sWOM}, s{sWOM}, {65536-8192}")
            a.label(l2)
        else:
            if cfg.prio:
                l2 = lab("nopr")
                a(f"s_cmp_lg_u32 s{sCNT}, 2\ns_cbranch_scc1 {l2}\ns_setprio 0")
                a.label(l2)
        a(f"s_sub_u32 s{sCNT}, s{sCNT}, 1\ns_cmp_lg_u32 s{sCNT}, 0\ns_cbranch_scc1 {l}")
    a(f"s_mov_b32 s{sT3}, 8\ns_cmp_lg_u32 s{sREDO}, 0\ns_cbranch_scc1 L_att2")
    loop(4, True)
    stamp(6)
    a(f"s_cmp_ge_u32 s{sW}, 4\ns_cbranch_scc1 L_jobA")
    a(f"s_cmp_lg_u32 s{sW}, 3\ns_cbranch_scc1 L_jobdone")
    a(f"""
    s_lshr_b32 s{sT0}, s{sRB}, 3
    s_lshl_b32 s{sT1}, s{sHG}, 2
    s_add_u32 s{sT0}, s{sT0}, s{sT1}
    s_lshl_b32 s{sT1}, s{sT0}, 7
    s_add_u32 s{sT1}, s{sT1}, {FL_P}
    v_lshl_add_u32 v{vT}, v{vLANE}, 2, s{sT1}
    """)
    poll(vT, vT1, 0xffffffff)
    a(f"""
    s_lshl_b32 s{sT0}, s{sT0}, 3
    s_and_b32 s{sT1}, s{sRB}, 7
    s_add_u32 s{sT0}, s{sT0}, s{sT1}
    s_mul_i32 s{sT1}, s{sT0}, {32*384}
    s_add_u32 s{sT1}, s{sT1}, {WS_P}
    v_lshrrev_b32 v{vT1}, 5, v{vLANE}
    v_mul_u32_u24 v{vT}, 384, v{vT1}
    v_and_b32 v{vT2}, 31, v{vLANE}
    v_lshl_add_u32 v{vT}, v{vT2}, 4, v{vT}
    v_lshlrev_b32 v{vT1}, 2, v{vT1}
    v_lshl_add_u32 v{vT1}, v{vT2}, 3, v{vT1}
    s_mov_b32 exec_lo, 0x1ffff
    s_mov_b32 exec_hi, 0x1ffff
    """)
    for i in range(16):
        a(f"buffer_load_dwordx4 {vr(SCR+4*i,4)}, v{vT}, {sr(rWS,4)}, s{sT1} offen offset:{(i%4)*768} sc1")
        if i % 4 == 3 and i < 15: a(f"s_add_u32 s{sT1}, s{sT1}, 3072")
    for i in range(1, 16):
        a(f"s_waitcnt vmcnt({15-i})")
        a(f"v_pk_add_f32 {vr(SCR,2)}, {vr(SCR,2)}, {vr(SCR+4*i,2)}\nv_pk_add_f32 {vr(SCR+2,2)}, {vr(SCR+2,2)}, {vr(SCR+4*i+2,2)}")
    a(f"""
    v_permlane32_swap_b32 v{SCR}, v{SCR+2}
    v_permlane32_swap_b32 v{SCR+1}, v{SCR+3}
    v_pk_add_f32 {vr(SCR,2)}, {vr(SCR,2)}, {vr(SCR+2,2)}
    v_cvt_pk_bf16_f32 v{SCR}, v{SCR}, v{SCR+1}
    s_lshl_b32 s{sT1}, s{sT0}, 8
    s_add_u32 s{sT1}, s{sT1}, {WS_F}
    buffer_store_dword v{SCR}, v{vT1}, {sr(rWS,4)}, s{sT1} offen sc1
    s_mov_b64 exec, -1
    s_lshr_b32 s{sT1}, s{sT0}, 3
    s_lshl_b32 s{sT1}, s{sT1}, 7
    s_and_b32 s{sT0}, s{sT0}, 7
    s_lshl_b32 s{sT0}, s{sT0}, 2
    s_add_u32 s{sT0}, s{sT0}, s{sT1}
    s_add_u32 s{sT0}, s{sT0}, {FL_F}
    v_mov_b32 v{vT}, s{sT0}
    s_waitcnt vmcnt(0)
    """)
    flag(vT, "1")
    a("s_branch L_jobdone")
    a.label("L_jobA")
    a(f"s_lshl_b32 s{sT0}, s{sH}, 7\ns_add_u32 s{sT0}, s{sT0}, {FL_F}\nv_lshl_add_u32 v{vT}, v{vLANE}, 2, s{sT0}")
    poll(vT, vT1, 0xff)
    a(f"""
    v_and_b32 v{vT}, 31, v{vLANE}
    v_min_u32 v{vT}, 16, v{vT}
    v_lshlrev_b32 v{vT}, 3, v{vT}
    v_lshrrev_b32 v{vT1}, 5, v{vLANE}
    v_lshl_add_u32 v{vT}, v{vT1}, 8, v{vT}
    s_lshl_b32 s{sT0}, s{sH}, 11
    s_add_u32 s{sT0}, s{sT0}, {WS_F}
    """)
    KT = SCR + 32
    for r4 in range(4):
        a(f"buffer_load_dwordx2 {vr(KT+2*r4,2)}, v{vT}, {sr(rWS,4)}, s{sT0} offen offset:{r4*512} sc1")
    a(f"s_lshl_b32 s{sT0}, s{sRB}, 6\ns_add_u32 s{sT0}, s{sT0}, s{sH}\ns_lshl_b32 s{sT0}, s{sT0}, 10\ns_add_u32 s{sT0}, s{sT0}, {WS_OA}\ns_add_u32 s{sT1}, s{sT0}, 32768")
    a("s_waitcnt vmcnt(0)")
    for ri in range(2):
        mfma(SCR + 16 * ri, KT, PHI + 8 * ri, "0")
    for ri in range(2):
        mfma(SCR + 16 * ri, KT + 4, PHI + 8 * ri + 4, SCR + 16 * ri)
    for ri in range(2):
        d = SCR + 16 * ri
        a(f"v_add_f32 v{d+8}, {f2u(1e-6)}, v{d+8}\nv_rcp_f32 v{d+8}, v{d+8}")
        for i in range(4):
            a(f"v_pk_mul_f32 {vr(d+2*i,2)}, {vr(d+2*i,2)}, {vr(d+8,2)} op_sel:[0,0] op_sel_hi:[1,0]")
        cvt(d + 12, d, 4)
        a(f"buffer_store_dwordx4 {vr(d+12,4)}, v{vL16}, {sr(rWS,4)}, s{sT0+ri} offen sc1")
    a(f"s_lshl_b32 s{sT0}, s{sRB}, 7\ns_lshl_b32 s{sT1}, s{sH}, 2\ns_add_u32 s{sT0}, s{sT0}, s{sT1}\ns_add_u32 s{sT0}, s{sT0}, {FL_OA}\nv_mov_b32 v{vT}, s{sT0}\ns_waitcnt vmcnt(0)")
    flag(vT, "1")
    a.label("L_jobdone")
    a(f"s_mov_b32 s{sT3}, 4")
    if cfg.prio: a("s_setprio 1")
    a.label("L_att2")
    loop(f"s{sT3}", False)
    smf(O + 16, ring(3)[2], S + 16 + 8)
    stamp(7)

    vCW, vCR = 6, 7
    a(f"""
    s_mul_i32 s{sT0}, s{sW}, 2304
    s_add_u32 s{sT0}, s{sT0}, {L_XC}
    v_add_u32 v{vCW}, s{sT0}, v{vL16}
    v_lshl_add_u32 v{vT}, v{vLANE}, 2, s{sT0}
    s_xor_b32 s{sT1}, s{sW}, 4
    s_mul_i32 s{sT1}, s{sT1}, 2304
    s_add_u32 s{sT1}, s{sT1}, {L_XC}
    v_add_u32 v{vCR}, s{sT1}, v{vL16}
    v_lshl_add_u32 v{vT1}, v{vLANE}, 2, s{sT1}
    s_cmp_ge_u32 s{sW}, 4
    s_cbranch_scc1 L_sendA
    ds_write_b128 v{vCW}, {vr(O+16,4)}
    ds_write_b128 v{vCW}, {vr(O+20,4)} offset:1024
    ds_write_b32 v{vT}, v{O+24} offset:2048
    s_branch L_sent
    L_sendA:
    ds_write_b128 v{vCW}, {vr(O,4)}
    ds_write_b128 v{vCW}, {vr(O+4,4)} offset:1024
    ds_write_b32 v{vT}, v{O+8} offset:2048
    """)
    for i in range(0, 10, 2):
        a(f"v_pk_mov_b32 {vr(O+i,2)}, {vr(O+16+i,2)}, {vr(O+16+i,2)} op_sel:[0,1]")
    a.label("L_sent")
    vFA, vFAA = 8, 9
    a(f"""
    s_lshl_b32 s{sT0}, s{sRB}, 7
    s_lshl_b32 s{sT1}, s{sW}, 4
    s_add_u32 s{sT0}, s{sT0}, s{sT1}
    s_add_u32 s{sT0}, s{sT0}, {FL_OA}
    v_lshl_add_u32 v{vFAA}, v{vLANE}, 2, s{sT0}
    s_mov_b64 exec, 15
    buffer_load_dword v{vFA}, v{vFAA}, {sr(rWS,4)}, 0 offen sc1
    s_mov_b64 exec, -1
    s_waitcnt lgkmcnt(0)
    s_barrier
    ds_read_b128 {vr(O+16,4)}, v{vCR}
    ds_read_b128 {vr(O+20,4)}, v{vCR} offset:1024
    ds_read_b32 v{O+24}, v{vT1} offset:2048
    s_lshr_b32 s{sT0}, s{sW}, 2
    s_xor_b32 s{sT0}, s{sT0}, s{sJ}
    s_and_b32 s{sT0}, s{sT0}, 1
    s_lshl_b32 s{sT1}, s{sRB}, 1
    s_add_u32 s{sT0}, s{sT0}, s{sT1}
    s_lshl_b32 s{sT0}, s{sT0}, 5
    s_add_u32 s{sT0}, s{sT0}, s{sH}
    s_lshl_b32 s{sT0}, s{sT0}, 10
    s_add_u32 s{sT0}, s{sT0}, {WS_OB}
    s_waitcnt lgkmcnt(0)
    v_add_f32 v{O+8}, v{O+8}, v{O+24}
    v_rcp_f32 v{O+10}, v{O+8}
    """)
    for i in range(4):
        a(f"v_pk_add_f32 {vr(O+2*i,2)}, {vr(O+2*i,2)}, {vr(O+16+2*i,2)}")
    a(f"v_mul_f32 v{O+11}, 0, v{O+8}")
    a(f"v_fma_f32 v{O+11}, v{O+10}, 0, v{O+11}")
    for i in range(8):
        a(f"v_fma_f32 v{O+11}, v{O+i}, 0, v{O+11}")
    for i in range(4):
        a(f"v_pk_mul_f32 {vr(O+2*i,2)}, {vr(O+2*i,2)}, {vr(O+10,2)} op_sel:[0,0] op_sel_hi:[1,0]")
    cvt(O + 12, O, 4)
    a(f"buffer_store_dwordx4 {vr(O+12,4)}, v{vL16}, {sr(rWS,4)}, s{sT0} offen sc1")
    l = lab("good")
    if cfg.force_redo:
        a(f"s_mov_b64 vcc, -1")
    else:
        a(f"v_cmp_u_f32 vcc, v{O+11}, v{O+11}")
    a(f"v_mov_b32 v{vT}, {L_BAD}\ns_cbranch_vccz {l}\nv_mov_b32 v{vT1}, 1\nds_write_b32 v{vT}, v{vT1}")
    a.label(l)
    WFA, WFB = 104, 168
    vWR = 10
    a(f"""
    v_bfe_u32 v{vT1}, v{vLANE}, 2, 2
    v_lshrrev_b32 v{vT2}, 5, v{vLANE}
    v_lshl_add_u32 v{vT1}, v{vT2}, 2, v{vT1}
    v_lshlrev_b32 v{vWR}, 7, v{vT1}
    s_bfe_u32 s{sT0}, s{sW}, 0x10001
    v_bfe_u32 v{vT1}, v{vLANE}, 3, 1
    v_xor_b32 v{vT1}, s{sT0}, v{vT1}
    v_lshl_add_u32 v{vWR}, v{vT1}, 6, v{vWR}
    v_and_b32 v{vT1}, 1, v{vLANE}
    v_lshl_add_u32 v{vWR}, v{vT1}, 5, v{vWR}
    v_bfe_u32 v{vT1}, v{vLANE}, 4, 1
    v_lshl_add_u32 v{vWR}, v{vT1}, 4, v{vWR}
    v_bfe_u32 v{vT1}, v{vLANE}, 1, 1
    v_lshl_add_u32 v{vWR}, v{vT1}, 3, v{vWR}
    s_lshr_b32 s{sT0}, s{sW}, 2
    s_lshl_b32 s{sT0}, s{sT0}, 15
    v_add_u32 v{vWR}, s{sT0}, v{vWR}
    v_add_u32 v{vWR+1}, {L_WB}, v{vWR}
    """)
    a("s_waitcnt vmcnt(2)")
    for br, wf in ((0, WFA), (1, WFB)):
        for hh in range(16):
            a(f"ds_read_b64_tr_b16 {vr(wf+4*hh,2)}, v{vWR+br} offset:{hh*2048}")
            a(f"ds_read_b64_tr_b16 {vr(wf+4*hh+2,2)}, v{vWR+br} offset:{hh*2048+1024}")
    a("s_waitcnt vmcnt(0) lgkmcnt(0)\ns_barrier")
    stamp(8)
    a(f"ds_read_b32 v{vT1}, v{vT}\ns_waitcnt lgkmcnt(0)\nv_readfirstlane_b32 s{sT0}, v{vT1}")
    a(f"s_andn2_b32 s{sT0}, s{sT0}, s{sREDO}\ns_cmp_lg_u32 s{sT0}, 0\ns_cbranch_scc1 L_slow")
    l = lab("noflagob")
    a(f"s_cmp_lg_u32 s{sW}, 0\ns_cbranch_scc1 {l}")
    a(f"s_lshl_b32 s{sT0}, s{sRB}, 10\ns_lshl_b32 s{sT1}, s{sHG}, 2\ns_add_u32 s{sT0}, s{sT0}, s{sT1}\ns_add_u32 s{sT0}, s{sT0}, {FL_OB}")
    a(f"v_lshl_add_u32 v{vT}, v{vLANE}, 7, s{sT0}")
    flag(vT, "0xff")
    a.label(l)
    poll(vFAA, vFA, 15, first_issued=True)
    def stage_o(ws_base, lds_base):
        a(f"s_lshl_b32 s{sT0}, s{sRB}, 16\ns_lshl_b32 s{sT1}, s{sW}, 12\ns_add_u32 s{sT0}, s{sT0}, s{sT1}\ns_add_u32 s{sT0}, s{sT0}, {ws_base}")
        a(f"s_add_u32 m0, s{sT1}, {lds_base}")
        for ri in range(2):
            if ri: a(f"s_add_u32 s{sT0}, s{sT0}, 32768\ns_add_u32 m0, s{sT1}, {lds_base+32768}")
            for i in range(4):
                a(f"buffer_load_dwordx4 v{vL16}, {sr(rWS,4)}, s{sT0} offen offset:{i*1024} sc1 lds")
    stage_o(WS_OA, L_WA)
    a(f"""
    s_lshl_b32 s{sT0}, s{sRB}, 3
    s_add_u32 s{sT0}, s{sT0}, s{sHG}
    s_lshl_b32 s{sT0}, s{sT0}, 7
    s_lshl_b32 s{sT1}, s{sW}, 2
    s_add_u32 s{sT0}, s{sT0}, s{sT1}
    s_add_u32 s{sT0}, s{sT0}, {FL_OB}
    v_mov_b32 v{vFAA}, s{sT0}
    """)
    vOR, vXW, vXR, vOST = 10, 12, 13, 6
    a(f"""
    s_and_b32 s{sT0}, s{sW}, 1
    s_lshl_b32 s{sT0}, s{sT0}, 15
    s_lshr_b32 s{sT1}, s{sW}, 2
    s_lshl_b32 s{sT1}, s{sT1}, 14
    s_add_u32 s{sT0}, s{sT0}, s{sT1}
    v_add_u32 v{vOR}, s{sT0}, v{vL16}
    v_add_u32 v{vOR+1}, {L_WB}, v{vOR}
    s_lshl_b32 s{sT0}, s{sW}, 11
    s_add_u32 s{sT0}, s{sT0}, {L_X}
    v_add_u32 v{vXW}, s{sT0}, v{vL16}
    v_xor_b32 v{vXR}, 0x2000, v{vXW}
    v_and_b32 v{vT}, 31, v{vLANE}
    s_lshl_b32 s{sT0}, s{sRB}, 1
    s_and_b32 s{sT1}, s{sW}, 1
    s_add_u32 s{sT0}, s{sT0}, s{sT1}
    s_lshl_b32 s{sT0}, s{sT0}, 5
    v_add_u32 v{vT}, s{sT0}, v{vT}
    v_lshlrev_b32 v{vOST}, 11, v{vT}
    v_lshrrev_b32 v{vT}, 5, v{vLANE}
    v_lshl_add_u32 v{vOST}, v{vT}, 5, v{vOST}
    s_lshl_b32 s{sT0}, s{sHG}, 7
    s_bfe_u32 s{sT1}, s{sW}, 0x10001
    s_lshl_b32 s{sT1}, s{sT1}, 6
    s_add_u32 s{sT0}, s{sT0}, s{sT1}
    s_lshr_b32 s{sT1}, s{sW}, 2
    s_lshl_b32 s{sT1}, s{sT1}, 4
    s_add_u32 s{sT0}, s{sT0}, s{sT1}
    v_add_u32 v{vOST}, s{sT0}, v{vOST}
    """)
    a("s_waitcnt vmcnt(0)\ns_barrier")
    stamp(9)
    poll(vFAA, vFA, 1)
    stage_o(WS_OB, L_WB)
    OF, PA = 24, 56
    def proj(br, wf):
        for i in range(8):
            a(f"ds_read_b128 {vr(OF+4*i,4)}, v{vOR+br} offset:{i*1024}")
        for hh in range(16):
            a(f"s_waitcnt lgkmcnt({min(7, 15-hh)})")
            mfma(PA, wf + 4 * hh, OF + 4 * (hh % 8), "0" if hh == 0 else PA)
            if hh < 8:
                a(f"ds_read_b128 {vr(OF+4*hh,4)}, v{vOR+br} offset:{(hh+8)*1024}")
        l1, l2 = lab("k1"), lab("k2")
        xo = br * 16384
        a(f"s_cmp_ge_u32 s{sW}, 4\ns_cbranch_scc1 {l1}")
        a(f"ds_write_b128 v{vXW}, {vr(PA+8,4)} offset:{xo}\nds_write_b128 v{vXW}, {vr(PA+12,4)} offset:{xo+1024}\ns_branch {l2}")
        a.label(l1)
        a(f"ds_write_b128 v{vXW}, {vr(PA,4)} offset:{xo}\nds_write_b128 v{vXW}, {vr(PA+4,4)} offset:{xo+1024}")
        for i in range(0, 8, 2):
            a(f"v_pk_mov_b32 {vr(PA+i,2)}, {vr(PA+8+i,2)}, {vr(PA+8+i,2)} op_sel:[0,1]")
        a.label(l2)
    def proj_fin(br):
        xo = br * 16384
        a(f"ds_read_b128 {vr(PA+8,4)}, v{vXR} offset:{xo}\nds_read_b128 {vr(PA+12,4)}, v{vXR} offset:{xo+1024}\ns_waitcnt lgkmcnt(0)")
        for i in range(4):
            a(f"v_pk_add_f32 {vr(PA+2*i,2)}, {vr(PA+2*i,2)}, {vr(PA+8+2*i,2)}")
        cvt(72 + 4 * br, PA, 4)
        a(f"buffer_store_dwordx4 {vr(72+4*br,4)}, v{vOST}, {sr(rOUT,4)}, 0 offen offset:{br*1024} {cfg.out_sc}")
    proj(0, WFA)
    a("s_waitcnt vmcnt(0) lgkmcnt(0)\ns_barrier")
    proj_fin(0)
    proj(1, WFB)
    a("s_waitcnt lgkmcnt(0)\ns_barrier")
    proj_fin(1)
    if cfg.prof:
        a(f"s_waitcnt vmcnt(0)\ns_memrealtime s[{sT0}:{sT1}]\ns_getreg_b32 s{sT2}, hwreg(HW_REG_XCC_ID)\ns_waitcnt lgkmcnt(0)")
        for i in range(10):
            a(f"v_mov_b32 v{16+i}, s{sPROF+2*i}")
        a(f"v_mov_b32 v26, s{sT0}\nv_mov_b32 v27, s{sT2}")
        a(f"s_lshl_b32 s{sT0}, s2, 3\ns_add_u32 s{sT0}, s{sT0}, s{sW}\ns_lshl_b32 s{sT0}, s{sT0}, 6\ns_add_u32 s{sT0}, s{sT0}, {WS_PROF}")
        a(f"v_mov_b32 v{vT}, 0\ns_mov_b64 exec, 1")
        for i in range(3):
            a(f"buffer_store_dwordx4 {vr(16+4*i,4)}, v{vT}, {sr(rWS,4)}, s{sT0} offen offset:{16*i}")
    a("s_endpgm")

    a.label("L_slow")
    a(f"s_mov_b32 s{sREDO}, 1\ns_mov_b32 s{sKV}, s{sKV0}\ns_mov_b32 s{sCNT}, 32")
    a(f"v_mov_b32 v{SCR}, 0xff800000\nv_mov_b32 v{SCR+1}, 0xff800000")
    a.label("L_slow_loop")
    a(f"buffer_load_dwordx4 {vr(RING,4)}, v{vL16}, {sr(rWS,4)}, s{sKV} offen sc1\ns_add_u32 s{sKV}, s{sKV}, 2048\ns_waitcnt vmcnt(0)")
    mfma(S, RING, Qf, "0")
    mfma(S + 16, RING, Qf + 4, "0")
    maxtree(SCR, S, 16, init=True)
    maxtree(SCR + 1, S + 16, 16, init=True)
    a(f"s_sub_u32 s{sCNT}, s{sCNT}, 1\ns_cmp_lg_u32 s{sCNT}, 0\ns_cbranch_scc1 L_slow_loop")
    crossmax(SCR)
    a(f"""
    s_lshl_b32 s{sT0}, s{sW}, 8
    s_add_u32 s{sT0}, s{sT0}, {L_X + 28672}
    v_lshl_add_u32 v{vT}, v{vLANE}, 2, s{sT0}
    ds_write_b32 v{vT}, v{SCR}
    v_xor_b32 v{vT}, 0x400, v{vT}
    s_waitcnt lgkmcnt(0)
    s_barrier
    ds_read_b32 v{SCR+1}, v{vT}
    s_waitcnt lgkmcnt(0)
    v_max_f32 v{SCR}, v{SCR}, v{SCR+1}
    v_sub_f32 v{SCR}, 0, v{SCR}
    v_mov_b32 v{SCR+1}, v{SCR}
    v_permlane32_swap_b32 v{SCR}, v{SCR+1}
    """)
    for i in range(16):
        a(f"v_mov_b32 v{NM+i}, v{SCR}\nv_mov_b32 v{NM+16+i}, v{SCR+1}")
    a("s_branch L_att_redo")
    a.label("L_end")
    a("s_endpgm")
    npad = a.pad()
    head = open(f"cdna_kernels/{NAME}.s.ref").read().split("; Override launch")[0]
    txt = head + f"""; Generated by gen/gen.py (hand-written generator).
; @launch grid=(256,1,1) block=(512,1,1) lds={LDS_SIZE}
.amdgcn_target "amdgcn-amd-amdhsa--gfx950"
.text
.globl {NAME}_kernel
.p2align 8
.type {NAME}_kernel,@function
{NAME}_kernel:
""" + a.text() + f""".section .rodata,"a"
.p2align 6
.amdhsa_kernel {NAME}_kernel
  .amdhsa_next_free_vgpr 256
  .amdhsa_next_free_sgpr 102
  .amdhsa_accum_offset 256
  .amdhsa_group_segment_fixed_size 0
  .amdhsa_kernarg_size 80
  .amdhsa_user_sgpr_count 2
  .amdhsa_user_sgpr_kernarg_segment_ptr 1
  .amdhsa_system_sgpr_workgroup_id_x 1
.end_amdhsa_kernel
"""
    return txt, npad

if __name__ == "__main__":
    kw = {}
    out = f"cdna_kernels/{NAME}.s"
    for arg in sys.argv[1:]:
        k, v = arg.split("=", 1)
        if k == "out":
            out = v
        else:
            kw[k] = eval(v)
    txt, npad = gen(Cfg(**kw))
    open(out, "w").write(txt)
    print("wrote", out, "nop states inserted:", npad, "lines:", txt.count("\n"))
```

```python
import math, struct, sys
from asmlib import Asm, vr, sr

NAME = "concat_heads__linear_kernel_hedgehog__softmax_full_mha__prompt"

def f2u(x):
    return struct.unpack("<I", struct.pack("<f", x))[0]

class Cfg:
    prof = False
    stop = 99
    mapping = "N"
    force_redo = False
    nrep = 8
    bias = 24.0
    out_sc = ""
    prio = True
    pref_sc = ''
    rot = (1, 2, 1)
    look = 2
    nB = 24
    depB, depA = 4, 4
    redT = (6, 9, 12, 15)
    jobT = (0, 19, 22, 25, 29)
    prioB = ((0, 0),)
    prioA = ((0, 3),)
    kvrot = True
    coupled = True
    lastA = 9
    flag_at = 10
    woT = 22
    itB = 9
    redB = 5
    hold8 = 1
    onepoll = True
    psleep = 2
    hold9 = False
    prB = (4, 1)
    prA = (3, 1)
    wopref = True
    oa_first = True
    spref = None
    codepref = 'xcd'
    ninit = 2
    pref = False
    prefA = (1, 2)
    spin = 1 << 18
    diag = None
    def __init__(self, **kw):
        for k, v in kw.items():
            assert hasattr(self, k), k
            setattr(self, k, v)

WS_KV = 0
WS_OA = 4 << 20
WS_OB = 6 << 20
WS_P = 8 << 20
WS_F = 11 << 20
WS_FL = (11 << 20) + 65536
FL_OB = WS_FL
FL_P = WS_FL + 32768
FL_F = FL_P + 4096
FL_OA = FL_F + 4096
FL_KV = FL_OA + 4096
WS_PROF = 12 << 20
WS_DBG = 13 << 20
WS_SIZE = 16 << 20

L_WA = 0
L_WB = 65536
L_X = 131072
L_XM = L_X + 8192
L_XC = L_X + 10240
L_XR = L_X + 28672
L_BAD = L_X + 32512
C_KV, C_WO, C_GO, C_RD = 4, 8, 12, 16
LDS_SIZE = 163840

sW, sJ, sRB, sHG, sH = 3, 4, 5, 6, 7
rXB, rWB, rXA, rWA, rWS, rOUT, rMISC, rDBG = 8, 12, 16, 20, 24, 28, 32, 36
kAX, kAW, kAP, kAO, kBX, kBW, kBO, kOUT, kDBG, kWS = range(40, 60, 2)
sM, sO0, sO1, sO2 = 60, 61, 62, 63
sC = 64
sVM = 66
sCNT, sKV, sKVMAX, sWO, sWOM, sREDO = 68, 69, 70, 71, 72, 73
sT0, sT1, sT2, sT3 = 74, 75, 76, 77
sSPIN = 78
sKV0 = 79
sROT = 82
sNIT = 83
sJB, sJL = 90, 91
sPROF = 80

vL16, vLANE = 0, 1
vT = 2
vX0, vX1, vWq, vWk, vWv = 3, 4, 5, 6, 7
vXA = 8
vQK, vV = 12, 13
vXB = 24
vT1, vT2 = 14, 15
vCNT, vONE = 254, 253
vOFFV, vIDX = 3, 4
vWOA = 5
Qf = 16
PHI = 24
NM = 40
O = 72
S = 104
RING = 136
SCR = 184
FR = 104
ACC = 184

def gen(cfg):
    a = Asm()
    uid = [0]
    def lab(p):
        uid[0] += 1
        return f"L_{p}_{uid[0]}"
    nstamp = [0]
    def stamp(idx):
        if cfg.prof:
            a(f"s_memrealtime s[96:97]\ns_memtime s[98:99]\ns_waitcnt lgkmcnt(0)\nv_writelane_b32 v255, s96, {idx}\nv_writelane_b32 v255, s98, {16+idx}")
        elif cfg.diag and idx in cfg.diag[:2]:
            a(f"s_memrealtime {sr(84 if idx == cfg.diag[0] else 86, 2)}\ns_waitcnt lgkmcnt(0)")
    def srd(r, k, size):
        a(f"s_mov_b32 s{r}, s{k}\ns_mov_b32 s{r+1}, s{k+1}\ns_mov_b32 s{r+2}, {size}\ns_mov_b32 s{r+3}, 0x00020000")
    def mfma(d, x, y, c):
        cc = c if isinstance(c, str) else vr(c, 16)
        a(f"v_mfma_f32_32x32x16_bf16 {vr(d,16)}, {vr(x,4)}, {vr(y,4)}, {cc}")
    def cvt(d, s0, n):
        for i in range(n):
            a(f"v_cvt_pk_bf16_f32 v{d+i}, v{s0+2*i}, v{s0+2*i+1}")
    def poll(vaddr, vdst, mask, srdr=rWS, soff="0", first_issued=False, sleep=0):
        lp, dn = lab("poll"), lab("polld")
        a(f"s_mov_b64 exec, {mask}" if isinstance(mask, str) else f"s_mov_b32 exec_lo, {mask & 0xffffffff}\ns_mov_b32 exec_hi, {mask >> 32}")
        a(f"s_mov_b32 s{sSPIN}, {cfg.spin}")
        if first_issued:
            a(f"v_cmp_eq_u32 vcc, 0, v{vdst}\ns_cbranch_vccz {dn}")
        a.label(lp)
        if sleep: a(f"s_sleep {sleep}")
        a(f"buffer_load_dword v{vdst}, v{vaddr}, {sr(srdr,4)}, {soff} offen sc1")
        a(f"s_sub_u32 s{sSPIN}, s{sSPIN}, 1\ns_cbranch_scc1 {dn}")
        a(f"s_waitcnt vmcnt(0)\nv_cmp_eq_u32 vcc, 0, v{vdst}\ns_cbranch_vccnz {lp}")
        a.label(dn)
        a("s_mov_b64 exec, -1")
    def flag(vaddr, mask, soff="0", srdr=rWS):
        a(f"v_mov_b32 v{vT2}, 1")
        mask = int(mask, 0)
        a(f"s_mov_b32 exec_lo, {mask & 0xffffffff}\ns_mov_b32 exec_hi, {mask >> 32}")
        a(f"buffer_store_dword v{vT2}, v{vaddr}, {sr(srdr,4)}, {soff} offen sc1")
        a("s_mov_b64 exec, -1")

    def arrive(off):
        a(f"s_mov_b64 exec, 1\nds_add_u32 v{vCNT}, v{vONE} offset:{off}\ns_mov_b64 exec, -1")
    def await_cnt(off, target):
        lp, dn = lab("cw"), lab("cwd")
        a(f"s_mov_b64 exec, 1\ns_mov_b32 s{sSPIN}, {cfg.spin * 16}")
        a.label(lp)
        a(f"ds_read_b32 v{vT2}, v{vCNT} offset:{off}\ns_sub_u32 s{sSPIN}, s{sSPIN}, 1\ns_cbranch_scc1 {dn}")
        a(f"s_waitcnt lgkmcnt(0)\nv_cmp_gt_u32 vcc, {target}, v{vT2}\ns_cbranch_vccnz {lp}")
        a.label(dn)
        a("s_mov_b64 exec, -1")

    a(f"s_cmp_ge_u32 s2, 256\ns_cbranch_scc1 L_end")
    a(f"s_load_dwordx16 s[40:55], s[0:1], 0\ns_load_dwordx4 s[56:59], s[0:1], 64")
    if cfg.prof or cfg.diag:
        a(f"s_memrealtime {sr(sPROF,2)}\ns_memtime s[100:101]")
    a(f"s_getpc_b64 s[{sT0}:{sT1}]")
    a.label("L_pc")
    if cfg.codepref == "all":
        a(f"v_lshlrev_b32 v{vT}, 7, v0\nv_min_u32 v{vT}, L_end-L_pc, v{vT}")
        a(f"global_load_dword v247, v{vT}, s[{sT0}:{sT1}]")
    else:
        a(f"s_lshr_b32 s{sT2}, s2, 3\ns_mul_i32 s{sT2}, s{sT2}, 12\nv_min_u32 v{vT}, 11, v0\nv_add_u32 v{vT}, s{sT2}, v{vT}")
        a(f"v_lshlrev_b32 v{vT}, 7, v{vT}\nv_min_u32 v{vT}, L_end-L_pc, v{vT}")
        a(f"global_load_dword v247, v{vT}, s[{sT0}:{sT1}]")
    a(f"v_lshrrev_b32 v{vT}, 6, v0\nv_and_b32 v{vLANE}, 63, v0\nv_readfirstlane_b32 s{sW}, v{vT}")
    a(f"v_lshlrev_b32 v{vL16}, 4, v{vLANE}\nv_mov_b32 v{vCNT}, {L_BAD}\nv_mov_b32 v{vONE}, 1")
    if cfg.mapping == "R":
        a(f"s_and_b32 s{sT0}, s2, 7\ns_lshl_b32 s{sT0}, s{sT0}, 2\ns_bfe_u32 s{sT1}, s2, 0x20003\ns_add_u32 s{sRB}, s{sT0}, s{sT1}\ns_lshr_b32 s{sHG}, s2, 5")
    elif cfg.mapping == "H":
        a(f"s_and_b32 s{sHG}, s2, 7\ns_lshr_b32 s{sRB}, s2, 3")
    elif cfg.mapping == "M":
        a(f"s_and_b32 s{sT0}, s2, 3\ns_lshl_b32 s{sT0}, s{sT0}, 1\ns_bfe_u32 s{sT1}, s2, 0x10003\ns_add_u32 s{sHG}, s{sT0}, s{sT1}")
        a(f"s_bfe_u32 s{sT0}, s2, 0x10002\ns_lshl_b32 s{sT0}, s{sT0}, 4\ns_lshr_b32 s{sT1}, s2, 4\ns_add_u32 s{sRB}, s{sT0}, s{sT1}")
    elif cfg.mapping == "N":
        a(f"s_and_b32 s{sT0}, s2, 1\ns_lshl_b32 s{sT0}, s{sT0}, 2\ns_bfe_u32 s{sT1}, s2, 0x20003\ns_add_u32 s{sHG}, s{sT0}, s{sT1}")
        a(f"s_bfe_u32 s{sT0}, s2, 0x20001\ns_lshl_b32 s{sT0}, s{sT0}, 3\ns_lshr_b32 s{sT1}, s2, 5\ns_add_u32 s{sRB}, s{sT0}, s{sT1}")
    a(f"s_and_b32 s{sJ}, s{sW}, 3\ns_lshl_b32 s{sH}, s{sHG}, 2\ns_add_u32 s{sH}, s{sH}, s{sJ}")
    a(f"s_lshl_b32 s{sM}, s{sJ}, 11")
    if cfg.rot:
        a(f"s_mul_i32 s{sROT}, s{sHG}, {cfg.rot[1]}\ns_mul_i32 s{sT0}, s{sRB}, {cfg.rot[0]}\ns_add_u32 s{sROT}, s{sROT}, s{sT0}")
        if len(cfg.rot) > 2:
            a(f"s_lshr_b32 s{sT0}, s{sHG}, 2\ns_mul_i32 s{sT0}, s{sT0}, {cfg.rot[2]}\ns_add_u32 s{sROT}, s{sROT}, s{sT0}")
    a(f"""
    v_lshrrev_b32 v{vT1}, 3, v{vLANE}
    v_and_b32 v{vT2}, 7, v{vLANE}
    s_lshl_b32 s{sT0}, s{sRB}, 6
    s_lshl_b32 s{sT1}, s{sJ}, 4
    s_add_u32 s{sT0}, s{sT0}, s{sT1}
    v_add_u32 v{vT}, s{sT0}, v{vT1}
    v_lshlrev_b32 v{vT}, 10, v{vT}
    v_lshrrev_b32 v{vX0}, 1, v{vT1}
    v_xor_b32 v{vX0}, v{vX0}, v{vT2}
    v_lshl_add_u32 v{vX0}, v{vX0}, 4, v{vT}
    v_add_u32 v{vX1}, 0x2000, v{vX0}
    v_xor_b32 v{vX1}, 64, v{vX1}
    v_add_u32 v{vT}, s{sT1}, v{vT1}
    v_mul_u32_u24 v{vT}, 0xc00, v{vT}
    s_lshl_b32 s{sT2}, s{sHG}, 7
    v_add_u32 v{vT}, s{sT2}, v{vT}
    v_bfe_u32 v{vT1}, v{vLANE}, 4, 1
    v_lshlrev_b32 v{vWq}, 1, v{vT1}
    v_xor_b32 v{vWq}, v{vWq}, v{vT2}
    v_xor_b32 v{vWk}, 4, v{vWq}
    v_lshlrev_b32 v{vWv}, 2, v{vT1}
    v_xor_b32 v{vWv}, v{vWv}, v{vT2}
    v_lshl_add_u32 v{vWq}, v{vWq}, 4, v{vT}
    v_lshl_add_u32 v{vWk}, v{vWk}, 4, v{vT}
    v_lshl_add_u32 v{vWv}, v{vWv}, 4, v{vT}
    v_add_u32 v{vWk}, 0x400, v{vWk}
    v_add_u32 v{vWv}, 0x800, v{vWv}
    s_waitcnt lgkmcnt(0)
    """)
    if cfg.prof:
        a(f"v_writelane_b32 v255, s{sPROF}, 0\nv_writelane_b32 v255, s100, 16")
    srd(rXB, kBX, 2048 * 1024)
    srd(rWB, kBW, 512 * 3072)
    a(f"s_cmp_lt_u32 s{sW}, 4\ns_cbranch_scc1 L_roleB")

    def chunk_pieces(c):
        rx, rw = (rXB, rWB) if c < 8 else (rXA, rWA)
        cc = c % 8
        slot = (c % 4) * 32768
        if cfg.rot:
            head = f"s_add_u32 s{sO0}, s{sROT}, {cc}\ns_and_b32 s{sO0}, s{sO0}, 7\ns_mul_i32 s{sO1}, s{sO0}, {64*3072}\n"
            head += f"s_lshl_b32 s{sO0}, s{sO0}, 7\ns_add_u32 s{sO2}, s{sO1}, {8*3072}\n"
        else:
            head = f"s_mov_b32 s{sO0}, {128*cc}\ns_mov_b32 s{sO1}, {cc*64*3072}\ns_mov_b32 s{sO2}, {cc*64*3072+8*3072}\n"
        ld = []
        for par in range(2):
            ld.append(f"s_add_u32 m0, s{sM}, {slot + par*1024}\nbuffer_load_dwordx4 v{vX0+par}, {sr(rx,4)}, s{sO0} offen lds\n")
            for seg in range(3):
                ld.append(f"s_add_u32 m0, s{sM}, {slot + 8192*(1+seg) + par*1024}\nbuffer_load_dwordx4 v{vWq+seg}, {sr(rw,4)}, s{sO1+par} offen lds\n")
        ld[0] = head + ld[0]
        return ld
    def issue_chunk(c):
        for t in chunk_pieces(c): a(t)

    def compute_addrs(role):
        a(f"""
        v_and_b32 v{vT}, 31, v{vLANE}
        v_lshrrev_b32 v{vT1}, 5, v{vLANE}
        v_bfe_u32 v{vT2}, v{vLANE}, 1, 3
        v_xor_b32 v{vT2}, v{vT2}, v{vT1}
        v_lshlrev_b32 v{vT2}, 4, v{vT2}
        v_lshl_add_u32 v{vXA}, v{vT}, 7, v{vT2}
        v_xor_b32 v{vXA+1}, 32, v{vXA}
        v_xor_b32 v{vXA+2}, 64, v{vXA}
        v_xor_b32 v{vXA+3}, 0x60, v{vXA}
        v_bfe_u32 v{vT}, v{vLANE}, 2, 2
        v_lshl_add_u32 v{vT}, v{vT1}, 3, v{vT}
        v_lshlrev_b32 v{vT}, 7, v{vT}
        v_and_b32 v{vT1}, 3, v{vLANE}
        v_lshl_add_u32 v{vT}, v{vT1}, 3, v{vT}
        v_bfe_u32 v{vT1}, v{vLANE}, 4, 1
        v_bfe_u32 v{vT2}, v{vLANE}, 3, 1
        v_lshl_add_u32 v{vQK}, v{vT1}, 1, v{vT2}
        v_xor_b32 v{vQK}, s{sJ}, v{vQK}
        v_lshl_add_u32 v{vQK}, v{vQK}, 5, v{vT}
        v_lshl_add_u32 v{vQK}, v{vT1}, 13, v{vQK}
        v_add_u32 v{vQK}, 0x2000, v{vQK}
        v_lshlrev_b32 v{vT2}, 1, v{vT2}
        """)
        if role == "B":
            a(f"s_and_b32 s{sT0}, s{sJ}, 2\nv_add_u32 v{vT1}, s{sT0}, v{vT1}\nv_xor_b32 v{vV}, v{vT1}, v{vT2}")
        else:
            a(f"v_xor_b32 v{vV}, s{sJ}, v{vT2}")
        a(f"v_lshl_add_u32 v{vV}, v{vV}, 5, v{vT}\nv_add_u32 v{vV}, 0x6000, v{vV}")

    def gemm(role, pre_barrier, post_barrier, mid=lambda: None):
        c0 = 0 if role == "B" else 8
        def fr(buf):
            b = FR + 16 * buf
            return dict(x0=b, x1=b + 4, qk=b + 8, v=b + 12)
        def reads(n, part):
            c, kk, f = c0 + n // 4, n % 4, fr(n % 2)
            so = (c % 2) * 32768
            if part == 0:
                a(f"ds_read_b64_tr_b16 {vr(f['qk'],2)}, v{vQK} offset:{so + kk*2048}")
                a(f"ds_read_b64_tr_b16 {vr(f['qk']+2,2)}, v{vQK} offset:{so + kk*2048 + 512}")
                a(f"ds_read_b128 {vr(f['x0'],4)}, v{vXA+kk} offset:{so}")
            else:
                if role == "B":
                    a(f"ds_read_b128 {vr(f['x1'],4)}, v{vXB+kk} offset:{so}")
                else:
                    a(f"ds_read_b128 {vr(f['x1'],4)}, v{vXA+kk} offset:{so + 4096}")
                a(f"ds_read_b64_tr_b16 {vr(f['v'],2)}, v{vV} offset:{so + kk*2048}")
                a(f"ds_read_b64_tr_b16 {vr(f['v']+2,2)}, v{vV} offset:{so + kk*2048 + 512}")
        def tgt(c): return 8 if (c == 9 and not cfg.hold8) else 4
        pre_barrier(c0)
        if role == "B" or cfg.coupled:
            a("s_barrier")
        else:
            arrive(4 * c0); await_cnt(4 * c0, tgt(c0))
        reads(0, 0); reads(0, 1)
        post_barrier(c0)
        for n in range(32):
            c, kk, f = c0 + n // 4, n % 4, fr(n % 2)
            cz = (lambda r: "0") if n == 0 else (lambda r: r)
            def toggle():
                if (c + 1) % 2 == 0 and n < 31:
                    for r in [vQK, vXA, vV, vXA + 1, vXA + 2, vXA + 3] + ([vXB + i for i in range(4)] if role == "B" else []):
                        a(f"v_xor_b32 v{r}, 0x10000, v{r}")
            if kk == 3 and role == "A" and not cfg.coupled:
                a("s_waitcnt lgkmcnt(0)")
                pre_barrier(c + 1)
                arrive(4 * (c + 1))
                mfma(ACC, f["qk"], f["x0"], ACC)
                mfma(ACC + 16, f["qk"], f["x1"], ACC + 16)
                toggle()
                if n < 31:
                    await_cnt(4 * (c + 1), tgt(c + 1))
                    reads(n + 1, 0); reads(n + 1, 1)
                post_barrier(c + 1)
                mfma(ACC + 32, f["x0"], f["v"], ACC + 32)
                mid()
                mfma(ACC + 48, f["x1"], f["v"], ACC + 48)
                mid()
                continue
            if kk == 3:
                a("s_waitcnt lgkmcnt(0)")
                if n < 31 or role == "A":
                    pre_barrier(c + 1)
                    a("s_barrier")
                    post_barrier(c + 1)
                elif not cfg.hold8 and not cfg.coupled:
                    arrive(4 * 9)
                toggle()
            else:
                a("s_waitcnt lgkmcnt(3)")
            mfma(ACC, f["qk"], f["x0"], cz(ACC))
            if n < 31: reads(n + 1, 0)
            if kk != 3: a("s_waitcnt lgkmcnt(3)")
            mfma(ACC + 16, f["qk"], f["x1"], cz(ACC + 16))
            if n < 31: reads(n + 1, 1)
            mfma(ACC + 32, f["x0"], f["v"], cz(ACC + 32))
            if role == "A":
                mid()
                mfma(ACC + 48, f["x1"], f["v"], cz(ACC + 48))
                mid()

    if cfg.prof: stamp(4)
    vq = []
    def issue(c):
        issue_chunk(c); vq.extend([c] * 8)
    def wait_for(tag):
        n = len(vq) - 1 - max(i for i, t in enumerate(vq) if t == tag)
        a(f"s_waitcnt vmcnt({n})")
    for c in range(cfg.ninit):
        issue(c)
    if cfg.prof: stamp(5)
    srd(rXA, kAX, 2048 * 1024)
    srd(rWA, kAW, 512 * 3072)
    srd(rWS, kWS, WS_SIZE)
    srd(rOUT, kOUT, 2048 * 2048)
    srd(rMISC, kAP, 32 * 512)
    WP, IDP = 248, 40
    vMASK = 252
    a(f"""
    v_lshrrev_b32 v{vT}, 5, v{vLANE}
    v_and_b32 v{vT1}, 15, v{vLANE}
    v_lshlrev_b32 v{vT1}, 1, v{vT1}
    v_lshl_add_u32 v{vT}, v{vT}, 7, v{vT1}
    s_lshl_b32 s{sT0}, s{sH}, 9
    """)
    for jj in range(8):
        a(f"buffer_load_ushort v{48+jj}, v{vT}, {sr(rMISC,4)}, s{sT0} offen offset:{(8*(jj>>2)+(jj&3))*32}")
    vq.extend(["g"] * 8)
    compute_addrs("A")
    a(f"""
    v_bfe_u32 v{vT}, v{vLANE}, 2, 1
    v_lshrrev_b32 v{vT1}, 5, v{vLANE}
    v_xor_b32 v{vT}, v{vT}, v{vT1}
    v_lshlrev_b32 v{vT}, 3, v{vT}
    v_bfe_u32 v{vT1}, v{vLANE}, 3, 2
    v_lshl_add_u32 v{vT}, v{vT1}, 1, v{vT}
    v_bfe_u32 v{vT1}, v{vLANE}, 1, 1
    v_add_u32 v{vT}, v{vT}, v{vT1}
    v_and_b32 v{vT1}, 1, v{vLANE}
    v_lshlrev_b32 v{vT1}, 4, v{vT1}
    v_mov_b32 v{vT2}, 0x3f80
    v_lshlrev_b32 v{vT1}, v{vT1}, v{vT2}
    """)
    for q in range(8):
        a(f"v_cmp_eq_u32 vcc, {q}, v{vT}\nv_cndmask_b32 v{IDP+q}, 0, v{vT1}, vcc")
    a(f"v_bfe_u32 v{vT}, v{vLANE}, 4, 1\nv_add_u32 v{vMASK}, -1, v{vT}")
    spf = []
    if cfg.spref:
        assert cfg.mapping == "N"
        a(f"""
        s_lshr_b32 s{sT0}, s2, 3
        s_lshl_b32 s{sT0}, s{sT0}, 2
        s_add_u32 s{sT0}, s{sT0}, s{sJ}
        s_bfe_u32 s{sT1}, s2, 0x20001
        s_and_b32 s{sT2}, s2, 1
        s_mul_i32 s84, s{sT1}, {384*1024}
        s_mul_i32 s85, s{sT0}, 3072
        s_add_u32 s84, s84, s85
        s_lshl_b32 s85, s{sT2}, 9
        s_add_u32 s84, s84, s85
        s_add_u32 s84, s{kAW}, s84
        s_addc_u32 s85, s{kAW+1}, 0
        s_lshl_b32 s86, s{sT1}, 19
        s_lshl_b32 s87, s{sT2}, 18
        s_add_u32 s86, s86, s87
        s_lshl_b32 s87, s{sT0}, 11
        s_add_u32 s86, s86, s87
        s_add_u32 s86, s{kAX}, s86
        s_addc_u32 s87, s{kAX+1}, 0
        """)
        spf = [f"s_load_dword s88, s[84:85], {b*1024 + i*64}" for b in range(3) for i in range(8)]
        spf += [f"s_load_dword s88, s[86:87], {i*64}" for i in range(32)]
    nxt = cfg.ninit
    lastA = cfg.lastA if cfg.coupled else (7 if cfg.hold8 else (8 if cfg.hold9 else 9))
    for c in range(8):
        wait_for(c)
        a("s_barrier")
        while nxt <= min(c + cfg.look, lastA):
            issue(nxt); nxt += 1
        if spf and c >= cfg.spref[0]:
            for t in spf[:cfg.spref[1]]: a(t)
            spf = spf[cfg.spref[1]:]
        if c == 4:
            a(f"v_bfe_u32 v{vT}, v{vLANE}, 4, 1\nv_lshlrev_b32 v{vT1}, 15, v{vT}\nv_lshl_or_b32 v{vT}, v{vT}, 31, v{vT1}")
            for q in range(4):
                a(f"v_lshl_or_b32 v{WP+q}, v{49+2*q}, 16, v{48+2*q}\nv_xor_b32 v{WP+q}, v{WP+q}, v{vT}")
    nxtA = [nxt]
    pend = []
    def preA(c):
        while pend and pend[0][0] <= c: midA()
        if c <= (lastA if cfg.coupled else 15): wait_for(c)
    def postA(c):
        while not cfg.coupled and nxtA[0] <= min(c + cfg.look, 15):
            pend.extend((nxtA[0], t) for t in chunk_pieces(nxtA[0])); nxtA[0] += 1
    def midA():
        for _ in range(2 if len(set(c for c, t in pend)) > 1 else 1):
            if pend:
                c, t = pend.pop(0)
                a(t); vq.append(c)
    if cfg.hold8 and not cfg.coupled:
        await_cnt(C_WO, 4)
        for c in range(8, 8 + cfg.hold8):
            issue(c)
        nxtA[0] = 8 + cfg.hold8
    assert not spf
    a("s_waitcnt lgkmcnt(0)")
    if cfg.prio: a("s_setprio 3")
    stamp(1)
    gemm("A", preA, postA, midA)
    stamp(2)
    if not cfg.coupled: await_cnt(C_KV, 4)
    vPOLL, vPOLLA = 6, 7
    a(f"""
    s_mul_i32 s{sT0}, s{sHG}, {128*cfg.nrep}
    s_and_b32 s{sT1}, s{sRB}, {cfg.nrep-1}
    s_lshl_b32 s{sT1}, s{sT1}, 7
    s_add_u32 s{sT0}, s{sT0}, s{sT1}
    s_add_u32 s{sT0}, s{sT0}, {FL_KV}
    v_lshl_add_u32 v{vPOLLA}, v{vLANE}, 2, s{sT0}
    s_mov_b32 exec_hi, 0
    buffer_load_dword v{vPOLL}, v{vPOLLA}, {sr(rWS,4)}, 0 offen sc1
    s_mov_b64 exec, -1
    """)
    X = [48, 64, 80, 96]
    KF, QF2, VP, PK, TT, PT, TM = 112, 120, 128, 144, 152, 168, 176
    L2E = math.log2(math.e)
    a(f"s_mov_b32 s{sC}, {f2u(L2E)}\ns_mov_b32 s{sC+1}, {f2u(L2E)}\ns_mov_b32 s{sT3}, 0x3f803f80")
    for ri in range(2):
        cvt(KF + 4 * ri, ACC + 16 * ri + 8, 4)
    for ri in range(2):
        mfma(X[ri], WP, KF + 4 * ri, "0")
    for ri in range(2):
        cvt(QF2 + 4 * ri, ACC + 16 * ri, 4)
    for ri in range(2):
        mfma(X[2 + ri], WP, QF2 + 4 * ri, "0")
    for ri in range(2):
        cvt(VP + 8 * ri, ACC + 32 + 16 * ri, 8)
        for i in range(8):
            a(f"v_bfi_b32 v{VP+8*ri+i}, v{vMASK}, v{VP+8*ri+i}, s{sT3}")
    def softmax2(x, dst):
        t, u = TM, TM + 1
        for base, r in ((x, t), (x + 8, u)):
            a(f"v_max3_f32 v{r}, v{base}, v{base+1}, v{base+2}\nv_max3_f32 v{r}, v{r}, v{base+3}, v{base+4}")
            a(f"v_max3_f32 v{r}, v{r}, v{base+5}, v{base+6}\nv_max_f32 v{r}, v{r}, v{base+7}")
        a(f"v_permlane32_swap_b32 v{t}, v{u}\nv_max_f32 v{t}, v{t}, v{u}")
        a(f"v_mul_f32 v{t}, {f2u(-L2E)}, v{t}\nv_mov_b32 v{u}, v{t}\nv_permlane32_swap_b32 v{t}, v{u}")
        for i in range(8):
            sel = "op_sel:[0,0,0] op_sel_hi:[1,1,0]" if i < 4 else "op_sel:[0,0,1] op_sel_hi:[1,1,1]"
            a(f"v_pk_fma_f32 {vr(x+2*i,2)}, {vr(x+2*i,2)}, {sr(sC,2)}, {vr(t,2)} {sel}")
        for i in range(16):
            a(f"v_exp_f32 v{x+i}, v{x+i}")
        p, q = TM + 2, TM + 4
        a(f"v_pk_add_f32 {vr(p,2)}, {vr(x,2)}, {vr(x+2,2)}\nv_pk_add_f32 {vr(q,2)}, {vr(x+8,2)}, {vr(x+10,2)}")
        a(f"v_pk_add_f32 {vr(p,2)}, {vr(p,2)}, {vr(x+4,2)}\nv_pk_add_f32 {vr(q,2)}, {vr(q,2)}, {vr(x+12,2)}")
        a(f"v_pk_add_f32 {vr(p,2)}, {vr(p,2)}, {vr(x+6,2)}\nv_pk_add_f32 {vr(q,2)}, {vr(q,2)}, {vr(x+14,2)}")
        a(f"v_add_f32 v{t}, v{p}, v{p+1}\nv_add_f32 v{u}, v{q}, v{q+1}")
        a(f"v_permlane32_swap_b32 v{t}, v{u}\nv_add_f32 v{t}, v{t}, v{u}\nv_rcp_f32 v{t}, v{t}")
        a(f"v_mov_b32 v{u}, v{t}\nv_permlane32_swap_b32 v{t}, v{u}")
        for i in range(8):
            sel = "op_sel:[0,0] op_sel_hi:[1,0]" if i < 4 else "op_sel:[0,1] op_sel_hi:[1,1]"
            a(f"v_pk_mul_f32 {vr(x+2*i,2)}, {vr(x+2*i,2)}, {vr(t,2)} {sel}")
        cvt(dst, x, 8)
    KVA = ACC
    softmax2(X[0], PK)
    mfma(TT, PK, IDP, "0")
    mfma(TT, PK + 4, IDP + 4, TT)
    softmax2(X[1], PK)
    cvt(PT, TT, 8)
    mfma(TT, PK, IDP, "0")
    mfma(TT, PK + 4, IDP + 4, TT)
    mfma(KVA, PT, VP, "0")
    mfma(KVA, PT + 4, VP + 4, KVA)
    softmax2(X[2], PHI)
    cvt(PT, TT, 8)
    mfma(KVA, PT, VP + 8, KVA)
    mfma(KVA, PT + 4, VP + 12, KVA)
    a(f"""
    v_lshrrev_b32 v{vT}, 5, v{vLANE}
    v_mul_u32_u24 v{vT}, {32*384}, v{vT}
    v_and_b32 v{vT1}, 31, v{vLANE}
    v_lshl_add_u32 v{vT}, v{vT1}, 4, v{vT}
    s_mul_i32 s{sT0}, s{sH}, {8*32*384}
    s_mul_i32 s{sT1}, s{sRB}, 384
    s_add_u32 s{sT0}, s{sT0}, s{sT1}
    s_add_u32 s{sT0}, s{sT0}, {WS_P}
    s_mov_b32 exec_lo, 0x1ffff
    s_mov_b32 exec_hi, 0x1ffff
    """)
    for r4 in range(4):
        a(f"buffer_store_dwordx4 {vr(KVA+4*r4,4)}, v{vT}, {sr(rWS,4)}, s{sT0} offen sc1")
        if r4 < 3: a(f"s_add_u32 s{sT0}, s{sT0}, {2*32*384}")
    a("s_mov_b64 exec, -1")
    softmax2(X[3], PHI + 8)
    a(f"""
    s_lshl_b32 s{sT0}, s{sJ}, 11
    s_add_u32 s{sT0}, s{sT0}, {L_X}
    v_add_u32 v{vT}, s{sT0}, v{vL16}
    ds_read_b128 {vr(Qf,4)}, v{vT}
    ds_read_b128 {vr(Qf+4,4)}, v{vT} offset:1024
    s_lshl_b32 s{sT0}, s{sJ}, 9
    s_add_u32 s{sT0}, s{sT0}, {L_XM}
    v_lshl_add_u32 v{vT}, v{vLANE}, 3, s{sT0}
    ds_read_b64 {vr(TM,2)}, v{vT}
    s_waitcnt vmcnt(4)
    """)
    poll(vPOLLA, vPOLL, 0xffffffff, first_issued=True)
    if cfg.coupled: a("s_waitcnt lgkmcnt(0)")
    else: await_cnt(4 * 16, 4)
    for i in range(16):
        a(f"v_mov_b32 v{NM+i}, v{TM}\nv_mov_b32 v{NM+16+i}, v{TM+1}")
    stamp(3)
    a("s_branch L_attA")

    a.label("L_roleB")
    vPX, vPW = 34, 35
    if cfg.pref:
        assert cfg.mapping == "N"
        nw, nx = (48, 32) if cfg.pref == "xcd" else (12, 16)
        a(f"""
        s_lshr_b32 s{sT0}, s2, 3
        s_lshl_b32 s{sT1}, s{sT0}, 2
        s_add_u32 s{sT1}, s{sT1}, s{sJ}
        s_mul_i32 s{sT2}, s{sT1}, {nw}
        s_bfe_u32 s{sT3}, s2, 0x20001
        """)
        if cfg.pref != "xcd":
            a(f"s_mul_i32 s{sT0}, s{sT3}, 1536\ns_add_u32 s{sT2}, s{sT2}, s{sT0}")
        a(f"""
        v_min_u32 v{vT}, {nw-1}, v{vLANE}
        v_add_u32 v{vT}, s{sT2}, v{vT}
        v_lshrrev_b32 v{vT1}, 2, v{vT}
        v_and_b32 v{vT}, 3, v{vT}
        v_lshlrev_b32 v{vT}, 7, v{vT}
        v_lshl_add_u32 v{vPW}, v{vT1}, 10, v{vT}
        s_and_b32 s{sT2}, s2, 1
        s_lshl_b32 s{sT0}, s{sT2}, 9
        v_add_u32 v{vPW}, s{sT0}, v{vPW}
        buffer_load_dword v246, v{vPW}, {sr(rWB,4)}, 0 offen {cfg.pref_sc}
        s_mul_i32 s{sT1}, s{sT1}, {nx*128}
        s_lshl_b32 s{sT3}, s{sT3}, 19
        s_add_u32 s{sT1}, s{sT1}, s{sT3}
        """)
        if cfg.pref != "xcd":
            a(f"s_lshl_b32 s{sT2}, s{sT2}, 18\ns_add_u32 s{sT1}, s{sT1}, s{sT2}")
        a(f"""
        v_min_u32 v{vT}, {nx-1}, v{vLANE}
        v_lshl_add_u32 v{vPX}, v{vT}, 7, s{sT1}
        buffer_load_dword v245, v{vPX}, {sr(rXB,4)}, 0 offen {cfg.pref_sc}
        """)
    srd(rXA, kAX, 2048 * 1024)
    srd(rWA, kAW, 512 * 3072)
    srd(rWS, kWS, WS_SIZE)
    srd(rOUT, kOUT, 2048 * 2048)
    srd(rDBG, kDBG, 256)
    if cfg.pref and cfg.prefA[0] < 0:
        a(f"buffer_load_dword v244, v{vPW}, {sr(rWA,4)}, 0 offen {cfg.pref_sc}")
        a(f"buffer_load_dword v243, v{vPX}, {sr(rXA,4)}, 0 offen {cfg.pref_sc}")
    compute_addrs("B")
    a(f"s_and_b32 s{sT0}, s{sJ}, 1\ns_lshl_b32 s{sT0}, s{sT0}, 12")
    for i in range(4):
        a(f"v_add_u32 v{vXA+i}, s{sT0}, v{vXA+i}\nv_xor_b32 v{vXB+i}, 0x1000, v{vXA+i}")
    a(f"s_cmp_lt_u32 s2, 8\ns_cselect_b32 s{sREDO}, s{sW}, 0")
    a(f"s_cmp_lg_u32 s{sREDO}, 1\ns_cbranch_scc1 L_noreset")
    a(f"v_mov_b32 v16, 0\nv_mov_b32 v17, 0\nv_mov_b32 v18, 0\nv_mov_b32 v19, 0")
    nres = -(-(FL_KV + 1024 * cfg.nrep - WS_FL) // 8192)
    a(f"s_mul_i32 s{sT1}, s2, {nres*1024}\ns_add_u32 s{sT1}, s{sT1}, {WS_FL}")
    for i in range(nres):
        a(f"buffer_store_dwordx4 v[16:19], v{vL16}, {sr(rWS,4)}, s{sT1} offen offset:{(i%4)*1024} sc1")
        if i % 4 == 3: a(f"s_add_u32 s{sT1}, s{sT1}, 4096")
    a.label("L_noreset")
    a(f"v_lshl_add_u32 v{vT}, v{vLANE}, 2, v{vCNT}\nv_mov_b32 v{vT1}, 0\nds_write_b32 v{vT}, v{vT1}")
    vKST, vVST = 28, 29
    a(f"""
    v_and_b32 v{vKST}, 0x33, v{vLANE}
    v_and_b32 v{vT}, 4, v{vLANE}
    v_lshl_or_b32 v{vKST}, v{vT}, 1, v{vKST}
    v_bfe_u32 v{vT}, v{vLANE}, 3, 1
    v_lshl_or_b32 v{vKST}, v{vT}, 2, v{vKST}
    v_lshlrev_b32 v{vKST}, 4, v{vKST}
    v_bfe_u32 v{vT}, v{vLANE}, 4, 1
    v_lshlrev_b32 v{vVST}, 17, v{vT}
    v_lshrrev_b32 v{vT}, 5, v{vLANE}
    v_lshl_add_u32 v{vVST}, v{vT}, 8, v{vVST}
    v_and_b32 v{vT}, 15, v{vLANE}
    v_lshl_add_u32 v{vVST}, v{vT}, 4, v{vVST}
    s_waitcnt lgkmcnt(0)
    """)
    def postB(c):
        if c == 5:
            l = lab("nogate")
            a(f"s_cmp_lg_u32 s{sREDO}, 1\ns_cbranch_scc1 {l}")
            a(f"s_lshl_b32 s{sT0}, s2, 2\nv_mov_b32 v{vT}, s{sT0}\ns_waitcnt vmcnt(0)")
            flag(vT, "1", srdr=rDBG)
            a.label(l)
        if c == 0: stamp(1)
        if cfg.pref and c == cfg.prefA[0]:
            a(f"buffer_load_dword v244, v{vPW}, {sr(rWA,4)}, 0 offen {cfg.pref_sc}")
        if cfg.pref and c == cfg.prefA[1]:
            a(f"buffer_load_dword v243, v{vPX}, {sr(rXA,4)}, 0 offen {cfg.pref_sc}")
    gemm("B", lambda c: None, postB)
    a("s_waitcnt vmcnt(0)")
    stamp(2)
    KOWN, VPK = 232, 240
    vG, vGA = 30, 31
    a(f"v_lshlrev_b32 v{vGA}, 2, v{vLANE}\ns_mov_b64 exec, 0xff\nbuffer_load_dword v{vG}, v{vGA}, {sr(rDBG,4)}, 0 offen sc1\ns_mov_b64 exec, -1")
    a(f"""
    s_and_b32 s{sT2}, s{sJ}, 1
    s_lshl_b32 s{sT0}, s{sRB}, 1
    s_add_u32 s{sT0}, s{sT0}, s{sT2}
    s_lshl_b32 s{sT0}, s{sT0}, 11
    s_lshl_b32 s{sT1}, s{sH}, 17
    s_add_u32 s{sT1}, s{sT1}, s{sT0}
    s_xor_b32 s{sT2}, s{sT1}, 0x800
    s_and_b32 s{sT3}, s{sH}, -2
    s_lshl_b32 s{sT3}, s{sT3}, 17
    s_add_u32 s{sT3}, s{sT3}, s{sT0}
    """)
    assert WS_KV == 0
    cvt(KOWN, ACC + 8, 4)
    a(f"buffer_store_dwordx4 {vr(KOWN,4)}, v{vKST}, {sr(rWS,4)}, s{sT1} offen sc1")
    cvt(KOWN + 4, ACC + 16 + 8, 4)
    a(f"buffer_store_dwordx4 {vr(KOWN+4,4)}, v{vKST}, {sr(rWS,4)}, s{sT2} offen sc1")
    cvt(VPK, ACC + 32, 4)
    a(f"buffer_store_dwordx4 {vr(VPK,4)}, v{vVST}, {sr(rWS,4)}, s{sT3} offen offset:1024 sc1")
    cvt(VPK + 4, ACC + 40, 4)
    a(f"buffer_store_dwordx4 {vr(VPK+4,4)}, v{vVST}, {sr(rWS,4)}, s{sT3} offen offset:1536 sc1")
    vq[:] = ["st"] * 4
    nxtB = [lastA + 1]
    def barB(c):
        if c > lastA: wait_for(c)
        a("s_barrier")
    def loadB(c):
        while nxtB[0] <= min(c + cfg.look, 15):
            issue(nxtB[0]); nxtB[0] += 1
    def flagKV():
        stamp(3)
        l = lab("noflag")
        a(f"s_cmp_lg_u32 s{sW}, 0\ns_cbranch_scc1 {l}")
        poll(vGA, vG, 0xff, srdr=rDBG, first_issued=True)
        a(f"""
        s_mul_i32 s{sT0}, s{sHG}, {128*cfg.nrep}
        s_lshl_b32 s{sT1}, s{sRB}, 2
        s_add_u32 s{sT0}, s{sT0}, s{sT1}
        s_add_u32 s{sT0}, s{sT0}, {FL_KV}
        v_lshl_add_u32 v{vT}, v{vLANE}, 7, s{sT0}
        """)
        flag(vT, str((1 << cfg.nrep) - 1))
        a.label(l)
    if cfg.coupled:
        barB(8)
        loadB(8)
    elif cfg.hold8: arrive(C_WO)
    qs = 0.25 * math.log2(math.e)
    a(f"s_mov_b32 s{sC}, {f2u(qs)}\ns_mov_b32 s{sC+1}, {f2u(qs)}")
    for qb in range(2):
        for i in range(4):
            a(f"v_pk_mul_f32 {vr(ACC+16*qb+2*i,2)}, {vr(ACC+16*qb+2*i,2)}, {sr(sC,2)}")
        cvt(Qf + 4 * qb, ACC + 16 * qb, 4)
    a(f"""
    s_lshl_b32 s{sT0}, s{sJ}, 11
    s_add_u32 s{sT0}, s{sT0}, {L_X}
    v_add_u32 v{vT}, s{sT0}, v{vL16}
    ds_write_b128 v{vT}, {vr(Qf,4)}
    ds_write_b128 v{vT}, {vr(Qf+4,4)} offset:1024
    """)
    if cfg.coupled:
        if cfg.flag_at == 9: wait_for("st")
        barB(9)
        if cfg.flag_at == 9: flagKV()
        loadB(9)
    for qb in range(2):
        mfma(72 + 32 * qb, KOWN, Qf + 4 * qb, "0")
        mfma(88 + 32 * qb, KOWN + 4, Qf + 4 * qb, "0")
    TMB = 32
    def maxtree(dst, base, n, init=None):
        i = 0
        if init is None:
            a(f"v_max3_f32 v{dst}, v{base}, v{base+1}, v{base+2}"); i = 3
        while i + 1 < n:
            a(f"v_max3_f32 v{dst}, v{dst}, v{base+i}, v{base+i+1}"); i += 2
        if i < n:
            a(f"v_max_f32 v{dst}, v{dst}, v{base+i}")
    maxtree(TMB, 72, 32)
    maxtree(TMB + 1, 104, 32)
    def crossmax(t):
        a(f"v_permlane32_swap_b32 v{t}, v{t+1}\nv_max_f32 v{t}, v{t}, v{t+1}")
    crossmax(TMB)
    a(f"v_sub_f32 v{TMB}, {f2u(-cfg.bias)}, v{TMB}\nv_mov_b32 v{TMB+1}, v{TMB}\nv_permlane32_swap_b32 v{TMB}, v{TMB+1}")
    a(f"""
    s_lshl_b32 s{sT0}, s{sJ}, 9
    s_add_u32 s{sT0}, s{sT0}, {L_XM}
    v_lshl_add_u32 v{vT}, v{vLANE}, 3, s{sT0}
    ds_write_b64 v{vT}, {vr(TMB,2)}
    """)
    if cfg.coupled:
        a("s_waitcnt lgkmcnt(0)")
        if cfg.flag_at == 10: wait_for("st")
        barB(10)
        if cfg.flag_at == 10: flagKV()
        loadB(10)
        for i in range(16):
            a(f"v_mov_b32 v{NM+i}, v{TMB}\nv_mov_b32 v{NM+16+i}, v{TMB+1}")
        for c in range(11, 15):
            barB(c)
            loadB(c)
        a(f"""
        s_mul_i32 s{sT0}, s{sHG}, {128*cfg.nrep}
        s_and_b32 s{sT1}, s{sRB}, {cfg.nrep-1}
        s_lshl_b32 s{sT1}, s{sT1}, 7
        s_add_u32 s{sT0}, s{sT0}, s{sT1}
        s_add_u32 s{sT0}, s{sT0}, {FL_KV}
        v_lshl_add_u32 v{vGA}, v{vLANE}, 2, s{sT0}
        s_mov_b32 exec_hi, 0
        buffer_load_dword v{vG}, v{vGA}, {sr(rWS,4)}, 0 offen sc1
        s_mov_b64 exec, -1
        """)
        a("s_waitcnt vmcnt(0)\ns_barrier")
        stamp(4)
        poll(vGA, vG, 0xffffffff, first_issued=True)
    else:
        for i in range(16):
            a(f"v_mov_b32 v{NM+i}, v{TMB}\nv_mov_b32 v{NM+16+i}, v{TMB+1}")
        a(f"""
        s_mul_i32 s{sT0}, s{sHG}, {128*cfg.nrep}
        s_lshl_b32 s{sT1}, s{sRB}, 2
        s_add_u32 s{sT1}, s{sT0}, s{sT1}
        s_add_u32 s{sT1}, s{sT1}, {FL_KV}
        v_lshl_add_u32 v{vT}, v{vLANE}, 7, s{sT1}
        s_and_b32 s{sT1}, s{sRB}, {cfg.nrep-1}
        s_lshl_b32 s{sT1}, s{sT1}, 7
        s_add_u32 s{sT0}, s{sT0}, s{sT1}
        s_add_u32 s{sT0}, s{sT0}, {FL_KV}
        s_waitcnt vmcnt(0) lgkmcnt(0)
        """)
        stamp(3)
        poll(vGA, vG, 0xff, srdr=rDBG, first_issued=True)
        l = lab("noflag")
        a(f"""
        s_mov_b64 exec, 1
        ds_add_rtn_u32 v{vT1}, v{vCNT}, v{vONE} offset:{C_KV}
        s_waitcnt lgkmcnt(0)
        v_cmp_eq_u32 vcc, 3, v{vT1}
        s_mov_b64 exec, -1
        s_cbranch_vccz {l}
        """)
        flag(vT, str((1 << cfg.nrep) - 1))
        if cfg.onepoll:
            a(f"v_lshl_add_u32 v{vGA}, v{vLANE}, 2, s{sT0}")
            poll(vGA, vG, 0xffffffff, sleep=cfg.psleep)
            arrive(C_GO)
            a.label(l)
            stamp(4)
            await_cnt(C_GO, 1)
        else:
            a.label(l)
            stamp(4)
            a(f"v_lshl_add_u32 v{vGA}, v{vLANE}, 2, s{sT0}")
            poll(vGA, vG, 0xffffffff, sleep=cfg.psleep)
    stamp(5)

    vOFFK = 8
    def smf(d, va, p):
        a(f"v_smfmac_f32_32x32x32_bf16 {vr(d,16)}, {vr(va,4)}, {vr(p,8)}, v{vIDX}")
    def att_setup(first, ntiles):
        a(f"""
        s_mov_b32 s{sREDO}, 0
        s_lshl_b32 s{sT0}, s{sH}, 17
        v_add_u32 v{vOFFK}, s{sT0}, v{vL16}
        v_lshrrev_b32 v{vT}, 5, v{vLANE}
        v_and_b32 v{vT1}, 15, v{vLANE}
        v_lshlrev_b32 v{vT1}, 4, v{vT1}
        v_lshl_add_u32 v{vOFFV}, v{vT}, 8, v{vT1}
        v_add_u32 v{vOFFV}, s{sT0}, v{vOFFV}
        v_mov_b32 v{vIDX}, 0xdddd
        s_mov_b32 s{sVM}, 0xffff
        s_mov_b32 s{sVM+1}, 0xffff
        s_mov_b32 s{sNIT}, {ntiles}
        """)
        if cfg.kvrot:
            a(f"s_and_b32 s{sKV0}, s{sRB}, 7\ns_lshl_b32 s{sKV0}, s{sKV0}, 14\ns_add_u32 s{sKV0}, s{sKV0}, {first*2048}\ns_and_b32 s{sKV0}, s{sKV0}, 0x1ffff")
        else:
            a(f"s_mov_b32 s{sKV0}, {first*2048}")
    class Stream:
        def __init__(self, depth, ntiles, init=()):
            self.d, self.n, self.q = depth, ntiles, list(init)
        def ring(self, t):
            b = RING + 12 * (t % self.d)
            return b, b + 4, b + 8
        def push(self, tag, n=1):
            self.q.extend([tag] * n)
        def wait(self, tag):
            idx = [i for i, t in enumerate(self.q) if t == tag]
            if idx:
                a(f"s_waitcnt vmcnt({len(self.q) - 1 - idx[-1]})")
                self.q = self.q[idx[-1] + 1:]
        def kvload(self, t, single=False):
            k, v0, v1 = self.ring(t)
            o = 0 if single else (t % 2) * 2048
            a(f"buffer_load_dwordx4 {vr(k,4)}, v{vOFFK}, {sr(rWS,4)}, s{sKV} offen offset:{o} sc1")
            a(f"s_mov_b64 exec, {sr(sVM,2)}")
            a(f"buffer_load_dwordx4 {vr(v0,4)}, v{vOFFV}, {sr(rWS,4)}, s{sKV} offen offset:{o+1024} sc1")
            a(f"buffer_load_dwordx4 {vr(v1,4)}, v{vOFFV}, {sr(rWS,4)}, s{sKV} offen offset:{o+1536} sc1")
            a(f"s_mov_b64 exec, -1")
            if single or t % 2 == 1:
                a(f"s_add_u32 s{sKV}, s{sKV}, {2048 if single else 4096}\ns_and_b32 s{sKV}, s{sKV}, 0x1ffff")
            self.push(("kv", t), 3)
        def prologue(self, single=False, bar=False):
            a(f"s_mov_b32 s{sKV}, s{sKV0}")
            a(f"v_and_b32 v{vT}, 27, v{vLANE}\nv_cmp_eq_u32 vcc, 16, v{vT}\nv_mov_b32 v{vT}, 0x3f803f80\nv_cndmask_b32 v{vT}, 0, v{vT}, vcc")
            for t in range(self.d):
                for i in range(4, 12):
                    a(f"v_mov_b32 v{RING+12*t+i}, v{vT}")
                if t < self.d - 1: self.kvload(t, single)
            for i in range(32):
                a(f"v_mov_b32 v{O+i}, 0")
            for i in range(8):
                a(f"v_mov_b32 v{S+16+8+i}, 0")
            if bar: a("s_barrier")
            self.wait(("kv", 0))
            mfma(S, self.ring(0)[0], Qf, NM)
        def tile(self, t, looped=False, extra=None):
            k, v0, v1 = self.ring(t)
            for qb in range(2):
                cur, oth = S + 16 * qb, S + 16 * (1 - qb)
                def ex(i): a(f"v_exp_f32 v{cur+i}, v{cur+i}")
                ex(0); ex(1)
                if qb == 0:
                    if looped or t > 0: smf(O + 16, self.ring(t - 1)[2], oth + 8)
                    ex(2)
                    if looped or t + self.d - 1 < self.n: self.kvload(t + self.d - 1, looped)
                    ex(3); ex(4)
                    mfma(oth, k, Qf + 4, NM + 16)
                else:
                    smf(O, v1, oth + 8)
                    ex(2); ex(3)
                    if looped: a(f"s_waitcnt vmcnt({3 * (self.d - 2)})")
                    elif t + 1 < self.n: self.wait(("kv", t + 1))
                    ex(4)
                    if looped or t + 1 < self.n: mfma(oth, self.ring(t + 1)[0], Qf, NM)
                for i in range(5, 10): ex(i)
                smf(O + 16 * qb, v0, cur)
                ex(10)
                if extra and qb == 1: extra()
                for i in range(11, 16): ex(i)
        def run(self, jobs, prio):
            pr = dict(prio) if cfg.prio else {}
            for t in range(self.n):
                if t in pr: a(f"s_setprio {pr[t]}")
                self.tile(t, extra=(lambda: [f() for f in jobs.get(t, [])]))
            smf(O + 16, self.ring(self.n - 1)[2], S + 16 + 8)

    att_setup(0, cfg.nB)
    sb = Stream(cfg.depB, cfg.nB)
    sb.prologue(bar=cfg.coupled)
    vJ0, vJ1, vJ2 = 9, 10, 11
    def stB(): stamp(6)
    def stB2(): stamp(14)
    sb.run({7: [stB], 11: [stB2]}, cfg.prioB)
    a("s_branch L_tail")

    a.label("L_attA")
    nA = 64 - cfg.nB
    att_setup(cfg.nB, nA)
    sa = Stream(cfg.depA, nA, init=["pst"] * 4)
    a(f"""
    v_lshrrev_b32 v{vT}, 3, v{vLANE}
    v_bfe_u32 v{vT1}, v{vLANE}, 4, 1
    v_lshlrev_b32 v{vT1}, 2, v{vT1}
    v_and_b32 v{vT2}, 7, v{vLANE}
    v_xor_b32 v{vT1}, v{vT1}, v{vT2}
    v_lshlrev_b32 v{vT1}, 4, v{vT1}
    v_lshl_add_u32 v{vWOA}, v{vT}, 10, v{vT1}
    s_lshl_b32 s{sT0}, s{sHG}, 7
    s_lshl_b32 s{sT1}, s{sJ}, 17
    s_add_u32 s{sT0}, s{sT0}, s{sT1}
    v_add_u32 v{vWOA}, s{sT0}, v{vWOA}
    s_and_b32 s{sWO}, s{sRB}, 7
    s_lshl_b32 s{sWO}, s{sWO}, 1
    s_lshl_b32 s{sWOM}, s{sJ}, 14
    """)
    srd(rMISC, kAO, 512 * 1024)
    srd(rXB, kBO, 512 * 1024)
    sa.prologue()
    JD = RING + 12 * cfg.depA
    KT = JD + 32
    assert KT + 8 <= 248
    RD = JD
    assert RD + 16 <= 248
    def red0():
        a(f"""
        s_lshr_b32 s{sT0}, s{sRB}, 3
        s_lshl_b32 s{sT1}, s{sHG}, 2
        s_add_u32 s{sJB}, s{sT0}, s{sT1}
        s_lshl_b32 s{sT1}, s{sJB}, 7
        s_lshl_b32 s{sT0}, s{sJ}, 5
        s_add_u32 s{sT1}, s{sT1}, s{sT0}
        s_add_u32 s{sT1}, s{sT1}, {FL_P}
        v_lshl_add_u32 v{vJ0}, v{vLANE}, 2, s{sT1}
        s_mov_b64 exec, 0xff
        buffer_load_dword v{vJ1}, v{vJ0}, {sr(rWS,4)}, 0 offen sc1
        s_mov_b64 exec, -1
        """)
        sa.push("fp")
    def red1():
        sa.wait("fp")
        poll(vJ0, vJ1, 0xff, first_issued=True)
        a(f"""
        s_lshl_b32 s{sJB}, s{sJB}, 3
        s_and_b32 s{sT1}, s{sRB}, 7
        s_add_u32 s{sJB}, s{sJB}, s{sT1}
        s_mul_i32 s{sT1}, s{sJB}, {32*384}
        s_mul_i32 s{sT0}, s{sJ}, {8*384}
        s_add_u32 s{sT1}, s{sT1}, s{sT0}
        s_add_u32 s{sT1}, s{sT1}, {WS_P}
        v_lshrrev_b32 v{vJ1}, 5, v{vLANE}
        v_mul_u32_u24 v{vJ0}, 384, v{vJ1}
        v_and_b32 v{vJ2}, 31, v{vLANE}
        v_lshl_add_u32 v{vJ0}, v{vJ2}, 4, v{vJ0}
        v_lshlrev_b32 v{vJ1}, 2, v{vJ1}
        v_lshl_add_u32 v{vJ1}, v{vJ2}, 3, v{vJ1}
        s_mov_b32 exec_lo, 0x1ffff
        s_mov_b32 exec_hi, 0x1ffff
        """)
        for i in range(4):
            a(f"buffer_load_dwordx4 {vr(RD+4*i,4)}, v{vJ0}, {sr(rWS,4)}, s{sT1} offen offset:{i*768} sc1")
        a("s_mov_b64 exec, -1")
        sa.push("part", 4)
    def red2():
        sa.wait("part")
        a(f"v_pk_add_f32 {vr(RD,2)}, {vr(RD,2)}, {vr(RD+4,2)}\nv_pk_add_f32 {vr(RD+2,2)}, {vr(RD+2,2)}, {vr(RD+6,2)}")
        a(f"v_pk_add_f32 {vr(RD+8,2)}, {vr(RD+8,2)}, {vr(RD+12,2)}\nv_pk_add_f32 {vr(RD+10,2)}, {vr(RD+10,2)}, {vr(RD+14,2)}")
        a(f"v_pk_add_f32 {vr(RD,2)}, {vr(RD,2)}, {vr(RD+8,2)}\nv_pk_add_f32 {vr(RD+2,2)}, {vr(RD+2,2)}, {vr(RD+10,2)}")
        l = lab("notlast")
        a(f"""
        s_mul_i32 s{sT0}, s{sJ}, 800
        s_add_u32 s{sT0}, s{sT0}, {L_XR}
        v_add_u32 v{vJ0}, s{sT0}, v{vL16}
        s_mov_b32 exec_lo, 0x1ffff
        s_mov_b32 exec_hi, 0x1ffff
        ds_write_b128 v{vJ0}, {vr(RD,4)}
        s_mov_b32 s{sJL}, 0
        s_waitcnt lgkmcnt(0)
        s_mov_b64 exec, 1
        ds_add_rtn_u32 v{vJ2}, v{vCNT}, v{vONE} offset:{C_RD}
        s_waitcnt lgkmcnt(0)
        v_cmp_eq_u32 vcc, 3, v{vJ2}
        s_mov_b64 exec, -1
        s_cbranch_vccz {l}
        s_mov_b32 s{sJL}, 1
        v_add_u32 v{vJ0}, {L_XR}, v{vL16}
        """)
        for i in range(4):
            a(f"ds_read_b128 {vr(RD+4*i,4)}, v{vJ0} offset:{i*800}")
        a("s_waitcnt lgkmcnt(0)")
        a(f"v_pk_add_f32 {vr(RD,2)}, {vr(RD,2)}, {vr(RD+4,2)}\nv_pk_add_f32 {vr(RD+2,2)}, {vr(RD+2,2)}, {vr(RD+6,2)}")
        a(f"v_pk_add_f32 {vr(RD+8,2)}, {vr(RD+8,2)}, {vr(RD+12,2)}\nv_pk_add_f32 {vr(RD+10,2)}, {vr(RD+10,2)}, {vr(RD+14,2)}")
        a(f"v_pk_add_f32 {vr(RD,2)}, {vr(RD,2)}, {vr(RD+8,2)}\nv_pk_add_f32 {vr(RD+2,2)}, {vr(RD+2,2)}, {vr(RD+10,2)}")
        a(f"""
        v_permlane32_swap_b32 v{RD}, v{RD+2}
        v_permlane32_swap_b32 v{RD+1}, v{RD+3}
        v_pk_add_f32 {vr(RD,2)}, {vr(RD,2)}, {vr(RD+2,2)}
        v_cvt_pk_bf16_f32 v{RD}, v{RD}, v{RD+1}
        s_lshl_b32 s{sT1}, s{sJB}, 8
        s_add_u32 s{sT1}, s{sT1}, {WS_F}
        s_mov_b32 exec_lo, 0x1ffff
        s_mov_b32 exec_hi, 0x1ffff
        buffer_store_dword v{RD}, v{vJ1}, {sr(rWS,4)}, s{sT1} offen sc1
        s_mov_b64 exec, -1
        """)
        a.label(l)
        sa.mark = len(sa.q)
        sa.push("after", 0)
        sa.stored_at = list(sa.q)
    def red3():
        n_new = sum(1 for t in sa.q if t not in sa.stored_at)
        l = lab("noffl")
        a(f"s_cmp_lg_u32 s{sJL}, 1\ns_cbranch_scc1 {l}")
        a(f"""
        s_lshr_b32 s{sT1}, s{sJB}, 3
        s_lshl_b32 s{sT1}, s{sT1}, 7
        s_and_b32 s{sT0}, s{sJB}, 7
        s_lshl_b32 s{sT0}, s{sT0}, 2
        s_add_u32 s{sT0}, s{sT0}, s{sT1}
        s_add_u32 s{sT0}, s{sT0}, {FL_F}
        v_mov_b32 v{vJ0}, s{sT0}
        s_waitcnt vmcnt({n_new})
        """)
        flag(vJ0, "1")
        a.label(l)
    def wopiece():
        a(f"""
        s_lshl_b32 s{sT0}, s{sWO}, 10
        s_add_u32 m0, s{sT0}, s{sWOM}
        s_lshl_b32 s{sT1}, s{sWO}, 13
        s_add_u32 s{sT0}, s{sT0}, {L_WB}
        buffer_load_dwordx4 v{vWOA}, {sr(rMISC,4)}, s{sT1} offen lds
        s_add_u32 m0, s{sT0}, s{sWOM}
        s_add_u32 s{sWO}, s{sWO}, 1
        s_and_b32 s{sWO}, s{sWO}, 15
        buffer_load_dwordx4 v{vWOA}, {sr(rXB,4)}, s{sT1} offen lds
        """)
        sa.push("wo", 2)
    def job0():
        sa.wait("pst")
        a(f"s_lshl_b32 s{sT0}, s{sH}, 7\ns_lshl_b32 s{sT1}, s{sRB}, 2\ns_add_u32 s{sT0}, s{sT0}, s{sT1}\ns_add_u32 s{sT0}, s{sT0}, {FL_P}\nv_mov_b32 v{vJ0}, s{sT0}")
        flag(vJ0, "1"); sa.push("fl")
    def job1():
        a(f"s_lshl_b32 s{sT0}, s{sH}, 7\ns_add_u32 s{sT0}, s{sT0}, {FL_F}\nv_lshl_add_u32 v{vJ0}, v{vLANE}, 2, s{sT0}")
        a(f"s_mov_b64 exec, 0xff\nbuffer_load_dword v{vJ1}, v{vJ0}, {sr(rWS,4)}, 0 offen sc1\ns_mov_b64 exec, -1")
        sa.push("ff")
        stamp(6)
    def job2():
        sa.wait("ff")
        poll(vJ0, vJ1, 0xff, first_issued=True)
        a(f"""
        v_and_b32 v{vJ0}, 31, v{vLANE}
        v_min_u32 v{vJ0}, 16, v{vJ0}
        v_lshlrev_b32 v{vJ0}, 3, v{vJ0}
        v_lshrrev_b32 v{vJ1}, 5, v{vLANE}
        v_lshl_add_u32 v{vJ0}, v{vJ1}, 8, v{vJ0}
        s_lshl_b32 s{sT0}, s{sH}, 11
        s_add_u32 s{sT0}, s{sT0}, {WS_F}
        """)
        for r4 in range(4):
            a(f"buffer_load_dwordx2 {vr(KT+2*r4,2)}, v{vJ0}, {sr(rWS,4)}, s{sT0} offen offset:{r4*512} sc1")
        sa.push("kt", 4)
        stamp(14)
    def job3a():
        sa.wait("kt")
        for ri in range(2):
            mfma(JD + 16 * ri, KT, PHI + 8 * ri, "0")
        for ri in range(2):
            mfma(JD + 16 * ri, KT + 4, PHI + 8 * ri + 4, JD + 16 * ri)
    def job3b():
        a(f"s_lshl_b32 s{sT0}, s{sRB}, 6\ns_add_u32 s{sT0}, s{sT0}, s{sH}\ns_lshl_b32 s{sT0}, s{sT0}, 10\ns_add_u32 s{sT0}, s{sT0}, {WS_OA}\ns_add_u32 s{sT1}, s{sT0}, 32768")
        for ri in range(2):
            d = JD + 16 * ri
            a(f"v_add_f32 v{d+8}, {f2u(1e-6)}, v{d+8}\nv_rcp_f32 v{d+8}, v{d+8}")
        for ri in range(2):
            d = JD + 16 * ri
            for i in range(4):
                a(f"v_pk_mul_f32 {vr(d+2*i,2)}, {vr(d+2*i,2)}, {vr(d+8,2)} op_sel:[0,0] op_sel_hi:[1,0]")
            cvt(d + 12, d, 4)
            a(f"buffer_store_dwordx4 {vr(d+12,4)}, v{vL16}, {sr(rWS,4)}, s{sT0+ri} offen sc1")
        sa.push("oa", 2)
    def job4():
        sa.wait("oa")
        a(f"s_lshl_b32 s{sT0}, s{sRB}, 7\ns_lshl_b32 s{sT1}, s{sH}, 2\ns_add_u32 s{sT0}, s{sT0}, s{sT1}\ns_add_u32 s{sT0}, s{sT0}, {FL_OA}\nv_mov_b32 v{vJ0}, s{sT0}")
        flag(vJ0, "1"); sa.push("fl")
    jobs = {}
    t0, t1, t2, t3, t4 = cfg.jobT
    for t, f in ((t0, job0), (t1, job1), (t2, job2), (t3, job3a), (t3 + 1, job3b), (t4, job4)): jobs.setdefault(t, []).append(f)
    for t, f in zip(cfg.redT, (red0, red1, red2, red3)): jobs.setdefault(t, []).append(f)
    for t in range(16): jobs.setdefault(t + cfg.woT, []).append(wopiece)
    assert max(jobs) < nA
    sa.run(jobs, cfg.prioA)
    sa.wait("wo")
    a.label("L_tail")
    stamp(7)

    CK = SCR
    vCW, vCR = 6, 7
    a(f"""
    s_mul_i32 s{sT0}, s{sW}, 2304
    s_add_u32 s{sT0}, s{sT0}, {L_XC}
    v_add_u32 v{vCW}, s{sT0}, v{vL16}
    v_lshl_add_u32 v{vT}, v{vLANE}, 2, s{sT0}
    s_xor_b32 s{sT1}, s{sW}, 4
    s_mul_i32 s{sT1}, s{sT1}, 2304
    s_add_u32 s{sT1}, s{sT1}, {L_XC}
    v_add_u32 v{vCR}, s{sT1}, v{vL16}
    v_lshl_add_u32 v{vT1}, v{vLANE}, 2, s{sT1}
    """)
    vFA, vFAA = 5, 9
    a(f"""
    s_lshl_b32 s{sT0}, s{sRB}, 7
    s_lshl_b32 s{sT1}, s{sW}, 4
    s_add_u32 s{sT0}, s{sT0}, s{sT1}
    s_add_u32 s{sT0}, s{sT0}, {FL_OA}
    v_lshl_add_u32 v{vFAA}, v{vLANE}, 2, s{sT0}
    s_mov_b64 exec, 15
    buffer_load_dword v{vFA}, v{vFAA}, {sr(rWS,4)}, 0 offen sc1
    s_mov_b64 exec, -1
    s_cmp_ge_u32 s{sW}, 4
    s_cbranch_scc1 L_sendA
    """)
    def check():
        a(f"v_mul_f32 v{CK}, 4.0, v{O+8}\nv_mul_f32 v{CK+1}, 4.0, v{O+24}")
        a(f"v_pk_mul_f32 {vr(CK,2)}, {vr(CK,2)}, 0 op_sel_hi:[1,0]")
        for i in range(8):
            r = O + 2 * i + (8 if i >= 4 else 0)
            a(f"v_pk_mul_f32 {vr(CK+2,2)}, {vr(r,2)}, 4.0 op_sel_hi:[1,0]")
            a(f"v_pk_fma_f32 {vr(CK,2)}, {vr(CK+2,2)}, 0, {vr(CK,2)} op_sel_hi:[1,0,1]")
        a(f"v_cmp_u_f32 vcc, v{CK}, v{CK+1}")
    a(f"""
    ds_write_b128 v{vCW}, {vr(O+16,4)}
    ds_write_b128 v{vCW}, {vr(O+20,4)} offset:1024
    ds_write_b32 v{vT}, v{O+24} offset:2048
    """)
    check()
    a("s_branch L_sent")
    a.label("L_sendA")
    a(f"""
    ds_write_b128 v{vCW}, {vr(O,4)}
    ds_write_b128 v{vCW}, {vr(O+4,4)} offset:1024
    ds_write_b32 v{vT}, v{O+8} offset:2048
    """)
    check()
    for i in range(0, 10, 2):
        a(f"v_pk_mov_b32 {vr(O+i,2)}, {vr(O+16+i,2)}, {vr(O+16+i,2)} op_sel:[0,1]")
    a.label("L_sent")
    l = lab("good")
    if cfg.force_redo:
        a(f"s_mov_b64 vcc, -1")
    a(f"s_cbranch_vccz {l}\nds_write_b32 v{vCNT}, v{vONE}")
    a.label(l)
    a(f"""
    s_lshr_b32 s{sT0}, s{sW}, 2
    s_xor_b32 s{sT0}, s{sT0}, s{sJ}
    s_and_b32 s{sT0}, s{sT0}, 1
    s_lshl_b32 s{sT1}, s{sRB}, 1
    s_add_u32 s{sT0}, s{sT0}, s{sT1}
    s_lshl_b32 s{sT0}, s{sT0}, 5
    s_add_u32 s{sT0}, s{sT0}, s{sH}
    s_lshl_b32 s{sT0}, s{sT0}, 10
    s_add_u32 s{sT0}, s{sT0}, {WS_OB}
    s_waitcnt lgkmcnt(0)
    s_barrier
    ds_read_b32 v{O+24}, v{vT1} offset:2048
    ds_read_b32 v{CK}, v{vCNT}
    ds_read_b128 {vr(O+16,4)}, v{vCR}
    ds_read_b128 {vr(O+20,4)}, v{vCR} offset:1024
    """)
    WFA, WFB = 104, 168
    vWR = 10
    a(f"""
    v_bfe_u32 v{vT1}, v{vLANE}, 2, 2
    v_lshrrev_b32 v{vT2}, 5, v{vLANE}
    v_lshl_add_u32 v{vT1}, v{vT2}, 2, v{vT1}
    v_lshlrev_b32 v{vWR}, 7, v{vT1}
    s_bfe_u32 s{sT1}, s{sW}, 0x10001
    v_bfe_u32 v{vT1}, v{vLANE}, 3, 1
    v_xor_b32 v{vT1}, s{sT1}, v{vT1}
    v_lshl_add_u32 v{vWR}, v{vT1}, 6, v{vWR}
    v_and_b32 v{vT1}, 1, v{vLANE}
    v_lshl_add_u32 v{vWR}, v{vT1}, 5, v{vWR}
    v_bfe_u32 v{vT1}, v{vLANE}, 4, 1
    v_lshl_add_u32 v{vWR}, v{vT1}, 4, v{vWR}
    v_bfe_u32 v{vT1}, v{vLANE}, 1, 1
    v_lshl_add_u32 v{vWR}, v{vT1}, 3, v{vWR}
    s_lshr_b32 s{sT1}, s{sW}, 2
    s_lshl_b32 s{sT1}, s{sT1}, 15
    v_add_u32 v{vWR}, s{sT1}, v{vWR}
    v_add_u32 v{vWR+1}, {L_WB}, v{vWR}
    s_waitcnt lgkmcnt(2)
    v_add_f32 v{O+8}, v{O+8}, v{O+24}
    v_readfirstlane_b32 s{sT1}, v{CK}
    v_rcp_f32 v{O+10}, v{O+8}
    s_andn2_b32 s{sT1}, s{sT1}, s{sREDO}
    s_cmp_lg_u32 s{sT1}, 0
    s_waitcnt lgkmcnt(0)
    s_cbranch_scc1 L_slow
    """)
    for i in range(4):
        a(f"v_pk_add_f32 {vr(O+2*i,2)}, {vr(O+2*i,2)}, {vr(O+16+2*i,2)}")
    for i in range(4):
        a(f"v_pk_mul_f32 {vr(O+2*i,2)}, {vr(O+2*i,2)}, {vr(O+10,2)} op_sel:[0,0] op_sel_hi:[1,0]")
    cvt(O + 12, O, 4)
    a(f"buffer_store_dwordx4 {vr(O+12,4)}, v{vL16}, {sr(rWS,4)}, s{sT0} offen sc1")
    a("s_waitcnt vmcnt(1)")
    def wofrags(br, wf):
        for hh in range(16):
            a(f"ds_read_b64_tr_b16 {vr(wf+4*hh,2)}, v{vWR+br} offset:{hh*2048}")
            a(f"ds_read_b64_tr_b16 {vr(wf+4*hh+2,2)}, v{vWR+br} offset:{hh*2048+1024}")
    wofrags(0, WFA)
    poll(vFAA, vFA, 15, first_issued=True)
    a("s_waitcnt lgkmcnt(0)\ns_barrier")
    stamp(8)
    def stage_o(ws_base, lds_base):
        a(f"s_lshl_b32 s{sT0}, s{sRB}, 16\ns_lshl_b32 s{sT1}, s{sW}, 12\ns_add_u32 s{sT0}, s{sT0}, s{sT1}\ns_add_u32 s{sT0}, s{sT0}, {ws_base}")
        a(f"s_add_u32 m0, s{sT1}, {lds_base}")
        for ri in range(2):
            if ri: a(f"s_add_u32 s{sT0}, s{sT0}, 32768\ns_add_u32 m0, s{sT1}, {lds_base+32768}")
            for i in range(4):
                a(f"buffer_load_dwordx4 v{vL16}, {sr(rWS,4)}, s{sT0} offen offset:{i*1024} sc1 lds")
    if cfg.oa_first: stage_o(WS_OA, L_WA)
    wofrags(1, WFB)
    a(f"s_lshl_b32 s{sT0}, s{sRB}, 10\ns_lshl_b32 s{sT1}, s{sHG}, 2\ns_add_u32 s{sT0}, s{sT0}, s{sT1}\ns_add_u32 s{sT0}, s{sT0}, {FL_OB}")
    a(f"v_lshl_add_u32 v{vT}, v{vLANE}, 7, s{sT0}")
    a(f"s_waitcnt vmcnt({8 if cfg.oa_first else 0}) lgkmcnt(0)\ns_barrier")
    l = lab("noflagob")
    a(f"s_cmp_lg_u32 s{sW}, 0\ns_cbranch_scc1 {l}")
    flag(vT, "0xff")
    a.label(l)
    stamp(9)
    if not cfg.oa_first: stage_o(WS_OA, L_WA)
    a(f"""
    s_lshl_b32 s{sT0}, s{sRB}, 3
    s_add_u32 s{sT0}, s{sT0}, s{sHG}
    s_lshl_b32 s{sT0}, s{sT0}, 7
    s_lshl_b32 s{sT1}, s{sW}, 2
    s_add_u32 s{sT0}, s{sT0}, s{sT1}
    s_add_u32 s{sT0}, s{sT0}, {FL_OB}
    v_mov_b32 v{vFAA}, s{sT0}
    """)
    vOR, vXW, vXR, vOST = 10, 12, 13, 6
    a(f"""
    s_and_b32 s{sT0}, s{sW}, 1
    s_lshl_b32 s{sT0}, s{sT0}, 15
    s_lshr_b32 s{sT1}, s{sW}, 2
    s_lshl_b32 s{sT1}, s{sT1}, 14
    s_add_u32 s{sT0}, s{sT0}, s{sT1}
    v_add_u32 v{vOR}, s{sT0}, v{vL16}
    v_add_u32 v{vOR+1}, {L_WB}, v{vOR}
    s_lshl_b32 s{sT0}, s{sW}, 11
    s_add_u32 s{sT0}, s{sT0}, {L_X}
    v_add_u32 v{vXW}, s{sT0}, v{vL16}
    v_xor_b32 v{vXR}, 0x2000, v{vXW}
    v_and_b32 v{vT}, 31, v{vLANE}
    s_lshl_b32 s{sT0}, s{sRB}, 1
    s_and_b32 s{sT1}, s{sW}, 1
    s_add_u32 s{sT0}, s{sT0}, s{sT1}
    s_lshl_b32 s{sT0}, s{sT0}, 5
    v_add_u32 v{vT}, s{sT0}, v{vT}
    v_lshlrev_b32 v{vOST}, 11, v{vT}
    v_lshrrev_b32 v{vT}, 5, v{vLANE}
    v_lshl_add_u32 v{vOST}, v{vT}, 5, v{vOST}
    s_lshl_b32 s{sT0}, s{sHG}, 7
    s_bfe_u32 s{sT1}, s{sW}, 0x10001
    s_lshl_b32 s{sT1}, s{sT1}, 6
    s_add_u32 s{sT0}, s{sT0}, s{sT1}
    s_lshr_b32 s{sT1}, s{sW}, 2
    s_lshl_b32 s{sT1}, s{sT1}, 4
    s_add_u32 s{sT0}, s{sT0}, s{sT1}
    v_add_u32 v{vOST}, s{sT0}, v{vOST}
    """)
    poll(vFAA, vFA, 1)
    a("s_waitcnt vmcnt(0)")
    stamp(10)
    stage_o(WS_OB, L_WB)
    a("s_barrier")
    OF, PA = 24, 56
    def proj(br, wf):
        for i in range(8):
            a(f"ds_read_b128 {vr(OF+4*i,4)}, v{vOR+br} offset:{i*1024}")
        for hh in range(16):
            a(f"s_waitcnt lgkmcnt({min(7, 15-hh)})")
            mfma(PA, wf + 4 * hh, OF + 4 * (hh % 8), "0" if hh == 0 else PA)
            if hh < 8:
                a(f"ds_read_b128 {vr(OF+4*hh,4)}, v{vOR+br} offset:{(hh+8)*1024}")
        l1, l2 = lab("k1"), lab("k2")
        xo = br * 16384
        a(f"s_cmp_ge_u32 s{sW}, 4\ns_cbranch_scc1 {l1}")
        a(f"ds_write_b128 v{vXW}, {vr(PA+8,4)} offset:{xo}\nds_write_b128 v{vXW}, {vr(PA+12,4)} offset:{xo+1024}\ns_branch {l2}")
        a.label(l1)
        a(f"ds_write_b128 v{vXW}, {vr(PA,4)} offset:{xo}\nds_write_b128 v{vXW}, {vr(PA+4,4)} offset:{xo+1024}")
        for i in range(0, 8, 2):
            a(f"v_pk_mov_b32 {vr(PA+i,2)}, {vr(PA+8+i,2)}, {vr(PA+8+i,2)} op_sel:[0,1]")
        a.label(l2)
    def proj_fin(br):
        xo = br * 16384
        a(f"ds_read_b128 {vr(PA+8,4)}, v{vXR} offset:{xo}\nds_read_b128 {vr(PA+12,4)}, v{vXR} offset:{xo+1024}\ns_waitcnt lgkmcnt(0)")
        for i in range(4):
            a(f"v_pk_add_f32 {vr(PA+2*i,2)}, {vr(PA+2*i,2)}, {vr(PA+8+2*i,2)}")
        cvt(72 + 4 * br, PA, 4)
        a(f"buffer_store_dwordx4 {vr(72+4*br,4)}, v{vOST}, {sr(rOUT,4)}, 0 offen offset:{br*1024} {cfg.out_sc}")
    proj(0, WFA)
    stamp(11)
    a("s_waitcnt vmcnt(0) lgkmcnt(0)\ns_barrier")
    stamp(12)
    proj_fin(0)
    proj(1, WFB)
    a("s_waitcnt lgkmcnt(0)\ns_barrier")
    stamp(13)
    proj_fin(1)
    if cfg.diag:
        da, db, base = cfg.diag
        ra = sPROF if da == 0 else 84
        if db == 0:
            a(f"s_mov_b32 s{sT2}, 0")
        elif db == 15:
            a(f"s_waitcnt vmcnt(0)\ns_memrealtime s[{sT0}:{sT1}]\ns_waitcnt lgkmcnt(0)\ns_sub_u32 s{sT2}, s{sT0}, s{ra}")
        elif db == 16:
            a(f"s_waitcnt vmcnt(0)\ns_memtime s[{sT0}:{sT1}]\ns_waitcnt lgkmcnt(0)\ns_sub_u32 s{sT2}, s{sT0}, s100\ns_lshr_b32 s{sT2}, s{sT2}, 4")
        else:
            a(f"s_sub_u32 s{sT2}, s86, s{ra}")
        a(f"s_add_u32 s{sT2}, s{sT2}, {base}\ns_min_u32 s{sT2}, s{sT2}, 30000")
        a(f"s_cmp_lg_u32 s{sW}, 0\ns_cbranch_scc1 L_end")
        a.label("L_diag")
        a(f"s_memrealtime s[{sT0}:{sT1}]\ns_waitcnt lgkmcnt(0)\ns_sub_u32 s{sT0}, s{sT0}, s{sPROF}\ns_cmp_lt_u32 s{sT0}, s{sT2}\ns_cbranch_scc1 L_diag")
    if cfg.prof:
        a("s_waitcnt vmcnt(0)")
        stamp(15)
        a(f"s_getreg_b32 s{sT2}, hwreg(HW_REG_XCC_ID)\nv_writelane_b32 v255, s{sT2}, 32")
        a(f"s_lshl_b32 s{sT0}, s2, 3\ns_add_u32 s{sT0}, s{sT0}, s{sW}\ns_lshl_b32 s{sT0}, s{sT0}, 8\ns_add_u32 s{sT0}, s{sT0}, {WS_PROF}")
        a(f"v_lshlrev_b32 v{vT}, 2, v{vLANE}")
        a(f"buffer_store_dword v255, v{vT}, {sr(rWS,4)}, s{sT0} offen")
    a("s_endpgm")

    a.label("L_slow")
    a(f"s_mov_b32 s{sREDO}, 1\ns_mov_b32 s{sKV}, s{sKV0}\ns_mov_b32 s{sCNT}, s{sNIT}")
    a(f"v_mov_b32 v{SCR}, 0xff800000\nv_mov_b32 v{SCR+1}, 0xff800000")
    a.label("L_slow_loop")
    a(f"buffer_load_dwordx4 {vr(RING,4)}, v{vOFFK}, {sr(rWS,4)}, s{sKV} offen sc1\ns_add_u32 s{sKV}, s{sKV}, 2048\ns_and_b32 s{sKV}, s{sKV}, 0x1ffff\ns_waitcnt vmcnt(0)")
    mfma(S, RING, Qf, "0")
    mfma(S + 16, RING, Qf + 4, "0")
    maxtree(SCR, S, 16, init=True)
    maxtree(SCR + 1, S + 16, 16, init=True)
    a(f"s_sub_u32 s{sCNT}, s{sCNT}, 1\ns_cmp_lg_u32 s{sCNT}, 0\ns_cbranch_scc1 L_slow_loop")
    crossmax(SCR)
    a(f"""
    s_lshl_b32 s{sT0}, s{sW}, 8
    s_add_u32 s{sT0}, s{sT0}, {L_X + 28672}
    v_lshl_add_u32 v{vT}, v{vLANE}, 2, s{sT0}
    ds_write_b32 v{vT}, v{SCR}
    v_xor_b32 v{vT}, 0x400, v{vT}
    s_waitcnt lgkmcnt(0)
    s_barrier
    ds_read_b32 v{SCR+1}, v{vT}
    s_waitcnt lgkmcnt(0)
    v_max_f32 v{SCR}, v{SCR}, v{SCR+1}
    v_sub_f32 v{SCR}, 0, v{SCR}
    v_mov_b32 v{SCR+1}, v{SCR}
    v_permlane32_swap_b32 v{SCR}, v{SCR+1}
    """)
    for i in range(16):
        a(f"v_mov_b32 v{NM+i}, v{SCR}\nv_mov_b32 v{NM+16+i}, v{SCR+1}")
    sr2 = Stream(2, 2)
    sr2.prologue(single=True)
    a(f"s_lshr_b32 s{sCNT}, s{sNIT}, 1\ns_nop 7\ns_nop 3")
    a.label("L_redo_loop")
    sr2.tile(0, looped=True)
    sr2.tile(1, looped=True)
    a(f"s_sub_u32 s{sCNT}, s{sCNT}, 1\ns_cmp_lg_u32 s{sCNT}, 0\ns_cbranch_scc1 L_redo_loop")
    smf(O + 16, sr2.ring(1)[2], S + 16 + 8)
    a("s_waitcnt vmcnt(0)\ns_branch L_tail")
    a.label("L_end")
    a("s_endpgm")
    npad = a.pad()
    head = open(f"cdna_kernels/{NAME}.s.ref").read().split("; Override launch")[0]
    txt = head + f"""; Generated by gen/gen.py (hand-written generator).
; @launch grid=(256,1,1) block=(512,1,1) lds={LDS_SIZE}
.amdgcn_target "amdgcn-amd-amdhsa--gfx950"
.text
.globl {NAME}_kernel
.p2align 8
.type {NAME}_kernel,@function
{NAME}_kernel:
""" + a.text() + f""".section .rodata,"a"
.p2align 6
.amdhsa_kernel {NAME}_kernel
  .amdhsa_next_free_vgpr 256
  .amdhsa_next_free_sgpr 102
  .amdhsa_accum_offset 256
  .amdhsa_group_segment_fixed_size 0
  .amdhsa_kernarg_size 80
  .amdhsa_user_sgpr_count 2
  .amdhsa_user_sgpr_kernarg_segment_ptr 1
  .amdhsa_system_sgpr_workgroup_id_x 1
.end_amdhsa_kernel
"""
    return txt, npad

if __name__ == "__main__":
    kw = {}
    out = f"cdna_kernels/{NAME}.s"
    for arg in sys.argv[1:]:
        k, v = arg.split("=", 1)
        if k == "out":
            out = v
        else:
            kw[k] = eval(v)
    txt, npad = gen(Cfg(**kw))
    open(out, "w").write(txt)
    print("wrote", out, "nop states inserted:", npad, "lines:", txt.count("\n"))
```

```python
import math, struct, sys
from asmlib import Asm, vr, sr

NAME = "concat_heads__linear_kernel_hedgehog__softmax_full_mha__prompt"

def f2u(x):
    return struct.unpack("<I", struct.pack("<f", x))[0]

class Cfg:
    prof = False
    stop = 99
    mapping = "N"
    force_redo = False
    nrep = 8
    bias = 24.0
    out_sc = ""
    prio = True
    pref_sc = ''
    rot = (2, 2, 1)
    sprefB = 0
    look = 2
    nB = 24
    depB, depA = 4, 4
    redT = (5, 8, 11, 14)
    jobT = (0, 17, 20, 23, 27)
    prioB = ((0, 0),)
    prioA = ((0, 3),)
    kvrot = True
    diag_wb = False
    split_ld = False
    pkA, pkB = 0, 0
    slowpref = 'abx'
    tprof = False
    skip = ()
    tailmode = 0
    drq = 4
    aload = 10
    hintw = 3
    tsleep = 0
    coupled = True
    lastA = 8
    flag_at = 8
    pollB = 13
    kvB = 14
    barT = (0,)
    woT = 1
    upA, upB = 26, 19
    oaT = (33, 35)
    itB = 9
    redB = 5
    hold8 = 1
    onepoll = True
    psleep = 2
    hold9 = False
    prB = (4, 1)
    prA = (3, 1)
    wopref = True
    oa_first = True
    spref = None
    codepref = 'xcd'
    ninit = 2
    pref = False
    prefA = (1, 2)
    spin = 1 << 18
    diag = None
    def __init__(self, **kw):
        for k, v in kw.items():
            assert hasattr(self, k), k
            setattr(self, k, v)

WS_KV = 0
WS_OA = 4 << 20
WS_OB = 6 << 20
WS_P = 8 << 20
WS_F = 11 << 20
WS_FL = (11 << 20) + 65536
FL_OB = WS_FL
FL_P = WS_FL + 32768
FL_F = FL_P + 4096
FL_OA = FL_F + 4096
FL_KV = FL_OA + 4096
WS_PROF = 12 << 20
WS_DBG = 13 << 20
WS_SIZE = 16 << 20

L_WA = 0
L_WB = 65536
L_X = 131072
L_XM = L_X + 8192
L_XC = L_X + 10240
L_XR = L_X + 28672
L_BAD = L_X + 32512
C_KV, C_WO, C_GO, C_RD, C_OA, C_OB, C_UP, C_DR = 4, 8, 12, 16, 20, 24, 28, 68
LDS_SIZE = 163840

sW, sJ, sRB, sHG, sH = 3, 4, 5, 6, 7
rXB, rWB, rXA, rWA, rWS, rOUT, rMISC, rDBG = 8, 12, 16, 20, 24, 28, 32, 36
kAX, kAW, kAP, kAO, kBX, kBW, kBO, kOUT, kDBG, kWS = range(40, 60, 2)
sM, sO0, sO1, sO2 = 60, 61, 62, 63
sC = 64
sVM = 66
sCNT, sKV, sKVMAX, sWO, sWOM, sREDO = 68, 69, 70, 71, 72, 73
sT0, sT1, sT2, sT3 = 74, 75, 76, 77
sSPIN = 78
sKV0 = 79
sROT = 82
sNIT = 83
sJB, sJL = 90, 91
sPROF = 80

vL16, vLANE = 0, 1
vT = 2
vX0, vX1, vWq, vWk, vWv = 3, 4, 5, 6, 7
vXA = 8
vQK, vV = 12, 13
vXB = 24
vT1, vT2 = 14, 15
vCNT, vONE = 254, 253
vOFFV, vIDX = 250, 251
vWOA = 5
Qf = 16
PHI = 24
NM = 40
O = 72
S = 104
RING = 136
SCR = 184
FR = 104
ACC = 184

def gen(cfg):
    a = Asm()
    uid = [0]
    def lab(p):
        uid[0] += 1
        return f"L_{p}_{uid[0]}"
    nstamp = [0]
    def stamp(idx):
        if cfg.prof:
            a(f"s_memrealtime s[96:97]\ns_memtime s[98:99]\ns_waitcnt lgkmcnt(0)\nv_writelane_b32 v255, s96, {idx}\nv_writelane_b32 v255, s98, {16+idx}")
        elif cfg.diag and idx in cfg.diag[:2]:
            a(f"s_memrealtime {sr(92 if idx == cfg.diag[0] else 94, 2)}\ns_waitcnt lgkmcnt(0)")
    def srd(r, k, size):
        a(f"s_mov_b32 s{r}, s{k}\ns_mov_b32 s{r+1}, s{k+1}\ns_mov_b32 s{r+2}, {size}\ns_mov_b32 s{r+3}, 0x00020000")
    def mfma(d, x, y, c):
        cc = c if isinstance(c, str) else vr(c, 16)
        a(f"v_mfma_f32_32x32x16_bf16 {vr(d,16)}, {vr(x,4)}, {vr(y,4)}, {cc}")
    def cvt(d, s0, n):
        for i in range(n):
            a(f"v_cvt_pk_bf16_f32 v{d+i}, v{s0+2*i}, v{s0+2*i+1}")
    def poll(vaddr, vdst, mask, srdr=rWS, soff="0", first_issued=False, sleep=0):
        lp, dn = lab("poll"), lab("polld")
        a(f"s_mov_b64 exec, {mask}" if isinstance(mask, str) else f"s_mov_b32 exec_lo, {mask & 0xffffffff}\ns_mov_b32 exec_hi, {mask >> 32}")
        a(f"s_mov_b32 s{sSPIN}, {cfg.spin}")
        if first_issued:
            a(f"v_cmp_eq_u32 vcc, 0, v{vdst}\ns_cbranch_vccz {dn}")
        a.label(lp)
        if sleep: a(f"s_sleep {sleep}")
        a(f"buffer_load_dword v{vdst}, v{vaddr}, {sr(srdr,4)}, {soff} offen sc1")
        a(f"s_sub_u32 s{sSPIN}, s{sSPIN}, 1\ns_cbranch_scc1 {dn}")
        a(f"s_waitcnt vmcnt(0)\nv_cmp_eq_u32 vcc, 0, v{vdst}\ns_cbranch_vccnz {lp}")
        a.label(dn)
        a("s_mov_b64 exec, -1")
    def flag(vaddr, mask, soff="0", srdr=rWS):
        a(f"v_mov_b32 v{vT2}, 1")
        mask = int(mask, 0)
        a(f"s_mov_b32 exec_lo, {mask & 0xffffffff}\ns_mov_b32 exec_hi, {mask >> 32}")
        a(f"buffer_store_dword v{vT2}, v{vaddr}, {sr(srdr,4)}, {soff} offen sc1")
        a("s_mov_b64 exec, -1")

    def nmfill(src):
        assert src % 2 == 0
        for i in range(0, 16, 2):
            a(f"v_pk_mov_b32 {vr(NM+i,2)}, {vr(src,2)}, {vr(src,2)} op_sel:[0,0]\nv_pk_mov_b32 {vr(NM+16+i,2)}, {vr(src,2)}, {vr(src,2)} op_sel:[1,1]")
    def arrive(off):
        a(f"s_mov_b64 exec, 1\nds_add_u32 v{vCNT}, v{vONE} offset:{off}\ns_mov_b64 exec, -1")
    def await_cnt(off, target):
        lp, dn = lab("cw"), lab("cwd")
        a(f"s_mov_b64 exec, 1\ns_mov_b32 s{sSPIN}, {cfg.spin * 16}")
        a.label(lp)
        a(f"ds_read_b32 v{vT2}, v{vCNT} offset:{off}\ns_sub_u32 s{sSPIN}, s{sSPIN}, 1\ns_cbranch_scc1 {dn}")
        a(f"s_waitcnt lgkmcnt(0)\nv_cmp_gt_u32 vcc, {target}, v{vT2}\ns_cbranch_vccnz {lp}")
        a.label(dn)
        a("s_mov_b64 exec, -1")

    a(f"s_cmp_ge_u32 s2, 256\ns_cbranch_scc1 L_end")
    a(f"s_load_dwordx16 s[40:55], s[0:1], 0\ns_load_dwordx4 s[56:59], s[0:1], 64")
    if cfg.prof or cfg.diag:
        a(f"s_memrealtime {sr(sPROF,2)}\ns_memtime s[100:101]")
    a(f"s_getpc_b64 s[{sT0}:{sT1}]")
    a.label("L_pc")
    if cfg.codepref == "all":
        a(f"v_lshlrev_b32 v{vT}, 7, v0\nv_min_u32 v{vT}, L_end-L_pc, v{vT}")
        a(f"global_load_dword v247, v{vT}, s[{sT0}:{sT1}]")
    else:
        a(f"s_lshr_b32 s{sT2}, s2, 3\ns_mul_i32 s{sT2}, s{sT2}, 12\nv_min_u32 v{vT}, 11, v0\nv_add_u32 v{vT}, s{sT2}, v{vT}")
        a(f"v_lshlrev_b32 v{vT}, 7, v{vT}\nv_min_u32 v{vT}, L_end-L_pc, v{vT}")
        a(f"global_load_dword v247, v{vT}, s[{sT0}:{sT1}]")
    a(f"v_lshrrev_b32 v{vT}, 6, v0\nv_and_b32 v{vLANE}, 63, v0\nv_readfirstlane_b32 s{sW}, v{vT}")
    a(f"v_lshlrev_b32 v{vL16}, 4, v{vLANE}\nv_mov_b32 v{vCNT}, {L_BAD}\nv_mov_b32 v{vONE}, 1")
    if cfg.mapping == "R":
        a(f"s_and_b32 s{sT0}, s2, 7\ns_lshl_b32 s{sT0}, s{sT0}, 2\ns_bfe_u32 s{sT1}, s2, 0x20003\ns_add_u32 s{sRB}, s{sT0}, s{sT1}\ns_lshr_b32 s{sHG}, s2, 5")
    elif cfg.mapping == "H":
        a(f"s_and_b32 s{sHG}, s2, 7\ns_lshr_b32 s{sRB}, s2, 3")
    elif cfg.mapping == "M":
        a(f"s_and_b32 s{sT0}, s2, 3\ns_lshl_b32 s{sT0}, s{sT0}, 1\ns_bfe_u32 s{sT1}, s2, 0x10003\ns_add_u32 s{sHG}, s{sT0}, s{sT1}")
        a(f"s_bfe_u32 s{sT0}, s2, 0x10002\ns_lshl_b32 s{sT0}, s{sT0}, 4\ns_lshr_b32 s{sT1}, s2, 4\ns_add_u32 s{sRB}, s{sT0}, s{sT1}")
    elif cfg.mapping == "N":
        a(f"s_and_b32 s{sT0}, s2, 1\ns_lshl_b32 s{sT0}, s{sT0}, 2\ns_bfe_u32 s{sT1}, s2, 0x20003\ns_add_u32 s{sHG}, s{sT0}, s{sT1}")
        a(f"s_bfe_u32 s{sT0}, s2, 0x20001\ns_lshl_b32 s{sT0}, s{sT0}, 3\ns_lshr_b32 s{sT1}, s2, 5\ns_add_u32 s{sRB}, s{sT0}, s{sT1}")
    a(f"s_and_b32 s{sJ}, s{sW}, 3\ns_lshl_b32 s{sH}, s{sHG}, 2\ns_add_u32 s{sH}, s{sH}, s{sJ}")
    a(f"s_lshl_b32 s{sM}, s{sJ}, 11")
    if cfg.rot:
        a(f"s_mul_i32 s{sROT}, s{sHG}, {cfg.rot[1]}\ns_mul_i32 s{sT0}, s{sRB}, {cfg.rot[0]}\ns_add_u32 s{sROT}, s{sROT}, s{sT0}")
        if len(cfg.rot) > 2:
            a(f"s_lshr_b32 s{sT0}, s{sHG}, 2\ns_mul_i32 s{sT0}, s{sT0}, {cfg.rot[2]}\ns_add_u32 s{sROT}, s{sROT}, s{sT0}")
    a(f"""
    v_lshrrev_b32 v{vT1}, 3, v{vLANE}
    v_and_b32 v{vT2}, 7, v{vLANE}
    s_lshl_b32 s{sT0}, s{sRB}, 6
    s_lshl_b32 s{sT1}, s{sJ}, 4
    s_add_u32 s{sT0}, s{sT0}, s{sT1}
    v_add_u32 v{vT}, s{sT0}, v{vT1}
    v_lshlrev_b32 v{vT}, 10, v{vT}
    v_lshrrev_b32 v{vX0}, 1, v{vT1}
    v_xor_b32 v{vX0}, v{vX0}, v{vT2}
    v_lshl_add_u32 v{vX0}, v{vX0}, 4, v{vT}
    v_add_u32 v{vX1}, 0x2000, v{vX0}
    v_xor_b32 v{vX1}, 64, v{vX1}
    v_add_u32 v{vT}, s{sT1}, v{vT1}
    v_mul_u32_u24 v{vT}, 0xc00, v{vT}
    s_lshl_b32 s{sT2}, s{sHG}, 7
    v_add_u32 v{vT}, s{sT2}, v{vT}
    v_bfe_u32 v{vT1}, v{vLANE}, 4, 1
    v_lshlrev_b32 v{vWq}, 1, v{vT1}
    v_xor_b32 v{vWq}, v{vWq}, v{vT2}
    v_xor_b32 v{vWk}, 4, v{vWq}
    v_lshlrev_b32 v{vWv}, 2, v{vT1}
    v_xor_b32 v{vWv}, v{vWv}, v{vT2}
    v_lshl_add_u32 v{vWq}, v{vWq}, 4, v{vT}
    v_lshl_add_u32 v{vWk}, v{vWk}, 4, v{vT}
    v_lshl_add_u32 v{vWv}, v{vWv}, 4, v{vT}
    v_add_u32 v{vWk}, 0x400, v{vWk}
    v_add_u32 v{vWv}, 0x800, v{vWv}
    s_waitcnt lgkmcnt(0)
    """)
    if cfg.prof:
        a(f"v_writelane_b32 v255, s{sPROF}, 0\nv_writelane_b32 v255, s100, 16")
    srd(rXB, kBX, 2048 * 1024)
    srd(rWB, kBW, 512 * 3072)
    a(f"s_cmp_lt_u32 s{sW}, 4\ns_cbranch_scc1 L_roleB")

    def chunk_pieces(c):
        rx, rw = (rXB, rWB) if c < 8 else (rXA, rWA)
        cc = c % 8
        slot = (c % 4) * 32768
        if cfg.rot:
            head = f"s_add_u32 s{sO0}, s{sROT}, {cc}\ns_and_b32 s{sO0}, s{sO0}, 7\ns_mul_i32 s{sO1}, s{sO0}, {64*3072}\n"
            head += f"s_lshl_b32 s{sO0}, s{sO0}, 7\ns_add_u32 s{sO2}, s{sO1}, {8*3072}\n"
        else:
            head = f"s_mov_b32 s{sO0}, {128*cc}\ns_mov_b32 s{sO1}, {cc*64*3072}\ns_mov_b32 s{sO2}, {cc*64*3072+8*3072}\n"
        ld = []
        for par in range(2):
            ld.append(f"s_add_u32 m0, s{sM}, {slot + par*1024}\nbuffer_load_dwordx4 v{vX0+par}, {sr(rx,4)}, s{sO0} offen lds\n")
            for seg in range(3):
                ld.append(f"s_add_u32 m0, s{sM}, {slot + 8192*(1+seg) + par*1024}\nbuffer_load_dwordx4 v{vWq+seg}, {sr(rw,4)}, s{sO1+par} offen lds\n")
        ld[0] = head + ld[0]
        return ld
    def issue_chunk(c):
        for t in chunk_pieces(c): a(t)

    def compute_addrs(role):
        a(f"""
        v_and_b32 v{vT}, 31, v{vLANE}
        v_lshrrev_b32 v{vT1}, 5, v{vLANE}
        v_bfe_u32 v{vT2}, v{vLANE}, 1, 3
        v_xor_b32 v{vT2}, v{vT2}, v{vT1}
        v_lshlrev_b32 v{vT2}, 4, v{vT2}
        v_lshl_add_u32 v{vXA}, v{vT}, 7, v{vT2}
        v_xor_b32 v{vXA+1}, 32, v{vXA}
        v_xor_b32 v{vXA+2}, 64, v{vXA}
        v_xor_b32 v{vXA+3}, 0x60, v{vXA}
        v_bfe_u32 v{vT}, v{vLANE}, 2, 2
        v_lshl_add_u32 v{vT}, v{vT1}, 3, v{vT}
        v_lshlrev_b32 v{vT}, 7, v{vT}
        v_and_b32 v{vT1}, 3, v{vLANE}
        v_lshl_add_u32 v{vT}, v{vT1}, 3, v{vT}
        v_bfe_u32 v{vT1}, v{vLANE}, 4, 1
        v_bfe_u32 v{vT2}, v{vLANE}, 3, 1
        v_lshl_add_u32 v{vQK}, v{vT1}, 1, v{vT2}
        v_xor_b32 v{vQK}, s{sJ}, v{vQK}
        v_lshl_add_u32 v{vQK}, v{vQK}, 5, v{vT}
        v_lshl_add_u32 v{vQK}, v{vT1}, 13, v{vQK}
        v_add_u32 v{vQK}, 0x2000, v{vQK}
        v_lshlrev_b32 v{vT2}, 1, v{vT2}
        """)
        if role == "B":
            a(f"s_and_b32 s{sT0}, s{sJ}, 2\nv_add_u32 v{vT1}, s{sT0}, v{vT1}\nv_xor_b32 v{vV}, v{vT1}, v{vT2}")
        else:
            a(f"v_xor_b32 v{vV}, s{sJ}, v{vT2}")
        a(f"v_lshl_add_u32 v{vV}, v{vV}, 5, v{vT}\nv_add_u32 v{vV}, 0x6000, v{vV}")

    def gemm(role, pre_barrier, post_barrier, mid=lambda: None):
        c0 = 0 if role == "B" else 8
        def fr(buf):
            b = FR + 16 * buf
            return dict(x0=b, x1=b + 4, qk=b + 8, v=b + 12)
        def reads(n, part):
            c, kk, f = c0 + n // 4, n % 4, fr(n % 2)
            so = (c % 2) * 32768
            if part == 0:
                a(f"ds_read_b64_tr_b16 {vr(f['qk'],2)}, v{vQK} offset:{so + kk*2048}")
                a(f"ds_read_b64_tr_b16 {vr(f['qk']+2,2)}, v{vQK} offset:{so + kk*2048 + 512}")
                a(f"ds_read_b128 {vr(f['x0'],4)}, v{vXA+kk} offset:{so}")
            else:
                if role == "B":
                    a(f"ds_read_b128 {vr(f['x1'],4)}, v{vXB+kk} offset:{so}")
                else:
                    a(f"ds_read_b128 {vr(f['x1'],4)}, v{vXA+kk} offset:{so + 4096}")
                a(f"ds_read_b64_tr_b16 {vr(f['v'],2)}, v{vV} offset:{so + kk*2048}")
                a(f"ds_read_b64_tr_b16 {vr(f['v']+2,2)}, v{vV} offset:{so + kk*2048 + 512}")
        def tgt(c): return 8 if (c == 9 and not cfg.hold8) else 4
        pre_barrier(c0)
        if role == "B" or cfg.coupled:
            a("s_barrier")
        else:
            arrive(4 * c0); await_cnt(4 * c0, tgt(c0))
        reads(0, 0); reads(0, 1)
        post_barrier(c0)
        for n in range(32):
            c, kk, f = c0 + n // 4, n % 4, fr(n % 2)
            cz = (lambda r: "0") if n == 0 else (lambda r: r)
            def toggle():
                if (c + 1) % 2 == 0 and n < 31:
                    for r in [vQK, vXA, vV, vXA + 1, vXA + 2, vXA + 3] + ([vXB + i for i in range(4)] if role == "B" else []):
                        a(f"v_xor_b32 v{r}, 0x10000, v{r}")
            if kk == 3 and role == "A" and not cfg.coupled:
                a("s_waitcnt lgkmcnt(0)")
                pre_barrier(c + 1)
                arrive(4 * (c + 1))
                mfma(ACC, f["qk"], f["x0"], ACC)
                mfma(ACC + 16, f["qk"], f["x1"], ACC + 16)
                toggle()
                if n < 31:
                    await_cnt(4 * (c + 1), tgt(c + 1))
                    reads(n + 1, 0); reads(n + 1, 1)
                post_barrier(c + 1)
                mfma(ACC + 32, f["x0"], f["v"], ACC + 32)
                mid()
                mfma(ACC + 48, f["x1"], f["v"], ACC + 48)
                mid()
                continue
            if kk == 3:
                a("s_waitcnt lgkmcnt(0)")
                if n < 31:
                    pre_barrier(c + 1)
                    a("s_barrier")
                    post_barrier(c + 1)
                elif role == "A":
                    arrive(4 * 16)
                elif not cfg.hold8 and not cfg.coupled:
                    arrive(4 * 9)
                toggle()
            else:
                a("s_waitcnt lgkmcnt(3)")
            mfma(ACC, f["qk"], f["x0"], cz(ACC))
            if n < 31: reads(n + 1, 0)
            if kk != 3: a("s_waitcnt lgkmcnt(3)")
            mfma(ACC + 16, f["qk"], f["x1"], cz(ACC + 16))
            if n < 31: reads(n + 1, 1)
            mfma(ACC + 32, f["x0"], f["v"], cz(ACC + 32))
            if role == "A":
                mid()
                mfma(ACC + 48, f["x1"], f["v"], cz(ACC + 48))
                mid()

    if cfg.prof: stamp(4)
    vq = []
    def issue(c):
        issue_chunk(c); vq.extend([c] * 8)
    def wait_for(tag):
        n = len(vq) - 1 - max(i for i, t in enumerate(vq) if t == tag)
        a(f"s_waitcnt vmcnt({n})")
    for c in range(cfg.ninit):
        issue(c)
    if cfg.prof: stamp(5)
    srd(rXA, kAX, 2048 * 1024)
    srd(rWA, kAW, 512 * 3072)
    srd(rWS, kWS, WS_SIZE)
    srd(rOUT, kOUT, 2048 * 2048)
    srd(rMISC, kAP, 32 * 512)
    WP, IDP = 248, 40
    vMASK = 252
    a(f"""
    v_lshrrev_b32 v{vT}, 5, v{vLANE}
    v_and_b32 v{vT1}, 15, v{vLANE}
    v_lshlrev_b32 v{vT1}, 1, v{vT1}
    v_lshl_add_u32 v{vT}, v{vT}, 7, v{vT1}
    s_lshl_b32 s{sT0}, s{sH}, 9
    """)
    for jj in range(8):
        a(f"buffer_load_ushort v{48+jj}, v{vT}, {sr(rMISC,4)}, s{sT0} offen offset:{(8*(jj>>2)+(jj&3))*32}")
    vq.extend(["g"] * 8)
    compute_addrs("A")
    a(f"""
    v_bfe_u32 v{vT}, v{vLANE}, 2, 1
    v_lshrrev_b32 v{vT1}, 5, v{vLANE}
    v_xor_b32 v{vT}, v{vT}, v{vT1}
    v_lshlrev_b32 v{vT}, 3, v{vT}
    v_bfe_u32 v{vT1}, v{vLANE}, 3, 2
    v_lshl_add_u32 v{vT}, v{vT1}, 1, v{vT}
    v_bfe_u32 v{vT1}, v{vLANE}, 1, 1
    v_add_u32 v{vT}, v{vT}, v{vT1}
    v_and_b32 v{vT1}, 1, v{vLANE}
    v_lshlrev_b32 v{vT1}, 4, v{vT1}
    v_mov_b32 v{vT2}, 0x3f80
    v_lshlrev_b32 v{vT1}, v{vT1}, v{vT2}
    """)
    for q in range(8):
        a(f"v_cmp_eq_u32 vcc, {q}, v{vT}\nv_cndmask_b32 v{IDP+q}, 0, v{vT1}, vcc")
    a(f"v_bfe_u32 v{vT}, v{vLANE}, 4, 1\nv_add_u32 v{vMASK}, -1, v{vT}")
    def spf_setup():
        assert cfg.mapping == "N"
        a(f"""
        s_lshr_b32 s{sT0}, s2, 3
        s_lshl_b32 s{sT0}, s{sT0}, 2
        s_add_u32 s{sT0}, s{sT0}, s{sJ}
        s_bfe_u32 s{sT1}, s2, 0x20001
        s_and_b32 s{sT2}, s2, 1
        s_mul_i32 s84, s{sT1}, {384*1024}
        s_mul_i32 s85, s{sT0}, 3072
        s_add_u32 s84, s84, s85
        s_lshl_b32 s85, s{sT2}, 9
        s_add_u32 s84, s84, s85
        s_add_u32 s84, s{kAW}, s84
        s_addc_u32 s85, s{kAW+1}, 0
        s_lshl_b32 s86, s{sT1}, 19
        s_lshl_b32 s87, s{sT2}, 18
        s_add_u32 s86, s86, s87
        s_lshl_b32 s87, s{sT0}, 11
        s_add_u32 s86, s86, s87
        s_add_u32 s86, s{kAX}, s86
        s_addc_u32 s87, s{kAX+1}, 0
        """)
        spf = [f"s_load_dword s88, s[84:85], {b*1024 + i*64}" for b in range(3) for i in range(8)]
        spf += [f"s_load_dword s88, s[86:87], {i*64}" for i in range(32)]
        return spf
    spf = spf_setup() if cfg.spref else []
    nxt = cfg.ninit
    lastA = cfg.lastA if cfg.coupled else (7 if cfg.hold8 else (8 if cfg.hold9 else 9))
    for c in range(8):
        wait_for(c)
        a("s_barrier")
        while nxt <= min(c + cfg.look, lastA):
            issue(nxt); nxt += 1
        if spf and c >= cfg.spref[0]:
            for t in spf[:cfg.spref[1]]: a(t)
            spf = spf[cfg.spref[1]:]
        if c == 4:
            a(f"v_bfe_u32 v{vT}, v{vLANE}, 4, 1\nv_lshlrev_b32 v{vT1}, 15, v{vT}\nv_lshl_or_b32 v{vT}, v{vT}, 31, v{vT1}")
            for q in range(4):
                a(f"v_lshl_or_b32 v{WP+q}, v{49+2*q}, 16, v{48+2*q}\nv_xor_b32 v{WP+q}, v{WP+q}, v{vT}")
    nxtA = [nxt]
    pend = []
    def preA(c):
        while pend and pend[0][0] <= c: midA()
        if c <= (lastA if cfg.coupled else 15): wait_for(c)
    def postA(c):
        while not cfg.coupled and nxtA[0] <= min(c + cfg.look, 15):
            pend.extend((nxtA[0], t) for t in chunk_pieces(nxtA[0])); nxtA[0] += 1
    def midA():
        for _ in range(2 if len(set(c for c, t in pend)) > 1 else 1):
            if pend:
                c, t = pend.pop(0)
                a(t); vq.append(c)
    if cfg.hold8 and not cfg.coupled:
        await_cnt(C_WO, 4)
        for c in range(8, 8 + cfg.hold8):
            issue(c)
        nxtA[0] = 8 + cfg.hold8
    assert not spf
    a("s_waitcnt lgkmcnt(0)")
    if cfg.prio: a("s_setprio 3")
    stamp(1)
    gemm("A", preA, postA, midA)
    stamp(2)
    if not cfg.coupled: await_cnt(C_KV, 4)
    vPOLL, vPOLLA = 6, 7
    a(f"""
    s_mul_i32 s{sT0}, s{sHG}, {128*cfg.nrep}
    s_and_b32 s{sT1}, s{sRB}, {cfg.nrep-1}
    s_lshl_b32 s{sT1}, s{sT1}, 7
    s_add_u32 s{sT0}, s{sT0}, s{sT1}
    s_add_u32 s{sT0}, s{sT0}, {FL_KV}
    v_lshl_add_u32 v{vPOLLA}, v{vLANE}, 2, s{sT0}
    s_mov_b32 exec_hi, 0
    buffer_load_dword v{vPOLL}, v{vPOLLA}, {sr(rWS,4)}, 0 offen sc1
    s_mov_b64 exec, -1
    """)
    srd(rMISC, kAO, 512 * 1024)
    srd(rXB, kBO, 512 * 1024)
    if cfg.wopref:
        a(f"""
        s_and_b32 s{sT0}, s{sRB}, 7
        s_lshl_b32 s{sT0}, s{sT0}, 2
        s_add_u32 s{sT0}, s{sT0}, s{sJ}
        s_lshl_b32 s{sT0}, s{sT0}, 14
        s_lshl_b32 s{sT1}, s{sHG}, 7
        s_add_u32 s{sT0}, s{sT0}, s{sT1}
        v_lshlrev_b32 v3, 10, v{vLANE}
        s_mov_b64 exec, 0xffff
        buffer_load_dword v4, v3, {sr(rMISC,4)}, s{sT0} offen
        buffer_load_dword v5, v3, {sr(rXB,4)}, s{sT0} offen
        s_mov_b64 exec, -1
        """)
    X = [48, 64, 80, 96]
    KF, QF2, VP, PK, TT, PT, TM = 112, 120, 128, 144, 152, 168, 176
    L2E = math.log2(math.e)
    a(f"s_mov_b32 s{sC}, {f2u(L2E)}\ns_mov_b32 s{sC+1}, {f2u(L2E)}\ns_mov_b32 s{sT3}, 0x3f803f80")
    for ri in range(2):
        cvt(KF + 4 * ri, ACC + 16 * ri + 8, 4)
    for ri in range(2):
        mfma(X[ri], WP, KF + 4 * ri, "0")
    for ri in range(2):
        cvt(QF2 + 4 * ri, ACC + 16 * ri, 4)
    for ri in range(2):
        mfma(X[2 + ri], WP, QF2 + 4 * ri, "0")
    for ri in range(2):
        cvt(VP + 8 * ri, ACC + 32 + 16 * ri, 8)
        for i in range(8):
            a(f"v_bfi_b32 v{VP+8*ri+i}, v{vMASK}, v{VP+8*ri+i}, s{sT3}")
    def softmax2(x, dst):
        t, u = TM, TM + 1
        for base, r in ((x, t), (x + 8, u)):
            a(f"v_max3_f32 v{r}, v{base}, v{base+1}, v{base+2}\nv_max3_f32 v{r}, v{r}, v{base+3}, v{base+4}")
            a(f"v_max3_f32 v{r}, v{r}, v{base+5}, v{base+6}\nv_max_f32 v{r}, v{r}, v{base+7}")
        a(f"v_permlane32_swap_b32 v{t}, v{u}\nv_max_f32 v{t}, v{t}, v{u}")
        a(f"v_mul_f32 v{t}, {f2u(-L2E)}, v{t}\nv_mov_b32 v{u}, v{t}\nv_permlane32_swap_b32 v{t}, v{u}")
        for i in range(8):
            sel = "op_sel:[0,0,0] op_sel_hi:[1,1,0]" if i < 4 else "op_sel:[0,0,1] op_sel_hi:[1,1,1]"
            a(f"v_pk_fma_f32 {vr(x+2*i,2)}, {vr(x+2*i,2)}, {sr(sC,2)}, {vr(t,2)} {sel}")
        for i in range(16):
            a(f"v_exp_f32 v{x+i}, v{x+i}")
        p, q = TM + 2, TM + 4
        a(f"v_pk_add_f32 {vr(p,2)}, {vr(x,2)}, {vr(x+2,2)}\nv_pk_add_f32 {vr(q,2)}, {vr(x+8,2)}, {vr(x+10,2)}")
        a(f"v_pk_add_f32 {vr(p,2)}, {vr(p,2)}, {vr(x+4,2)}\nv_pk_add_f32 {vr(q,2)}, {vr(q,2)}, {vr(x+12,2)}")
        a(f"v_pk_add_f32 {vr(p,2)}, {vr(p,2)}, {vr(x+6,2)}\nv_pk_add_f32 {vr(q,2)}, {vr(q,2)}, {vr(x+14,2)}")
        a(f"v_add_f32 v{t}, v{p}, v{p+1}\nv_add_f32 v{u}, v{q}, v{q+1}")
        a(f"v_permlane32_swap_b32 v{t}, v{u}\nv_add_f32 v{t}, v{t}, v{u}\nv_rcp_f32 v{t}, v{t}")
        a(f"v_mov_b32 v{u}, v{t}\nv_permlane32_swap_b32 v{t}, v{u}")
        for i in range(8):
            sel = "op_sel:[0,0] op_sel_hi:[1,0]" if i < 4 else "op_sel:[0,1] op_sel_hi:[1,1]"
            a(f"v_pk_mul_f32 {vr(x+2*i,2)}, {vr(x+2*i,2)}, {vr(t,2)} {sel}")
        cvt(dst, x, 8)
    KVA = ACC
    softmax2(X[0], PK)
    mfma(TT, PK, IDP, "0")
    mfma(TT, PK + 4, IDP + 4, TT)
    softmax2(X[1], PK)
    cvt(PT, TT, 8)
    mfma(TT, PK, IDP, "0")
    mfma(TT, PK + 4, IDP + 4, TT)
    mfma(KVA, PT, VP, "0")
    mfma(KVA, PT + 4, VP + 4, KVA)
    softmax2(X[2], PHI)
    cvt(PT, TT, 8)
    mfma(KVA, PT, VP + 8, KVA)
    mfma(KVA, PT + 4, VP + 12, KVA)
    a(f"""
    v_lshrrev_b32 v{vT}, 5, v{vLANE}
    v_mul_u32_u24 v{vT}, {32*384}, v{vT}
    v_and_b32 v{vT1}, 31, v{vLANE}
    v_lshl_add_u32 v{vT}, v{vT1}, 4, v{vT}
    s_mul_i32 s{sT0}, s{sH}, {8*32*384}
    s_mul_i32 s{sT1}, s{sRB}, 384
    s_add_u32 s{sT0}, s{sT0}, s{sT1}
    s_add_u32 s{sT0}, s{sT0}, {WS_P}
    s_mov_b32 exec_lo, 0x1ffff
    s_mov_b32 exec_hi, 0x1ffff
    """)
    for r4 in range(4):
        a(f"buffer_store_dwordx4 {vr(KVA+4*r4,4)}, v{vT}, {sr(rWS,4)}, s{sT0} offen sc1")
        if r4 < 3: a(f"s_add_u32 s{sT0}, s{sT0}, {2*32*384}")
    a("s_mov_b64 exec, -1")
    softmax2(X[3], PHI + 8)
    a(f"""
    s_lshl_b32 s{sT0}, s{sJ}, 11
    s_add_u32 s{sT0}, s{sT0}, {L_X}
    v_add_u32 v{vT}, s{sT0}, v{vL16}
    ds_read_b128 {vr(Qf,4)}, v{vT}
    ds_read_b128 {vr(Qf+4,4)}, v{vT} offset:1024
    s_lshl_b32 s{sT0}, s{sJ}, 9
    s_add_u32 s{sT0}, s{sT0}, {L_XM}
    v_lshl_add_u32 v{vT}, v{vLANE}, 3, s{sT0}
    ds_read_b64 {vr(TM,2)}, v{vT}
    s_waitcnt vmcnt(4)
    """)
    poll(vPOLLA, vPOLL, 0xffffffff, first_issued=True)
    await_cnt(4 * 16, 4)
    nmfill(TM)
    stamp(3)
    a("s_branch L_attA")

    a.label("L_roleB")
    vPX, vPW = 34, 35
    if cfg.pref:
        assert cfg.mapping == "N"
        nw, nx = (48, 32) if cfg.pref == "xcd" else (12, 16)
        a(f"""
        s_lshr_b32 s{sT0}, s2, 3
        s_lshl_b32 s{sT1}, s{sT0}, 2
        s_add_u32 s{sT1}, s{sT1}, s{sJ}
        s_mul_i32 s{sT2}, s{sT1}, {nw}
        s_bfe_u32 s{sT3}, s2, 0x20001
        """)
        if cfg.pref != "xcd":
            a(f"s_mul_i32 s{sT0}, s{sT3}, 1536\ns_add_u32 s{sT2}, s{sT2}, s{sT0}")
        a(f"""
        v_min_u32 v{vT}, {nw-1}, v{vLANE}
        v_add_u32 v{vT}, s{sT2}, v{vT}
        v_lshrrev_b32 v{vT1}, 2, v{vT}
        v_and_b32 v{vT}, 3, v{vT}
        v_lshlrev_b32 v{vT}, 7, v{vT}
        v_lshl_add_u32 v{vPW}, v{vT1}, 10, v{vT}
        s_and_b32 s{sT2}, s2, 1
        s_lshl_b32 s{sT0}, s{sT2}, 9
        v_add_u32 v{vPW}, s{sT0}, v{vPW}
        buffer_load_dword v246, v{vPW}, {sr(rWB,4)}, 0 offen {cfg.pref_sc}
        s_mul_i32 s{sT1}, s{sT1}, {nx*128}
        s_lshl_b32 s{sT3}, s{sT3}, 19
        s_add_u32 s{sT1}, s{sT1}, s{sT3}
        """)
        if cfg.pref != "xcd":
            a(f"s_lshl_b32 s{sT2}, s{sT2}, 18\ns_add_u32 s{sT1}, s{sT1}, s{sT2}")
        a(f"""
        v_min_u32 v{vT}, {nx-1}, v{vLANE}
        v_lshl_add_u32 v{vPX}, v{vT}, 7, s{sT1}
        buffer_load_dword v245, v{vPX}, {sr(rXB,4)}, 0 offen {cfg.pref_sc}
        """)
    srd(rXA, kAX, 2048 * 1024)
    srd(rWA, kAW, 512 * 3072)
    srd(rWS, kWS, WS_SIZE)
    srd(rOUT, kOUT, 2048 * 2048)
    srd(rDBG, kDBG, 256)
    if cfg.pref and cfg.prefA[0] < 0:
        a(f"buffer_load_dword v244, v{vPW}, {sr(rWA,4)}, 0 offen {cfg.pref_sc}")
        a(f"buffer_load_dword v243, v{vPX}, {sr(rXA,4)}, 0 offen {cfg.pref_sc}")
    if cfg.slowpref:
        a(f"""
        s_lshr_b32 s{sT0}, s2, 3
        s_lshl_b32 s{sT0}, s{sT0}, 2
        s_add_u32 s{sT0}, s{sT0}, s{sJ}
        s_mul_i32 s{sT1}, s{sT0}, {12*1024}
        s_and_b32 s{sT2}, s2, 1
        s_lshl_b32 s{sT2}, s{sT2}, 9
        s_add_u32 s{sT1}, s{sT1}, s{sT2}
        s_add_u32 s{sT1}, s{sT1}, 384
        v_lshlrev_b32 v{vT}, 10, v{vLANE}
        s_lshl_b32 s{sT0}, s{sT0}, 12
        s_bfe_u32 s{sT2}, s2, 0x20001
        s_lshl_b32 s{sT2}, s{sT2}, 19
        s_add_u32 s{sT0}, s{sT0}, s{sT2}
        s_add_u32 s{sT0}, s{sT0}, 384
        s_mov_b64 exec, 0xfff
        """)
        if "b" in cfg.slowpref: a(f"buffer_load_dword v246, v{vT}, {sr(rWB,4)}, s{sT1} offen")
        if "a" in cfg.slowpref: a(f"buffer_load_dword v244, v{vT}, {sr(rWA,4)}, s{sT1} offen")
        a("s_mov_b64 exec, 15")
        if "x" in cfg.slowpref:
            if "b" in cfg.slowpref: a(f"buffer_load_dword v245, v{vT}, {sr(rXB,4)}, s{sT0} offen")
            if "a" in cfg.slowpref: a(f"buffer_load_dword v243, v{vT}, {sr(rXA,4)}, s{sT0} offen")
        a("s_mov_b64 exec, -1")
    if cfg.sprefB:
        for t in spf_setup()[:cfg.sprefB]: a(t)
    compute_addrs("B")
    a(f"s_and_b32 s{sT0}, s{sJ}, 1\ns_lshl_b32 s{sT0}, s{sT0}, 12")
    for i in range(4):
        a(f"v_add_u32 v{vXA+i}, s{sT0}, v{vXA+i}\nv_xor_b32 v{vXB+i}, 0x1000, v{vXA+i}")
    a(f"s_cmp_lt_u32 s2, 8\ns_cselect_b32 s{sREDO}, s{sW}, 0")
    a(f"s_cmp_lg_u32 s{sREDO}, 1\ns_cbranch_scc1 L_noreset")
    a(f"v_mov_b32 v16, 0\nv_mov_b32 v17, 0\nv_mov_b32 v18, 0\nv_mov_b32 v19, 0")
    nres = -(-(FL_KV + 1024 * cfg.nrep - WS_FL) // 8192)
    a(f"s_mul_i32 s{sT1}, s2, {nres*1024}\ns_add_u32 s{sT1}, s{sT1}, {WS_FL}")
    for i in range(nres):
        a(f"buffer_store_dwordx4 v[16:19], v{vL16}, {sr(rWS,4)}, s{sT1} offen offset:{(i%4)*1024} sc1")
        if i % 4 == 3: a(f"s_add_u32 s{sT1}, s{sT1}, 4096")
    a.label("L_noreset")
    a(f"v_lshl_add_u32 v{vT}, v{vLANE}, 2, v{vCNT}\nv_mov_b32 v{vT1}, 0\nds_write_b32 v{vT}, v{vT1}")
    vKST, vVST = 28, 29
    a(f"""
    v_and_b32 v{vKST}, 0x33, v{vLANE}
    v_and_b32 v{vT}, 4, v{vLANE}
    v_lshl_or_b32 v{vKST}, v{vT}, 1, v{vKST}
    v_bfe_u32 v{vT}, v{vLANE}, 3, 1
    v_lshl_or_b32 v{vKST}, v{vT}, 2, v{vKST}
    v_lshlrev_b32 v{vKST}, 4, v{vKST}
    v_bfe_u32 v{vT}, v{vLANE}, 4, 1
    v_lshlrev_b32 v{vVST}, 17, v{vT}
    v_lshrrev_b32 v{vT}, 5, v{vLANE}
    v_lshl_add_u32 v{vVST}, v{vT}, 8, v{vVST}
    v_and_b32 v{vT}, 15, v{vLANE}
    v_lshl_add_u32 v{vVST}, v{vT}, 4, v{vVST}
    s_waitcnt lgkmcnt(0)
    """)
    def bst(c):
        if cfg.tprof: a(f"s_memtime s[98:99]\ns_waitcnt lgkmcnt(0)\nv_writelane_b32 v252, s98, {48+c}")
    def postB(c):
        if c > 0: bst(c)
        if c == 5:
            l = lab("nogate")
            a(f"s_cmp_lg_u32 s{sREDO}, 1\ns_cbranch_scc1 {l}")
            a(f"s_lshl_b32 s{sT0}, s2, 2\nv_mov_b32 v{vT}, s{sT0}\ns_waitcnt vmcnt(0)")
            flag(vT, "1", srdr=rDBG)
            a.label(l)
        if c == 0: stamp(1)
        if cfg.pref and c == cfg.prefA[0]:
            a(f"buffer_load_dword v244, v{vPW}, {sr(rWA,4)}, 0 offen {cfg.pref_sc}")
        if cfg.pref and c == cfg.prefA[1]:
            a(f"buffer_load_dword v243, v{vPX}, {sr(rXA,4)}, 0 offen {cfg.pref_sc}")
    gemm("B", lambda c: None, postB)
    a("s_waitcnt vmcnt(0)")
    stamp(2)
    KOWN, VPK = 232, 240
    vG, vGA = 30, 31
    a(f"v_lshlrev_b32 v{vGA}, 2, v{vLANE}\ns_mov_b64 exec, 0xff\nbuffer_load_dword v{vG}, v{vGA}, {sr(rDBG,4)}, 0 offen sc1\ns_mov_b64 exec, -1")
    a(f"""
    s_and_b32 s{sT2}, s{sJ}, 1
    s_lshl_b32 s{sT0}, s{sRB}, 1
    s_add_u32 s{sT0}, s{sT0}, s{sT2}
    s_lshl_b32 s{sT0}, s{sT0}, 11
    s_lshl_b32 s{sT1}, s{sH}, 17
    s_add_u32 s{sT1}, s{sT1}, s{sT0}
    s_xor_b32 s{sT2}, s{sT1}, 0x800
    s_and_b32 s{sT3}, s{sH}, -2
    s_lshl_b32 s{sT3}, s{sT3}, 17
    s_add_u32 s{sT3}, s{sT3}, s{sT0}
    """)
    assert WS_KV == 0
    cvt(KOWN, ACC + 8, 4)
    a(f"buffer_store_dwordx4 {vr(KOWN,4)}, v{vKST}, {sr(rWS,4)}, s{sT1} offen sc1")
    cvt(KOWN + 4, ACC + 16 + 8, 4)
    a(f"buffer_store_dwordx4 {vr(KOWN+4,4)}, v{vKST}, {sr(rWS,4)}, s{sT2} offen sc1")
    cvt(VPK, ACC + 32, 4)
    a(f"buffer_store_dwordx4 {vr(VPK,4)}, v{vVST}, {sr(rWS,4)}, s{sT3} offen offset:1024 sc1")
    cvt(VPK + 4, ACC + 40, 4)
    a(f"buffer_store_dwordx4 {vr(VPK+4,4)}, v{vVST}, {sr(rWS,4)}, s{sT3} offen offset:1536 sc1")
    vq[:] = ["st"] * 4
    nxtB = [lastA + 1]
    def barB(c):
        if c > lastA: wait_for(c)
        a("s_barrier")
        bst(c)
    def loadB(c):
        while nxtB[0] <= min(c + cfg.look, 15):
            issue(nxtB[0]); nxtB[0] += 1
    def flagKV():
        stamp(3)
        l = lab("noflag")
        a(f"s_cmp_lg_u32 s{sW}, 0\ns_cbranch_scc1 {l}")
        poll(vGA, vG, 0xff, srdr=rDBG, first_issued=True)
        a(f"""
        s_mul_i32 s{sT0}, s{sHG}, {128*cfg.nrep}
        s_lshl_b32 s{sT1}, s{sRB}, 2
        s_add_u32 s{sT0}, s{sT0}, s{sT1}
        s_add_u32 s{sT0}, s{sT0}, {FL_KV}
        v_lshl_add_u32 v{vT}, v{vLANE}, 7, s{sT0}
        """)
        flag(vT, str((1 << cfg.nrep) - 1))
        a.label(l)
    assert cfg.coupled
    qs = 0.25 * math.log2(math.e)
    a(f"s_mov_b32 s{sC}, {f2u(qs)}\ns_mov_b32 s{sC+1}, {f2u(qs)}")
    for qb in range(2):
        for i in range(4):
            a(f"v_pk_mul_f32 {vr(ACC+16*qb+2*i,2)}, {vr(ACC+16*qb+2*i,2)}, {sr(sC,2)}")
        cvt(Qf + 4 * qb, ACC + 16 * qb, 4)
    a(f"""
    s_lshl_b32 s{sT0}, s{sJ}, 11
    s_add_u32 s{sT0}, s{sT0}, {L_X}
    v_add_u32 v{vT}, s{sT0}, v{vL16}
    ds_write_b128 v{vT}, {vr(Qf,4)}
    ds_write_b128 v{vT}, {vr(Qf+4,4)} offset:1024
    """)
    for qb in range(2):
        mfma(72 + 32 * qb, KOWN, Qf + 4 * qb, "0")
        mfma(88 + 32 * qb, KOWN + 4, Qf + 4 * qb, "0")
    TMB = 32
    def maxtree(dst, base, n, init=None):
        i = 0
        if init is None:
            a(f"v_max3_f32 v{dst}, v{base}, v{base+1}, v{base+2}"); i = 3
        while i + 1 < n:
            a(f"v_max3_f32 v{dst}, v{dst}, v{base+i}, v{base+i+1}"); i += 2
        if i < n:
            a(f"v_max_f32 v{dst}, v{dst}, v{base+i}")
    maxtree(TMB, 72, 32)
    maxtree(TMB + 1, 104, 32)
    def crossmax(t):
        a(f"v_permlane32_swap_b32 v{t}, v{t+1}\nv_max_f32 v{t}, v{t}, v{t+1}")
    crossmax(TMB)
    a(f"v_sub_f32 v{TMB}, {f2u(-cfg.bias)}, v{TMB}\nv_mov_b32 v{TMB+1}, v{TMB}\nv_permlane32_swap_b32 v{TMB}, v{TMB+1}")
    a(f"""
    s_lshl_b32 s{sT0}, s{sJ}, 9
    s_add_u32 s{sT0}, s{sT0}, {L_XM}
    v_lshl_add_u32 v{vT}, v{vLANE}, 3, s{sT0}
    ds_write_b64 v{vT}, {vr(TMB,2)}
    """)
    a(f"""
    s_mul_i32 s{sT0}, s{sHG}, {128*cfg.nrep}
    s_lshl_b32 s{sT1}, s{sRB}, 2
    s_add_u32 s{sT1}, s{sT0}, s{sT1}
    s_add_u32 s{sT1}, s{sT1}, {FL_KV}
    v_lshl_add_u32 v{vT}, v{vLANE}, 7, s{sT1}
    s_and_b32 s{sT1}, s{sRB}, {cfg.nrep-1}
    s_lshl_b32 s{sT1}, s{sT1}, 7
    s_add_u32 s{sT0}, s{sT0}, s{sT1}
    s_add_u32 s{sT0}, s{sT0}, {FL_KV}
    s_waitcnt vmcnt(0) lgkmcnt(0)
    """)
    poll(vGA, vG, 0xff, srdr=rDBG, first_issued=True)
    l = lab("noflag")
    a(f"""
    v_lshl_add_u32 v{vGA}, v{vLANE}, 2, s{sT0}
    s_mov_b64 exec, 1
    ds_add_rtn_u32 v{vT1}, v{vCNT}, v{vONE} offset:{C_KV}
    s_waitcnt lgkmcnt(0)
    v_cmp_eq_u32 vcc, 3, v{vT1}
    s_mov_b64 exec, -1
    s_cbranch_vccz {l}
    """)
    flag(vT, str((1 << cfg.nrep) - 1))
    a.label(l)
    stamp(3)
    vq[:] = []
    barB(8)
    loadB(8)
    nmfill(TMB)
    for c in range(9, cfg.pollB + 1):
        if c == cfg.pollB:
            a(f"s_mov_b32 exec_hi, 0\nbuffer_load_dword v{vG}, v{vGA}, {sr(rWS,4)}, 0 offen sc1\ns_mov_b64 exec, -1")
            vq.append("kvf")
        barB(c)
        loadB(c)
    wait_done = [t for t in vq]

    vOFFK = 8
    def smf(d, va, p):
        a(f"v_smfmac_f32_32x32x32_bf16 {vr(d,16)}, {vr(va,4)}, {vr(p,8)}, v{vIDX}")
    def att_setup(first, ntiles):
        a(f"""
        s_mov_b32 s{sREDO}, 0
        s_lshl_b32 s{sT0}, s{sH}, 17
        v_add_u32 v{vOFFK}, s{sT0}, v{vL16}
        v_lshrrev_b32 v{vT}, 5, v{vLANE}
        v_and_b32 v{vT1}, 15, v{vLANE}
        v_lshlrev_b32 v{vT1}, 4, v{vT1}
        v_lshl_add_u32 v{vOFFV}, v{vT}, 8, v{vT1}
        v_add_u32 v{vOFFV}, s{sT0}, v{vOFFV}
        v_mov_b32 v{vIDX}, 0xdddd
        s_mov_b32 s{sVM}, 0xffff
        s_mov_b32 s{sVM+1}, 0xffff
        s_mov_b32 s{sNIT}, {ntiles}
        """)
        if cfg.kvrot:
            a(f"s_and_b32 s{sKV0}, s{sRB}, 7\ns_lshl_b32 s{sKV0}, s{sKV0}, 14\ns_add_u32 s{sKV0}, s{sKV0}, {first*2048}\ns_and_b32 s{sKV0}, s{sKV0}, 0x1ffff")
        else:
            a(f"s_mov_b32 s{sKV0}, {first*2048}")
    class Stream:
        def __init__(self, depth, ntiles, init=()):
            self.d, self.n, self.q = depth, ntiles, list(init)
        def ring(self, t):
            b = RING + 12 * (t % self.d)
            return b, b + 4, b + 8
        def push(self, tag, n=1):
            self.q.extend([tag] * n)
        def wait(self, tag):
            idx = [i for i, t in enumerate(self.q) if t == tag]
            if idx:
                a(f"s_waitcnt vmcnt({len(self.q) - 1 - idx[-1]})")
                self.q = self.q[idx[-1] + 1:]
        def kload(self, t, single=False):
            o = 0 if single else (t % 2) * 2048
            a(f"buffer_load_dwordx4 {vr(self.ring(t)[0],4)}, v{vOFFK}, {sr(rWS,4)}, s{sKV} offen offset:{o} sc1")
            self.push(("k", t))
        def vload(self, t, single=False):
            k, v0, v1 = self.ring(t)
            o = 0 if single else (t % 2) * 2048
            a(f"s_mov_b64 exec, {sr(sVM,2)}")
            a(f"buffer_load_dwordx4 {vr(v0,4)}, v{vOFFV}, {sr(rWS,4)}, s{sKV} offen offset:{o+1024} sc1")
            a(f"buffer_load_dwordx4 {vr(v1,4)}, v{vOFFV}, {sr(rWS,4)}, s{sKV} offen offset:{o+1536} sc1")
            a(f"s_mov_b64 exec, -1")
            if single or t % 2 == 1:
                a(f"s_add_u32 s{sKV}, s{sKV}, {2048 if single else 4096}\ns_and_b32 s{sKV}, s{sKV}, 0x1ffff")
            self.push(("kv", t), 2)
        def kvload(self, t, single=False):
            self.kload(t, single); self.vload(t, single)
        def prologue(self, single=False, mid=None, pk=0):
            a(f"s_mov_b32 s{sKV}, s{sKV0}")
            a(f"v_and_b32 v{vT}, 27, v{vLANE}\nv_cmp_eq_u32 vcc, 16, v{vT}\nv_mov_b32 v{vT}, 0x3f803f80\nv_cndmask_b32 v{vT}, 0, v{vT}, vcc")
            for t in range(self.d):
                for i in range(4, 12, 2):
                    if pk: a(f"v_pk_mov_b32 {vr(RING+12*t+i,2)}, {vr(vT,2)}, {vr(vT,2)} op_sel:[0,0]")
                    else: a(f"v_mov_b32 v{RING+12*t+i}, v{vT}\nv_mov_b32 v{RING+12*t+i+1}, v{vT}")
                if t < self.d - 1: self.kvload(t, single)
                elif cfg.split_ld and not single: self.kload(t)
            if pk == 2:
                for i in range(0, 4, 2):
                    a(f"v_pk_mov_b32 {vr(S+16+8+i,2)}, 0, 0")
                mfma(O, S + 24, S + 24, "0")
                mfma(O + 16, S + 24, S + 24, "0")
            else:
                for i in range(0, 32, 2):
                    if pk: a(f"v_pk_mov_b32 {vr(O+i,2)}, 0, 0")
                    else: a(f"v_mov_b32 v{O+i}, 0\nv_mov_b32 v{O+i+1}, 0")
            if single:
                for i in range(0, 8, 2):
                    a(f"v_pk_mov_b32 {vr(S+16+8+i,2)}, 0, 0")
            if mid: mid()
            self.wait(("k", 0) if (cfg.split_ld and not single) else ("kv", 0))
            mfma(S, self.ring(0)[0], Qf, NM)
        def tile(self, t, looped=False, extra=None):
            k, v0, v1 = self.ring(t)
            split = cfg.split_ld and not looped
            for qb in range(2):
                cur, oth = S + 16 * qb, S + 16 * (1 - qb)
                def ex(i): a(f"v_exp_f32 v{cur+i}, v{cur+i}")
                ex(0); ex(1)
                if qb == 0:
                    if looped or t > 0: smf(O + 16, self.ring(t - 1)[2], oth + 8)
                    ex(2)
                    if looped or t + self.d - 1 < self.n:
                        if split: self.vload(t + self.d - 1)
                        else: self.kvload(t + self.d - 1, looped)
                    ex(3); ex(4)
                    mfma(oth, k, Qf + 4, NM + 16)
                    ex(5)
                    if split and t + self.d < self.n: self.kload(t + self.d)
                    for i in range(6, 10): ex(i)
                    if split: self.wait(("k", t + 1) if (cfg.split_ld == 2 and t + 1 < self.n) else ("kv", t))
                else:
                    smf(O, v1, oth + 8)
                    ex(2); ex(3)
                    if looped: a(f"s_waitcnt vmcnt({3 * (self.d - 2)})")
                    elif t + 1 < self.n: self.wait(("k" if split else "kv", t + 1))
                    ex(4)
                    if looped or t + 1 < self.n: mfma(oth, self.ring(t + 1)[0], Qf, NM)
                    for i in range(5, 10): ex(i)
                smf(O + 16 * qb, v0, cur)
                ex(10)
                if extra and qb == 1: extra()
                for i in range(11, 16): ex(i)
        def run(self, jobs, prio):
            pr = dict(prio) if cfg.prio else {}
            for t in range(self.n):
                if t in pr: a(f"s_setprio {pr[t]}")
                if cfg.tprof: a(f"s_memtime s[98:99]\ns_waitcnt lgkmcnt(0)\nv_writelane_b32 v252, s98, {t}")
                self.tile(t, extra=(lambda: [f() for f in jobs.get(t, [])]))
            smf(O + 16, self.ring(self.n - 1)[2], S + 16 + 8)

    WFB = 184
    vWR = 12
    def woaddr():
        a(f"""
        v_bfe_u32 v{vT1}, v{vLANE}, 2, 2
        v_lshrrev_b32 v{vT2}, 5, v{vLANE}
        v_lshl_add_u32 v{vT1}, v{vT2}, 2, v{vT1}
        v_lshlrev_b32 v{vWR}, 7, v{vT1}
        s_lshr_b32 s{sT1}, s{sW}, 2
        v_bfe_u32 v{vT1}, v{vLANE}, 3, 1
        v_xor_b32 v{vT1}, s{sT1}, v{vT1}
        v_lshl_add_u32 v{vWR}, v{vT1}, 6, v{vWR}
        v_and_b32 v{vT1}, 1, v{vLANE}
        v_lshl_add_u32 v{vWR}, v{vT1}, 5, v{vWR}
        s_bfe_u32 s{sT1}, s{sW}, 0x10001
        v_bfe_u32 v{vT1}, v{vLANE}, 4, 1
        v_xor_b32 v{vT1}, s{sT1}, v{vT1}
        v_lshl_add_u32 v{vWR}, v{vT1}, 4, v{vWR}
        v_bfe_u32 v{vT1}, v{vLANE}, 1, 1
        v_lshl_add_u32 v{vWR}, v{vT1}, 3, v{vWR}
        s_lshr_b32 s{sT1}, s{sW}, 1
        s_lshl_b32 s{sT1}, s{sT1}, 14
        s_add_u32 s{sT1}, s{sT1}, {L_WB}
        v_add_u32 v{vWR}, s{sT1}, v{vWR}
        v_xor_b32 v{vWR+1}, 64, v{vWR}
        """)
    def wofrags(base, g2):
        for hh in range(8):
            a(f"ds_read_b64_tr_b16 {vr(base+32*g2+4*hh,2)}, v{vWR+g2} offset:{hh*2048}")
            a(f"ds_read_b64_tr_b16 {vr(base+32*g2+4*hh+2,2)}, v{vWR+g2} offset:{hh*2048+1024}")
    def upper(base):
        def f0():
            woaddr()
            await_cnt(C_WO, 4)
            wofrags(WFB, 0)
        def f1():
            wofrags(WFB, 1)
        def f2():
            a("s_waitcnt lgkmcnt(0)")
            arrive(C_UP)
        return f0, f1, f2

    sb = Stream(cfg.depB, cfg.nB, init=vq)
    def barS(c):
        sb.wait(c)
        a("s_barrier")
        bst(c)
        while nxtB[0] <= min(c + cfg.look, 15):
            issue_chunk(nxtB[0]); sb.push(nxtB[0], 8); nxtB[0] += 1
    for c in range(cfg.pollB + 1, cfg.kvB + 1): barS(c)
    sb.wait("kvf")
    stamp(4)
    poll(vGA, vG, 0xffffffff, first_issued=True)
    att_setup(0, cfg.nB)
    barT = cfg.barT
    assert len(barT) == 15 - cfg.kvB
    sb.prologue(mid=lambda: [barS(cfg.kvB + 1 + i) for i, t in enumerate(barT) if t == 0], pk=cfg.pkB)
    stamp(5)
    vJ0, vJ1, vJ2 = 9, 10, 11
    def stB(): stamp(6)
    def stB2(): stamp(14)
    assert cfg.depB <= 4
    jobs = {7: [stB], 11: [stB2]}
    for i, t in enumerate(barT):
        if t: jobs.setdefault(t - 1, []).append(lambda c=cfg.kvB + 1 + i: barS(c))
    for i, f in enumerate(upper(L_WB)):
        if f.__name__ not in cfg.skip: jobs.setdefault(cfg.upB + i, []).append(f)
    sb.run(jobs, cfg.prioB)
    a("s_branch L_tail")

    a.label("L_attA")
    nA = 64 - cfg.nB
    att_setup(cfg.nB, nA)
    sa = Stream(cfg.depA, nA, init=["pst"] * 4)
    a(f"""
    v_lshrrev_b32 v{vT}, 3, v{vLANE}
    v_bfe_u32 v{vT1}, v{vLANE}, 4, 1
    v_lshlrev_b32 v{vT1}, 2, v{vT1}
    v_and_b32 v{vT2}, 7, v{vLANE}
    v_xor_b32 v{vT1}, v{vT1}, v{vT2}
    v_lshlrev_b32 v{vT1}, 4, v{vT1}
    v_lshl_add_u32 v{vWOA}, v{vT}, 10, v{vT1}
    s_lshl_b32 s{sT0}, s{sHG}, 7
    s_lshl_b32 s{sT1}, s{sJ}, 17
    s_add_u32 s{sT0}, s{sT0}, s{sT1}
    v_add_u32 v{vWOA}, s{sT0}, v{vWOA}
    s_and_b32 s{sWO}, s{sRB}, 7
    s_lshl_b32 s{sWO}, s{sWO}, 1
    s_lshl_b32 s{sWOM}, s{sJ}, 14
    """)
    a(f"""
    v_mov_b32 v{S}, -1
    v_mov_b32 v{S+1}, -1
    v_mov_b32 v{S+2}, -1
    v_mov_b32 v{S+3}, -1
    s_lshl_b32 s{sT0}, s{sRB}, 6
    s_add_u32 s{sT0}, s{sT0}, s{sH}
    s_lshl_b32 s{sT0}, s{sT0}, 10
    s_add_u32 s{sT0}, s{sT0}, {WS_OB}
    s_add_u32 s{sT1}, s{sT0}, 32768
    buffer_store_dwordx4 {vr(S,4)}, v{vL16}, {sr(rWS,4)}, s{sT0} offen sc1
    buffer_store_dwordx4 {vr(S,4)}, v{vL16}, {sr(rWS,4)}, s{sT1} offen sc1
    """)
    sa.push("poison", 2)
    sa.prologue(pk=cfg.pkA)
    JD = RING + 12 * cfg.depA
    KT = JD + 32
    assert KT + 8 <= 248
    RD = JD
    assert RD + 16 <= 248
    def red0():
        a(f"""
        s_lshr_b32 s{sT0}, s{sRB}, 3
        s_lshl_b32 s{sT1}, s{sHG}, 2
        s_add_u32 s{sJB}, s{sT0}, s{sT1}
        s_lshl_b32 s{sT1}, s{sJB}, 7
        s_lshl_b32 s{sT0}, s{sJ}, 5
        s_add_u32 s{sT1}, s{sT1}, s{sT0}
        s_add_u32 s{sT1}, s{sT1}, {FL_P}
        v_lshl_add_u32 v{vJ0}, v{vLANE}, 2, s{sT1}
        s_mov_b64 exec, 0xff
        buffer_load_dword v{vJ1}, v{vJ0}, {sr(rWS,4)}, 0 offen sc1
        s_mov_b64 exec, -1
        """)
        sa.push("fp")
    def red1():
        sa.wait("fp")
        poll(vJ0, vJ1, 0xff, first_issued=True)
        a(f"""
        s_lshl_b32 s{sJB}, s{sJB}, 3
        s_and_b32 s{sT1}, s{sRB}, 7
        s_add_u32 s{sJB}, s{sJB}, s{sT1}
        s_mul_i32 s{sT1}, s{sJB}, {32*384}
        s_mul_i32 s{sT0}, s{sJ}, {8*384}
        s_add_u32 s{sT1}, s{sT1}, s{sT0}
        s_add_u32 s{sT1}, s{sT1}, {WS_P}
        v_lshrrev_b32 v{vJ1}, 5, v{vLANE}
        v_mul_u32_u24 v{vJ0}, 384, v{vJ1}
        v_and_b32 v{vJ2}, 31, v{vLANE}
        v_lshl_add_u32 v{vJ0}, v{vJ2}, 4, v{vJ0}
        v_lshlrev_b32 v{vJ1}, 2, v{vJ1}
        v_lshl_add_u32 v{vJ1}, v{vJ2}, 3, v{vJ1}
        s_mov_b32 exec_lo, 0x1ffff
        s_mov_b32 exec_hi, 0x1ffff
        """)
        for i in range(4):
            a(f"buffer_load_dwordx4 {vr(RD+4*i,4)}, v{vJ0}, {sr(rWS,4)}, s{sT1} offen offset:{i*768} sc1")
        a("s_mov_b64 exec, -1")
        sa.push("part", 4)
    def red2():
        sa.wait("part")
        a(f"v_pk_add_f32 {vr(RD,2)}, {vr(RD,2)}, {vr(RD+4,2)}\nv_pk_add_f32 {vr(RD+2,2)}, {vr(RD+2,2)}, {vr(RD+6,2)}")
        a(f"v_pk_add_f32 {vr(RD+8,2)}, {vr(RD+8,2)}, {vr(RD+12,2)}\nv_pk_add_f32 {vr(RD+10,2)}, {vr(RD+10,2)}, {vr(RD+14,2)}")
        a(f"v_pk_add_f32 {vr(RD,2)}, {vr(RD,2)}, {vr(RD+8,2)}\nv_pk_add_f32 {vr(RD+2,2)}, {vr(RD+2,2)}, {vr(RD+10,2)}")
        l = lab("notlast")
        a(f"""
        s_mul_i32 s{sT0}, s{sJ}, 800
        s_add_u32 s{sT0}, s{sT0}, {L_XR}
        v_add_u32 v{vJ0}, s{sT0}, v{vL16}
        s_mov_b32 exec_lo, 0x1ffff
        s_mov_b32 exec_hi, 0x1ffff
        ds_write_b128 v{vJ0}, {vr(RD,4)}
        s_mov_b32 s{sJL}, 0
        s_waitcnt lgkmcnt(0)
        s_mov_b64 exec, 1
        ds_add_rtn_u32 v{vJ2}, v{vCNT}, v{vONE} offset:{C_RD}
        s_waitcnt lgkmcnt(0)
        v_cmp_eq_u32 vcc, 3, v{vJ2}
        s_mov_b64 exec, -1
        s_cbranch_vccz {l}
        s_mov_b32 s{sJL}, 1
        v_add_u32 v{vJ0}, {L_XR}, v{vL16}
        """)
        for i in range(4):
            a(f"ds_read_b128 {vr(RD+4*i,4)}, v{vJ0} offset:{i*800}")
        a("s_waitcnt lgkmcnt(0)")
        a(f"v_pk_add_f32 {vr(RD,2)}, {vr(RD,2)}, {vr(RD+4,2)}\nv_pk_add_f32 {vr(RD+2,2)}, {vr(RD+2,2)}, {vr(RD+6,2)}")
        a(f"v_pk_add_f32 {vr(RD+8,2)}, {vr(RD+8,2)}, {vr(RD+12,2)}\nv_pk_add_f32 {vr(RD+10,2)}, {vr(RD+10,2)}, {vr(RD+14,2)}")
        a(f"v_pk_add_f32 {vr(RD,2)}, {vr(RD,2)}, {vr(RD+8,2)}\nv_pk_add_f32 {vr(RD+2,2)}, {vr(RD+2,2)}, {vr(RD+10,2)}")
        a(f"""
        v_permlane32_swap_b32 v{RD}, v{RD+2}
        v_permlane32_swap_b32 v{RD+1}, v{RD+3}
        v_pk_add_f32 {vr(RD,2)}, {vr(RD,2)}, {vr(RD+2,2)}
        v_cvt_pk_bf16_f32 v{RD}, v{RD}, v{RD+1}
        s_lshl_b32 s{sT1}, s{sJB}, 8
        s_add_u32 s{sT1}, s{sT1}, {WS_F}
        s_mov_b32 exec_lo, 0x1ffff
        s_mov_b32 exec_hi, 0x1ffff
        buffer_store_dword v{RD}, v{vJ1}, {sr(rWS,4)}, s{sT1} offen sc1
        s_mov_b64 exec, -1
        """)
        a.label(l)
        sa.mark = len(sa.q)
        sa.push("after", 0)
        sa.stored_at = list(sa.q)
    def red3():
        n_new = sum(1 for t in sa.q if t not in sa.stored_at)
        l = lab("noffl")
        a(f"s_cmp_lg_u32 s{sJL}, 1\ns_cbranch_scc1 {l}")
        a(f"""
        s_lshr_b32 s{sT1}, s{sJB}, 3
        s_lshl_b32 s{sT1}, s{sT1}, 7
        s_and_b32 s{sT0}, s{sJB}, 7
        s_lshl_b32 s{sT0}, s{sT0}, 2
        s_add_u32 s{sT0}, s{sT0}, s{sT1}
        s_add_u32 s{sT0}, s{sT0}, {FL_F}
        v_mov_b32 v{vJ0}, s{sT0}
        s_waitcnt vmcnt({n_new})
        """)
        flag(vJ0, "1")
        a.label(l)
    def wopiece():
        a(f"""
        s_lshl_b32 s{sT0}, s{sWO}, 10
        s_add_u32 m0, s{sT0}, s{sWOM}
        s_lshl_b32 s{sT1}, s{sWO}, 13
        s_add_u32 s{sT0}, s{sT0}, {L_WB}
        buffer_load_dwordx4 v{vWOA}, {sr(rMISC,4)}, s{sT1} offen lds
        s_add_u32 m0, s{sT0}, s{sWOM}
        s_add_u32 s{sWO}, s{sWO}, 1
        s_and_b32 s{sWO}, s{sWO}, 15
        buffer_load_dwordx4 v{vWOA}, {sr(rXB,4)}, s{sT1} offen lds
        """)
        sa.push("wo", 2)
    def wodone():
        sa.wait("wo")
        arrive(C_WO)
    def oa0():
        a(f"""
        s_lshl_b32 s{sT0}, s{sRB}, 7
        s_lshl_b32 s{sT1}, s{sJ}, 5
        s_add_u32 s{sT0}, s{sT0}, s{sT1}
        s_add_u32 s{sT0}, s{sT0}, {FL_OA}
        v_lshl_add_u32 v{vJ0}, v{vLANE}, 2, s{sT0}
        s_mov_b64 exec, 0xff
        buffer_load_dword v{vJ1}, v{vJ0}, {sr(rWS,4)}, 0 offen sc1
        s_mov_b64 exec, -1
        """)
        sa.push("foa")
    def oa1(part):
        def f():
            if part == 0:
                sa.wait("foa")
                poll(vJ0, vJ1, 0xff, first_issued=True)
                await_cnt(C_UP, 8)
            off = (part >> 1) * 32768 + (part & 1) * 4096
            loff = L_WB + off
            a(f"""
            s_lshl_b32 s{sT0}, s{sRB}, 16
            s_lshl_b32 s{sT1}, s{sJ}, 13
            s_add_u32 s{sT0}, s{sT0}, s{sT1}
            s_add_u32 s{sT0}, s{sT0}, {WS_OA + off}
            s_add_u32 m0, s{sT1}, {loff}
            """)
            for i in range(4):
                a(f"buffer_load_dwordx4 v{vL16}, {sr(rWS,4)}, s{sT0} offen offset:{i*1024} sc1 lds")
            sa.push("wo", 4)
        return f
    def job0():
        sa.wait("pst")
        a(f"s_lshl_b32 s{sT0}, s{sH}, 7\ns_lshl_b32 s{sT1}, s{sRB}, 2\ns_add_u32 s{sT0}, s{sT0}, s{sT1}\ns_add_u32 s{sT0}, s{sT0}, {FL_P}\nv_mov_b32 v{vJ0}, s{sT0}")
        flag(vJ0, "1"); sa.push("fl")
    def job1():
        a(f"s_lshl_b32 s{sT0}, s{sH}, 7\ns_add_u32 s{sT0}, s{sT0}, {FL_F}\nv_lshl_add_u32 v{vJ0}, v{vLANE}, 2, s{sT0}")
        a(f"s_mov_b64 exec, 0xff\nbuffer_load_dword v{vJ1}, v{vJ0}, {sr(rWS,4)}, 0 offen sc1\ns_mov_b64 exec, -1")
        sa.push("ff")
        stamp(6)
    def job2():
        sa.wait("ff")
        poll(vJ0, vJ1, 0xff, first_issued=True)
        a(f"""
        v_and_b32 v{vJ0}, 31, v{vLANE}
        v_min_u32 v{vJ0}, 16, v{vJ0}
        v_lshlrev_b32 v{vJ0}, 3, v{vJ0}
        v_lshrrev_b32 v{vJ1}, 5, v{vLANE}
        v_lshl_add_u32 v{vJ0}, v{vJ1}, 8, v{vJ0}
        s_lshl_b32 s{sT0}, s{sH}, 11
        s_add_u32 s{sT0}, s{sT0}, {WS_F}
        """)
        for r4 in range(4):
            a(f"buffer_load_dwordx2 {vr(KT+2*r4,2)}, v{vJ0}, {sr(rWS,4)}, s{sT0} offen offset:{r4*512} sc1")
        sa.push("kt", 4)
        stamp(14)
    def job3a():
        sa.wait("kt")
        for ri in range(2):
            mfma(JD + 16 * ri, KT, PHI + 8 * ri, "0")
        for ri in range(2):
            mfma(JD + 16 * ri, KT + 4, PHI + 8 * ri + 4, JD + 16 * ri)
    def job3b():
        a(f"s_lshl_b32 s{sT0}, s{sRB}, 6\ns_add_u32 s{sT0}, s{sT0}, s{sH}\ns_lshl_b32 s{sT0}, s{sT0}, 10\ns_add_u32 s{sT0}, s{sT0}, {WS_OA}\ns_add_u32 s{sT1}, s{sT0}, 32768")
        for ri in range(2):
            d = JD + 16 * ri
            a(f"v_add_f32 v{d+8}, {f2u(1e-6)}, v{d+8}\nv_rcp_f32 v{d+8}, v{d+8}")
        for ri in range(2):
            d = JD + 16 * ri
            for i in range(4):
                a(f"v_pk_mul_f32 {vr(d+2*i,2)}, {vr(d+2*i,2)}, {vr(d+8,2)} op_sel:[0,0] op_sel_hi:[1,0]")
            cvt(d + 12, d, 4)
            a(f"buffer_store_dwordx4 {vr(d+12,4)}, v{vL16}, {sr(rWS,4)}, s{sT0+ri} offen sc1")
        sa.push("oa", 2)
    def job4():
        sa.wait("oa")
        a(f"s_lshl_b32 s{sT0}, s{sRB}, 7\ns_lshl_b32 s{sT1}, s{sH}, 2\ns_add_u32 s{sT0}, s{sT0}, s{sT1}\ns_add_u32 s{sT0}, s{sT0}, {FL_OA}\nv_mov_b32 v{vJ0}, s{sT0}")
        flag(vJ0, "1"); sa.push("fl")
    jobs = {}
    t0, t1, t2, t3, t4 = cfg.jobT
    for t, f in ((t0, job0), (t1, job1), (t2, job2), (t3, job3a), (t3 + 1, job3b), (t4, job4)): jobs.setdefault(t, []).append(f)
    for t, f in zip(cfg.redT, (red0, red1, red2, red3)): jobs.setdefault(t, []).append(f)
    for t in range(16): jobs.setdefault(t + cfg.woT, []).append(wopiece)
    jobs.setdefault(cfg.woT + 18, []).append(wodone)
    assert cfg.upA > t3 + 1 and cfg.depA <= 4
    for i, f in enumerate(upper(L_WA)): jobs.setdefault(cfg.upA + i, []).append(f)
    jobs.setdefault(cfg.oaT[0], []).append(oa0)
    for p in range(4): jobs.setdefault(cfg.oaT[1] + p, []).append(oa1(p))
    assert max(jobs) < nA
    if cfg.skip:
        for t in list(jobs):
            jobs[t] = [f for f in jobs[t] if f.__name__ not in cfg.skip]
    sa.run(jobs, cfg.prioA)
    sa.wait("wo")
    a.label("L_tail")
    stamp(7)

    CK = NM
    vCW, vCR = 6, 7
    a(f"""
    s_mul_i32 s{sT0}, s{sW}, 2304
    s_add_u32 s{sT0}, s{sT0}, {L_XC}
    v_add_u32 v{vCW}, s{sT0}, v{vL16}
    v_lshl_add_u32 v{vT}, v{vLANE}, 2, s{sT0}
    s_xor_b32 s{sT1}, s{sW}, 4
    s_mul_i32 s{sT1}, s{sT1}, 2304
    s_add_u32 s{sT1}, s{sT1}, {L_XC}
    v_add_u32 v{vCR}, s{sT1}, v{vL16}
    v_lshl_add_u32 v{vT1}, v{vLANE}, 2, s{sT1}
    """)
    vH, vHA = 248, 249
    a(f"""
    s_lshl_b32 s{sT0}, s{sRB}, 3
    s_add_u32 s{sT0}, s{sT0}, s{sHG}
    s_lshl_b32 s{sT0}, s{sT0}, 7
    s_lshr_b32 s{sT1}, s{sW}, 1
    s_lshl_b32 s{sT1}, s{sT1}, 3
    s_add_u32 s{sT0}, s{sT0}, s{sT1}
    s_add_u32 s{sT0}, s{sT0}, {FL_OB}
    v_lshl_add_u32 v{vHA}, v{vLANE}, 2, s{sT0}
    s_mov_b64 exec, 3
    buffer_load_dword v{vH}, v{vHA}, {sr(rWS,4)}, 0 offen sc1
    s_mov_b64 exec, -1
    """)
    a(f"s_cmp_ge_u32 s{sW}, 4\ns_cbranch_scc1 L_sendA")
    def check():
        a(f"v_mul_f32 v{CK}, 4.0, v{O+8}\nv_mul_f32 v{CK+1}, 4.0, v{O+24}")
        a(f"v_pk_mul_f32 {vr(CK,2)}, {vr(CK,2)}, 0 op_sel_hi:[1,0]")
        for i in range(8):
            r = O + 2 * i + (8 if i >= 4 else 0)
            a(f"v_pk_mul_f32 {vr(CK+2,2)}, {vr(r,2)}, 4.0 op_sel_hi:[1,0]")
            a(f"v_pk_fma_f32 {vr(CK,2)}, {vr(CK+2,2)}, 0, {vr(CK,2)} op_sel_hi:[1,0,1]")
        a(f"v_cmp_u_f32 vcc, v{CK}, v{CK+1}")
    a(f"""
    ds_write_b128 v{vCW}, {vr(O+16,4)}
    ds_write_b128 v{vCW}, {vr(O+20,4)} offset:1024
    ds_write_b32 v{vT}, v{O+24} offset:2048
    """)
    check()
    a("s_branch L_sent")
    a.label("L_sendA")
    a(f"""
    ds_write_b128 v{vCW}, {vr(O,4)}
    ds_write_b128 v{vCW}, {vr(O+4,4)} offset:1024
    ds_write_b32 v{vT}, v{O+8} offset:2048
    """)
    check()
    for i in range(0, 10, 2):
        a(f"v_pk_mov_b32 {vr(O+i,2)}, {vr(O+16+i,2)}, {vr(O+16+i,2)} op_sel:[0,1]")
    a.label("L_sent")
    l = lab("good")
    if cfg.force_redo:
        a(f"s_mov_b64 vcc, -1")
    a(f"s_cbranch_vccz {l}\nds_write_b32 v{vCNT}, v{vONE}")
    a.label(l)
    a(f"""
    s_lshr_b32 s{sT0}, s{sW}, 2
    s_xor_b32 s{sT0}, s{sT0}, s{sJ}
    s_and_b32 s{sT0}, s{sT0}, 1
    s_lshl_b32 s{sT1}, s{sRB}, 1
    s_add_u32 s{sT0}, s{sT0}, s{sT1}
    s_lshl_b32 s{sT0}, s{sT0}, 5
    s_add_u32 s{sT0}, s{sT0}, s{sH}
    s_lshl_b32 s{sT0}, s{sT0}, 10
    s_add_u32 s{sT0}, s{sT0}, {WS_OB}
    s_waitcnt lgkmcnt(0)
    s_barrier
    ds_read_b32 v{O+24}, v{vT1} offset:2048
    ds_read_b32 v{CK}, v{vCNT}
    ds_read_b128 {vr(O+16,4)}, v{vCR}
    ds_read_b128 {vr(O+20,4)}, v{vCR} offset:1024
    """)
    OFB, AB = 48, (16, 32)
    vOR, vOST, vXW, vXR, vOWN = 5, 7, 9, 10, 11
    sPEND, sOB = 86, 87
    a(f"""
    s_waitcnt lgkmcnt(2)
    v_add_f32 v{O+8}, v{O+8}, v{O+24}
    v_readfirstlane_b32 s{sT1}, v{CK}
    v_rcp_f32 v{O+10}, v{O+8}
    s_andn2_b32 s{sT1}, s{sT1}, s{sREDO}
    s_cmp_lg_u32 s{sT1}, 0
    s_waitcnt lgkmcnt(0)
    s_cbranch_scc1 L_slow
    """)
    for i in range(4):
        a(f"v_pk_add_f32 {vr(O+2*i,2)}, {vr(O+2*i,2)}, {vr(O+16+2*i,2)}")
    for i in range(4):
        a(f"v_pk_mul_f32 {vr(O+2*i,2)}, {vr(O+2*i,2)}, {vr(O+10,2)} op_sel:[0,0] op_sel_hi:[1,0]")
    OS = 96
    cvt(OS, O, 4)
    for i in range(4):
        a(f"v_min_u32 v{OS+i}, -2, v{OS+i}")
    a(f"buffer_store_dwordx4 {vr(OS,4)}, v{vL16}, {sr(rWS,4)}, s{sT0} offen sc1")
    l = lab("nohint")
    a(f"s_cmp_lg_u32 s{sW}, {cfg.hintw}\ns_cbranch_scc1 {l}")
    a(f"s_lshl_b32 s{sT0}, s{sRB}, 10\ns_lshl_b32 s{sT1}, s{sHG}, 2\ns_add_u32 s{sT0}, s{sT0}, s{sT1}\ns_add_u32 s{sT0}, s{sT0}, {FL_OB}")
    a(f"v_lshl_add_u32 v{vT}, v{vLANE}, 7, s{sT0}")
    flag(vT, "0xff")
    a.label(l)
    stamp(8)
    a(f"""
    s_lshr_b32 s{sT0}, s{sW}, 2
    s_xor_b32 s{sT0}, s{sT0}, s{sJ}
    s_and_b32 s{sT0}, s{sT0}, 1
    s_lshl_b32 s{sT0}, s{sT0}, 2
    s_add_u32 s{sT0}, s{sT0}, s{sJ}
    s_lshl_b32 s{sT0}, s{sT0}, 10
    s_add_u32 s{sT0}, s{sT0}, {L_X}
    v_add_u32 v{vT}, s{sT0}, v{vL16}
    ds_write_b128 v{vT}, {vr(OS,4)}
    s_and_b32 s{sT2}, s{sW}, 1
    s_lshr_b32 s{sT3}, s{sW}, 1
    s_lshl_b32 s{sT0}, s{sT2}, 15
    s_lshl_b32 s{sT1}, s{sT3}, 13
    s_add_u32 s{sT0}, s{sT0}, s{sT1}
    s_lshl_b32 s{sT1}, s{sRB}, 16
    s_add_u32 s{sOB}, s{sT0}, s{sT1}
    s_add_u32 s{sOB}, s{sOB}, {WS_OB}
    s_lshr_b32 s{sT0}, s{sHG}, 1
    s_and_b32 s{sT1}, s{sHG}, 1
    s_lshl_b32 s{sT1}, 1, s{sT1}
    s_cmp_eq_u32 s{sT0}, s{sT3}
    s_cselect_b32 s{sT1}, s{sT1}, 0
    s_andn2_b32 s{sPEND}, 3, s{sT1}
    s_waitcnt lgkmcnt(0)
    """)
    arrive(C_OB)
    def oload(g):
        l = lab("nol")
        a(f"s_bitcmp1_b32 s{sPEND}, {g}\ns_cbranch_scc0 {l}")
        if g: a(f"s_add_u32 s{sT0}, s{sOB}, 4096")
        for i in range(4):
            a(f"buffer_load_dwordx4 {vr(OFB+16*g+4*i,4)}, v{vL16}, {sr(rWS,4)}, s{sT0 if g else sOB} offen offset:{i*1024} sc1")
        a.label(l)
    def rowaddr(dst, sri):
        a(f"""
        v_and_b32 v{vT1}, 31, v{vLANE}
        s_lshl_b32 s{sT0}, s{sRB}, 1
        s_add_u32 s{sT0}, s{sT0}, s{sri}
        s_lshl_b32 s{sT0}, s{sT0}, 5
        v_add_u32 v{vT1}, s{sT0}, v{vT1}
        v_lshlrev_b32 v{dst}, 11, v{vT1}
        v_lshrrev_b32 v{vT1}, 5, v{vLANE}
        v_lshl_add_u32 v{dst}, v{vT1}, 5, v{dst}
        """)
    sOWN = 88
    def first_look(n):
        l = lab("fl")
        a(f"""
        v_mov_b32 v{OFB}, -1
        v_mov_b32 v{OFB+16}, -1
        s_waitcnt vmcnt({n+1})
        s_cmp_eq_u32 s{sW}, {cfg.hintw}
        s_cbranch_scc1 {l}
        s_waitcnt vmcnt({n})
        {l}:
        s_mov_b64 exec, 3
        v_cmp_ne_u32 vcc, 0, v{vH}
        s_mov_b64 exec, -1
        s_and_b32 s{sPEND}, s{sOWN}, vcc_lo
        """)
    a(f"s_mov_b32 s{sOWN}, s{sPEND}")
    a(f"s_cmp_lt_u32 s{sW}, 4\ns_cbranch_scc1 L_tailB")
    PA, PW, PO, PS = 80, 104, 136, 168
    a(f"""
    v_bfe_u32 v{vT1}, v{vLANE}, 2, 2
    v_lshrrev_b32 v{vT2}, 5, v{vLANE}
    v_lshl_add_u32 v{vT1}, v{vT2}, 2, v{vT1}
    v_lshlrev_b32 v{vWR}, 7, v{vT1}
    s_lshr_b32 s{sT1}, s{sJ}, 1
    v_bfe_u32 v{vT1}, v{vLANE}, 3, 1
    v_xor_b32 v{vT1}, s{sT1}, v{vT1}
    v_lshl_add_u32 v{vWR}, v{vT1}, 6, v{vWR}
    v_and_b32 v{vT1}, 1, v{vLANE}
    v_lshl_add_u32 v{vWR}, v{vT1}, 5, v{vWR}
    v_bfe_u32 v{vT1}, v{vLANE}, 4, 1
    v_lshl_add_u32 v{vWR}, v{vT1}, 4, v{vWR}
    v_bfe_u32 v{vT1}, v{vLANE}, 1, 1
    v_lshl_add_u32 v{vWR}, v{vT1}, 3, v{vWR}
    s_lshl_b32 s{sT0}, s{sT2}, 15
    s_add_u32 s{sT0}, s{sT0}, {L_WB}
    v_add_u32 v{vOR}, s{sT0}, v{vL16}
    """)
    assert L_WA == 0
    DP = 4
    def rd(q):
        a(f"ds_read_b64_tr_b16 {vr(PW+4*(q%8),2)}, v{vWR} offset:{q*2048}")
        a(f"ds_read_b64_tr_b16 {vr(PW+4*(q%8)+2,2)}, v{vWR} offset:{q*2048+1024}")
        a(f"ds_read_b128 {vr(PO+4*(q%8),4)}, v{vOR} offset:{q*1024}")
    for q in range(DP): rd(q)
    for q in range(32):
        a(f"s_waitcnt lgkmcnt({3*min(DP-1, 31-q)})")
        mfma(PA, PW + 4 * (q % 8), PO + 4 * (q % 8), "0" if q == 0 else PA)
        if q + DP < 32: rd(q + DP)
        if q == cfg.aload:
            first_look(1)
            oload(0)
        if q == cfg.aload + 4: oload(1)
        if q == 31 - DP:
            rowaddr(vOST, sT2)
            a(f"s_lshl_b32 s{sT0}, s{sHG}, 7\ns_lshr_b32 s{sT1}, s{sJ}, 1\ns_lshl_b32 s{sT1}, s{sT1}, 6\ns_add_u32 s{sT0}, s{sT0}, s{sT1}\nv_add_u32 v{vOST}, s{sT0}, v{vOST}")
    arrive(C_OA)
    cvt(PS, PA, 8)
    a(f"buffer_store_dwordx4 {vr(PS,4)}, v{vOST}, {sr(rOUT,4)}, 0 offen {cfg.out_sc}")
    a(f"buffer_store_dwordx4 {vr(PS+4,4)}, v{vOST}, {sr(rOUT,4)}, 0 offen offset:16 {cfg.out_sc}")
    a("s_branch L_tailAB")
    a.label("L_tailB")
    first_look(1)
    oload(0); oload(1)
    a.label("L_tailAB")
    stamp(9)
    rowaddr(vOST, sT2)
    a(f"""
    s_lshl_b32 s{sT0}, s{sHG}, 7
    s_lshr_b32 s{sT1}, s{sW}, 2
    s_lshl_b32 s{sT1}, s{sT1}, 6
    s_add_u32 s{sT0}, s{sT0}, s{sT1}
    s_and_b32 s{sT1}, s{sT3}, 1
    s_lshl_b32 s{sT1}, s{sT1}, 4
    s_add_u32 s{sT0}, s{sT0}, s{sT1}
    v_add_u32 v{vOST}, s{sT0}, v{vOST}
    s_mul_i32 s{sT0}, s{sW}, 6144
    v_add_u32 v{vXR}, s{sT0}, v{vL16}
    s_lshl_b32 s{sT0}, s{sT2}, 12
    s_add_u32 s{sT0}, s{sT0}, {L_X}
    v_add_u32 v{vOWN}, s{sT0}, v{vL16}
    """)
    l = lab("noown")
    a(f"s_cmp_eq_u32 s{sOWN}, 3\ns_cbranch_scc1 {l}")
    await_cnt(C_OB, 8)
    for g in range(2):
        l2 = lab("own")
        a(f"s_bitcmp1_b32 s{sOWN}, {g}\ns_cbranch_scc1 {l2}")
        for i in range(4):
            a(f"ds_read_b128 {vr(OFB+16*g+4*i,4)}, v{vOWN} offset:{i*1024}")
        a.label(l2)
    a.label(l)
    for g2 in range(2):
        for i in range(0, 16, 2):
            a(f"v_pk_mov_b32 {vr(AB[g2]+i,2)}, 0, 0")
    def mm(acc, wfb, of, hhs):
        for hh in hhs:
            for g2 in range(2):
                mfma(acc[g2], wfb + 32 * g2 + 4 * hh, of + 4 * hh, acc[g2])
    a(f"s_mov_b32 s{sT3}, 3\ns_mov_b32 s{sCNT}, {cfg.spin}")
    l1, l2 = lab("wv"), lab("wv")
    a(f"s_cmp_lt_u32 s{sW}, 4\ns_cbranch_scc1 {l1}\ns_waitcnt vmcnt(2) lgkmcnt(0)\ns_branch {l2}")
    a.label(l1)
    a("s_waitcnt vmcnt(0) lgkmcnt(0)")
    a.label(l2)
    a.label("L_otry")
    for g in range(2):
        l, l2 = lab("og"), lab("og")
        a(f"s_bitcmp1_b32 s{sT3}, {g}\ns_cbranch_scc0 {l}")
        b = OFB + 16 * g
        a(f"v_max3_u32 v{vT}, v{b}, v{b+1}, v{b+2}")
        for i in range(3, 15, 2):
            a(f"v_max3_u32 v{vT}, v{vT}, v{b+i}, v{b+i+1}")
        a(f"v_max_u32 v{vT}, v{vT}, v{b+15}\nv_cmp_eq_u32 vcc, -1, v{vT}")
        a(f"s_cmp_eq_u32 s{sCNT}, 0\ns_cbranch_scc1 {l2}\ns_cbranch_vccnz {l}")
        a.label(l2)
        mm(AB, WFB, OFB, range(4 * g, 4 * g + 4))
        a(f"s_bitset0_b32 s{sT3}, {g}")
        a.label(l)
    a(f"s_cmp_eq_u32 s{sT3}, 0\ns_cbranch_scc1 L_odone")
    lp, dn = lab("hint"), lab("hintd")
    a(f"s_mov_b32 s{sPEND}, s{sT3}\ns_mov_b64 exec, 3")
    a.label(lp)
    if cfg.tsleep: a(f"s_sleep {cfg.tsleep}")
    a(f"buffer_load_dword v{vH}, v{vHA}, {sr(rWS,4)}, 0 offen sc1")
    a(f"s_sub_u32 s{sCNT}, s{sCNT}, 1\ns_cmp_eq_u32 s{sCNT}, 0\ns_cbranch_scc1 {dn}")
    a(f"s_waitcnt vmcnt(0)\nv_cmp_ne_u32 vcc, 0, v{vH}\ns_and_b32 s{sPEND}, s{sT3}, vcc_lo\ns_cbranch_scc0 {lp}")
    a.label(dn)
    a("s_mov_b64 exec, -1")
    oload(0); oload(1)
    a("s_waitcnt vmcnt(0)\ns_branch L_otry")
    a.label("L_odone")
    stamp(10)
    await_cnt(C_OA, 4)
    stamp(11)
    def grp(acc, g):
        return acc[g >> 1] + 8 * (g & 1)
    for g in range(1, 4):
        a(f"s_xor_b32 s{sT0}, s{sW}, {2*g}\ns_mul_i32 s{sT0}, s{sT0}, 6144\ns_add_u32 s{sT0}, s{sT0}, {(g-1)*2048}\nv_add_u32 v{vXW}, s{sT0}, v{vL16}")
        a(f"ds_write_b128 v{vXW}, {vr(grp(AB,g),4)}\nds_write_b128 v{vXW}, {vr(grp(AB,g)+4,4)} offset:1024")
    a("s_waitcnt lgkmcnt(0)\ns_barrier")
    stamp(12)
    tmp = 104
    for i in range(6):
        a(f"ds_read_b128 {vr(tmp+4*i,4)}, v{vXR} offset:{i*1024}")
    d = AB[0]
    for g in range(3):
        a(f"s_waitcnt lgkmcnt({4-2*g})")
        for i in range(4):
            a(f"v_pk_add_f32 {vr(d+2*i,2)}, {vr(d+2*i,2)}, {vr(tmp+8*g+2*i,2)}")
    cvt(tmp + 24, d, 4)
    a(f"buffer_store_dwordx4 {vr(tmp+24,4)}, v{vOST}, {sr(rOUT,4)}, 0 offen offset:1024 {cfg.out_sc}")
    stamp(13)
    if cfg.diag:
        da, db, base = cfg.diag
        ra = sPROF if da == 0 else 92
        if db == 0:
            a(f"s_mov_b32 s{sT2}, 0")
        elif db == 15:
            a(f"s_waitcnt vmcnt(0)\ns_memrealtime s[{sT0}:{sT1}]\ns_waitcnt lgkmcnt(0)\ns_sub_u32 s{sT2}, s{sT0}, s{ra}")
        elif db == 16:
            a(f"s_waitcnt vmcnt(0)\ns_memtime s[{sT0}:{sT1}]\ns_waitcnt lgkmcnt(0)\ns_sub_u32 s{sT2}, s{sT0}, s100\ns_lshr_b32 s{sT2}, s{sT2}, 4")
        else:
            a(f"s_sub_u32 s{sT2}, s94, s{ra}")
        a(f"s_add_u32 s{sT2}, s{sT2}, {base}\ns_min_u32 s{sT2}, s{sT2}, 30000")
        a(f"s_cmp_lg_u32 s{sW}, 0\ns_cbranch_scc1 L_end")
        if cfg.diag_wb: a("s_waitcnt vmcnt(0)\ns_sleep 100\nbuffer_wbl2 sc1\ns_waitcnt vmcnt(0)")
        a.label("L_diag")
        a(f"s_memrealtime s[{sT0}:{sT1}]\ns_waitcnt lgkmcnt(0)\ns_sub_u32 s{sT0}, s{sT0}, s{sPROF}\ns_cmp_lt_u32 s{sT0}, s{sT2}\ns_cbranch_scc1 L_diag")
    if cfg.prof:
        a("s_waitcnt vmcnt(0)")
        stamp(15)
        a(f"s_getreg_b32 s{sT2}, hwreg(HW_REG_XCC_ID)\nv_writelane_b32 v255, s{sT2}, 32")
        a(f"s_lshl_b32 s{sT0}, s2, 3\ns_add_u32 s{sT0}, s{sT0}, s{sW}\ns_lshl_b32 s{sT0}, s{sT0}, 8\ns_add_u32 s{sT0}, s{sT0}, {WS_PROF}")
        a(f"v_lshlrev_b32 v{vT}, 2, v{vLANE}")
        a(f"buffer_store_dword v255, v{vT}, {sr(rWS,4)}, s{sT0} offen")
        if cfg.tprof:
            a(f"s_add_u32 s{sT0}, s{sT0}, {WS_DBG - WS_PROF}\nbuffer_store_dword v252, v{vT}, {sr(rWS,4)}, s{sT0} offen")
    a("s_endpgm")

    SL = O
    a.label("L_slow")
    a(f"s_mov_b32 s{sREDO}, 1\ns_mov_b32 s{sKV}, s{sKV0}\ns_mov_b32 s{sCNT}, s{sNIT}")
    a(f"v_mov_b32 v{SL}, 0xff800000\nv_mov_b32 v{SL+1}, 0xff800000")
    a.label("L_slow_loop")
    a(f"buffer_load_dwordx4 {vr(RING,4)}, v{vOFFK}, {sr(rWS,4)}, s{sKV} offen sc1\ns_add_u32 s{sKV}, s{sKV}, 2048\ns_and_b32 s{sKV}, s{sKV}, 0x1ffff\ns_waitcnt vmcnt(0)")
    mfma(S, RING, Qf, "0")
    mfma(S + 16, RING, Qf + 4, "0")
    maxtree(SL, S, 16, init=True)
    maxtree(SL + 1, S + 16, 16, init=True)
    a(f"s_sub_u32 s{sCNT}, s{sCNT}, 1\ns_cmp_lg_u32 s{sCNT}, 0\ns_cbranch_scc1 L_slow_loop")
    crossmax(SL)
    a(f"""
    s_lshl_b32 s{sT0}, s{sW}, 8
    s_add_u32 s{sT0}, s{sT0}, {L_X + 28672}
    v_lshl_add_u32 v{vT}, v{vLANE}, 2, s{sT0}
    ds_write_b32 v{vT}, v{SL}
    v_xor_b32 v{vT}, 0x400, v{vT}
    s_waitcnt lgkmcnt(0)
    s_barrier
    ds_read_b32 v{SL+1}, v{vT}
    s_waitcnt lgkmcnt(0)
    v_max_f32 v{SL}, v{SL}, v{SL+1}
    v_sub_f32 v{SL}, 0, v{SL}
    v_mov_b32 v{SL+1}, v{SL}
    v_permlane32_swap_b32 v{SL}, v{SL+1}
    """)
    nmfill(SL)
    sr2 = Stream(2, 2)
    sr2.prologue(single=True)
    a(f"s_lshr_b32 s{sCNT}, s{sNIT}, 1\ns_nop 7\ns_nop 3")
    a.label("L_redo_loop")
    sr2.tile(0, looped=True)
    sr2.tile(1, looped=True)
    a(f"s_sub_u32 s{sCNT}, s{sCNT}, 1\ns_cmp_lg_u32 s{sCNT}, 0\ns_cbranch_scc1 L_redo_loop")
    smf(O + 16, sr2.ring(1)[2], S + 16 + 8)
    a("s_waitcnt vmcnt(0)\ns_branch L_tail")
    a.label("L_end")
    a("s_endpgm")
    npad = a.pad()
    head = open(f"cdna_kernels/{NAME}.s.ref").read().split("; Override launch")[0]
    txt = head + f"""; Generated by gen/gen.py (hand-written generator).
; @launch grid=(256,1,1) block=(512,1,1) lds={LDS_SIZE}
.amdgcn_target "amdgcn-amd-amdhsa--gfx950"
.text
.globl {NAME}_kernel
.p2align 8
.type {NAME}_kernel,@function
{NAME}_kernel:
""" + a.text() + f""".section .rodata,"a"
.p2align 6
.amdhsa_kernel {NAME}_kernel
  .amdhsa_next_free_vgpr 256
  .amdhsa_next_free_sgpr 102
  .amdhsa_accum_offset 256
  .amdhsa_group_segment_fixed_size 0
  .amdhsa_kernarg_size 80
  .amdhsa_user_sgpr_count 2
  .amdhsa_user_sgpr_kernarg_segment_ptr 1
  .amdhsa_system_sgpr_workgroup_id_x 1
.end_amdhsa_kernel
"""
    return txt, npad

if __name__ == "__main__":
    kw = {}
    out = f"cdna_kernels/{NAME}.s"
    for arg in sys.argv[1:]:
        k, v = arg.split("=", 1)
        if k == "out":
            out = v
        else:
            kw[k] = eval(v)
    txt, npad = gen(Cfg(**kw))
    open(out, "w").write(txt)
    print("wrote", out, "nop states inserted:", npad, "lines:", txt.count("\n"))
```

```python
import math, struct, sys
from asmlib import Asm, vr, sr

NAME = "concat_heads__linear_kernel_hedgehog__softmax_full_mha__prompt"

def f2u(x):
    return struct.unpack("<I", struct.pack("<f", x))[0]

class Cfg:
    prof = False
    stop = 99
    mapping = "N"
    force_redo = False
    nrep = 8
    bias = 100.0
    out_sc = ""
    prio = True
    pref_sc = ''
    rot = (4, 4, 2)
    rotA = (1, 2, 1)
    sprefB = 0
    look = 2
    nB = 24
    depB, depA = 4, 4
    redT = (7, 9, 11, 14)
    jobT = (0, 19, 21, 23, 26)
    prioB = ((0, 0),)
    prioA = ((0, 3),)
    kvrot = True
    diag_wb = False
    split_ld = False
    earlyset = True
    l2A = None
    pre9 = 1
    bnear = False
    sslow = 'b'
    sslowA = (0, 4)
    outA_t = False
    outA_sc = ''
    nfirst = 1
    gat_at = -1
    a3 = True
    slowpref = ''
    tprof = False
    skip = ()
    tailmode = 0
    drq = 4
    aload = 10
    hintw = 7
    tsleep = 0
    coupled = True
    lastA = 8
    flag_at = 10
    pollB = 13
    kvB = 14
    barT = (0,)
    woT = 1
    upA, upB = 26, 17
    oaT = (35, 36)
    itB = 9
    redB = 5
    hold8 = 1
    onepoll = True
    psleep = 2
    hold9 = False
    prB = (4, 1)
    prA = (3, 1)
    wopref = False
    oa_first = True
    spref = None
    codepref = 'xcd'
    ninit = 2
    pref = 'uniq'
    prefA = (99, 99)
    spin = 1 << 18
    diag = None
    def __init__(self, **kw):
        for k, v in kw.items():
            assert hasattr(self, k), k
            setattr(self, k, v)

WS_KV = 0
WS_OA = 4 << 20
WS_OB = 6 << 20
WS_P = 8 << 20
WS_F = 11 << 20
WS_FL = (11 << 20) + 65536
FL_OB = WS_FL
FL_P = WS_FL + 32768
FL_F = FL_P + 4096
FL_OA = FL_F + 4096
FL_KV = FL_OA + 4096
WS_PROF = 12 << 20
WS_DBG = 13 << 20
WS_SIZE = 16 << 20

L_WA = 0
L_WB = 65536
L_X = 131072
L_XM = L_X + 8192
L_XC = L_X + 10240
L_XV = L_X + 12288
L_XR = L_X + 28672
L_BAD = L_X + 32512
C_KV, C_WO, C_GO, C_RD, C_OA, C_OB, C_UP, C_DR = 4, 8, 12, 16, 20, 24, 28, 68
LDS_SIZE = 163840

sW, sJ, sRB, sHG, sH = 3, 4, 5, 6, 7
rXB, rWB, rXA, rWA, rWS, rOUT, rMISC, rDBG = 8, 12, 16, 20, 24, 28, 32, 36
kAX, kAW, kAP, kAO, kBX, kBW, kBO, kOUT, kDBG, kWS = range(40, 60, 2)
sM, sO0, sO1, sO2 = 60, 61, 62, 63
sC = 64
sVM = 66
sCNT, sKV, sKVMAX, sWO, sWOM, sREDO = 68, 69, 70, 71, 72, 73
sT0, sT1, sT2, sT3 = 74, 75, 76, 77
sSPIN = 78
sKV0 = 79
sROT = 82
sROTA = 70
sNIT = 83
sJB, sJL = 90, 91
sPROF = 80

vL16, vLANE = 0, 1
vT = 2
vX0, vX1, vWq, vWk, vWv = 3, 4, 5, 6, 7
vXA = 8
vQK, vV = 12, 13
vPX, vPW = 34, 35
vXB = 24
vT1, vT2 = 14, 15
vCNT, vONE = 254, 253
vOFFV, vIDX = 250, 251
vWOA = 5
Qf = 16
PHI = 24
NM = 40
O = 72
S = 104
RING = 136
SCR = 184
FR = 104
ACC = 184

def gen(cfg):
    a = Asm()
    uid = [0]
    def lab(p):
        uid[0] += 1
        return f"L_{p}_{uid[0]}"
    nstamp = [0]
    def stamp(idx):
        if cfg.prof:
            a(f"s_memrealtime s[96:97]\ns_memtime s[98:99]\ns_waitcnt lgkmcnt(0)\nv_writelane_b32 v255, s96, {idx}\nv_writelane_b32 v255, s98, {16+idx}")
        elif cfg.diag and idx in cfg.diag[:2]:
            a(f"s_memrealtime {sr(92 if idx == cfg.diag[0] else 94, 2)}\ns_waitcnt lgkmcnt(0)")
    def srd(r, k, size):
        a(f"s_mov_b32 s{r}, s{k}\ns_mov_b32 s{r+1}, s{k+1}\ns_mov_b32 s{r+2}, {size}\ns_mov_b32 s{r+3}, 0x00020000")
    def mfma(d, x, y, c):
        cc = c if isinstance(c, str) else vr(c, 16)
        a(f"v_mfma_f32_32x32x16_bf16 {vr(d,16)}, {vr(x,4)}, {vr(y,4)}, {cc}")
    def cvt(d, s0, n):
        for i in range(n):
            a(f"v_cvt_pk_bf16_f32 v{d+i}, v{s0+2*i}, v{s0+2*i+1}")
    def poll(vaddr, vdst, mask, srdr=rWS, soff="0", first_issued=False, sleep=0):
        lp, dn = lab("poll"), lab("polld")
        a(f"s_mov_b64 exec, {mask}" if isinstance(mask, str) else f"s_mov_b32 exec_lo, {mask & 0xffffffff}\ns_mov_b32 exec_hi, {mask >> 32}")
        a(f"s_mov_b32 s{sSPIN}, {cfg.spin}")
        if first_issued:
            a(f"v_cmp_eq_u32 vcc, 0, v{vdst}\ns_cbranch_vccz {dn}")
        a.label(lp)
        if sleep: a(f"s_sleep {sleep}")
        a(f"buffer_load_dword v{vdst}, v{vaddr}, {sr(srdr,4)}, {soff} offen sc1")
        a(f"s_sub_u32 s{sSPIN}, s{sSPIN}, 1\ns_cbranch_scc1 {dn}")
        a(f"s_waitcnt vmcnt(0)\nv_cmp_eq_u32 vcc, 0, v{vdst}\ns_cbranch_vccnz {lp}")
        a.label(dn)
        a("s_mov_b64 exec, -1")
    def flag(vaddr, mask, soff="0", srdr=rWS):
        a(f"v_mov_b32 v{vT2}, 1")
        mask = int(mask, 0)
        a(f"s_mov_b32 exec_lo, {mask & 0xffffffff}\ns_mov_b32 exec_hi, {mask >> 32}")
        a(f"buffer_store_dword v{vT2}, v{vaddr}, {sr(srdr,4)}, {soff} offen sc1")
        a("s_mov_b64 exec, -1")

    def nmfill(src):
        assert src % 2 == 0
        for i in range(0, 16, 2):
            a(f"v_pk_mov_b32 {vr(NM+i,2)}, {vr(src,2)}, {vr(src,2)} op_sel:[0,0]\nv_pk_mov_b32 {vr(NM+16+i,2)}, {vr(src,2)}, {vr(src,2)} op_sel:[1,1]")
    def arrive(off):
        a(f"s_mov_b64 exec, 1\nds_add_u32 v{vCNT}, v{vONE} offset:{off}\ns_mov_b64 exec, -1")
    def await_cnt(off, target):
        lp, dn = lab("cw"), lab("cwd")
        a(f"s_mov_b64 exec, 1\ns_mov_b32 s{sSPIN}, {cfg.spin * 16}")
        a.label(lp)
        a(f"ds_read_b32 v{vT2}, v{vCNT} offset:{off}\ns_sub_u32 s{sSPIN}, s{sSPIN}, 1\ns_cbranch_scc1 {dn}")
        a(f"s_waitcnt lgkmcnt(0)\nv_cmp_gt_u32 vcc, {target}, v{vT2}\ns_cbranch_vccnz {lp}")
        a.label(dn)
        a("s_mov_b64 exec, -1")

    a(f"s_cmp_ge_u32 s2, 256\ns_cbranch_scc1 L_end")
    a(f"s_load_dwordx2 {sr(rXB,2)}, s[0:1], 32\ns_load_dwordx2 {sr(rWB,2)}, s[0:1], 40")
    a(f"s_load_dwordx16 s[40:55], s[0:1], 0\ns_load_dwordx4 s[56:59], s[0:1], 64")
    if cfg.prof or cfg.diag:
        a(f"s_memrealtime {sr(sPROF,2)}\ns_memtime s[100:101]")
    def code_prefetch(tag):
        a(f"s_getpc_b64 s[{sT0}:{sT1}]")
        a.label(f"L_pc{tag}")
        a(f"s_sub_u32 s{sT0}, s{sT0}, L_pc{tag}-{NAME}_kernel\ns_subb_u32 s{sT1}, s{sT1}, 0")
        a(f"s_lshr_b32 s{sT2}, s2, 3\ns_lshl_b32 s{sT2}, s{sT2}, 2\ns_add_u32 s{sT2}, s{sT2}, s{sJ}\ns_mul_i32 s{sT2}, s{sT2}, 3")
        a(f"v_min_u32 v{vT}, 2, v{vLANE}\nv_add_u32 v{vT}, s{sT2}, v{vT}")
        a(f"v_lshlrev_b32 v{vT}, 7, v{vT}\nv_min_u32 v{vT}, L_end-{NAME}_kernel, v{vT}")
        a(f"global_load_dword v39, v{vT}, s[{sT0}:{sT1}]")
    a(f"v_lshrrev_b32 v{vT}, 6, v0\nv_and_b32 v{vLANE}, 63, v0\nv_readfirstlane_b32 s{sW}, v{vT}")
    if cfg.mapping == "R":
        a(f"s_and_b32 s{sT0}, s2, 7\ns_lshl_b32 s{sT0}, s{sT0}, 2\ns_bfe_u32 s{sT1}, s2, 0x20003\ns_add_u32 s{sRB}, s{sT0}, s{sT1}\ns_lshr_b32 s{sHG}, s2, 5")
    elif cfg.mapping == "H":
        a(f"s_and_b32 s{sHG}, s2, 7\ns_lshr_b32 s{sRB}, s2, 3")
    elif cfg.mapping == "M":
        a(f"s_and_b32 s{sT0}, s2, 3\ns_lshl_b32 s{sT0}, s{sT0}, 1\ns_bfe_u32 s{sT1}, s2, 0x10003\ns_add_u32 s{sHG}, s{sT0}, s{sT1}")
        a(f"s_bfe_u32 s{sT0}, s2, 0x10002\ns_lshl_b32 s{sT0}, s{sT0}, 4\ns_lshr_b32 s{sT1}, s2, 4\ns_add_u32 s{sRB}, s{sT0}, s{sT1}")
    elif cfg.mapping == "N":
        a(f"s_and_b32 s{sT0}, s2, 1\ns_lshl_b32 s{sT0}, s{sT0}, 2\ns_bfe_u32 s{sT1}, s2, 0x20003\ns_add_u32 s{sHG}, s{sT0}, s{sT1}")
        a(f"s_bfe_u32 s{sT0}, s2, 0x20001\ns_lshl_b32 s{sT0}, s{sT0}, 3\ns_lshr_b32 s{sT1}, s2, 5\ns_add_u32 s{sRB}, s{sT0}, s{sT1}")
    a(f"s_and_b32 s{sJ}, s{sW}, 3")
    def rotation(reg, rot):
        if rot:
            a(f"s_mul_i32 s{reg}, s{sHG}, {rot[1]}\ns_mul_i32 s{sT0}, s{sRB}, {rot[0]}\ns_add_u32 s{reg}, s{reg}, s{sT0}")
            a(f"s_lshr_b32 s{sT0}, s{sHG}, 2\ns_mul_i32 s{sT0}, s{sT0}, {rot[2]}\ns_add_u32 s{reg}, s{reg}, s{sT0}")
    def late_setup():
        a(f"s_lshl_b32 s{sH}, s{sHG}, 2\ns_add_u32 s{sH}, s{sH}, s{sJ}")
        a(f"v_lshlrev_b32 v{vL16}, 4, v{vLANE}\nv_mov_b32 v{vCNT}, {L_BAD}\nv_mov_b32 v{vONE}, 1")
        rotation(sROTA, cfg.rotA)
    def loader_addrs():
        a(f"s_lshl_b32 s{sM}, s{sJ}, 11")
        a(f"""
        v_lshrrev_b32 v{vT1}, 3, v{vLANE}
        v_and_b32 v{vT2}, 7, v{vLANE}
        s_lshl_b32 s{sT0}, s{sRB}, 6
        s_lshl_b32 s{sT1}, s{sJ}, 4
        s_add_u32 s{sT0}, s{sT0}, s{sT1}
        v_add_u32 v{vT}, s{sT0}, v{vT1}
        v_lshlrev_b32 v{vT}, 10, v{vT}
        v_lshrrev_b32 v{vX0}, 1, v{vT1}
        v_xor_b32 v{vX0}, v{vX0}, v{vT2}
        v_lshl_add_u32 v{vX0}, v{vX0}, 4, v{vT}
        v_add_u32 v{vX1}, 0x2000, v{vX0}
        v_xor_b32 v{vX1}, 64, v{vX1}
        v_add_u32 v{vT}, s{sT1}, v{vT1}
        v_mul_u32_u24 v{vT}, 0xc00, v{vT}
        s_lshl_b32 s{sT2}, s{sHG}, 7
        v_add_u32 v{vT}, s{sT2}, v{vT}
        v_bfe_u32 v{vT1}, v{vLANE}, 4, 1
        v_lshlrev_b32 v{vWq}, 1, v{vT1}
        v_xor_b32 v{vWq}, v{vWq}, v{vT2}
        v_xor_b32 v{vWk}, 4, v{vWq}
        v_lshlrev_b32 v{vWv}, 2, v{vT1}
        v_xor_b32 v{vWv}, v{vWv}, v{vT2}
        v_lshl_add_u32 v{vWq}, v{vWq}, 4, v{vT}
        v_lshl_add_u32 v{vWk}, v{vWk}, 4, v{vT}
        v_lshl_add_u32 v{vWv}, v{vWv}, 4, v{vT}
        v_add_u32 v{vWk}, 0x400, v{vWk}
        v_add_u32 v{vWv}, 0x800, v{vWv}
        """)
    def kernargs():
        a(f"s_mov_b32 s{rXB+2}, {2048*1024}\ns_mov_b32 s{rXB+3}, 0x00020000\ns_mov_b32 s{rWB+2}, {512*3072}\ns_mov_b32 s{rWB+3}, 0x00020000")
        a("s_waitcnt lgkmcnt(0)")
        if cfg.prof:
            a(f"v_writelane_b32 v255, s{sPROF}, 0\nv_writelane_b32 v255, s100, 16")
    def binit():
        if cfg.pref:
            assert cfg.mapping == "N"
            nw, nx = (48, 32) if cfg.pref == "xcd" else (12, 16)
            a(f"""
            s_lshr_b32 s{sT0}, s2, 3
            s_lshl_b32 s{sT1}, s{sT0}, 2
            s_add_u32 s{sT1}, s{sT1}, s{sJ}
            s_mul_i32 s{sT2}, s{sT1}, {nw}
            s_bfe_u32 s{sT3}, s2, 0x20001
            """)
            if cfg.pref != "xcd":
                a(f"s_mul_i32 s{sT0}, s{sT3}, 1536\ns_add_u32 s{sT2}, s{sT2}, s{sT0}")
            a(f"""
            v_min_u32 v{vT}, {nw-1}, v{vLANE}
            v_add_u32 v{vT}, s{sT2}, v{vT}
            v_lshrrev_b32 v{vT1}, 2, v{vT}
            v_and_b32 v{vT}, 3, v{vT}
            v_lshlrev_b32 v{vT}, 7, v{vT}
            v_lshl_add_u32 v{vPW}, v{vT1}, 10, v{vT}
            s_and_b32 s{sT2}, s2, 1
            s_lshl_b32 s{sT0}, s{sT2}, 9
            v_add_u32 v{vPW}, s{sT0}, v{vPW}
            s_mul_i32 s{sT1}, s{sT1}, {nx*128}
            s_lshl_b32 s{sT3}, s{sT3}, 19
            s_add_u32 s{sT1}, s{sT1}, s{sT3}
            """)
            if cfg.pref != "xcd":
                a(f"s_lshl_b32 s{sT2}, s{sT2}, 18\ns_add_u32 s{sT1}, s{sT1}, s{sT2}")
            a(f"""
            v_min_u32 v{vT}, {nx-1}, v{vLANE}
            v_lshl_add_u32 v{vPX}, v{vT}, 7, s{sT1}
            """)
        kernargs()
        if cfg.pref:
            a(f"buffer_load_dword v36, v{vPW}, {sr(rWB,4)}, 0 offen {cfg.pref_sc}\nbuffer_load_dword v37, v{vPX}, {sr(rXB,4)}, 0 offen {cfg.pref_sc}")
    if cfg.bnear:
        a(f"s_cmp_ge_u32 s{sW}, 4\ns_cbranch_scc1 L_roleA")
        binit()
        code_prefetch("B")
        a("s_branch L_roleB")
        a.label("L_roleA")
    else:
        a(f"s_cmp_lt_u32 s{sW}, 4\ns_cbranch_scc1 L_roleB")
    loader_addrs()
    rotation(sROT, cfg.rot)
    kernargs()

    def chunk_pieces(c):
        rx, rw = (rXB, rWB) if c < 8 else (rXA, rWA)
        cc = c % 8
        slot = (c % 4) * 32768
        if (cfg.rot if c < 8 else cfg.rotA):
            head = f"s_add_u32 s{sO0}, s{sROT if c < 8 else sROTA}, {cc}\ns_and_b32 s{sO0}, s{sO0}, 7\ns_mul_i32 s{sO1}, s{sO0}, {64*3072}\n"
            head += f"s_lshl_b32 s{sO0}, s{sO0}, 7\ns_add_u32 s{sO2}, s{sO1}, {8*3072}\n"
        else:
            head = f"s_mov_b32 s{sO0}, {128*cc}\ns_mov_b32 s{sO1}, {cc*64*3072}\ns_mov_b32 s{sO2}, {cc*64*3072+8*3072}\n"
        ld = []
        for par in range(2):
            ld.append(f"s_add_u32 m0, s{sM}, {slot + par*1024}\nbuffer_load_dwordx4 v{vX0+par}, {sr(rx,4)}, s{sO0} offen lds\n")
            for seg in range(3):
                ld.append(f"s_add_u32 m0, s{sM}, {slot + 8192*(1+seg) + par*1024}\nbuffer_load_dwordx4 v{vWq+seg}, {sr(rw,4)}, s{sO1+par} offen lds\n")
        ld[0] = head + ld[0]
        return ld
    def issue_chunk(c):
        for t in chunk_pieces(c): a(t)

    def compute_addrs(role):
        a(f"""
        v_and_b32 v{vT}, 31, v{vLANE}
        v_lshrrev_b32 v{vT1}, 5, v{vLANE}
        v_bfe_u32 v{vT2}, v{vLANE}, 1, 3
        v_xor_b32 v{vT2}, v{vT2}, v{vT1}
        v_lshlrev_b32 v{vT2}, 4, v{vT2}
        v_lshl_add_u32 v{vXA}, v{vT}, 7, v{vT2}
        v_xor_b32 v{vXA+1}, 32, v{vXA}
        v_xor_b32 v{vXA+2}, 64, v{vXA}
        v_xor_b32 v{vXA+3}, 0x60, v{vXA}
        v_bfe_u32 v{vT}, v{vLANE}, 2, 2
        v_lshl_add_u32 v{vT}, v{vT1}, 3, v{vT}
        v_lshlrev_b32 v{vT}, 7, v{vT}
        v_and_b32 v{vT1}, 3, v{vLANE}
        v_lshl_add_u32 v{vT}, v{vT1}, 3, v{vT}
        v_bfe_u32 v{vT1}, v{vLANE}, 4, 1
        v_bfe_u32 v{vT2}, v{vLANE}, 3, 1
        v_lshl_add_u32 v{vQK}, v{vT1}, 1, v{vT2}
        v_xor_b32 v{vQK}, s{sJ}, v{vQK}
        v_lshl_add_u32 v{vQK}, v{vQK}, 5, v{vT}
        v_lshl_add_u32 v{vQK}, v{vT1}, 13, v{vQK}
        v_add_u32 v{vQK}, 0x2000, v{vQK}
        v_lshlrev_b32 v{vT2}, 1, v{vT2}
        """)
        if role == "B" or cfg.a3:
            a(f"s_and_b32 s{sT0}, s{sJ}, 2\nv_add_u32 v{vT1}, s{sT0}, v{vT1}\nv_xor_b32 v{vV}, v{vT1}, v{vT2}")
        else:
            a(f"v_xor_b32 v{vV}, s{sJ}, v{vT2}")
        a(f"v_lshl_add_u32 v{vV}, v{vV}, 5, v{vT}\nv_add_u32 v{vV}, 0x6000, v{vV}")
        if role == "B" or cfg.a3:
            a(f"s_and_b32 s{sT0}, s{sJ}, 1\ns_lshl_b32 s{sT0}, s{sT0}, 12")
            for i in range(4):
                a(f"v_add_u32 v{vXA+i}, s{sT0}, v{vXA+i}\nv_xor_b32 v{vXB+i}, 0x1000, v{vXA+i}")

    def gemm(role, pre_barrier, post_barrier, mid=lambda: None):
        c0 = 0 if role == "B" else 8
        def fr(buf):
            b = FR + 16 * buf
            return dict(x0=b, x1=b + 4, qk=b + 8, v=b + 12)
        def reads(n, part):
            c, kk, f = c0 + n // 4, n % 4, fr(n % 2)
            so = (c % 2) * 32768
            if part == 0:
                a(f"ds_read_b64_tr_b16 {vr(f['qk'],2)}, v{vQK} offset:{so + kk*2048}")
                a(f"ds_read_b64_tr_b16 {vr(f['qk']+2,2)}, v{vQK} offset:{so + kk*2048 + 512}")
                a(f"ds_read_b128 {vr(f['x0'],4)}, v{vXA+kk} offset:{so}")
            else:
                if role == "B" or cfg.a3:
                    a(f"ds_read_b128 {vr(f['x1'],4)}, v{vXB+kk} offset:{so}")
                else:
                    a(f"ds_read_b128 {vr(f['x1'],4)}, v{vXA+kk} offset:{so + 4096}")
                a(f"ds_read_b64_tr_b16 {vr(f['v'],2)}, v{vV} offset:{so + kk*2048}")
                a(f"ds_read_b64_tr_b16 {vr(f['v']+2,2)}, v{vV} offset:{so + kk*2048 + 512}")
        def tgt(c): return 8 if (c == 9 and not cfg.hold8) else 4
        pre_barrier(c0)
        if role == "B" or cfg.coupled:
            a("s_barrier")
        else:
            arrive(4 * c0); await_cnt(4 * c0, tgt(c0))
        reads(0, 0); reads(0, 1)
        post_barrier(c0)
        for n in range(32):
            c, kk, f = c0 + n // 4, n % 4, fr(n % 2)
            cz = (lambda r: "0") if n == 0 else (lambda r: r)
            def toggle():
                if (c + 1) % 2 == 0 and n < 31:
                    for r in [vQK, vXA, vV, vXA + 1, vXA + 2, vXA + 3] + ([vXB + i for i in range(4)] if (role == "B" or cfg.a3) else []):
                        a(f"v_xor_b32 v{r}, 0x10000, v{r}")
            if kk == 3 and role == "A" and not cfg.coupled:
                a("s_waitcnt lgkmcnt(0)")
                pre_barrier(c + 1)
                arrive(4 * (c + 1))
                mfma(ACC, f["qk"], f["x0"], ACC)
                mfma(ACC + 16, f["qk"], f["x1"], ACC + 16)
                toggle()
                if n < 31:
                    await_cnt(4 * (c + 1), tgt(c + 1))
                    reads(n + 1, 0); reads(n + 1, 1)
                post_barrier(c + 1)
                mfma(ACC + 32, f["x0"], f["v"], ACC + 32)
                mid()
                mfma(ACC + 48, f["x1"], f["v"], ACC + 48)
                mid()
                continue
            if kk == 3:
                a("s_waitcnt lgkmcnt(0)")
                if n < 31:
                    pre_barrier(c + 1)
                    a("s_barrier")
                    post_barrier(c + 1)
                elif role == "A" and not cfg.a3:
                    arrive(4 * 16)
                elif not cfg.hold8 and not cfg.coupled:
                    arrive(4 * 9)
                toggle()
            else:
                a("s_waitcnt lgkmcnt(3)")
            mfma(ACC, f["qk"], f["x0"], cz(ACC))
            if n < 31: reads(n + 1, 0)
            if kk != 3: a("s_waitcnt lgkmcnt(3)")
            mfma(ACC + 16, f["qk"], f["x1"], cz(ACC + 16))
            if n < 31: reads(n + 1, 1)
            mfma(ACC + 32, f["x0"], f["v"], cz(ACC + 32))
            if role == "A" and not cfg.a3:
                mid()
                mfma(ACC + 48, f["x1"], f["v"], cz(ACC + 48))
                mid()

    vOFFK = 8
    def smf(d, va, p):
        a(f"v_smfmac_f32_32x32x32_bf16 {vr(d,16)}, {vr(va,4)}, {vr(p,8)}, v{vIDX}")
    def att_setup(first, ntiles):
        a(f"""
        s_mov_b32 s{sREDO}, 0
        s_lshl_b32 s{sT0}, s{sH}, 17
        v_add_u32 v{vOFFK}, s{sT0}, v{vL16}
        v_lshrrev_b32 v{vT}, 5, v{vLANE}
        v_and_b32 v{vT1}, 15, v{vLANE}
        v_lshlrev_b32 v{vT1}, 4, v{vT1}
        v_lshl_add_u32 v{vOFFV}, v{vT}, 8, v{vT1}
        v_add_u32 v{vOFFV}, s{sT0}, v{vOFFV}
        v_mov_b32 v{vIDX}, 0xdddd
        s_mov_b32 s{sVM}, 0xffff
        s_mov_b32 s{sVM+1}, 0xffff
        s_mov_b32 s{sNIT}, {ntiles}
        """)
        if cfg.kvrot:
            a(f"s_and_b32 s{sKV0}, s{sRB}, 7\ns_lshl_b32 s{sKV0}, s{sKV0}, 14\ns_add_u32 s{sKV0}, s{sKV0}, {first*2048}\ns_and_b32 s{sKV0}, s{sKV0}, 0x1ffff")
        else:
            a(f"s_mov_b32 s{sKV0}, {first*2048}")
    class Stream:
        def __init__(self, depth, ntiles, init=()):
            self.d, self.n, self.q = depth, ntiles, list(init)
        def ring(self, t):
            b = RING + 12 * (t % self.d)
            return b, b + 4, b + 8
        def push(self, tag, n=1):
            self.q.extend([tag] * n)
        def wait(self, tag):
            idx = [i for i, t in enumerate(self.q) if t == tag]
            if idx:
                a(f"s_waitcnt vmcnt({len(self.q) - 1 - idx[-1]})")
                self.q = self.q[idx[-1] + 1:]
        def kload(self, t, single=False):
            o = 0 if single else (t % 2) * 2048
            a(f"buffer_load_dwordx4 {vr(self.ring(t)[0],4)}, v{vOFFK}, {sr(rWS,4)}, s{sKV} offen offset:{o} sc1")
            self.push(("k", t))
        def vload(self, t, single=False):
            k, v0, v1 = self.ring(t)
            o = 0 if single else (t % 2) * 2048
            a(f"s_mov_b64 exec, {sr(sVM,2)}")
            a(f"buffer_load_dwordx4 {vr(v0,4)}, v{vOFFV}, {sr(rWS,4)}, s{sKV} offen offset:{o+1024} sc1")
            a(f"buffer_load_dwordx4 {vr(v1,4)}, v{vOFFV}, {sr(rWS,4)}, s{sKV} offen offset:{o+1536} sc1")
            a(f"s_mov_b64 exec, -1")
            if single or t % 2 == 1:
                a(f"s_add_u32 s{sKV}, s{sKV}, {2048 if single else 4096}\ns_and_b32 s{sKV}, s{sKV}, 0x1ffff")
            self.push(("kv", t), 2)
        def kvload(self, t, single=False):
            self.kload(t, single); self.vload(t, single)
        def setup(self, single=False):
            a(f"s_mov_b32 s{sKV}, s{sKV0}")
            a(f"v_and_b32 v{vT}, 27, v{vLANE}\nv_cmp_eq_u32 vcc, 16, v{vT}\nv_mov_b32 v{vT}, 0x3f803f80\nv_cndmask_b32 v{vT}, 0, v{vT}, vcc")
            for t in range(self.d):
                for i in range(4, 12):
                    a(f"v_mov_b32 v{RING+12*t+i}, v{vT}")
        def zero(self, single=False):
            for i in range(32):
                a(f"v_mov_b32 v{O+i}, 0")
            if single:
                for i in range(8):
                    a(f"v_mov_b32 v{S+16+8+i}, 0")
        def first(self, single=False):
            for t in range(self.d - 1): self.kvload(t, single)
            if cfg.split_ld and not single: self.kload(self.d - 1)
        def start(self, single=False):
            self.wait(("k", 0) if (cfg.split_ld and not single) else ("kv", 0))
            mfma(S, self.ring(0)[0], Qf, NM)
        def prologue(self, single=False):
            self.setup(single); self.first(single); self.zero(single); self.start(single)
        def tile(self, t, looped=False, extra=None):
            k, v0, v1 = self.ring(t)
            split = cfg.split_ld and not looped
            for qb in range(2):
                cur, oth = S + 16 * qb, S + 16 * (1 - qb)
                def ex(i): a(f"v_exp_f32 v{cur+i}, v{cur+i}")
                ex(0); ex(1)
                if qb == 0:
                    if looped or t > 0: smf(O + 16, self.ring(t - 1)[2], oth + 8)
                    ex(2)
                    if looped or t + self.d - 1 < self.n:
                        if split: self.vload(t + self.d - 1)
                        else: self.kvload(t + self.d - 1, looped)
                    ex(3); ex(4)
                    mfma(oth, k, Qf + 4, NM + 16)
                    ex(5)
                    if split and t + self.d < self.n: self.kload(t + self.d)
                    for i in range(6, 10): ex(i)
                    if split: self.wait(("k", t + 1) if (cfg.split_ld == 2 and t + 1 < self.n) else ("kv", t))
                else:
                    smf(O, v1, oth + 8)
                    ex(2); ex(3)
                    if looped: a(f"s_waitcnt vmcnt({3 * (self.d - 2)})")
                    elif t + 1 < self.n: self.wait(("k" if split else "kv", t + 1))
                    ex(4)
                    if looped or t + 1 < self.n: mfma(oth, self.ring(t + 1)[0], Qf, NM)
                    for i in range(5, 10): ex(i)
                smf(O + 16 * qb, v0, cur)
                ex(10)
                if extra and qb == 1: extra()
                for i in range(11, 16): ex(i)
        def run(self, jobs, prio):
            pr = dict(prio) if cfg.prio else {}
            for t in range(self.n):
                if t in pr: a(f"s_setprio {pr[t]}")
                if cfg.tprof: a(f"s_memtime s[98:99]\ns_waitcnt lgkmcnt(0)\nv_writelane_b32 v252, s98, {t}")
                self.tile(t, extra=(lambda: [f() for f in jobs.get(t, [])]))
            smf(O + 16, self.ring(self.n - 1)[2], S + 16 + 8)

    if cfg.prof: stamp(4)
    vq = []
    def issue(c):
        issue_chunk(c); vq.extend([c] * 8)
    def wait_for(tag):
        n = len(vq) - 1 - max(i for i, t in enumerate(vq) if t == tag)
        a(f"s_waitcnt vmcnt({n})")
    for c in range(cfg.nfirst):
        issue(c)
    late_setup()
    srd(rXA, kAX, 2048 * 1024)
    srd(rWA, kAW, 512 * 3072)
    srd(rWS, kWS, WS_SIZE)
    srd(rOUT, kOUT, 2048 * 2048)
    srd(rMISC, kAP, 32 * 512)
    WP, IDP = 248, 40
    vMASK = 252
    def gather():
        a(f"""
        v_lshrrev_b32 v{vT}, 5, v{vLANE}
        v_and_b32 v{vT1}, 15, v{vLANE}
        v_lshlrev_b32 v{vT1}, 1, v{vT1}
        v_lshl_add_u32 v{vT}, v{vT}, 7, v{vT1}
        s_lshl_b32 s{sT0}, s{sH}, 9
        """)
        for jj in range(8):
            a(f"buffer_load_ushort v{48+jj}, v{vT}, {sr(rMISC,4)}, s{sT0} offen offset:{(8*(jj>>2)+(jj&3))*32}")
        vq.extend(["g"] * 8)
    if cfg.gat_at < 0: gather()
    compute_addrs("A")
    a(f"""
    v_bfe_u32 v{vT}, v{vLANE}, 2, 1
    v_lshrrev_b32 v{vT1}, 5, v{vLANE}
    v_xor_b32 v{vT}, v{vT}, v{vT1}
    v_lshlrev_b32 v{vT}, 3, v{vT}
    v_bfe_u32 v{vT1}, v{vLANE}, 3, 2
    v_lshl_add_u32 v{vT}, v{vT1}, 1, v{vT}
    v_bfe_u32 v{vT1}, v{vLANE}, 1, 1
    v_add_u32 v{vT}, v{vT}, v{vT1}
    v_and_b32 v{vT1}, 1, v{vLANE}
    v_lshlrev_b32 v{vT1}, 4, v{vT1}
    v_mov_b32 v{vT2}, 0x3f80
    v_lshlrev_b32 v{vT1}, v{vT1}, v{vT2}
    """)
    for q in range(8):
        a(f"v_cmp_eq_u32 vcc, {q}, v{vT}\nv_cndmask_b32 v{IDP+q}, 0, v{vT1}, vcc")
    a(f"v_bfe_u32 v{vT}, v{vLANE}, 4, 1\nv_add_u32 v{vMASK}, -1, v{vT}")
    def spf_setup():
        assert cfg.mapping == "N"
        a(f"""
        s_lshr_b32 s{sT0}, s2, 3
        s_lshl_b32 s{sT0}, s{sT0}, 2
        s_add_u32 s{sT0}, s{sT0}, s{sJ}
        s_bfe_u32 s{sT1}, s2, 0x20001
        s_and_b32 s{sT2}, s2, 1
        s_mul_i32 s84, s{sT1}, {384*1024}
        s_mul_i32 s85, s{sT0}, 3072
        s_add_u32 s84, s84, s85
        s_lshl_b32 s85, s{sT2}, 9
        s_add_u32 s84, s84, s85
        s_add_u32 s84, s{kAW}, s84
        s_addc_u32 s85, s{kAW+1}, 0
        s_lshl_b32 s86, s{sT1}, 19
        s_lshl_b32 s87, s{sT2}, 18
        s_add_u32 s86, s86, s87
        s_lshl_b32 s87, s{sT0}, 11
        s_add_u32 s86, s86, s87
        s_add_u32 s86, s{kAX}, s86
        s_addc_u32 s87, s{kAX+1}, 0
        """)
        spf = [f"s_load_dword s88, s[84:85], {b*1024 + i*64}" for b in range(3) for i in range(8)]
        spf += [f"s_load_dword s88, s[86:87], {i*64}" for i in range(32)]
        return spf
    spf = spf_setup() if cfg.spref else []
    if cfg.sslowA:
        a(f"""
        s_lshr_b32 s{sT0}, s2, 3
        s_lshl_b32 s{sT0}, s{sT0}, 2
        s_add_u32 s{sT0}, s{sT0}, s{sJ}
        s_mul_i32 s{sT0}, s{sT0}, {12*1024}
        s_and_b32 s{sT1}, s2, 1
        s_lshl_b32 s{sT1}, s{sT1}, 9
        s_add_u32 s{sT0}, s{sT0}, s{sT1}
        s_add_u32 s{sT0}, s{sT0}, 384
        s_add_u32 s86, s{kAW}, s{sT0}
        s_addc_u32 s87, s{kAW+1}, 0
        """)
        spf = [f"s_load_dword s{88+h}, s[86:87], {i*1024+64*h}" for i in range(12) for h in range(2)]
        cfg.spref = cfg.sslowA
    for c in range(cfg.nfirst, cfg.ninit):
        issue(c)
    if cfg.prof: stamp(5)
    nxt = cfg.ninit
    lastA = cfg.lastA if cfg.coupled else (7 if cfg.hold8 else (8 if cfg.hold9 else 9))
    for c in range(8):
        wait_for(c)
        a("s_barrier")
        while nxt <= min(c + cfg.look, lastA):
            issue(nxt); nxt += 1
        if spf and c >= cfg.spref[0]:
            for t in spf[:cfg.spref[1]]: a(t)
            spf = spf[cfg.spref[1]:]
        if c == cfg.gat_at: gather()
        if c == 7:
            if cfg.gat_at >= 0: wait_for("g")
            a(f"v_bfe_u32 v{vT}, v{vLANE}, 4, 1\nv_lshlrev_b32 v{vT1}, 15, v{vT}\nv_lshl_or_b32 v{vT}, v{vT}, 31, v{vT1}")
            for q in range(4):
                a(f"v_lshl_or_b32 v{WP+q}, v{49+2*q}, 16, v{48+2*q}\nv_xor_b32 v{WP+q}, v{WP+q}, v{vT}")
    nxtA = [nxt]
    pend = []
    def preA(c):
        while pend and pend[0][0] <= c: midA()
        if c <= (lastA if cfg.coupled else 15): wait_for(c)
    def postA(c):
        while not cfg.coupled and nxtA[0] <= min(c + cfg.look, 15):
            pend.extend((nxtA[0], t) for t in chunk_pieces(nxtA[0])); nxtA[0] += 1
    def midA():
        for _ in range(2 if len(set(c for c, t in pend)) > 1 else 1):
            if pend:
                c, t = pend.pop(0)
                a(t); vq.append(c)
    if cfg.hold8 and not cfg.coupled:
        await_cnt(C_WO, 4)
        for c in range(8, 8 + cfg.hold8):
            issue(c)
        nxtA[0] = 8 + cfg.hold8
    assert not spf
    a("s_waitcnt lgkmcnt(0)")
    if cfg.prio: a("s_setprio 3")
    stamp(1)
    gemm("A", preA, postA, midA)
    stamp(2)
    assert cfg.coupled and cfg.kvB < 15
    srd(rMISC, kAO, 512 * 1024)
    srd(rXB, kBO, 512 * 1024)
    if cfg.wopref:
        a(f"""
        s_and_b32 s{sT0}, s{sRB}, 7
        s_lshl_b32 s{sT0}, s{sT0}, 2
        s_add_u32 s{sT0}, s{sT0}, s{sJ}
        s_lshl_b32 s{sT0}, s{sT0}, 14
        s_lshl_b32 s{sT1}, s{sHG}, 7
        s_add_u32 s{sT0}, s{sT0}, s{sT1}
        v_lshlrev_b32 v3, 10, v{vLANE}
        s_mov_b64 exec, 0xffff
        buffer_load_dword v4, v3, {sr(rMISC,4)}, s{sT0} offen
        buffer_load_dword v5, v3, {sr(rXB,4)}, s{sT0} offen
        s_mov_b64 exec, -1
        """)
    X = [48, 64, 80, 96]
    KF, QF2, VP, PK, TT, PT, TM = 112, 120, 128, 144, 152, 168, 176
    L2E = math.log2(math.e)
    a(f"s_mov_b32 s{sC}, {f2u(L2E)}\ns_mov_b32 s{sC+1}, {f2u(L2E)}\ns_mov_b32 s{sT3}, 0x3f803f80")
    for ri in range(2):
        cvt(KF + 4 * ri, ACC + 16 * ri + 8, 4)
    for ri in range(2):
        mfma(X[ri], WP, KF + 4 * ri, "0")
    for ri in range(2):
        cvt(QF2 + 4 * ri, ACC + 16 * ri, 4)
    for ri in range(2):
        mfma(X[2 + ri], WP, QF2 + 4 * ri, "0")
    if cfg.a3:
        cvt(VP, ACC + 32, 8)
        a(f"""
        s_lshl_b32 s{sT0}, s{sJ}, 11
        s_add_u32 s{sT0}, s{sT0}, {L_XV}
        v_add_u32 v{vT}, s{sT0}, v{vL16}
        ds_write_b128 v{vT}, {vr(VP,4)}
        ds_write_b128 v{vT}, {vr(VP+4,4)} offset:1024
        s_and_b32 s{sT1}, s{sJ}, 1
        s_lshl_b32 s{sT1}, s{sT1}, 8
        s_add_u32 s{sT0}, s{sT0}, s{sT1}
        v_and_b32 v{vT}, 0x2f, v{vLANE}
        v_lshl_add_u32 v9, v{vT}, 4, s{sT0}
        v_xor_b32 v10, 0x800, v9
        s_waitcnt lgkmcnt(0)
        """)
        assert L_XV % 4096 == 0
        arrive(4 * 16)
    else:
        for ri in range(2):
            cvt(VP + 8 * ri, ACC + 32 + 16 * ri, 8)
            for i in range(8):
                a(f"v_bfi_b32 v{VP+8*ri+i}, v{vMASK}, v{VP+8*ri+i}, s{sT3}")
    def getv():
        if not cfg.a3: return
        await_cnt(4 * 16, 4)
        for aa in range(2):
            a(f"ds_read_b128 {vr(VP+8*aa,4)}, v{9+aa}\nds_read_b128 {vr(VP+8*aa+4,4)}, v{9+aa} offset:1024")
    def fixv():
        if not cfg.a3: return
        a("s_waitcnt lgkmcnt(0)")
        for i in range(16):
            a(f"v_bfi_b32 v{VP+i}, v{vMASK}, v{VP+i}, s{sT3}")
    def softmax2(x, dst):
        t, u = TM, TM + 1
        for base, r in ((x, t), (x + 8, u)):
            a(f"v_max3_f32 v{r}, v{base}, v{base+1}, v{base+2}\nv_max3_f32 v{r}, v{r}, v{base+3}, v{base+4}")
            a(f"v_max3_f32 v{r}, v{r}, v{base+5}, v{base+6}\nv_max_f32 v{r}, v{r}, v{base+7}")
        a(f"v_permlane32_swap_b32 v{t}, v{u}\nv_max_f32 v{t}, v{t}, v{u}")
        a(f"v_mul_f32 v{t}, {f2u(-L2E)}, v{t}\nv_mov_b32 v{u}, v{t}\nv_permlane32_swap_b32 v{t}, v{u}")
        for i in range(8):
            sel = "op_sel:[0,0,0] op_sel_hi:[1,1,0]" if i < 4 else "op_sel:[0,0,1] op_sel_hi:[1,1,1]"
            a(f"v_pk_fma_f32 {vr(x+2*i,2)}, {vr(x+2*i,2)}, {sr(sC,2)}, {vr(t,2)} {sel}")
        for i in range(16):
            a(f"v_exp_f32 v{x+i}, v{x+i}")
        p, q = TM + 2, TM + 4
        a(f"v_pk_add_f32 {vr(p,2)}, {vr(x,2)}, {vr(x+2,2)}\nv_pk_add_f32 {vr(q,2)}, {vr(x+8,2)}, {vr(x+10,2)}")
        a(f"v_pk_add_f32 {vr(p,2)}, {vr(p,2)}, {vr(x+4,2)}\nv_pk_add_f32 {vr(q,2)}, {vr(q,2)}, {vr(x+12,2)}")
        a(f"v_pk_add_f32 {vr(p,2)}, {vr(p,2)}, {vr(x+6,2)}\nv_pk_add_f32 {vr(q,2)}, {vr(q,2)}, {vr(x+14,2)}")
        a(f"v_add_f32 v{t}, v{p}, v{p+1}\nv_add_f32 v{u}, v{q}, v{q+1}")
        a(f"v_permlane32_swap_b32 v{t}, v{u}\nv_add_f32 v{t}, v{t}, v{u}\nv_rcp_f32 v{t}, v{t}")
        a(f"v_mov_b32 v{u}, v{t}\nv_permlane32_swap_b32 v{t}, v{u}")
        for i in range(8):
            sel = "op_sel:[0,0] op_sel_hi:[1,0]" if i < 4 else "op_sel:[0,1] op_sel_hi:[1,1]"
            a(f"v_pk_mul_f32 {vr(x+2*i,2)}, {vr(x+2*i,2)}, {vr(t,2)} {sel}")
        cvt(dst, x, 8)
    KVA = ACC
    softmax2(X[0], PK)
    mfma(TT, PK, IDP, "0")
    mfma(TT, PK + 4, IDP + 4, TT)
    getv()
    softmax2(X[1], PK)
    fixv()
    cvt(PT, TT, 8)
    mfma(TT, PK, IDP, "0")
    mfma(TT, PK + 4, IDP + 4, TT)
    mfma(KVA, PT, VP, "0")
    mfma(KVA, PT + 4, VP + 4, KVA)
    softmax2(X[2], PHI)
    cvt(PT, TT, 8)
    mfma(KVA, PT, VP + 8, KVA)
    mfma(KVA, PT + 4, VP + 12, KVA)
    a(f"""
    v_lshrrev_b32 v{vT}, 5, v{vLANE}
    v_mul_u32_u24 v{vT}, {32*384}, v{vT}
    v_and_b32 v{vT1}, 31, v{vLANE}
    v_lshl_add_u32 v{vT}, v{vT1}, 4, v{vT}
    s_mul_i32 s{sT0}, s{sH}, {8*32*384}
    s_mul_i32 s{sT1}, s{sRB}, 384
    s_add_u32 s{sT0}, s{sT0}, s{sT1}
    s_add_u32 s{sT0}, s{sT0}, {WS_P}
    s_mov_b32 exec_lo, 0x1ffff
    s_mov_b32 exec_hi, 0x1ffff
    """)
    for r4 in range(4):
        a(f"buffer_store_dwordx4 {vr(KVA+4*r4,4)}, v{vT}, {sr(rWS,4)}, s{sT0} offen sc1")
        if r4 < 3: a(f"s_add_u32 s{sT0}, s{sT0}, {2*32*384}")
    a("s_mov_b64 exec, -1")
    softmax2(X[3], PHI + 8)
    a(f"""
    s_lshl_b32 s{sT0}, s{sJ}, 11
    s_add_u32 s{sT0}, s{sT0}, {L_X}
    v_add_u32 v{vT}, s{sT0}, v{vL16}
    ds_read_b128 {vr(Qf,4)}, v{vT}
    ds_read_b128 {vr(Qf+4,4)}, v{vT} offset:1024
    s_lshl_b32 s{sT0}, s{sJ}, 9
    s_add_u32 s{sT0}, s{sT0}, {L_XM}
    v_lshl_add_u32 v{vT}, v{vLANE}, 3, s{sT0}
    ds_read_b64 {vr(TM,2)}, v{vT}
    s_waitcnt vmcnt(4)
    """)
    if cfg.a3: a("s_waitcnt lgkmcnt(0)")
    else: await_cnt(4 * 16, 4)
    nmfill(TM)
    stamp(3)
    a("s_branch L_attA")

    a.label("L_roleB")
    if not cfg.bnear:
        code_prefetch("B")
        binit()
    late_setup()
    loader_addrs()
    srd(rXA, kAX, 2048 * 1024)
    srd(rWA, kAW, 512 * 3072)
    srd(rWS, kWS, WS_SIZE)
    srd(rOUT, kOUT, 2048 * 2048)
    srd(rDBG, kDBG, 256)
    if cfg.pref and cfg.prefA[0] < 0:
        a(f"buffer_load_dword v38, v{vPW}, {sr(rWA,4)}, 0 offen {cfg.pref_sc}")
        a(f"buffer_load_dword v36, v{vPX}, {sr(rXA,4)}, 0 offen {cfg.pref_sc}")
    if cfg.slowpref:
        a(f"""
        s_lshr_b32 s{sT0}, s2, 3
        s_lshl_b32 s{sT0}, s{sT0}, 2
        s_add_u32 s{sT0}, s{sT0}, s{sJ}
        s_mul_i32 s{sT1}, s{sT0}, {12*1024}
        s_and_b32 s{sT2}, s2, 1
        s_lshl_b32 s{sT2}, s{sT2}, 9
        s_add_u32 s{sT1}, s{sT1}, s{sT2}
        s_add_u32 s{sT1}, s{sT1}, 384
        v_lshlrev_b32 v{vT}, 10, v{vLANE}
        s_lshl_b32 s{sT0}, s{sT0}, 12
        s_bfe_u32 s{sT2}, s2, 0x20001
        s_lshl_b32 s{sT2}, s{sT2}, 19
        s_add_u32 s{sT0}, s{sT0}, s{sT2}
        s_add_u32 s{sT0}, s{sT0}, 384
        s_mov_b64 exec, 0xfff
        """)
        if "b" in cfg.slowpref: a(f"buffer_load_dword v36, v{vT}, {sr(rWB,4)}, s{sT1} offen")
        if "a" in cfg.slowpref: a(f"buffer_load_dword v38, v{vT}, {sr(rWA,4)}, s{sT1} offen")
        a("s_mov_b64 exec, 15")
        if "x" in cfg.slowpref:
            if "b" in cfg.slowpref: a(f"buffer_load_dword v37, v{vT}, {sr(rXB,4)}, s{sT0} offen")
            if "a" in cfg.slowpref: a(f"buffer_load_dword v36, v{vT}, {sr(rXA,4)}, s{sT0} offen")
        a("s_mov_b64 exec, -1")
    if cfg.sslow:
        l = lab("noss")
        a(f"""
        s_bitcmp1_b32 s2, 0
        s_cbranch_scc1 {l}
        s_lshr_b32 s{sT0}, s2, 3
        s_lshl_b32 s{sT0}, s{sT0}, 2
        s_add_u32 s{sT0}, s{sT0}, s{sJ}
        s_mul_i32 s{sT0}, s{sT0}, {12*1024}
        s_add_u32 s{sT0}, s{sT0}, 384
        s_add_u32 s84, s{kBW}, s{sT0}
        s_addc_u32 s85, s{kBW+1}, 0
        s_add_u32 s86, s{kAW}, s{sT0}
        s_addc_u32 s87, s{kAW+1}, 0
        """)
        for ch, reg in (("b", 84), ("a", 86)):
            if ch in cfg.sslow:
                for i in range(12):
                    a(f"s_load_dword s88, s[{reg}:{reg+1}], {i*1024}\ns_load_dword s89, s[{reg}:{reg+1}], {i*1024+64}")
        a.label(l)
    if cfg.sprefB:
        for t in spf_setup()[:cfg.sprefB]: a(t)
    compute_addrs("B")
    a(f"s_cmp_lt_u32 s2, 8\ns_cselect_b32 s{sREDO}, s{sW}, 0")
    a(f"s_cmp_lg_u32 s{sREDO}, 1\ns_cbranch_scc1 L_noreset")
    a(f"v_mov_b32 v16, 0\nv_mov_b32 v17, 0\nv_mov_b32 v18, 0\nv_mov_b32 v19, 0")
    nres = -(-(FL_KV + 1024 * cfg.nrep - WS_FL) // 8192)
    a(f"s_mul_i32 s{sT1}, s2, {nres*1024}\ns_add_u32 s{sT1}, s{sT1}, {WS_FL}")
    for i in range(nres):
        a(f"buffer_store_dwordx4 v[16:19], v{vL16}, {sr(rWS,4)}, s{sT1} offen offset:{(i%4)*1024} sc1")
        if i % 4 == 3: a(f"s_add_u32 s{sT1}, s{sT1}, 4096")
    a.label("L_noreset")
    a(f"v_lshl_add_u32 v{vT}, v{vLANE}, 2, v{vCNT}\nv_mov_b32 v{vT1}, 0\nds_write_b32 v{vT}, v{vT1}")
    vKST, vVST = 28, 29
    a(f"""
    v_and_b32 v{vKST}, 0x33, v{vLANE}
    v_and_b32 v{vT}, 4, v{vLANE}
    v_lshl_or_b32 v{vKST}, v{vT}, 1, v{vKST}
    v_bfe_u32 v{vT}, v{vLANE}, 3, 1
    v_lshl_or_b32 v{vKST}, v{vT}, 2, v{vKST}
    v_lshlrev_b32 v{vKST}, 4, v{vKST}
    v_bfe_u32 v{vT}, v{vLANE}, 4, 1
    v_lshlrev_b32 v{vVST}, 17, v{vT}
    v_lshrrev_b32 v{vT}, 5, v{vLANE}
    v_lshl_add_u32 v{vVST}, v{vT}, 8, v{vVST}
    v_and_b32 v{vT}, 15, v{vLANE}
    v_lshl_add_u32 v{vVST}, v{vT}, 4, v{vVST}
    s_waitcnt lgkmcnt(0)
    """)
    def bst(c):
        if cfg.tprof: a(f"s_memtime s[98:99]\ns_waitcnt lgkmcnt(0)\nv_writelane_b32 v252, s98, {48+c}")
    def postB(c):
        if c > 0: bst(c)
        if c == 5:
            l = lab("nogate")
            a(f"s_cmp_lg_u32 s{sREDO}, 1\ns_cbranch_scc1 {l}")
            a(f"s_lshl_b32 s{sT0}, s2, 2\nv_mov_b32 v{vT}, s{sT0}\ns_waitcnt vmcnt(0)")
            flag(vT, "1", srdr=rDBG)
            a.label(l)
        if cfg.l2A and cfg.l2A[0] <= c < cfg.l2A[0] + cfg.l2A[1]:
            nb, b = cfg.l2A[1], c - cfg.l2A[0]
            nw, nx = 48 // nb, 32 // nb
            if b == 0:
                a(f"""
                s_lshr_b32 s{sT0}, s2, 3
                s_lshl_b32 s{sT0}, s{sT0}, 2
                s_add_u32 s{sT0}, s{sT0}, s{sJ}
                s_mul_i32 s84, s{sT0}, {12*1024}
                s_and_b32 s{sT1}, s2, 1
                s_lshl_b32 s{sT1}, s{sT1}, 9
                s_add_u32 s84, s84, s{sT1}
                s_lshl_b32 s85, s{sT0}, 12
                s_bfe_u32 s{sT1}, s2, 0x20001
                s_lshl_b32 s{sT1}, s{sT1}, 19
                s_add_u32 s85, s85, s{sT1}
                v_lshrrev_b32 v{vPW}, 2, v{vLANE}
                v_lshlrev_b32 v{vPW}, 10, v{vPW}
                v_and_b32 v{vPX}, 3, v{vLANE}
                v_lshl_add_u32 v{vPW}, v{vPX}, 7, v{vPW}
                v_lshlrev_b32 v{vPX}, 7, v{vLANE}
                """)
            a(f"""
            s_mov_b32 exec_hi, {((1 << nw) - 1) >> 32}
            s_mov_b32 exec_lo, {((1 << nw) - 1) & 0xffffffff}
            buffer_load_dword v38, v{vPW}, {sr(rWA,4)}, s84 offen
            s_mov_b32 exec_hi, 0
            s_mov_b32 exec_lo, {(1 << nx) - 1}
            buffer_load_dword v36, v{vPX}, {sr(rXA,4)}, s85 offen
            s_mov_b64 exec, -1
            s_add_u32 s84, s84, {nw // 4 * 1024}
            s_add_u32 s85, s85, {nx * 128}
            """)
        if c == 0: stamp(1)
        if cfg.pref and c == cfg.prefA[0]:
            a(f"buffer_load_dword v38, v{vPW}, {sr(rWA,4)}, 0 offen {cfg.pref_sc}")
        if cfg.pref and c == cfg.prefA[1]:
            a(f"buffer_load_dword v36, v{vPX}, {sr(rXA,4)}, 0 offen {cfg.pref_sc}")
    gemm("B", lambda c: None, postB)
    stamp(2)
    KOWN, VPK = 232, 240
    vG, vGA = 30, 31
    a(f"v_lshlrev_b32 v{vGA}, 2, v{vLANE}\ns_mov_b64 exec, 0xff\nbuffer_load_dword v{vG}, v{vGA}, {sr(rDBG,4)}, 0 offen sc1\ns_mov_b64 exec, -1")
    a(f"""
    s_and_b32 s{sT2}, s{sJ}, 1
    s_lshl_b32 s{sT0}, s{sRB}, 1
    s_add_u32 s{sT0}, s{sT0}, s{sT2}
    s_lshl_b32 s{sT0}, s{sT0}, 11
    s_lshl_b32 s{sT1}, s{sH}, 17
    s_add_u32 s{sT1}, s{sT1}, s{sT0}
    s_xor_b32 s{sT2}, s{sT1}, 0x800
    s_and_b32 s{sT3}, s{sH}, -2
    s_lshl_b32 s{sT3}, s{sT3}, 17
    s_add_u32 s{sT3}, s{sT3}, s{sT0}
    """)
    assert WS_KV == 0
    cvt(KOWN, ACC + 8, 4)
    a(f"buffer_store_dwordx4 {vr(KOWN,4)}, v{vKST}, {sr(rWS,4)}, s{sT1} offen sc1")
    cvt(KOWN + 4, ACC + 16 + 8, 4)
    a(f"buffer_store_dwordx4 {vr(KOWN+4,4)}, v{vKST}, {sr(rWS,4)}, s{sT2} offen sc1")
    cvt(VPK, ACC + 32, 4)
    a(f"buffer_store_dwordx4 {vr(VPK,4)}, v{vVST}, {sr(rWS,4)}, s{sT3} offen offset:1024 sc1")
    cvt(VPK + 4, ACC + 40, 4)
    a(f"buffer_store_dwordx4 {vr(VPK+4,4)}, v{vVST}, {sr(rWS,4)}, s{sT3} offen offset:1536 sc1")
    vq[:] = ["st"] * 4
    nxtB = [lastA + 1]
    def barB(c):
        if c > lastA: wait_for(c)
        a("s_barrier")
        bst(c)
    def loadB(c):
        while nxtB[0] <= min(c + cfg.look, 15):
            issue(nxtB[0]); nxtB[0] += 1
    def flagKV():
        stamp(3)
        l = lab("noflag")
        a(f"s_cmp_lg_u32 s{sW}, 0\ns_cbranch_scc1 {l}")
        poll(vGA, vG, 0xff, srdr=rDBG, first_issued=True)
        a(f"""
        s_mul_i32 s{sT0}, s{sHG}, {128*cfg.nrep}
        s_lshl_b32 s{sT1}, s{sRB}, 2
        s_add_u32 s{sT0}, s{sT0}, s{sT1}
        s_add_u32 s{sT0}, s{sT0}, {FL_KV}
        v_lshl_add_u32 v{vT}, v{vLANE}, 7, s{sT0}
        """)
        flag(vT, str((1 << cfg.nrep) - 1))
        a.label(l)
    assert cfg.coupled
    if cfg.flag_at == 9:
        if cfg.pre9: loadB(7 + cfg.pre9 - 1)
        barB(8); loadB(8)
    qs = 0.25 * math.log2(math.e)
    a(f"s_mov_b32 s{sC}, {f2u(qs)}\ns_mov_b32 s{sC+1}, {f2u(qs)}")
    for qb in range(2):
        for i in range(4):
            a(f"v_pk_mul_f32 {vr(ACC+16*qb+2*i,2)}, {vr(ACC+16*qb+2*i,2)}, {sr(sC,2)}")
        cvt(Qf + 4 * qb, ACC + 16 * qb, 4)
    a(f"""
    s_lshl_b32 s{sT0}, s{sJ}, 11
    s_add_u32 s{sT0}, s{sT0}, {L_X}
    v_add_u32 v{vT}, s{sT0}, v{vL16}
    ds_write_b128 v{vT}, {vr(Qf,4)}
    ds_write_b128 v{vT}, {vr(Qf+4,4)} offset:1024
    """)
    for qb in range(2):
        mfma(72 + 32 * qb, KOWN, Qf + 4 * qb, "0")
        mfma(88 + 32 * qb, KOWN + 4, Qf + 4 * qb, "0")
    TMB = 32
    def maxtree(dst, base, n, init=None):
        i = 0
        if init is None:
            a(f"v_max3_f32 v{dst}, v{base}, v{base+1}, v{base+2}"); i = 3
        while i + 1 < n:
            a(f"v_max3_f32 v{dst}, v{dst}, v{base+i}, v{base+i+1}"); i += 2
        if i < n:
            a(f"v_max_f32 v{dst}, v{dst}, v{base+i}")
    maxtree(TMB, 72, 32)
    maxtree(TMB + 1, 104, 32)
    def crossmax(t):
        a(f"v_permlane32_swap_b32 v{t}, v{t+1}\nv_max_f32 v{t}, v{t}, v{t+1}")
    crossmax(TMB)
    a(f"v_sub_f32 v{TMB}, {f2u(-cfg.bias)}, v{TMB}\nv_mov_b32 v{TMB+1}, v{TMB}\nv_permlane32_swap_b32 v{TMB}, v{TMB+1}")
    a(f"""
    s_lshl_b32 s{sT0}, s{sJ}, 9
    s_add_u32 s{sT0}, s{sT0}, {L_XM}
    v_lshl_add_u32 v{vT}, v{vLANE}, 3, s{sT0}
    ds_write_b64 v{vT}, {vr(TMB,2)}
    """)
    def flagKV2():
        a(f"""
        s_mul_i32 s{sT0}, s{sHG}, {128*cfg.nrep}
        s_lshl_b32 s{sT1}, s{sRB}, 2
        s_add_u32 s{sT1}, s{sT0}, s{sT1}
        s_add_u32 s{sT1}, s{sT1}, {FL_KV}
        v_lshl_add_u32 v{vT}, v{vLANE}, 7, s{sT1}
        s_and_b32 s{sT1}, s{sRB}, {cfg.nrep-1}
        s_lshl_b32 s{sT1}, s{sT1}, 7
        s_add_u32 s{sT0}, s{sT0}, s{sT1}
        s_add_u32 s{sT0}, s{sT0}, {FL_KV}
        s_waitcnt lgkmcnt(0)
        """)
        wait_for("st")
        poll(vGA, vG, 0xff, srdr=rDBG, first_issued=True)
        l = lab("noflag")
        a(f"""
        v_lshl_add_u32 v{vGA}, v{vLANE}, 2, s{sT0}
        s_mov_b64 exec, 1
        ds_add_rtn_u32 v{vT1}, v{vCNT}, v{vONE} offset:{C_KV}
        s_waitcnt lgkmcnt(0)
        v_cmp_eq_u32 vcc, 3, v{vT1}
        s_mov_b64 exec, -1
        s_cbranch_vccz {l}
        """)
        flag(vT, str((1 << cfg.nrep) - 1))
        a.label(l)
        stamp(3)
    sb = Stream(cfg.depB, cfg.nB)
    if cfg.flag_at == 8:
        flagKV2()
        barB(8); loadB(8)
        nmfill(TMB)
    elif cfg.flag_at == 9:
        flagKV2()
        nmfill(TMB)
    elif cfg.flag_at == 10:
        nmfill(TMB)
        loadB(7)
        a("s_waitcnt lgkmcnt(0)")
        barB(8)
        if cfg.pre9 == 0:
            loadB(8); flagKV2()
        else:
            flagKV2(); loadB(8)
    for c in range(9, cfg.pollB + 1):
        if c == cfg.pollB:
            a(f"s_mov_b32 exec_hi, 0\nbuffer_load_dword v{vG}, v{vGA}, {sr(rWS,4)}, 0 offen sc1\ns_mov_b64 exec, -1")
            vq.append("kvf")
        barB(c)
        loadB(c)
        if c == 10 and cfg.earlyset:
            att_setup(0, cfg.nB); sb.setup()
        if c == 11 and cfg.earlyset:
            sb.zero()
    sb.q = list(vq)

    WFB = 184
    vWR = 12
    def woaddr():
        a(f"""
        v_bfe_u32 v{vT1}, v{vLANE}, 2, 2
        v_lshrrev_b32 v{vT2}, 5, v{vLANE}
        v_lshl_add_u32 v{vT1}, v{vT2}, 2, v{vT1}
        v_lshlrev_b32 v{vWR}, 7, v{vT1}
        s_lshr_b32 s{sT1}, s{sJ}, 1
        v_bfe_u32 v{vT1}, v{vLANE}, 3, 1
        v_xor_b32 v{vT1}, s{sT1}, v{vT1}
        v_lshl_add_u32 v{vWR}, v{vT1}, 6, v{vWR}
        v_and_b32 v{vT1}, 1, v{vLANE}
        v_lshl_add_u32 v{vWR}, v{vT1}, 5, v{vWR}
        s_and_b32 s{sT1}, s{sJ}, 1
        v_bfe_u32 v{vT1}, v{vLANE}, 4, 1
        v_xor_b32 v{vT1}, s{sT1}, v{vT1}
        v_lshl_add_u32 v{vWR}, v{vT1}, 4, v{vWR}
        v_bfe_u32 v{vT1}, v{vLANE}, 1, 1
        v_lshl_add_u32 v{vWR}, v{vT1}, 3, v{vWR}
        s_lshl_b32 s{sT1}, s{sJ}, 14
        s_add_u32 s{sT1}, s{sT1}, {L_WB}
        v_add_u32 v{vWR}, s{sT1}, v{vWR}
        v_xor_b32 v{vWR+1}, 64, v{vWR}
        """)
    def wofrags(base, g2):
        for hh in range(8):
            a(f"ds_read_b64_tr_b16 {vr(base+32*g2+4*hh,2)}, v{vWR+g2} offset:{hh*2048}")
            a(f"ds_read_b64_tr_b16 {vr(base+32*g2+4*hh+2,2)}, v{vWR+g2} offset:{hh*2048+1024}")
    def upper(base):
        def f0():
            woaddr()
            await_cnt(C_WO, 4)
            wofrags(WFB, 0)
        def f1():
            wofrags(WFB, 1)
        def f2():
            a("s_waitcnt lgkmcnt(0)")
            arrive(C_UP)
        return f0, f1, f2

    vC4, vC1 = 6, 7
    def pretail():
        a(f"s_mul_i32 s{sT0}, s{sJ}, 4608\ns_add_u32 s{sT0}, s{sT0}, {L_XC}\nv_add_u32 v{vC4}, s{sT0}, v{vL16}\nv_lshl_add_u32 v{vC1}, v{vLANE}, 2, s{sT0}")

    def barS(c):
        sb.wait(c)
        a("s_barrier")
        bst(c)
        while nxtB[0] <= min(c + cfg.look, 15):
            issue_chunk(nxtB[0]); sb.push(nxtB[0], 8); nxtB[0] += 1
    for c in range(cfg.pollB + 1, cfg.kvB + 1): barS(c)
    sb.wait("kvf")
    stamp(4)
    poll(vGA, vG, 0xffffffff, first_issued=True)
    barT = cfg.barT
    assert len(barT) == 15 - cfg.kvB
    if not cfg.earlyset:
        att_setup(0, cfg.nB); sb.setup()
    sb.first()
    if not cfg.earlyset: sb.zero()
    for i, t in enumerate(barT):
        if t == 0: barS(cfg.kvB + 1 + i)
    sb.start()
    stamp(5)
    vJ0, vJ1, vJ2 = 9, 10, 11
    def stB(): stamp(6)
    def stB2(): stamp(14)
    assert cfg.depB <= 4
    jobs = {7: [stB], 11: [stB2]}
    for i, t in enumerate(barT):
        if t: jobs.setdefault(t - 1, []).append(lambda c=cfg.kvB + 1 + i: barS(c))
    for i, f in enumerate(upper(L_WB)):
        if f.__name__ not in cfg.skip: jobs.setdefault(cfg.upB + i, []).append(f)
    jobs.setdefault(cfg.nB - 2, []).append(pretail)
    sb.run(jobs, cfg.prioB)
    a("s_branch L_tail")

    a.label("L_attA")
    nA = 64 - cfg.nB
    att_setup(cfg.nB, nA)
    sa = Stream(cfg.depA, nA, init=["pst"] * 4)
    a(f"""
    v_lshrrev_b32 v{vT}, 3, v{vLANE}
    v_bfe_u32 v{vT1}, v{vLANE}, 4, 1
    v_lshlrev_b32 v{vT1}, 2, v{vT1}
    v_and_b32 v{vT2}, 7, v{vLANE}
    v_xor_b32 v{vT1}, v{vT1}, v{vT2}
    v_lshlrev_b32 v{vT1}, 4, v{vT1}
    v_lshl_add_u32 v{vWOA}, v{vT}, 10, v{vT1}
    s_lshl_b32 s{sT0}, s{sHG}, 7
    s_lshl_b32 s{sT1}, s{sJ}, 17
    s_add_u32 s{sT0}, s{sT0}, s{sT1}
    v_add_u32 v{vWOA}, s{sT0}, v{vWOA}
    s_and_b32 s{sWO}, s{sRB}, 7
    s_lshl_b32 s{sWO}, s{sWO}, 1
    s_lshl_b32 s{sWOM}, s{sJ}, 14
    """)
    a(f"""
    v_mov_b32 v{S}, -1
    v_mov_b32 v{S+1}, -1
    v_mov_b32 v{S+2}, -1
    v_mov_b32 v{S+3}, -1
    s_lshl_b32 s{sT0}, s{sRB}, 6
    s_add_u32 s{sT0}, s{sT0}, s{sH}
    s_lshl_b32 s{sT0}, s{sT0}, 10
    s_add_u32 s{sT0}, s{sT0}, {WS_OB}
    s_add_u32 s{sT1}, s{sT0}, 32768
    buffer_store_dwordx4 {vr(S,4)}, v{vL16}, {sr(rWS,4)}, s{sT0} offen sc1
    buffer_store_dwordx4 {vr(S,4)}, v{vL16}, {sr(rWS,4)}, s{sT1} offen sc1
    """)
    sa.push("poison", 2)
    sa.prologue()
    JD = RING + 12 * cfg.depA
    KT = JD + 32
    assert KT + 8 <= 248
    RD = JD
    assert RD + 16 <= 248
    def red0():
        a(f"""
        s_lshr_b32 s{sT0}, s{sRB}, 3
        s_lshl_b32 s{sT1}, s{sHG}, 2
        s_add_u32 s{sJB}, s{sT0}, s{sT1}
        s_lshl_b32 s{sT1}, s{sJB}, 7
        s_lshl_b32 s{sT0}, s{sJ}, 5
        s_add_u32 s{sT1}, s{sT1}, s{sT0}
        s_add_u32 s{sT1}, s{sT1}, {FL_P}
        v_lshl_add_u32 v{vJ0}, v{vLANE}, 2, s{sT1}
        s_mov_b64 exec, 0xff
        buffer_load_dword v{vJ1}, v{vJ0}, {sr(rWS,4)}, 0 offen sc1
        s_mov_b64 exec, -1
        """)
        sa.push("fp")
    def red1():
        sa.wait("fp")
        poll(vJ0, vJ1, 0xff, first_issued=True)
        a(f"""
        s_lshl_b32 s{sJB}, s{sJB}, 3
        s_and_b32 s{sT1}, s{sRB}, 7
        s_add_u32 s{sJB}, s{sJB}, s{sT1}
        s_mul_i32 s{sT1}, s{sJB}, {32*384}
        s_mul_i32 s{sT0}, s{sJ}, {8*384}
        s_add_u32 s{sT1}, s{sT1}, s{sT0}
        s_add_u32 s{sT1}, s{sT1}, {WS_P}
        v_lshrrev_b32 v{vJ1}, 5, v{vLANE}
        v_mul_u32_u24 v{vJ0}, 384, v{vJ1}
        v_and_b32 v{vJ2}, 31, v{vLANE}
        v_lshl_add_u32 v{vJ0}, v{vJ2}, 4, v{vJ0}
        v_lshlrev_b32 v{vJ1}, 2, v{vJ1}
        v_lshl_add_u32 v{vJ1}, v{vJ2}, 3, v{vJ1}
        s_mov_b32 exec_lo, 0x1ffff
        s_mov_b32 exec_hi, 0x1ffff
        """)
        for i in range(4):
            a(f"buffer_load_dwordx4 {vr(RD+4*i,4)}, v{vJ0}, {sr(rWS,4)}, s{sT1} offen offset:{i*768} sc1")
        a("s_mov_b64 exec, -1")
        sa.push("part", 4)
    def red2():
        sa.wait("part")
        a(f"v_pk_add_f32 {vr(RD,2)}, {vr(RD,2)}, {vr(RD+4,2)}\nv_pk_add_f32 {vr(RD+2,2)}, {vr(RD+2,2)}, {vr(RD+6,2)}")
        a(f"v_pk_add_f32 {vr(RD+8,2)}, {vr(RD+8,2)}, {vr(RD+12,2)}\nv_pk_add_f32 {vr(RD+10,2)}, {vr(RD+10,2)}, {vr(RD+14,2)}")
        a(f"v_pk_add_f32 {vr(RD,2)}, {vr(RD,2)}, {vr(RD+8,2)}\nv_pk_add_f32 {vr(RD+2,2)}, {vr(RD+2,2)}, {vr(RD+10,2)}")
        l = lab("notlast")
        a(f"""
        s_mul_i32 s{sT0}, s{sJ}, 800
        s_add_u32 s{sT0}, s{sT0}, {L_XR}
        v_add_u32 v{vJ0}, s{sT0}, v{vL16}
        s_mov_b32 exec_lo, 0x1ffff
        s_mov_b32 exec_hi, 0x1ffff
        ds_write_b128 v{vJ0}, {vr(RD,4)}
        s_mov_b32 s{sJL}, 0
        s_waitcnt lgkmcnt(0)
        s_mov_b64 exec, 1
        ds_add_rtn_u32 v{vJ2}, v{vCNT}, v{vONE} offset:{C_RD}
        s_waitcnt lgkmcnt(0)
        v_cmp_eq_u32 vcc, 3, v{vJ2}
        s_mov_b64 exec, -1
        s_cbranch_vccz {l}
        s_mov_b32 s{sJL}, 1
        v_add_u32 v{vJ0}, {L_XR}, v{vL16}
        """)
        for i in range(4):
            a(f"ds_read_b128 {vr(RD+4*i,4)}, v{vJ0} offset:{i*800}")
        a("s_waitcnt lgkmcnt(0)")
        a(f"v_pk_add_f32 {vr(RD,2)}, {vr(RD,2)}, {vr(RD+4,2)}\nv_pk_add_f32 {vr(RD+2,2)}, {vr(RD+2,2)}, {vr(RD+6,2)}")
        a(f"v_pk_add_f32 {vr(RD+8,2)}, {vr(RD+8,2)}, {vr(RD+12,2)}\nv_pk_add_f32 {vr(RD+10,2)}, {vr(RD+10,2)}, {vr(RD+14,2)}")
        a(f"v_pk_add_f32 {vr(RD,2)}, {vr(RD,2)}, {vr(RD+8,2)}\nv_pk_add_f32 {vr(RD+2,2)}, {vr(RD+2,2)}, {vr(RD+10,2)}")
        a(f"""
        v_permlane32_swap_b32 v{RD}, v{RD+2}
        v_permlane32_swap_b32 v{RD+1}, v{RD+3}
        v_pk_add_f32 {vr(RD,2)}, {vr(RD,2)}, {vr(RD+2,2)}
        v_cvt_pk_bf16_f32 v{RD}, v{RD}, v{RD+1}
        s_lshl_b32 s{sT1}, s{sJB}, 8
        s_add_u32 s{sT1}, s{sT1}, {WS_F}
        s_mov_b32 exec_lo, 0x1ffff
        s_mov_b32 exec_hi, 0x1ffff
        buffer_store_dword v{RD}, v{vJ1}, {sr(rWS,4)}, s{sT1} offen sc1
        s_mov_b64 exec, -1
        """)
        a.label(l)
        sa.mark = len(sa.q)
        sa.push("after", 0)
        sa.stored_at = list(sa.q)
    def red3():
        n_new = sum(1 for t in sa.q if t not in sa.stored_at)
        l = lab("noffl")
        a(f"s_cmp_lg_u32 s{sJL}, 1\ns_cbranch_scc1 {l}")
        a(f"""
        s_lshr_b32 s{sT1}, s{sJB}, 3
        s_lshl_b32 s{sT1}, s{sT1}, 7
        s_and_b32 s{sT0}, s{sJB}, 7
        s_lshl_b32 s{sT0}, s{sT0}, 2
        s_add_u32 s{sT0}, s{sT0}, s{sT1}
        s_add_u32 s{sT0}, s{sT0}, {FL_F}
        v_mov_b32 v{vJ0}, s{sT0}
        s_waitcnt vmcnt({n_new})
        """)
        flag(vJ0, "1")
        a.label(l)
    def wopiece():
        a(f"""
        s_lshl_b32 s{sT0}, s{sWO}, 10
        s_add_u32 m0, s{sT0}, s{sWOM}
        s_lshl_b32 s{sT1}, s{sWO}, 13
        s_add_u32 s{sT0}, s{sT0}, {L_WB}
        buffer_load_dwordx4 v{vWOA}, {sr(rMISC,4)}, s{sT1} offen lds
        s_add_u32 m0, s{sT0}, s{sWOM}
        s_add_u32 s{sWO}, s{sWO}, 1
        s_and_b32 s{sWO}, s{sWO}, 15
        buffer_load_dwordx4 v{vWOA}, {sr(rXB,4)}, s{sT1} offen lds
        """)
        sa.push("wo", 2)
    def wodone():
        sa.wait("wo")
        arrive(C_WO)
    def oa0():
        a(f"""
        s_lshl_b32 s{sT0}, s{sRB}, 7
        s_lshl_b32 s{sT1}, s{sJ}, 5
        s_add_u32 s{sT0}, s{sT0}, s{sT1}
        s_add_u32 s{sT0}, s{sT0}, {FL_OA}
        v_lshl_add_u32 v{vJ0}, v{vLANE}, 2, s{sT0}
        s_mov_b64 exec, 0xff
        buffer_load_dword v{vJ1}, v{vJ0}, {sr(rWS,4)}, 0 offen sc1
        s_mov_b64 exec, -1
        """)
        sa.push("foa")
    def oa1(part):
        def f():
            if part == 0:
                sa.wait("foa")
                poll(vJ0, vJ1, 0xff, first_issued=True)
                await_cnt(C_UP, 4)
            off = (part >> 1) * 32768 + (part & 1) * 4096
            loff = L_WB + off
            a(f"""
            s_lshl_b32 s{sT0}, s{sRB}, 16
            s_lshl_b32 s{sT1}, s{sJ}, 13
            s_add_u32 s{sT0}, s{sT0}, s{sT1}
            s_add_u32 s{sT0}, s{sT0}, {WS_OA + off}
            s_add_u32 m0, s{sT1}, {loff}
            """)
            for i in range(4):
                a(f"buffer_load_dwordx4 v{vL16}, {sr(rWS,4)}, s{sT0} offen offset:{i*1024} sc1 lds")
            sa.push("wo", 4)
        return f
    def job0():
        sa.wait("pst")
        a(f"s_lshl_b32 s{sT0}, s{sH}, 7\ns_lshl_b32 s{sT1}, s{sRB}, 2\ns_add_u32 s{sT0}, s{sT0}, s{sT1}\ns_add_u32 s{sT0}, s{sT0}, {FL_P}\nv_mov_b32 v{vJ0}, s{sT0}")
        flag(vJ0, "1"); sa.push("fl")
    def job1():
        a(f"s_lshl_b32 s{sT0}, s{sH}, 7\ns_add_u32 s{sT0}, s{sT0}, {FL_F}\nv_lshl_add_u32 v{vJ0}, v{vLANE}, 2, s{sT0}")
        a(f"s_mov_b64 exec, 0xff\nbuffer_load_dword v{vJ1}, v{vJ0}, {sr(rWS,4)}, 0 offen sc1\ns_mov_b64 exec, -1")
        sa.push("ff")
        stamp(6)
    def job2():
        sa.wait("ff")
        poll(vJ0, vJ1, 0xff, first_issued=True)
        a(f"""
        v_and_b32 v{vJ0}, 31, v{vLANE}
        v_min_u32 v{vJ0}, 16, v{vJ0}
        v_lshlrev_b32 v{vJ0}, 3, v{vJ0}
        v_lshrrev_b32 v{vJ1}, 5, v{vLANE}
        v_lshl_add_u32 v{vJ0}, v{vJ1}, 8, v{vJ0}
        s_lshl_b32 s{sT0}, s{sH}, 11
        s_add_u32 s{sT0}, s{sT0}, {WS_F}
        """)
        for r4 in range(4):
            a(f"buffer_load_dwordx2 {vr(KT+2*r4,2)}, v{vJ0}, {sr(rWS,4)}, s{sT0} offen offset:{r4*512} sc1")
        sa.push("kt", 4)
        stamp(14)
    def job3a():
        sa.wait("kt")
        for ri in range(2):
            mfma(JD + 16 * ri, KT, PHI + 8 * ri, "0")
        for ri in range(2):
            mfma(JD + 16 * ri, KT + 4, PHI + 8 * ri + 4, JD + 16 * ri)
    def job3b():
        a(f"s_lshl_b32 s{sT0}, s{sRB}, 6\ns_add_u32 s{sT0}, s{sT0}, s{sH}\ns_lshl_b32 s{sT0}, s{sT0}, 10\ns_add_u32 s{sT0}, s{sT0}, {WS_OA}\ns_add_u32 s{sT1}, s{sT0}, 32768")
        if cfg.a3:
            a(f"s_and_b32 s{sT2}, s{sJ}, 1\ns_lshl_b32 s{sT2}, s{sT2}, 15\ns_add_u32 s{sT0}, s{sT0}, s{sT2}\ns_sub_u32 s{sT1}, s{sT1}, s{sT2}")
        for ri in range(2):
            d = JD + 16 * ri
            a(f"v_add_f32 v{d+8}, {f2u(1e-6)}, v{d+8}\nv_rcp_f32 v{d+8}, v{d+8}")
        for ri in range(2):
            d = JD + 16 * ri
            for i in range(4):
                a(f"v_pk_mul_f32 {vr(d+2*i,2)}, {vr(d+2*i,2)}, {vr(d+8,2)} op_sel:[0,0] op_sel_hi:[1,0]")
            cvt(d + 12, d, 4)
            a(f"buffer_store_dwordx4 {vr(d+12,4)}, v{vL16}, {sr(rWS,4)}, s{sT0+ri} offen sc1")
        sa.push("oa", 2)
    def job4():
        sa.wait("oa")
        a(f"s_lshl_b32 s{sT0}, s{sRB}, 7\ns_lshl_b32 s{sT1}, s{sH}, 2\ns_add_u32 s{sT0}, s{sT0}, s{sT1}\ns_add_u32 s{sT0}, s{sT0}, {FL_OA}\nv_mov_b32 v{vJ0}, s{sT0}")
        flag(vJ0, "1"); sa.push("fl")
    jobs = {}
    t0, t1, t2, t3, t4 = cfg.jobT
    for t, f in ((t0, job0), (t1, job1), (t2, job2), (t3, job3a), (t3 + 1, job3b), (t4, job4)): jobs.setdefault(t, []).append(f)
    for t, f in zip(cfg.redT, (red0, red1, red2, red3)): jobs.setdefault(t, []).append(f)
    for t in range(16): jobs.setdefault(t + cfg.woT, []).append(wopiece)
    jobs.setdefault(cfg.woT + 18, []).append(wodone)
    jobs.setdefault(nA - 2, []).append(pretail)
    jobs.setdefault(cfg.oaT[0], []).append(oa0)
    for p in range(4): jobs.setdefault(cfg.oaT[1] + p, []).append(oa1(p))
    assert max(jobs) < nA
    if cfg.skip:
        for t in list(jobs):
            jobs[t] = [f for f in jobs[t] if f.__name__ not in cfg.skip]
    sa.run(jobs, cfg.prioA)
    sa.wait("wo")
    a.label("L_tail")
    stamp(7)

    CK = NM
    def check():
        for q in range(2):
            b = O + 16 * q
            a(f"v_max3_f32 v{CK+q}, abs(v{b}), abs(v{b+1}), abs(v{b+2})\nv_max3_f32 v{CK+q}, v{CK+q}, abs(v{b+3}), abs(v{b+4})")
            a(f"v_max3_f32 v{CK+q}, v{CK+q}, abs(v{b+5}), abs(v{b+6})\nv_max_f32 v{CK+q}, v{CK+q}, abs(v{b+7})")
        a(f"v_pk_add_f32 {vr(CK+2,2)}, {vr(O,2)}, {vr(O+2,2)}")
        for r in (O + 4, O + 6, O + 16, O + 18, O + 20, O + 22):
            a(f"v_pk_add_f32 {vr(CK+2,2)}, {vr(CK+2,2)}, {vr(r,2)}")
        a(f"""
        v_add_f32 v{CK+2}, v{CK+2}, v{O+8}
        v_add_f32 v{CK+3}, v{CK+3}, v{O+24}
        v_max3_f32 v{CK+4}, v{CK}, v{CK+1}, v{O+8}
        v_max_f32 v{CK+4}, v{CK+4}, v{O+24}
        s_mov_b32 s{sT2}, {f2u(2.0 ** -(cfg.bias + 2))}
        s_mov_b32 s{sT3}, {f2u(2.0 ** -112)}
        v_cmp_le_f32 s[84:85], s{sT2}, v{O+8}
        v_cmp_gt_f32 s[86:87], s{sT3}, v{CK}
        v_cmp_le_f32 s[88:89], s{sT2}, v{O+24}
        v_cmp_gt_f32 s[90:91], s{sT3}, v{CK+1}
        v_cmp_u_f32 vcc, v{CK+2}, v{CK+3}
        s_and_b64 s[84:85], s[84:85], s[86:87]
        s_and_b64 s[88:89], s[88:89], s[90:91]
        s_or_b64 s[84:85], s[84:85], s[88:89]
        s_or_b64 s[84:85], s[84:85], vcc
        v_cmp_ngt_f32 vcc, {f2u(2.0 ** 125)}, v{CK+4}
        s_or_b64 vcc, vcc, s[84:85]
        """)
    def badflag():
        l = lab("good")
        if cfg.force_redo:
            a(f"s_mov_b64 vcc, -1")
        a(f"s_cbranch_vccz {l}\nds_write_b32 v{vCNT}, v{vONE}")
        a.label(l)
    def rowaddr(dst, ri):
        a(f"""
        v_and_b32 v{vT1}, 31, v{vLANE}
        s_lshl_b32 s{sT0}, s{sRB}, 1
        s_add_u32 s{sT0}, s{sT0}, {ri}
        s_lshl_b32 s{sT0}, s{sT0}, 5
        v_add_u32 v{vT1}, s{sT0}, v{vT1}
        v_lshlrev_b32 v{dst}, 11, v{vT1}
        v_lshrrev_b32 v{vT1}, 5, v{vLANE}
        v_lshl_add_u32 v{dst}, v{vT1}, 5, v{dst}
        """)
    a(f"s_cmp_lt_u32 s{sW}, 4\ns_cbranch_scc1 L_tailB")
    check()
    badflag()
    a(f"""
    s_lshl_b32 s{sT0}, s{sRB}, 6
    s_add_u32 s{sT0}, s{sT0}, s{sH}
    s_lshl_b32 s{sT0}, s{sT0}, 10
    s_add_u32 s{sT0}, s{sT0}, {WS_OB}
    s_and_b32 s{sT2}, s{sJ}, 1
    s_lshl_b32 s{sT1}, s{sT2}, 15
    s_add_u32 s84, s{sT0}, s{sT1}
    s_xor_b32 s{sT1}, s{sT1}, 0x8000
    s_add_u32 s85, s{sT0}, s{sT1}
    s_waitcnt lgkmcnt(0)
    s_barrier
    """)
    PB = 104
    a(f"""
    ds_read_b32 v{PB+16}, v{vC1} offset:4096
    ds_read_b32 v{PB+17}, v{vC1} offset:4352
    ds_read_b32 v{CK}, v{vCNT}
    ds_read_b128 {vr(PB,4)}, v{vC4}
    ds_read_b128 {vr(PB+4,4)}, v{vC4} offset:1024
    ds_read_b128 {vr(PB+8,4)}, v{vC4} offset:2048
    ds_read_b128 {vr(PB+12,4)}, v{vC4} offset:3072
    s_waitcnt lgkmcnt(4)
    v_add_f32 v{O+8}, v{O+8}, v{PB+16}
    v_add_f32 v{O+24}, v{O+24}, v{PB+17}
    v_readfirstlane_b32 s{sT1}, v{CK}
    v_rcp_f32 v{O+10}, v{O+8}
    v_rcp_f32 v{O+26}, v{O+24}
    s_andn2_b32 s{sT1}, s{sT1}, s{sREDO}
    s_cmp_lg_u32 s{sT1}, 0
    s_cbranch_scc1 L_slow
    """)
    OS = 124
    for q in range(2):
        b = O + 16 * q
        a(f"s_waitcnt lgkmcnt({2 - 2*q})")
        for i in range(4):
            a(f"v_pk_add_f32 {vr(b+2*i,2)}, {vr(b+2*i,2)}, {vr(PB+8*q+2*i,2)}")
        for i in range(4):
            a(f"v_pk_mul_f32 {vr(b+2*i,2)}, {vr(b+2*i,2)}, {vr(b+10,2)} op_sel:[0,0] op_sel_hi:[1,0]")
        cvt(OS + 4 * q, b, 4)
        for i in range(4):
            a(f"v_min_u32 v{OS+4*q+i}, -2, v{OS+4*q+i}")
        a(f"buffer_store_dwordx4 {vr(OS+4*q,4)}, v{vL16}, {sr(rWS,4)}, s{84+q} offen sc1")
    l = lab("nohint")
    a(f"s_cmp_lg_u32 s{sW}, {cfg.hintw}\ns_cbranch_scc1 {l}")
    a(f"s_lshl_b32 s{sT0}, s{sRB}, 10\ns_lshl_b32 s{sT1}, s{sHG}, 2\ns_add_u32 s{sT0}, s{sT0}, s{sT1}\ns_add_u32 s{sT0}, s{sT0}, {FL_OB}")
    a(f"v_lshl_add_u32 v{vT}, v{vLANE}, 7, s{sT0}")
    flag(vT, "0xff")
    a.label(l)
    stamp(8)
    vOR, vOST = 5, 7
    PA, PW, PO, PS = 80, 136, 16, 48
    a(f"""
    s_lshl_b32 s{sT0}, s{sT2}, 2
    s_add_u32 s{sT0}, s{sT0}, s{sJ}
    s_lshl_b32 s{sT0}, s{sT0}, 10
    s_add_u32 s{sT0}, s{sT0}, {L_X}
    v_add_u32 v{vT}, s{sT0}, v{vL16}
    ds_write_b128 v{vT}, {vr(OS,4)}
    v_xor_b32 v{vT}, 0x1000, v{vT}
    ds_write_b128 v{vT}, {vr(OS+4,4)}
    v_bfe_u32 v{vT1}, v{vLANE}, 2, 2
    v_lshrrev_b32 v{vT2}, 5, v{vLANE}
    v_lshl_add_u32 v{vT1}, v{vT2}, 2, v{vT1}
    v_lshlrev_b32 v{vWR}, 7, v{vT1}
    s_lshr_b32 s{sT1}, s{sJ}, 1
    v_bfe_u32 v{vT1}, v{vLANE}, 3, 1
    v_xor_b32 v{vT1}, s{sT1}, v{vT1}
    v_lshl_add_u32 v{vWR}, v{vT1}, 6, v{vWR}
    v_and_b32 v{vT1}, 1, v{vLANE}
    v_lshl_add_u32 v{vWR}, v{vT1}, 5, v{vWR}
    v_bfe_u32 v{vT1}, v{vLANE}, 4, 1
    v_lshl_add_u32 v{vWR}, v{vT1}, 4, v{vWR}
    v_bfe_u32 v{vT1}, v{vLANE}, 1, 1
    v_lshl_add_u32 v{vWR}, v{vT1}, 3, v{vWR}
    s_lshl_b32 s{sT0}, s{sT2}, 15
    s_add_u32 s{sT0}, s{sT0}, {L_WB}
    v_add_u32 v{vOR}, s{sT0}, v{vL16}
    s_waitcnt lgkmcnt(0)
    """)
    arrive(C_OB)
    assert L_WA == 0
    DP = 4
    def rd(q):
        a(f"ds_read_b64_tr_b16 {vr(PW+4*(q%8),2)}, v{vWR} offset:{q*2048}")
        a(f"ds_read_b64_tr_b16 {vr(PW+4*(q%8)+2,2)}, v{vWR} offset:{q*2048+1024}")
        a(f"ds_read_b128 {vr(PO+4*(q%8),4)}, v{vOR} offset:{q*1024}")
    for q in range(DP): rd(q)
    for q in range(32):
        a(f"s_waitcnt lgkmcnt({3*min(DP-1, 31-q)})")
        mfma(PA, PW + 4 * (q % 8), PO + 4 * (q % 8), "0" if q == 0 else PA)
        if q + DP < 32: rd(q + DP)
        if q == 31 - DP:
            if cfg.outA_t:
                a(f"""
                v_lshrrev_b32 v{vT1}, 2, v{vLANE}
                s_lshl_b32 s{sT0}, s{sRB}, 1
                s_add_u32 s{sT0}, s{sT0}, s{sT2}
                s_lshl_b32 s{sT0}, s{sT0}, 5
                v_add_u32 v{vT1}, s{sT0}, v{vT1}
                v_lshlrev_b32 v{vOST}, 11, v{vT1}
                v_and_b32 v{vT1}, 3, v{vLANE}
                v_lshl_add_u32 v{vOST}, v{vT1}, 4, v{vOST}
                v_and_b32 v{vT1}, 31, v{vLANE}
                v_lshlrev_b32 v{vT1}, 6, v{vT1}
                v_lshrrev_b32 v{vT2}, 5, v{vLANE}
                v_lshl_add_u32 v{vT1}, v{vT2}, 5, v{vT1}
                s_mul_i32 s{sT0}, s{sJ}, 4608
                s_add_u32 s{sT0}, s{sT0}, {L_XC}
                v_add_u32 v9, s{sT0}, v{vT1}
                """)
            else:
                rowaddr(vOST, f"s{sT2}")
            a(f"s_lshl_b32 s{sT0}, s{sHG}, 7\ns_lshr_b32 s{sT1}, s{sJ}, 1\ns_lshl_b32 s{sT1}, s{sT1}, 6\ns_add_u32 s{sT0}, s{sT0}, s{sT1}\nv_add_u32 v{vOST}, s{sT0}, v{vOST}")
    arrive(C_OA)
    stamp(9)
    cvt(PS, PA, 8)
    if cfg.outA_t:
        a(f"""
        ds_write_b128 v9, {vr(PS,4)}
        ds_write_b128 v9, {vr(PS+4,4)} offset:16
        v_add_u32 v10, 0x8000, v{vOST}
        s_waitcnt lgkmcnt(0)
        ds_read_b128 {vr(PS+8,4)}, v{vC4}
        ds_read_b128 {vr(PS+12,4)}, v{vC4} offset:1024
        s_waitcnt lgkmcnt(1)
        buffer_store_dwordx4 {vr(PS+8,4)}, v{vOST}, {sr(rOUT,4)}, 0 offen {cfg.outA_sc}
        s_waitcnt lgkmcnt(0)
        buffer_store_dwordx4 {vr(PS+12,4)}, v10, {sr(rOUT,4)}, 0 offen {cfg.outA_sc}
        """)
    else:
        a(f"buffer_store_dwordx4 {vr(PS,4)}, v{vOST}, {sr(rOUT,4)}, 0 offen {cfg.outA_sc}")
        a(f"buffer_store_dwordx4 {vr(PS+4,4)}, v{vOST}, {sr(rOUT,4)}, 0 offen offset:16 {cfg.outA_sc}")
    stamp(10); stamp(11); stamp(12)
    a("s_branch L_fin")

    a.label("L_tailB")
    a(f"""
    ds_write_b128 v{vC4}, {vr(O,4)}
    ds_write_b128 v{vC4}, {vr(O+4,4)} offset:1024
    ds_write_b32 v{vC1}, v{O+8} offset:4096
    ds_write_b128 v{vC4}, {vr(O+16,4)} offset:2048
    ds_write_b128 v{vC4}, {vr(O+20,4)} offset:3072
    ds_write_b32 v{vC1}, v{O+24} offset:4352
    """)
    check()
    badflag()
    OFB, AB = 16, 104
    vH, vHA, vXW, vXR, vOWN = 248, 249, 9, 10, 11
    sTODO, sREQ, sOWN, sOB, sNEW = 84, 85, 86, 87, 88
    a(f"""
    s_lshl_b32 s{sT0}, s{sRB}, 3
    s_add_u32 s{sT0}, s{sT0}, s{sHG}
    s_lshl_b32 s{sT0}, s{sT0}, 7
    s_lshl_b32 s{sT1}, s{sJ}, 3
    s_add_u32 s{sT0}, s{sT0}, s{sT1}
    s_add_u32 s{sT0}, s{sT0}, {FL_OB}
    v_lshl_add_u32 v{vHA}, v{vLANE}, 2, s{sT0}
    s_lshl_b32 s{sT0}, s{sRB}, 16
    s_lshl_b32 s{sT1}, s{sJ}, 13
    s_add_u32 s{sOB}, s{sT0}, s{sT1}
    s_add_u32 s{sOB}, s{sOB}, {WS_OB}
    s_lshr_b32 s{sT0}, s{sHG}, 1
    s_and_b32 s{sT1}, s{sHG}, 1
    s_lshl_b32 s{sT1}, 1, s{sT1}
    s_cmp_eq_u32 s{sT0}, s{sJ}
    s_cselect_b32 s{sOWN}, s{sT1}, 0
    s_waitcnt lgkmcnt(0)
    s_barrier
    ds_read_b32 v{CK}, v{vCNT}
    s_mov_b64 exec, 3
    buffer_load_dword v{vH}, v{vHA}, {sr(rWS,4)}, 0 offen sc1
    s_mov_b64 exec, -1
    v_pk_mov_b32 {vr(168,2)}, 0, 0
    v_pk_mov_b32 {vr(170,2)}, 0, 0
    s_waitcnt lgkmcnt(0)
    v_readfirstlane_b32 s{sT1}, v{CK}
    s_andn2_b32 s{sT1}, s{sT1}, s{sREDO}
    s_cmp_lg_u32 s{sT1}, 0
    s_cbranch_scc1 L_slow
    """)
    stamp(8)
    for i in range(4):
        mfma(AB + 16 * i, 168, 168, "0")
    rowaddr(vOST, 0)
    a(f"""
    s_lshl_b32 s{sT0}, s{sHG}, 7
    s_lshr_b32 s{sT1}, s{sJ}, 1
    s_lshl_b32 s{sT1}, s{sT1}, 6
    s_add_u32 s{sT0}, s{sT0}, s{sT1}
    s_and_b32 s{sT1}, s{sJ}, 1
    s_lshl_b32 s{sT1}, s{sT1}, 4
    s_add_u32 s{sT0}, s{sT0}, s{sT1}
    v_add_u32 v{vOST}, s{sT0}, v{vOST}
    s_mul_i32 s{sT0}, s{sJ}, 12288
    v_add_u32 v{vXR}, s{sT0}, v{vL16}
    v_add_u32 v{vOWN}, {L_X}, v{vL16}
    s_andn2_b32 s{sTODO}, 3, s{sOWN}
    s_mov_b32 s{sREQ}, 0
    s_mov_b32 s{sCNT}, {cfg.spin}
    """)
    def mm(g):
        for i in range(4):
            for ri in range(2):
                for g2 in range(2):
                    d = AB + 32 * ri + 16 * g2
                    mfma(d, WFB + 32 * g2 + 4 * (4 * g + i), OFB + 32 * g + 16 * ri + 4 * i, d)
    def oload(g):
        l = lab("nol")
        a(f"s_bitcmp1_b32 s{sNEW}, {g}\ns_cbranch_scc0 {l}")
        for ri in range(2):
            a(f"s_add_u32 s{sT0}, s{sOB}, {g*4096 + ri*32768}")
            for i in range(4):
                a(f"buffer_load_dwordx4 {vr(OFB+32*g+16*ri+4*i,4)}, v{vL16}, {sr(rWS,4)}, s{sT0} offen offset:{i*1024} sc1")
        a.label(l)
    def look():
        a(f"""
        s_mov_b64 exec, 3
        v_cmp_ne_u32 vcc, 0, v{vH}
        s_mov_b64 exec, -1
        s_cmp_eq_u32 s{sCNT}, 0
        s_cselect_b32 s{sNEW}, 3, vcc_lo
        s_and_b32 s{sNEW}, s{sNEW}, s{sTODO}
        s_andn2_b32 s{sNEW}, s{sNEW}, s{sREQ}
        """)
        oload(0); oload(1)
    def use(g):
        l, l2 = lab("og"), lab("og")
        b = OFB + 32 * g
        a(f"v_max3_u32 v{vT}, v{b}, v{b+1}, v{b+2}\nv_max3_u32 v{vT1}, v{b+3}, v{b+4}, v{b+5}")
        for i in range(6, 30, 4):
            a(f"v_max3_u32 v{vT}, v{vT}, v{b+i}, v{b+i+1}\nv_max3_u32 v{vT1}, v{vT1}, v{b+i+2}, v{b+i+3}")
        a(f"v_max3_u32 v{vT}, v{vT}, v{b+30}, v{b+31}\nv_max_u32 v{vT}, v{vT}, v{vT1}\nv_cmp_eq_u32 vcc, -1, v{vT}")
        a(f"s_cmp_eq_u32 s{sCNT}, 0\ns_cbranch_scc1 {l2}\ns_cbranch_vccnz {l}")
        a.label(l2)
        mm(g)
        a(f"s_bitset0_b32 s{sTODO}, {g}")
        a.label(l)
    a("s_waitcnt vmcnt(0)")
    look()
    a(f"s_mov_b32 s{sREQ}, s{sNEW}")
    l = lab("noown")
    a(f"s_cmp_eq_u32 s{sOWN}, 0\ns_cbranch_scc1 {l}")
    await_cnt(C_OB, 4)
    for g in range(2):
        l2 = lab("own")
        a(f"s_bitcmp1_b32 s{sOWN}, {g}\ns_cbranch_scc0 {l2}")
        for i in range(8):
            a(f"ds_read_b128 {vr(OFB+32*g+4*i,4)}, v{vOWN} offset:{i*1024}")
        a("s_waitcnt lgkmcnt(0)")
        mm(g)
        a.label(l2)
    a.label(l)
    stamp(9)
    if cfg.prof: a("s_mov_b32 s70, 0")
    a.label("L_otry")
    if cfg.prof:
        a("s_memtime s[98:99]\ns_add_u32 s70, s70, 1\ns_add_u32 s71, s70, 40\ns_min_u32 s71, s71, 47\ns_waitcnt lgkmcnt(0)\ns_mov_b32 m0, s71\nv_writelane_b32 v255, s98, m0")
    a(f"s_cmp_lg_u32 s{sREQ}, 3\ns_cbranch_scc1 L_oone")
    a("s_waitcnt vmcnt(8)")
    use(0)
    a("s_waitcnt vmcnt(0)")
    use(1)
    a(f"s_mov_b32 s{sREQ}, 0\ns_branch L_onext")
    a.label("L_oone")
    l = lab("nopoll")
    a(f"s_andn2_b32 s{sT0}, s{sTODO}, s{sREQ}\ns_cbranch_scc0 {l}")
    if cfg.tsleep: a(f"s_sleep {cfg.tsleep}")
    a(f"s_mov_b64 exec, 3\nbuffer_load_dword v{vH}, v{vHA}, {sr(rWS,4)}, 0 offen sc1\ns_mov_b64 exec, -1")
    a(f"s_max_u32 s{sCNT}, s{sCNT}, 1\ns_sub_u32 s{sCNT}, s{sCNT}, 1")
    a.label(l)
    a("s_waitcnt vmcnt(0)")
    look()
    for g in range(2):
        l = lab("nouse")
        a(f"s_bitcmp1_b32 s{sREQ}, {g}\ns_cbranch_scc0 {l}")
        use(g)
        a.label(l)
    a(f"s_mov_b32 s{sREQ}, s{sNEW}")
    a.label("L_onext")
    a(f"s_cmp_lg_u32 s{sTODO}, 0\ns_cbranch_scc1 L_otry")
    if cfg.prof: a(f"v_writelane_b32 v255, s70, 33\nv_writelane_b32 v255, s{sCNT}, 34")
    stamp(10)
    await_cnt(C_OA, 4)
    stamp(11)
    def grp(ri, g):
        return AB + 32 * ri + 16 * (g >> 1) + 8 * (g & 1)
    for g in range(1, 4):
        a(f"s_xor_b32 s{sT0}, s{sJ}, {g}\ns_mul_i32 s{sT0}, s{sT0}, 12288\ns_add_u32 s{sT0}, s{sT0}, {(g-1)*4096}\nv_add_u32 v{vXW}, s{sT0}, v{vL16}")
        for ri in range(2):
            a(f"ds_write_b128 v{vXW}, {vr(grp(ri,g),4)} offset:{ri*2048}\nds_write_b128 v{vXW}, {vr(grp(ri,g)+4,4)} offset:{ri*2048+1024}")
    a("s_waitcnt lgkmcnt(0)\ns_barrier")
    stamp(12)
    tmp = 16
    for ri in range(2):
        for g in range(3):
            for i in range(2):
                a(f"ds_read_b128 {vr(tmp+24*ri+8*g+4*i,4)}, v{vXR} offset:{g*4096 + ri*2048 + i*1024}")
    a(f"v_add_u32 v{vXW}, 0x10000, v{vOST}")
    for ri in range(2):
        d = grp(ri, 0)
        for g in range(3):
            a(f"s_waitcnt lgkmcnt({10 - 6*ri - 2*g})")
            for i in range(4):
                a(f"v_pk_add_f32 {vr(d+2*i,2)}, {vr(d+2*i,2)}, {vr(tmp+24*ri+8*g+2*i,2)}")
        cvt(64 + 4 * ri, d, 4)
        a(f"buffer_store_dwordx4 {vr(64+4*ri,4)}, v{vXW if ri else vOST}, {sr(rOUT,4)}, 0 offen offset:1024 {cfg.out_sc}")
    a.label("L_fin")
    stamp(13)
    if cfg.diag:
        da, db, base = cfg.diag
        ra = sPROF if da == 0 else 92
        if db == 0:
            a(f"s_mov_b32 s{sT2}, 0")
        elif db == 15:
            a(f"s_waitcnt vmcnt(0)\ns_memrealtime s[{sT0}:{sT1}]\ns_waitcnt lgkmcnt(0)\ns_sub_u32 s{sT2}, s{sT0}, s{ra}")
        elif db == 16:
            a(f"s_waitcnt vmcnt(0)\ns_memtime s[{sT0}:{sT1}]\ns_waitcnt lgkmcnt(0)\ns_sub_u32 s{sT2}, s{sT0}, s100\ns_lshr_b32 s{sT2}, s{sT2}, 4")
        else:
            a(f"s_sub_u32 s{sT2}, s94, s{ra}")
        a(f"s_add_u32 s{sT2}, s{sT2}, {base}\ns_min_u32 s{sT2}, s{sT2}, 30000")
        a(f"s_cmp_lg_u32 s{sW}, 0\ns_cbranch_scc1 L_end")
        if cfg.diag_wb: a("s_waitcnt vmcnt(0)\ns_sleep 100\nbuffer_wbl2 sc1\ns_waitcnt vmcnt(0)")
        a.label("L_diag")
        a(f"s_memrealtime s[{sT0}:{sT1}]\ns_waitcnt lgkmcnt(0)\ns_sub_u32 s{sT0}, s{sT0}, s{sPROF}\ns_cmp_lt_u32 s{sT0}, s{sT2}\ns_cbranch_scc1 L_diag")
    if cfg.prof:
        a("s_waitcnt vmcnt(0)")
        stamp(15)
        a(f"s_getreg_b32 s{sT2}, hwreg(HW_REG_XCC_ID)\nv_writelane_b32 v255, s{sT2}, 32")
        a(f"s_lshl_b32 s{sT0}, s2, 3\ns_add_u32 s{sT0}, s{sT0}, s{sW}\ns_lshl_b32 s{sT0}, s{sT0}, 8\ns_add_u32 s{sT0}, s{sT0}, {WS_PROF}")
        a(f"v_lshlrev_b32 v{vT}, 2, v{vLANE}")
        a(f"buffer_store_dword v255, v{vT}, {sr(rWS,4)}, s{sT0} offen")
        if cfg.tprof:
            a(f"s_add_u32 s{sT0}, s{sT0}, {WS_DBG - WS_PROF}\nbuffer_store_dword v252, v{vT}, {sr(rWS,4)}, s{sT0} offen")
    a("s_endpgm")

    SL = O
    a.label("L_slow")
    a("s_waitcnt vmcnt(0) lgkmcnt(0)")
    a(f"s_mov_b32 s{sREDO}, 1\ns_mov_b32 s{sKV}, s{sKV0}\ns_mov_b32 s{sCNT}, s{sNIT}")
    a(f"v_mov_b32 v{SL}, 0xff800000\nv_mov_b32 v{SL+1}, 0xff800000")
    a.label("L_slow_loop")
    a(f"buffer_load_dwordx4 {vr(RING,4)}, v{vOFFK}, {sr(rWS,4)}, s{sKV} offen sc1\ns_add_u32 s{sKV}, s{sKV}, 2048\ns_and_b32 s{sKV}, s{sKV}, 0x1ffff\ns_waitcnt vmcnt(0)")
    mfma(S, RING, Qf, "0")
    mfma(S + 16, RING, Qf + 4, "0")
    maxtree(SL, S, 16, init=True)
    maxtree(SL + 1, S + 16, 16, init=True)
    a(f"s_sub_u32 s{sCNT}, s{sCNT}, 1\ns_cmp_lg_u32 s{sCNT}, 0\ns_cbranch_scc1 L_slow_loop")
    crossmax(SL)
    a(f"""
    s_lshl_b32 s{sT0}, s{sW}, 8
    s_add_u32 s{sT0}, s{sT0}, {L_X + 28672}
    v_lshl_add_u32 v{vT}, v{vLANE}, 2, s{sT0}
    ds_write_b32 v{vT}, v{SL}
    v_xor_b32 v{vT}, 0x400, v{vT}
    s_waitcnt lgkmcnt(0)
    s_barrier
    ds_read_b32 v{SL+1}, v{vT}
    s_waitcnt lgkmcnt(0)
    v_max_f32 v{SL}, v{SL}, v{SL+1}
    v_sub_f32 v{SL}, 0, v{SL}
    v_mov_b32 v{SL+1}, v{SL}
    v_permlane32_swap_b32 v{SL}, v{SL+1}
    """)
    nmfill(SL)
    sr2 = Stream(2, 2)
    sr2.prologue(single=True)
    a(f"s_lshr_b32 s{sCNT}, s{sNIT}, 1\ns_nop 7\ns_nop 3")
    a.label("L_redo_loop")
    sr2.tile(0, looped=True)
    sr2.tile(1, looped=True)
    a(f"s_sub_u32 s{sCNT}, s{sCNT}, 1\ns_cmp_lg_u32 s{sCNT}, 0\ns_cbranch_scc1 L_redo_loop")
    smf(O + 16, sr2.ring(1)[2], S + 16 + 8)
    a("s_waitcnt vmcnt(0)\ns_branch L_tail")
    a.label("L_end")
    a("s_endpgm")
    npad = a.pad()
    head = open(f"cdna_kernels/{NAME}.s.ref").read().split("; Override launch")[0]
    txt = head + f"""; Generated by gen/gen.py (hand-written generator).
; @launch grid=(256,1,1) block=(512,1,1) lds={LDS_SIZE}
.amdgcn_target "amdgcn-amd-amdhsa--gfx950"
.text
.globl {NAME}_kernel
.p2align 8
.type {NAME}_kernel,@function
{NAME}_kernel:
""" + a.text() + f""".section .rodata,"a"
.p2align 6
.amdhsa_kernel {NAME}_kernel
  .amdhsa_next_free_vgpr 256
  .amdhsa_next_free_sgpr 102
  .amdhsa_accum_offset 256
  .amdhsa_group_segment_fixed_size 0
  .amdhsa_kernarg_size 80
  .amdhsa_user_sgpr_count 2
  .amdhsa_user_sgpr_kernarg_segment_ptr 1
  .amdhsa_system_sgpr_workgroup_id_x 1
.end_amdhsa_kernel
"""
    return txt, npad

if __name__ == "__main__":
    kw = {}
    out = f"cdna_kernels/{NAME}.s"
    for arg in sys.argv[1:]:
        k, v = arg.split("=", 1)
        if k == "out":
            out = v
        else:
            kw[k] = eval(v)
    txt, npad = gen(Cfg(**kw))
    open(out, "w").write(txt)
    print("wrote", out, "nop states inserted:", npad, "lines:", txt.count("\n"))
```

```python
import math, struct, sys
from asmlib import Asm, vr, sr

NAME = "concat_heads__linear_kernel_hedgehog__softmax_full_mha__prompt"

def f2u(x):
    return struct.unpack("<I", struct.pack("<f", x))[0]

class Cfg:
    prof = False
    stop = 99
    mapping = "N"
    force_redo = False
    nrep = 8
    bias = 100.0
    out_sc = ""
    prio = True
    pref_sc = ''
    rot = (4, 4, 2)
    rotA = (1, 2, 1)
    sprefB = 0
    look = 2
    nB = 24
    depB, depA = 4, 4
    redT = (8, 10, 12, 15)
    jobT = (0, 20, 22, 24, 27)
    prioB = ((0, 0),)
    prioA = ((0, 3),)
    kvrot = True
    diag_wb = False
    split_ld = False
    earlyset = True
    prebar = 0
    m16 = True
    tailprio = 1
    ob_st = 'sc1'
    ob_ld = 'sc1'
    l2A = None
    pre9 = 1
    bnear = False
    sslow = 'b'
    sslowA = (1, 6)
    outA_t = False
    outA_sc = ''
    nfirst = 1
    gat_at = -1
    a3 = True
    slowpref = ''
    tprof = False
    skip = ()
    tailmode = 0
    drq = 4
    aload = 10
    hintw = 7
    tsleep = 0
    coupled = True
    lastA = 8
    flag_at = 10
    pollB = 13
    kvB = 14
    barT = (0,)
    woT = 1
    upA, upB = 26, 17
    oaT = (35, 36)
    itB = 9
    redB = 5
    hold8 = 1
    onepoll = True
    psleep = 2
    hold9 = False
    prB = (4, 1)
    prA = (3, 1)
    wopref = False
    oa_first = True
    spref = None
    codepref = 'xcd'
    ninit = 2
    pref = 'uniq'
    prefA = (99, 99)
    spin = 1 << 18
    diag = None
    def __init__(self, **kw):
        for k, v in kw.items():
            assert hasattr(self, k), k
            setattr(self, k, v)
        if self.m16: self.a3 = False

WS_KV = 0
WS_OA = 4 << 20
WS_OB = 6 << 20
WS_P = 8 << 20
WS_F = 11 << 20
WS_FL = (11 << 20) + 65536
FL_OB = WS_FL
FL_P = WS_FL + 32768
FL_F = FL_P + 4096
FL_OA = FL_F + 4096
FL_KV = FL_OA + 4096
WS_PROF = 12 << 20
WS_DBG = 13 << 20
WS_SIZE = 16 << 20

L_WA = 0
L_WB = 65536
L_X = 131072
L_XM = L_X + 8192
L_XC = L_X + 10240
L_XV = L_X + 12288
L_XR = L_X + 28672
L_BAD = L_X + 32512
C_KV, C_WO, C_GO, C_RD, C_OA, C_OB, C_UP, C_DR = 4, 8, 12, 16, 20, 24, 28, 68
LDS_SIZE = 163840

sW, sJ, sRB, sHG, sH = 3, 4, 5, 6, 7
rXB, rWB, rXA, rWA, rWS, rOUT, rMISC, rDBG = 8, 12, 16, 20, 24, 28, 32, 36
kAX, kAW, kAP, kAO, kBX, kBW, kBO, kOUT, kDBG, kWS = range(40, 60, 2)
sM, sO0, sO1, sO2 = 60, 61, 62, 63
sC = 64
sVM = 66
sCNT, sKV, sKVMAX, sWO, sWOM, sREDO = 68, 69, 70, 71, 72, 73
sT0, sT1, sT2, sT3 = 74, 75, 76, 77
sSPIN = 78
sKV0 = 79
sROT = 82
sROTA = 70
sNIT = 83
sJB, sJL = 90, 91
sPROF = 80

vL16, vLANE = 0, 1
vT = 2
vX0, vX1, vWq, vWk, vWv = 3, 4, 5, 6, 7
vXA = 8
vQK, vV = 12, 13
vPX, vPW = 34, 35
vXB = 24
vT1, vT2 = 14, 15
vCNT, vONE = 254, 253
vOFFV, vIDX = 250, 251
vWOA = 5
Qf = 16
PHI = 24
NM = 40
O = 72
S = 104
RING = 136
SCR = 184
FR = 104
ACC = 184

def gen(cfg):
    a = Asm()
    uid = [0]
    def lab(p):
        uid[0] += 1
        return f"L_{p}_{uid[0]}"
    nstamp = [0]
    def stamp(idx):
        if cfg.prof:
            a(f"s_memrealtime s[96:97]\ns_memtime s[98:99]\ns_waitcnt lgkmcnt(0)\nv_writelane_b32 v255, s96, {idx}\nv_writelane_b32 v255, s98, {16+idx}")
        elif cfg.diag and idx in cfg.diag[:2]:
            a(f"s_memrealtime {sr(92 if idx == cfg.diag[0] else 94, 2)}\ns_waitcnt lgkmcnt(0)")
    def srd(r, k, size):
        a(f"s_mov_b32 s{r}, s{k}\ns_mov_b32 s{r+1}, s{k+1}\ns_mov_b32 s{r+2}, {size}\ns_mov_b32 s{r+3}, 0x00020000")
    def mfma(d, x, y, c):
        cc = c if isinstance(c, str) else vr(c, 16)
        a(f"v_mfma_f32_32x32x16_bf16 {vr(d,16)}, {vr(x,4)}, {vr(y,4)}, {cc}")
    def cvt(d, s0, n):
        for i in range(n):
            a(f"v_cvt_pk_bf16_f32 v{d+i}, v{s0+2*i}, v{s0+2*i+1}")
    def poll(vaddr, vdst, mask, srdr=rWS, soff="0", first_issued=False, sleep=0):
        lp, dn = lab("poll"), lab("polld")
        a(f"s_mov_b64 exec, {mask}" if isinstance(mask, str) else f"s_mov_b32 exec_lo, {mask & 0xffffffff}\ns_mov_b32 exec_hi, {mask >> 32}")
        a(f"s_mov_b32 s{sSPIN}, {cfg.spin}")
        if first_issued:
            a(f"v_cmp_eq_u32 vcc, 0, v{vdst}\ns_cbranch_vccz {dn}")
        a.label(lp)
        if sleep: a(f"s_sleep {sleep}")
        a(f"buffer_load_dword v{vdst}, v{vaddr}, {sr(srdr,4)}, {soff} offen sc1")
        a(f"s_sub_u32 s{sSPIN}, s{sSPIN}, 1\ns_cbranch_scc1 {dn}")
        a(f"s_waitcnt vmcnt(0)\nv_cmp_eq_u32 vcc, 0, v{vdst}\ns_cbranch_vccnz {lp}")
        a.label(dn)
        a("s_mov_b64 exec, -1")
    def flag(vaddr, mask, soff="0", srdr=rWS):
        a(f"v_mov_b32 v{vT2}, 1")
        mask = int(mask, 0)
        a(f"s_mov_b32 exec_lo, {mask & 0xffffffff}\ns_mov_b32 exec_hi, {mask >> 32}")
        a(f"buffer_store_dword v{vT2}, v{vaddr}, {sr(srdr,4)}, {soff} offen sc1")
        a("s_mov_b64 exec, -1")

    def nmfill(src):
        assert src % 2 == 0
        for i in range(0, 16, 2):
            a(f"v_pk_mov_b32 {vr(NM+i,2)}, {vr(src,2)}, {vr(src,2)} op_sel:[0,0]\nv_pk_mov_b32 {vr(NM+16+i,2)}, {vr(src,2)}, {vr(src,2)} op_sel:[1,1]")
    def arrive(off):
        a(f"s_mov_b64 exec, 1\nds_add_u32 v{vCNT}, v{vONE} offset:{off}\ns_mov_b64 exec, -1")
    def await_cnt(off, target):
        lp, dn = lab("cw"), lab("cwd")
        a(f"s_mov_b64 exec, 1\ns_mov_b32 s{sSPIN}, {cfg.spin * 16}")
        a.label(lp)
        a(f"ds_read_b32 v{vT2}, v{vCNT} offset:{off}\ns_sub_u32 s{sSPIN}, s{sSPIN}, 1\ns_cbranch_scc1 {dn}")
        a(f"s_waitcnt lgkmcnt(0)\nv_cmp_gt_u32 vcc, {target}, v{vT2}\ns_cbranch_vccnz {lp}")
        a.label(dn)
        a("s_mov_b64 exec, -1")

    a(f"s_cmp_ge_u32 s2, 256\ns_cbranch_scc1 L_end")
    a(f"s_load_dwordx2 {sr(rXB,2)}, s[0:1], 32\ns_load_dwordx2 {sr(rWB,2)}, s[0:1], 40")
    a(f"s_load_dwordx16 s[40:55], s[0:1], 0\ns_load_dwordx4 s[56:59], s[0:1], 64")
    if cfg.prof or cfg.diag:
        a(f"s_memrealtime {sr(sPROF,2)}\ns_memtime s[100:101]")
    def code_prefetch(tag):
        a(f"s_getpc_b64 s[{sT0}:{sT1}]")
        a.label(f"L_pc{tag}")
        a(f"s_sub_u32 s{sT0}, s{sT0}, L_pc{tag}-{NAME}_kernel\ns_subb_u32 s{sT1}, s{sT1}, 0")
        a(f"s_lshr_b32 s{sT2}, s2, 3\ns_lshl_b32 s{sT2}, s{sT2}, 2\ns_add_u32 s{sT2}, s{sT2}, s{sJ}\ns_mul_i32 s{sT2}, s{sT2}, 3")
        a(f"v_min_u32 v{vT}, 2, v{vLANE}\nv_add_u32 v{vT}, s{sT2}, v{vT}")
        a(f"v_lshlrev_b32 v{vT}, 7, v{vT}\nv_min_u32 v{vT}, L_end-{NAME}_kernel, v{vT}")
        a(f"global_load_dword v39, v{vT}, s[{sT0}:{sT1}]")
    a(f"v_lshrrev_b32 v{vT}, 6, v0\nv_and_b32 v{vLANE}, 63, v0\nv_readfirstlane_b32 s{sW}, v{vT}")
    if cfg.mapping == "R":
        a(f"s_and_b32 s{sT0}, s2, 7\ns_lshl_b32 s{sT0}, s{sT0}, 2\ns_bfe_u32 s{sT1}, s2, 0x20003\ns_add_u32 s{sRB}, s{sT0}, s{sT1}\ns_lshr_b32 s{sHG}, s2, 5")
    elif cfg.mapping == "H":
        a(f"s_and_b32 s{sHG}, s2, 7\ns_lshr_b32 s{sRB}, s2, 3")
    elif cfg.mapping == "M":
        a(f"s_and_b32 s{sT0}, s2, 3\ns_lshl_b32 s{sT0}, s{sT0}, 1\ns_bfe_u32 s{sT1}, s2, 0x10003\ns_add_u32 s{sHG}, s{sT0}, s{sT1}")
        a(f"s_bfe_u32 s{sT0}, s2, 0x10002\ns_lshl_b32 s{sT0}, s{sT0}, 4\ns_lshr_b32 s{sT1}, s2, 4\ns_add_u32 s{sRB}, s{sT0}, s{sT1}")
    elif cfg.mapping == "N":
        a(f"s_and_b32 s{sT0}, s2, 1\ns_lshl_b32 s{sT0}, s{sT0}, 2\ns_bfe_u32 s{sT1}, s2, 0x20003\ns_add_u32 s{sHG}, s{sT0}, s{sT1}")
        a(f"s_bfe_u32 s{sT0}, s2, 0x20001\ns_lshl_b32 s{sT0}, s{sT0}, 3\ns_lshr_b32 s{sT1}, s2, 5\ns_add_u32 s{sRB}, s{sT0}, s{sT1}")
    a(f"s_and_b32 s{sJ}, s{sW}, 3")
    def rotation(reg, rot):
        if rot:
            a(f"s_mul_i32 s{reg}, s{sHG}, {rot[1]}\ns_mul_i32 s{sT0}, s{sRB}, {rot[0]}\ns_add_u32 s{reg}, s{reg}, s{sT0}")
            a(f"s_lshr_b32 s{sT0}, s{sHG}, 2\ns_mul_i32 s{sT0}, s{sT0}, {rot[2]}\ns_add_u32 s{reg}, s{reg}, s{sT0}")
    def late_setup():
        a(f"s_lshl_b32 s{sH}, s{sHG}, 2\ns_add_u32 s{sH}, s{sH}, s{sJ}")
        a(f"v_lshlrev_b32 v{vL16}, 4, v{vLANE}\nv_mov_b32 v{vCNT}, {L_BAD}\nv_mov_b32 v{vONE}, 1")
        rotation(sROTA, cfg.rotA)
    def loader_addrs():
        a(f"s_lshl_b32 s{sM}, s{sJ}, 11")
        a(f"""
        v_lshrrev_b32 v{vT1}, 3, v{vLANE}
        v_and_b32 v{vT2}, 7, v{vLANE}
        s_lshl_b32 s{sT0}, s{sRB}, 6
        s_lshl_b32 s{sT1}, s{sJ}, 4
        s_add_u32 s{sT0}, s{sT0}, s{sT1}
        v_add_u32 v{vT}, s{sT0}, v{vT1}
        v_lshlrev_b32 v{vT}, 10, v{vT}
        v_lshrrev_b32 v{vX0}, 1, v{vT1}
        v_xor_b32 v{vX0}, v{vX0}, v{vT2}
        v_lshl_add_u32 v{vX0}, v{vX0}, 4, v{vT}
        v_add_u32 v{vX1}, 0x2000, v{vX0}
        v_xor_b32 v{vX1}, 64, v{vX1}
        v_add_u32 v{vT}, s{sT1}, v{vT1}
        v_mul_u32_u24 v{vT}, 0xc00, v{vT}
        s_lshl_b32 s{sT2}, s{sHG}, 7
        v_add_u32 v{vT}, s{sT2}, v{vT}
        v_bfe_u32 v{vT1}, v{vLANE}, 4, 1
        v_lshlrev_b32 v{vWq}, 1, v{vT1}
        v_xor_b32 v{vWq}, v{vWq}, v{vT2}
        v_xor_b32 v{vWk}, 4, v{vWq}
        """)
        if cfg.m16:
            a(f"v_lshl_add_u32 v{vWq}, v{vWq}, 4, v{vT}\nv_lshl_add_u32 v{vWk}, v{vWk}, 4, v{vT}")
        else:
            a(f"""
            v_lshlrev_b32 v{vWv}, 2, v{vT1}
            v_xor_b32 v{vWv}, v{vWv}, v{vT2}
            v_lshl_add_u32 v{vWq}, v{vWq}, 4, v{vT}
            v_lshl_add_u32 v{vWk}, v{vWk}, 4, v{vT}
            v_lshl_add_u32 v{vWv}, v{vWv}, 4, v{vT}
            v_add_u32 v{vWk}, 0x400, v{vWk}
            v_add_u32 v{vWv}, 0x800, v{vWv}
            """)
    def kernargs():
        a(f"s_mov_b32 s{rXB+2}, {2048*1024}\ns_mov_b32 s{rXB+3}, 0x00020000\ns_mov_b32 s{rWB+2}, {512*3072}\ns_mov_b32 s{rWB+3}, 0x00020000")
        a("s_waitcnt lgkmcnt(0)")
        if cfg.prof:
            a(f"v_writelane_b32 v255, s{sPROF}, 0\nv_writelane_b32 v255, s100, 16")
    def binit():
        if cfg.pref:
            assert cfg.mapping == "N"
            nw, nx = (48, 32) if cfg.pref == "xcd" else (12, 16)
            a(f"""
            s_lshr_b32 s{sT0}, s2, 3
            s_lshl_b32 s{sT1}, s{sT0}, 2
            s_add_u32 s{sT1}, s{sT1}, s{sJ}
            s_mul_i32 s{sT2}, s{sT1}, {nw}
            s_bfe_u32 s{sT3}, s2, 0x20001
            """)
            if cfg.pref != "xcd":
                a(f"s_mul_i32 s{sT0}, s{sT3}, 1536\ns_add_u32 s{sT2}, s{sT2}, s{sT0}")
            a(f"""
            v_min_u32 v{vT}, {nw-1}, v{vLANE}
            v_add_u32 v{vT}, s{sT2}, v{vT}
            v_lshrrev_b32 v{vT1}, 2, v{vT}
            v_and_b32 v{vT}, 3, v{vT}
            v_lshlrev_b32 v{vT}, 7, v{vT}
            v_lshl_add_u32 v{vPW}, v{vT1}, 10, v{vT}
            s_and_b32 s{sT2}, s2, 1
            s_lshl_b32 s{sT0}, s{sT2}, 9
            v_add_u32 v{vPW}, s{sT0}, v{vPW}
            s_mul_i32 s{sT1}, s{sT1}, {nx*128}
            s_lshl_b32 s{sT3}, s{sT3}, 19
            s_add_u32 s{sT1}, s{sT1}, s{sT3}
            """)
            if cfg.pref != "xcd":
                a(f"s_lshl_b32 s{sT2}, s{sT2}, 18\ns_add_u32 s{sT1}, s{sT1}, s{sT2}")
            a(f"""
            v_min_u32 v{vT}, {nx-1}, v{vLANE}
            v_lshl_add_u32 v{vPX}, v{vT}, 7, s{sT1}
            """)
        kernargs()
        if cfg.pref:
            a(f"buffer_load_dword v36, v{vPW}, {sr(rWB,4)}, 0 offen {cfg.pref_sc}\nbuffer_load_dword v37, v{vPX}, {sr(rXB,4)}, 0 offen {cfg.pref_sc}")
    if cfg.bnear:
        a(f"s_cmp_ge_u32 s{sW}, 4\ns_cbranch_scc1 L_roleA")
        binit()
        code_prefetch("B")
        a("s_branch L_roleB")
        a.label("L_roleA")
    else:
        a(f"s_cmp_lt_u32 s{sW}, 4\ns_cbranch_scc1 L_roleB")
    loader_addrs()
    rotation(sROT, cfg.rot)
    kernargs()

    def chunk_pieces(c):
        rx, rw = (rXB, rWB) if c < 8 else (rXA, rWA)
        cc = c % 8
        slot = (c % 4) * 32768
        if (cfg.rot if c < 8 else cfg.rotA):
            head = f"s_add_u32 s{sO0}, s{sROT if c < 8 else sROTA}, {cc}\ns_and_b32 s{sO0}, s{sO0}, 7\ns_mul_i32 s{sO1}, s{sO0}, {64*3072}\n"
            head += f"s_lshl_b32 s{sO0}, s{sO0}, 7\ns_add_u32 s{sO2}, s{sO1}, {8*3072}\n"
        else:
            head = f"s_mov_b32 s{sO0}, {128*cc}\ns_mov_b32 s{sO1}, {cc*64*3072}\ns_mov_b32 s{sO2}, {cc*64*3072+8*3072}\n"
        ld = []
        for par in range(2):
            ld.append(f"s_add_u32 m0, s{sM}, {slot + par*1024}\nbuffer_load_dwordx4 v{vX0+par}, {sr(rx,4)}, s{sO0} offen lds\n")
            for seg in range(3):
                if cfg.m16:
                    ld.append(f"s_add_u32 m0, s{sM}, {slot + 8192*(1+seg) + par*1024 - seg*1024}\nbuffer_load_dwordx4 v{vWq+par}, {sr(rw,4)}, s{sO1+par} offen offset:{seg*1024} lds\n")
                else:
                    ld.append(f"s_add_u32 m0, s{sM}, {slot + 8192*(1+seg) + par*1024}\nbuffer_load_dwordx4 v{vWq+seg}, {sr(rw,4)}, s{sO1+par} offen lds\n")
        ld[0] = head + ld[0]
        return ld
    def issue_chunk(c):
        for t in chunk_pieces(c): a(t)

    def compute_addrs(role):
        if cfg.m16:
            a(f"""
            v_and_b32 v{vT}, 15, v{vLANE}
            v_lshrrev_b32 v{vT1}, 4, v{vLANE}
            v_lshrrev_b32 v{vT2}, 1, v{vT}
            v_xor_b32 v{vT2}, v{vT2}, v{vT1}
            v_lshlrev_b32 v{vT2}, 4, v{vT2}
            v_lshl_add_u32 v{vXA}, v{vT}, 7, v{vT2}
            v_xor_b32 v{vXA+1}, 64, v{vXA}
            v_bfe_u32 v{vT}, v{vLANE}, 2, 2
            v_lshl_add_u32 v{vT}, v{vT1}, 3, v{vT}
            v_lshlrev_b32 v{vT}, 7, v{vT}
            v_and_b32 v{vT2}, 3, v{vLANE}
            v_lshl_add_u32 v{vT}, v{vT2}, 3, v{vT}
            v_bfe_u32 v{vT1}, v{vLANE}, 3, 2
            v_xor_b32 v{vT1}, s{sJ}, v{vT1}
            v_lshl_add_u32 v{vQK}, v{vT1}, 5, v{vT}
            v_add_u32 v{vQK}, 0x2000, v{vQK}
            """)
            return
        a(f"""
        v_and_b32 v{vT}, 31, v{vLANE}
        v_lshrrev_b32 v{vT1}, 5, v{vLANE}
        v_bfe_u32 v{vT2}, v{vLANE}, 1, 3
        v_xor_b32 v{vT2}, v{vT2}, v{vT1}
        v_lshlrev_b32 v{vT2}, 4, v{vT2}
        v_lshl_add_u32 v{vXA}, v{vT}, 7, v{vT2}
        v_xor_b32 v{vXA+1}, 32, v{vXA}
        v_xor_b32 v{vXA+2}, 64, v{vXA}
        v_xor_b32 v{vXA+3}, 0x60, v{vXA}
        v_bfe_u32 v{vT}, v{vLANE}, 2, 2
        v_lshl_add_u32 v{vT}, v{vT1}, 3, v{vT}
        v_lshlrev_b32 v{vT}, 7, v{vT}
        v_and_b32 v{vT1}, 3, v{vLANE}
        v_lshl_add_u32 v{vT}, v{vT1}, 3, v{vT}
        v_bfe_u32 v{vT1}, v{vLANE}, 4, 1
        v_bfe_u32 v{vT2}, v{vLANE}, 3, 1
        v_lshl_add_u32 v{vQK}, v{vT1}, 1, v{vT2}
        v_xor_b32 v{vQK}, s{sJ}, v{vQK}
        v_lshl_add_u32 v{vQK}, v{vQK}, 5, v{vT}
        v_lshl_add_u32 v{vQK}, v{vT1}, 13, v{vQK}
        v_add_u32 v{vQK}, 0x2000, v{vQK}
        v_lshlrev_b32 v{vT2}, 1, v{vT2}
        """)
        if role == "B" or cfg.a3:
            a(f"s_and_b32 s{sT0}, s{sJ}, 2\nv_add_u32 v{vT1}, s{sT0}, v{vT1}\nv_xor_b32 v{vV}, v{vT1}, v{vT2}")
        else:
            a(f"v_xor_b32 v{vV}, s{sJ}, v{vT2}")
        a(f"v_lshl_add_u32 v{vV}, v{vV}, 5, v{vT}\nv_add_u32 v{vV}, 0x6000, v{vV}")
        if role == "B" or cfg.a3:
            a(f"s_and_b32 s{sT0}, s{sJ}, 1\ns_lshl_b32 s{sT0}, s{sT0}, 12")
            for i in range(4):
                a(f"v_add_u32 v{vXA+i}, s{sT0}, v{vXA+i}\nv_xor_b32 v{vXB+i}, 0x1000, v{vXA+i}")

    def gemm16(role, pre_barrier, post_barrier):
        c0 = 0 if role == "B" else 8
        def m16(d, x, y, first):
            a(f"v_mfma_f32_16x16x32_bf16 {vr(d,4)}, {vr(x,4)}, {vr(y,4)}, {'0' if first else vr(d,4)}")
        def fr(buf):
            b = FR + 28 * buf
            return dict(x=b, q=b + 16, k=b + 20, v=b + 24)
        def reads(n, part):
            c, ks, f = c0 + n // 2, n % 2, fr(n % 2)
            so = (c % 2) * 32768
            nm, seg = (("k", 1), ("q", 0), ("v", 2))[part]
            a(f"ds_read_b64_tr_b16 {vr(f[nm],2)}, v{vQK} offset:{so + seg*8192 + ks*4096}")
            a(f"ds_read_b64_tr_b16 {vr(f[nm]+2,2)}, v{vQK} offset:{so + seg*8192 + ks*4096 + 512}")
            if part < 2:
                for T in (2 * part, 2 * part + 1):
                    a(f"ds_read_b128 {vr(f['x']+4*T,4)}, v{vXA+ks} offset:{so + T*2048}")
        pre_barrier(c0)
        a("s_barrier")
        for p in range(3): reads(0, p)
        post_barrier(c0)
        for n in range(16):
            c, ks, f = c0 + n // 2, n % 2, fr(n % 2)
            z = n == 0
            Q = lambda T: m16(ACC + 4 * T, f["q"], f["x"] + 4 * T, z)
            K = lambda T: m16(ACC + 16 + 4 * T, f["k"], f["x"] + 4 * T, z)
            V = lambda T: m16(ACC + 32 + 4 * T, f["x"] + 4 * T, f["v"], z)
            nx = (lambda p: reads(n + 1, p)) if n < 15 else (lambda p: None)
            w = (lambda k: a(f"s_waitcnt lgkmcnt({k})")) if ks == 0 else (lambda k: None)
            if ks == 1:
                a("s_waitcnt lgkmcnt(0)")
                allm = [lambda: K(0), lambda: K(1), lambda: Q(0), lambda: Q(1), lambda: K(2), lambda: K(3), lambda: Q(2), lambda: Q(3),
                        lambda: V(0), lambda: V(1), lambda: V(2), lambda: V(3)]
                if n == 15 and role == "A": arrive(4 * 16)
                for m_ in allm[:cfg.prebar]: m_()
                if n < 15:
                    pre_barrier(c + 1)
                    a("s_barrier")
                    post_barrier(c + 1)
                    if (c + 1) % 2 == 0:
                        for r in (vQK, vXA, vXA + 1):
                            a(f"v_xor_b32 v{r}, 0x10000, v{r}")
                rest = allm[cfg.prebar:]
                per = max(1, len(rest) // 4)
                for p in range(3):
                    nx(p)
                    for m_ in rest[:per]: m_()
                    rest = rest[per:]
                for m_ in rest: m_()
                continue
            w(6); K(0); K(1); nx(0)
            w(6); Q(0); Q(1); K(2); K(3); nx(1); Q(2); Q(3)
            w(8); V(0); V(1); nx(2); V(2); V(3)
    def swap16(r):
        a(f"v_permlane16_swap_b32 v{r}, v{r+2}\nv_permlane16_swap_b32 v{r+1}, v{r+3}")
    def gemm(role, pre_barrier, post_barrier, mid=lambda: None):
        if cfg.m16: return gemm16(role, pre_barrier, post_barrier)
        c0 = 0 if role == "B" else 8
        def fr(buf):
            b = FR + 16 * buf
            return dict(x0=b, x1=b + 4, qk=b + 8, v=b + 12)
        def reads(n, part):
            c, kk, f = c0 + n // 4, n % 4, fr(n % 2)
            so = (c % 2) * 32768
            if part == 0:
                a(f"ds_read_b64_tr_b16 {vr(f['qk'],2)}, v{vQK} offset:{so + kk*2048}")
                a(f"ds_read_b64_tr_b16 {vr(f['qk']+2,2)}, v{vQK} offset:{so + kk*2048 + 512}")
                a(f"ds_read_b128 {vr(f['x0'],4)}, v{vXA+kk} offset:{so}")
            else:
                if role == "B" or cfg.a3:
                    a(f"ds_read_b128 {vr(f['x1'],4)}, v{vXB+kk} offset:{so}")
                else:
                    a(f"ds_read_b128 {vr(f['x1'],4)}, v{vXA+kk} offset:{so + 4096}")
                a(f"ds_read_b64_tr_b16 {vr(f['v'],2)}, v{vV} offset:{so + kk*2048}")
                a(f"ds_read_b64_tr_b16 {vr(f['v']+2,2)}, v{vV} offset:{so + kk*2048 + 512}")
        def tgt(c): return 8 if (c == 9 and not cfg.hold8) else 4
        pre_barrier(c0)
        if role == "B" or cfg.coupled:
            a("s_barrier")
        else:
            arrive(4 * c0); await_cnt(4 * c0, tgt(c0))
        reads(0, 0); reads(0, 1)
        post_barrier(c0)
        for n in range(32):
            c, kk, f = c0 + n // 4, n % 4, fr(n % 2)
            cz = (lambda r: "0") if n == 0 else (lambda r: r)
            def toggle():
                if (c + 1) % 2 == 0 and n < 31:
                    for r in [vQK, vXA, vV, vXA + 1, vXA + 2, vXA + 3] + ([vXB + i for i in range(4)] if (role == "B" or cfg.a3) else []):
                        a(f"v_xor_b32 v{r}, 0x10000, v{r}")
            if kk == 3 and role == "A" and not cfg.coupled:
                a("s_waitcnt lgkmcnt(0)")
                pre_barrier(c + 1)
                arrive(4 * (c + 1))
                mfma(ACC, f["qk"], f["x0"], ACC)
                mfma(ACC + 16, f["qk"], f["x1"], ACC + 16)
                toggle()
                if n < 31:
                    await_cnt(4 * (c + 1), tgt(c + 1))
                    reads(n + 1, 0); reads(n + 1, 1)
                post_barrier(c + 1)
                mfma(ACC + 32, f["x0"], f["v"], ACC + 32)
                mid()
                mfma(ACC + 48, f["x1"], f["v"], ACC + 48)
                mid()
                continue
            if kk == 3:
                a("s_waitcnt lgkmcnt(0)")
                if n < 31:
                    pre_barrier(c + 1)
                    a("s_barrier")
                    post_barrier(c + 1)
                elif role == "A" and not cfg.a3:
                    arrive(4 * 16)
                elif not cfg.hold8 and not cfg.coupled:
                    arrive(4 * 9)
                toggle()
            else:
                a("s_waitcnt lgkmcnt(3)")
            mfma(ACC, f["qk"], f["x0"], cz(ACC))
            if n < 31: reads(n + 1, 0)
            if kk != 3: a("s_waitcnt lgkmcnt(3)")
            mfma(ACC + 16, f["qk"], f["x1"], cz(ACC + 16))
            if n < 31: reads(n + 1, 1)
            mfma(ACC + 32, f["x0"], f["v"], cz(ACC + 32))
            if role == "A" and not cfg.a3:
                mid()
                mfma(ACC + 48, f["x1"], f["v"], cz(ACC + 48))
                mid()

    vOFFK = 8
    def smf(d, va, p):
        a(f"v_smfmac_f32_32x32x32_bf16 {vr(d,16)}, {vr(va,4)}, {vr(p,8)}, v{vIDX}")
    def att_setup(first, ntiles):
        a(f"""
        s_mov_b32 s{sREDO}, 0
        s_lshl_b32 s{sT0}, s{sH}, 17
        v_add_u32 v{vOFFK}, s{sT0}, v{vL16}
        v_lshrrev_b32 v{vT}, 5, v{vLANE}
        v_and_b32 v{vT1}, 15, v{vLANE}
        v_lshlrev_b32 v{vT1}, 4, v{vT1}
        v_lshl_add_u32 v{vOFFV}, v{vT}, 8, v{vT1}
        v_add_u32 v{vOFFV}, s{sT0}, v{vOFFV}
        v_mov_b32 v{vIDX}, 0xdddd
        s_mov_b32 s{sVM}, 0xffff
        s_mov_b32 s{sVM+1}, 0xffff
        s_mov_b32 s{sNIT}, {ntiles}
        """)
        if cfg.kvrot:
            a(f"s_and_b32 s{sKV0}, s{sRB}, 7\ns_lshl_b32 s{sKV0}, s{sKV0}, 14\ns_add_u32 s{sKV0}, s{sKV0}, {first*2048}\ns_and_b32 s{sKV0}, s{sKV0}, 0x1ffff")
        else:
            a(f"s_mov_b32 s{sKV0}, {first*2048}")
    class Stream:
        def __init__(self, depth, ntiles, init=()):
            self.d, self.n, self.q = depth, ntiles, list(init)
        def ring(self, t):
            b = RING + 12 * (t % self.d)
            return b, b + 4, b + 8
        def push(self, tag, n=1):
            self.q.extend([tag] * n)
        def wait(self, tag):
            idx = [i for i, t in enumerate(self.q) if t == tag]
            if idx:
                a(f"s_waitcnt vmcnt({len(self.q) - 1 - idx[-1]})")
                self.q = self.q[idx[-1] + 1:]
        def kload(self, t, single=False):
            o = 0 if single else (t % 2) * 2048
            a(f"buffer_load_dwordx4 {vr(self.ring(t)[0],4)}, v{vOFFK}, {sr(rWS,4)}, s{sKV} offen offset:{o} sc1")
            self.push(("k", t))
        def vload(self, t, single=False):
            k, v0, v1 = self.ring(t)
            o = 0 if single else (t % 2) * 2048
            a(f"s_mov_b64 exec, {sr(sVM,2)}")
            a(f"buffer_load_dwordx4 {vr(v0,4)}, v{vOFFV}, {sr(rWS,4)}, s{sKV} offen offset:{o+1024} sc1")
            a(f"buffer_load_dwordx4 {vr(v1,4)}, v{vOFFV}, {sr(rWS,4)}, s{sKV} offen offset:{o+1536} sc1")
            a(f"s_mov_b64 exec, -1")
            if single or t % 2 == 1:
                a(f"s_add_u32 s{sKV}, s{sKV}, {2048 if single else 4096}\ns_and_b32 s{sKV}, s{sKV}, 0x1ffff")
            self.push(("kv", t), 2)
        def kvload(self, t, single=False):
            self.kload(t, single); self.vload(t, single)
        def setup(self, single=False):
            a(f"s_mov_b32 s{sKV}, s{sKV0}")
            a(f"v_and_b32 v{vT}, 27, v{vLANE}\nv_cmp_eq_u32 vcc, 16, v{vT}\nv_mov_b32 v{vT}, 0x3f803f80\nv_cndmask_b32 v{vT}, 0, v{vT}, vcc")
            for t in range(self.d):
                for i in range(4, 12):
                    a(f"v_mov_b32 v{RING+12*t+i}, v{vT}")
        def zero(self, single=False):
            for i in range(32):
                a(f"v_mov_b32 v{O+i}, 0")
            if single:
                for i in range(8):
                    a(f"v_mov_b32 v{S+16+8+i}, 0")
        def first(self, single=False):
            for t in range(self.d - 1): self.kvload(t, single)
            if cfg.split_ld and not single: self.kload(self.d - 1)
        def start(self, single=False):
            self.wait(("k", 0) if (cfg.split_ld and not single) else ("kv", 0))
            mfma(S, self.ring(0)[0], Qf, NM)
        def prologue(self, single=False):
            self.setup(single); self.first(single); self.zero(single); self.start(single)
        def tile(self, t, looped=False, extra=None):
            k, v0, v1 = self.ring(t)
            split = cfg.split_ld and not looped
            for qb in range(2):
                cur, oth = S + 16 * qb, S + 16 * (1 - qb)
                def ex(i): a(f"v_exp_f32 v{cur+i}, v{cur+i}")
                ex(0); ex(1)
                if qb == 0:
                    if looped or t > 0: smf(O + 16, self.ring(t - 1)[2], oth + 8)
                    ex(2)
                    if looped or t + self.d - 1 < self.n:
                        if split: self.vload(t + self.d - 1)
                        else: self.kvload(t + self.d - 1, looped)
                    ex(3); ex(4)
                    mfma(oth, k, Qf + 4, NM + 16)
                    ex(5)
                    if split and t + self.d < self.n: self.kload(t + self.d)
                    for i in range(6, 10): ex(i)
                    if split: self.wait(("k", t + 1) if (cfg.split_ld == 2 and t + 1 < self.n) else ("kv", t))
                else:
                    smf(O, v1, oth + 8)
                    ex(2); ex(3)
                    if looped: a(f"s_waitcnt vmcnt({3 * (self.d - 2)})")
                    elif t + 1 < self.n: self.wait(("k" if split else "kv", t + 1))
                    ex(4)
                    if looped or t + 1 < self.n: mfma(oth, self.ring(t + 1)[0], Qf, NM)
                    for i in range(5, 10): ex(i)
                smf(O + 16 * qb, v0, cur)
                ex(10)
                if extra and qb == 1: extra()
                for i in range(11, 16): ex(i)
        def run(self, jobs, prio):
            pr = dict(prio) if cfg.prio else {}
            for t in range(self.n):
                if t in pr: a(f"s_setprio {pr[t]}")
                if cfg.tprof: a(f"s_memtime s[98:99]\ns_waitcnt lgkmcnt(0)\nv_writelane_b32 v252, s98, {t}")
                self.tile(t, extra=(lambda: [f() for f in jobs.get(t, [])]))
            smf(O + 16, self.ring(self.n - 1)[2], S + 16 + 8)

    if cfg.prof: stamp(4)
    vq = []
    def issue(c):
        issue_chunk(c); vq.extend([c] * 8)
    def wait_for(tag):
        n = len(vq) - 1 - max(i for i, t in enumerate(vq) if t == tag)
        a(f"s_waitcnt vmcnt({n})")
    for c in range(cfg.nfirst):
        issue(c)
    late_setup()
    srd(rXA, kAX, 2048 * 1024)
    srd(rWA, kAW, 512 * 3072)
    srd(rWS, kWS, WS_SIZE)
    srd(rOUT, kOUT, 2048 * 2048)
    srd(rMISC, kAP, 32 * 512)
    WP, IDP = 248, 40
    vMASK = 252
    def gather():
        a(f"""
        v_lshrrev_b32 v{vT}, 5, v{vLANE}
        v_and_b32 v{vT1}, 15, v{vLANE}
        v_lshlrev_b32 v{vT1}, 1, v{vT1}
        v_lshl_add_u32 v{vT}, v{vT}, {8 if cfg.m16 else 7}, v{vT1}
        s_lshl_b32 s{sT0}, s{sH}, 9
        """)
        for jj in range(8):
            a(f"buffer_load_ushort v{48+jj}, v{vT}, {sr(rMISC,4)}, s{sT0} offen offset:{(jj if cfg.m16 else 8*(jj>>2)+(jj&3))*32}")
        vq.extend(["g"] * 8)
    if cfg.gat_at < 0: gather()
    compute_addrs("A")
    a(f"""
    v_bfe_u32 v{vT}, v{vLANE}, 2, 1
    v_lshrrev_b32 v{vT1}, 5, v{vLANE}
    v_xor_b32 v{vT}, v{vT}, v{vT1}
    v_lshlrev_b32 v{vT}, 3, v{vT}
    v_bfe_u32 v{vT1}, v{vLANE}, 3, 2
    v_lshl_add_u32 v{vT}, v{vT1}, 1, v{vT}
    v_bfe_u32 v{vT1}, v{vLANE}, 1, 1
    v_add_u32 v{vT}, v{vT}, v{vT1}
    v_and_b32 v{vT1}, 1, v{vLANE}
    v_lshlrev_b32 v{vT1}, 4, v{vT1}
    v_mov_b32 v{vT2}, 0x3f80
    v_lshlrev_b32 v{vT1}, v{vT1}, v{vT2}
    """)
    for q in range(8):
        a(f"v_cmp_eq_u32 vcc, {q}, v{vT}\nv_cndmask_b32 v{IDP+q}, 0, v{vT1}, vcc")
    a(f"v_bfe_u32 v{vT}, v{vLANE}, 4, 1\nv_add_u32 v{vMASK}, -1, v{vT}")
    def spf_setup():
        assert cfg.mapping == "N"
        a(f"""
        s_lshr_b32 s{sT0}, s2, 3
        s_lshl_b32 s{sT0}, s{sT0}, 2
        s_add_u32 s{sT0}, s{sT0}, s{sJ}
        s_bfe_u32 s{sT1}, s2, 0x20001
        s_and_b32 s{sT2}, s2, 1
        s_mul_i32 s84, s{sT1}, {384*1024}
        s_mul_i32 s85, s{sT0}, 3072
        s_add_u32 s84, s84, s85
        s_lshl_b32 s85, s{sT2}, 9
        s_add_u32 s84, s84, s85
        s_add_u32 s84, s{kAW}, s84
        s_addc_u32 s85, s{kAW+1}, 0
        s_lshl_b32 s86, s{sT1}, 19
        s_lshl_b32 s87, s{sT2}, 18
        s_add_u32 s86, s86, s87
        s_lshl_b32 s87, s{sT0}, 11
        s_add_u32 s86, s86, s87
        s_add_u32 s86, s{kAX}, s86
        s_addc_u32 s87, s{kAX+1}, 0
        """)
        spf = [f"s_load_dword s88, s[84:85], {b*1024 + i*64}" for b in range(3) for i in range(8)]
        spf += [f"s_load_dword s88, s[86:87], {i*64}" for i in range(32)]
        return spf
    spf = spf_setup() if cfg.spref else []
    if cfg.sslowA:
        a(f"""
        s_lshr_b32 s{sT0}, s2, 3
        s_lshl_b32 s{sT0}, s{sT0}, 2
        s_add_u32 s{sT0}, s{sT0}, s{sJ}
        s_mul_i32 s{sT0}, s{sT0}, {12*1024}
        s_and_b32 s{sT1}, s2, 1
        s_lshl_b32 s{sT1}, s{sT1}, 9
        s_add_u32 s{sT0}, s{sT0}, s{sT1}
        s_add_u32 s{sT0}, s{sT0}, 384
        s_add_u32 s86, s{kAW}, s{sT0}
        s_addc_u32 s87, s{kAW+1}, 0
        """)
        spf = [f"s_load_dword s{88+h}, s[86:87], {i*1024+64*h}" for i in range(12) for h in range(2)]
        cfg.spref = cfg.sslowA
    for c in range(cfg.nfirst, cfg.ninit):
        issue(c)
    if cfg.prof: stamp(5)
    nxt = cfg.ninit
    lastA = cfg.lastA if cfg.coupled else (7 if cfg.hold8 else (8 if cfg.hold9 else 9))
    for c in range(8):
        wait_for(c)
        a("s_barrier")
        while nxt <= min(c + cfg.look, lastA):
            issue(nxt); nxt += 1
        if spf and c >= cfg.spref[0]:
            for t in spf[:cfg.spref[1]]: a(t)
            spf = spf[cfg.spref[1]:]
        if c == cfg.gat_at: gather()
        if c == 7:
            if cfg.gat_at >= 0: wait_for("g")
            a(f"v_bfe_u32 v{vT}, v{vLANE}, 4, 1\nv_lshlrev_b32 v{vT1}, 15, v{vT}\nv_lshl_or_b32 v{vT}, v{vT}, 31, v{vT1}")
            for q in range(4):
                a(f"v_lshl_or_b32 v{WP+q}, v{49+2*q}, 16, v{48+2*q}\nv_xor_b32 v{WP+q}, v{WP+q}, v{vT}")
    nxtA = [nxt]
    pend = []
    def preA(c):
        while pend and pend[0][0] <= c: midA()
        if c <= (lastA if cfg.coupled else 15): wait_for(c)
    def postA(c):
        while not cfg.coupled and nxtA[0] <= min(c + cfg.look, 15):
            pend.extend((nxtA[0], t) for t in chunk_pieces(nxtA[0])); nxtA[0] += 1
    def midA():
        for _ in range(2 if len(set(c for c, t in pend)) > 1 else 1):
            if pend:
                c, t = pend.pop(0)
                a(t); vq.append(c)
    if cfg.hold8 and not cfg.coupled:
        await_cnt(C_WO, 4)
        for c in range(8, 8 + cfg.hold8):
            issue(c)
        nxtA[0] = 8 + cfg.hold8
    assert not spf
    a("s_waitcnt lgkmcnt(0)")
    if cfg.prio: a("s_setprio 3")
    stamp(1)
    gemm("A", preA, postA, midA)
    stamp(2)
    assert cfg.coupled and cfg.kvB < 15
    srd(rMISC, kAO, 512 * 1024)
    srd(rXB, kBO, 512 * 1024)
    if cfg.wopref:
        a(f"""
        s_and_b32 s{sT0}, s{sRB}, 7
        s_lshl_b32 s{sT0}, s{sT0}, 2
        s_add_u32 s{sT0}, s{sT0}, s{sJ}
        s_lshl_b32 s{sT0}, s{sT0}, 14
        s_lshl_b32 s{sT1}, s{sHG}, 7
        s_add_u32 s{sT0}, s{sT0}, s{sT1}
        v_lshlrev_b32 v3, 10, v{vLANE}
        s_mov_b64 exec, 0xffff
        buffer_load_dword v4, v3, {sr(rMISC,4)}, s{sT0} offen
        buffer_load_dword v5, v3, {sr(rXB,4)}, s{sT0} offen
        s_mov_b64 exec, -1
        """)
    X = [48, 64, 80, 96]
    KF, QF2, VP, PK, TT, PT, TM = 112, 120, 128, 144, 152, 168, 176
    L2E = math.log2(math.e)
    a(f"s_mov_b32 s{sC}, {f2u(L2E)}\ns_mov_b32 s{sC+1}, {f2u(L2E)}\ns_mov_b32 s{sT3}, 0x3f803f80")
    for ri in range(2):
        cvt(KF + 4 * ri, (ACC + 16 + 8 * ri) if cfg.m16 else (ACC + 16 * ri + 8), 4)
    if cfg.m16: swap16(KF); swap16(KF + 4)
    for ri in range(2):
        mfma(X[ri], WP, KF + 4 * ri, "0")
    for ri in range(2):
        cvt(QF2 + 4 * ri, (ACC + 8 * ri) if cfg.m16 else (ACC + 16 * ri), 4)
    if cfg.m16: swap16(QF2); swap16(QF2 + 4)
    for ri in range(2):
        mfma(X[2 + ri], WP, QF2 + 4 * ri, "0")
    if cfg.a3:
        cvt(VP, ACC + 32, 8)
        a(f"""
        s_lshl_b32 s{sT0}, s{sJ}, 11
        s_add_u32 s{sT0}, s{sT0}, {L_XV}
        v_add_u32 v{vT}, s{sT0}, v{vL16}
        ds_write_b128 v{vT}, {vr(VP,4)}
        ds_write_b128 v{vT}, {vr(VP+4,4)} offset:1024
        s_and_b32 s{sT1}, s{sJ}, 1
        s_lshl_b32 s{sT1}, s{sT1}, 8
        s_add_u32 s{sT0}, s{sT0}, s{sT1}
        v_and_b32 v{vT}, 0x2f, v{vLANE}
        v_lshl_add_u32 v9, v{vT}, 4, s{sT0}
        v_xor_b32 v10, 0x800, v9
        s_waitcnt lgkmcnt(0)
        """)
        assert L_XV % 4096 == 0
        arrive(4 * 16)
    elif cfg.m16:
        for T in range(4):
            cvt(VP + 4 * T, ACC + 32 + 4 * T, 2)
            a(f"v_mov_b32 v{VP+4*T+2}, s{sT3}\nv_mov_b32 v{VP+4*T+3}, s{sT3}")
        for T in range(4): swap16(VP + 4 * T)
        for T in range(4):
            a(f"v_permlane32_swap_b32 v{VP+4*T}, v{VP+4*T+2}\nv_permlane32_swap_b32 v{VP+4*T+1}, v{VP+4*T+3}")
    else:
        for ri in range(2):
            cvt(VP + 8 * ri, ACC + 32 + 16 * ri, 8)
            for i in range(8):
                a(f"v_bfi_b32 v{VP+8*ri+i}, v{vMASK}, v{VP+8*ri+i}, s{sT3}")
    def getv():
        if not cfg.a3: return
        await_cnt(4 * 16, 4)
        for aa in range(2):
            a(f"ds_read_b128 {vr(VP+8*aa,4)}, v{9+aa}\nds_read_b128 {vr(VP+8*aa+4,4)}, v{9+aa} offset:1024")
    def fixv():
        if not cfg.a3: return
        a("s_waitcnt lgkmcnt(0)")
        for i in range(16):
            a(f"v_bfi_b32 v{VP+i}, v{vMASK}, v{VP+i}, s{sT3}")
    def softmax2(x, dst):
        t, u = TM, TM + 1
        for base, r in ((x, t), (x + 8, u)):
            a(f"v_max3_f32 v{r}, v{base}, v{base+1}, v{base+2}\nv_max3_f32 v{r}, v{r}, v{base+3}, v{base+4}")
            a(f"v_max3_f32 v{r}, v{r}, v{base+5}, v{base+6}\nv_max_f32 v{r}, v{r}, v{base+7}")
        a(f"v_permlane32_swap_b32 v{t}, v{u}\nv_max_f32 v{t}, v{t}, v{u}")
        a(f"v_mul_f32 v{t}, {f2u(-L2E)}, v{t}\nv_mov_b32 v{u}, v{t}\nv_permlane32_swap_b32 v{t}, v{u}")
        for i in range(8):
            sel = "op_sel:[0,0,0] op_sel_hi:[1,1,0]" if i < 4 else "op_sel:[0,0,1] op_sel_hi:[1,1,1]"
            a(f"v_pk_fma_f32 {vr(x+2*i,2)}, {vr(x+2*i,2)}, {sr(sC,2)}, {vr(t,2)} {sel}")
        for i in range(16):
            a(f"v_exp_f32 v{x+i}, v{x+i}")
        p, q = TM + 2, TM + 4
        a(f"v_pk_add_f32 {vr(p,2)}, {vr(x,2)}, {vr(x+2,2)}\nv_pk_add_f32 {vr(q,2)}, {vr(x+8,2)}, {vr(x+10,2)}")
        a(f"v_pk_add_f32 {vr(p,2)}, {vr(p,2)}, {vr(x+4,2)}\nv_pk_add_f32 {vr(q,2)}, {vr(q,2)}, {vr(x+12,2)}")
        a(f"v_pk_add_f32 {vr(p,2)}, {vr(p,2)}, {vr(x+6,2)}\nv_pk_add_f32 {vr(q,2)}, {vr(q,2)}, {vr(x+14,2)}")
        a(f"v_add_f32 v{t}, v{p}, v{p+1}\nv_add_f32 v{u}, v{q}, v{q+1}")
        a(f"v_permlane32_swap_b32 v{t}, v{u}\nv_add_f32 v{t}, v{t}, v{u}\nv_rcp_f32 v{t}, v{t}")
        a(f"v_mov_b32 v{u}, v{t}\nv_permlane32_swap_b32 v{t}, v{u}")
        for i in range(8):
            sel = "op_sel:[0,0] op_sel_hi:[1,0]" if i < 4 else "op_sel:[0,1] op_sel_hi:[1,1]"
            a(f"v_pk_mul_f32 {vr(x+2*i,2)}, {vr(x+2*i,2)}, {vr(t,2)} {sel}")
        cvt(dst, x, 8)
    KVA = ACC
    softmax2(X[0], PK)
    mfma(TT, PK, IDP, "0")
    mfma(TT, PK + 4, IDP + 4, TT)
    getv()
    softmax2(X[1], PK)
    fixv()
    cvt(PT, TT, 8)
    mfma(TT, PK, IDP, "0")
    mfma(TT, PK + 4, IDP + 4, TT)
    mfma(KVA, PT, VP, "0")
    mfma(KVA, PT + 4, VP + 4, KVA)
    softmax2(X[2], PHI)
    cvt(PT, TT, 8)
    mfma(KVA, PT, VP + 8, KVA)
    mfma(KVA, PT + 4, VP + 12, KVA)
    a(f"""
    v_lshrrev_b32 v{vT}, 5, v{vLANE}
    v_mul_u32_u24 v{vT}, {32*384}, v{vT}
    v_and_b32 v{vT1}, 31, v{vLANE}
    v_lshl_add_u32 v{vT}, v{vT1}, 4, v{vT}
    s_mul_i32 s{sT0}, s{sH}, {8*32*384}
    s_mul_i32 s{sT1}, s{sRB}, 384
    s_add_u32 s{sT0}, s{sT0}, s{sT1}
    s_add_u32 s{sT0}, s{sT0}, {WS_P}
    s_mov_b32 exec_lo, 0x1ffff
    s_mov_b32 exec_hi, 0x1ffff
    """)
    for r4 in range(4):
        a(f"buffer_store_dwordx4 {vr(KVA+4*r4,4)}, v{vT}, {sr(rWS,4)}, s{sT0} offen sc1")
        if r4 < 3: a(f"s_add_u32 s{sT0}, s{sT0}, {2*32*384}")
    a("s_mov_b64 exec, -1")
    softmax2(X[3], PHI + 8)
    a(f"""
    s_lshl_b32 s{sT0}, s{sJ}, 11
    s_add_u32 s{sT0}, s{sT0}, {L_X}
    v_add_u32 v{vT}, s{sT0}, v{vL16}
    ds_read_b128 {vr(Qf,4)}, v{vT}
    ds_read_b128 {vr(Qf+4,4)}, v{vT} offset:1024
    s_lshl_b32 s{sT0}, s{sJ}, 9
    s_add_u32 s{sT0}, s{sT0}, {L_XM}
    v_lshl_add_u32 v{vT}, v{vLANE}, 3, s{sT0}
    ds_read_b64 {vr(TM,2)}, v{vT}
    s_waitcnt vmcnt(4)
    """)
    if cfg.a3: a("s_waitcnt lgkmcnt(0)")
    else: await_cnt(4 * 16, 4)
    nmfill(TM)
    stamp(3)
    a("s_branch L_attA")

    a.label("L_roleB")
    if not cfg.bnear:
        code_prefetch("B")
        binit()
    late_setup()
    loader_addrs()
    srd(rXA, kAX, 2048 * 1024)
    srd(rWA, kAW, 512 * 3072)
    srd(rWS, kWS, WS_SIZE)
    srd(rOUT, kOUT, 2048 * 2048)
    srd(rDBG, kDBG, 256)
    if cfg.pref and cfg.prefA[0] < 0:
        a(f"buffer_load_dword v38, v{vPW}, {sr(rWA,4)}, 0 offen {cfg.pref_sc}")
        a(f"buffer_load_dword v36, v{vPX}, {sr(rXA,4)}, 0 offen {cfg.pref_sc}")
    if cfg.slowpref:
        a(f"""
        s_lshr_b32 s{sT0}, s2, 3
        s_lshl_b32 s{sT0}, s{sT0}, 2
        s_add_u32 s{sT0}, s{sT0}, s{sJ}
        s_mul_i32 s{sT1}, s{sT0}, {12*1024}
        s_and_b32 s{sT2}, s2, 1
        s_lshl_b32 s{sT2}, s{sT2}, 9
        s_add_u32 s{sT1}, s{sT1}, s{sT2}
        s_add_u32 s{sT1}, s{sT1}, 384
        v_lshlrev_b32 v{vT}, 10, v{vLANE}
        s_lshl_b32 s{sT0}, s{sT0}, 12
        s_bfe_u32 s{sT2}, s2, 0x20001
        s_lshl_b32 s{sT2}, s{sT2}, 19
        s_add_u32 s{sT0}, s{sT0}, s{sT2}
        s_add_u32 s{sT0}, s{sT0}, 384
        s_mov_b64 exec, 0xfff
        """)
        if "b" in cfg.slowpref: a(f"buffer_load_dword v36, v{vT}, {sr(rWB,4)}, s{sT1} offen")
        if "a" in cfg.slowpref: a(f"buffer_load_dword v38, v{vT}, {sr(rWA,4)}, s{sT1} offen")
        a("s_mov_b64 exec, 15")
        if "x" in cfg.slowpref:
            if "b" in cfg.slowpref: a(f"buffer_load_dword v37, v{vT}, {sr(rXB,4)}, s{sT0} offen")
            if "a" in cfg.slowpref: a(f"buffer_load_dword v36, v{vT}, {sr(rXA,4)}, s{sT0} offen")
        a("s_mov_b64 exec, -1")
    if cfg.sslow:
        l = lab("noss")
        a(f"""
        s_bitcmp1_b32 s2, 0
        s_cbranch_scc1 {l}
        s_lshr_b32 s{sT0}, s2, 3
        s_lshl_b32 s{sT0}, s{sT0}, 2
        s_add_u32 s{sT0}, s{sT0}, s{sJ}
        s_mul_i32 s{sT0}, s{sT0}, {12*1024}
        s_add_u32 s{sT0}, s{sT0}, 384
        s_add_u32 s84, s{kBW}, s{sT0}
        s_addc_u32 s85, s{kBW+1}, 0
        s_add_u32 s86, s{kAW}, s{sT0}
        s_addc_u32 s87, s{kAW+1}, 0
        """)
        for ch, reg in (("b", 84), ("a", 86)):
            if ch in cfg.sslow:
                for i in range(12):
                    a(f"s_load_dword s88, s[{reg}:{reg+1}], {i*1024}\ns_load_dword s89, s[{reg}:{reg+1}], {i*1024+64}")
        a.label(l)
    if cfg.sprefB:
        for t in spf_setup()[:cfg.sprefB]: a(t)
    compute_addrs("B")
    a(f"s_cmp_lt_u32 s2, 8\ns_cselect_b32 s{sREDO}, s{sW}, 0")
    a(f"s_cmp_lg_u32 s{sREDO}, 1\ns_cbranch_scc1 L_noreset")
    a(f"v_mov_b32 v16, 0\nv_mov_b32 v17, 0\nv_mov_b32 v18, 0\nv_mov_b32 v19, 0")
    nres = -(-(FL_KV + 1024 * cfg.nrep - WS_FL) // 8192)
    a(f"s_mul_i32 s{sT1}, s2, {nres*1024}\ns_add_u32 s{sT1}, s{sT1}, {WS_FL}")
    for i in range(nres):
        a(f"buffer_store_dwordx4 v[16:19], v{vL16}, {sr(rWS,4)}, s{sT1} offen offset:{(i%4)*1024} sc1")
        if i % 4 == 3: a(f"s_add_u32 s{sT1}, s{sT1}, 4096")
    a.label("L_noreset")
    a(f"v_lshl_add_u32 v{vT}, v{vLANE}, 2, v{vCNT}\nv_mov_b32 v{vT1}, 0\nds_write_b32 v{vT}, v{vT1}")
    vKST, vVST = 28, 29
    if cfg.m16:
        a(f"""
        v_and_b32 v{vKST}, 0x23, v{vLANE}
        v_bfe_u32 v{vT}, v{vLANE}, 2, 2
        v_lshl_or_b32 v{vKST}, v{vT}, 3, v{vKST}
        v_bfe_u32 v{vT}, v{vLANE}, 4, 1
        v_lshl_or_b32 v{vKST}, v{vT}, 2, v{vKST}
        v_lshlrev_b32 v{vKST}, 4, v{vKST}
        s_waitcnt lgkmcnt(0)
        """)
    else: a(f"""
    v_and_b32 v{vKST}, 0x33, v{vLANE}
    v_and_b32 v{vT}, 4, v{vLANE}
    v_lshl_or_b32 v{vKST}, v{vT}, 1, v{vKST}
    v_bfe_u32 v{vT}, v{vLANE}, 3, 1
    v_lshl_or_b32 v{vKST}, v{vT}, 2, v{vKST}
    v_lshlrev_b32 v{vKST}, 4, v{vKST}
    v_bfe_u32 v{vT}, v{vLANE}, 4, 1
    v_lshlrev_b32 v{vVST}, 17, v{vT}
    v_lshrrev_b32 v{vT}, 5, v{vLANE}
    v_lshl_add_u32 v{vVST}, v{vT}, 8, v{vVST}
    v_and_b32 v{vT}, 15, v{vLANE}
    v_lshl_add_u32 v{vVST}, v{vT}, 4, v{vVST}
    s_waitcnt lgkmcnt(0)
    """)
    def bst(c):
        if cfg.tprof: a(f"s_memtime s[98:99]\ns_waitcnt lgkmcnt(0)\nv_writelane_b32 v252, s98, {48+c}")
    def postB(c):
        if c > 0: bst(c)
        if c == 5:
            l = lab("nogate")
            a(f"s_cmp_lg_u32 s{sREDO}, 1\ns_cbranch_scc1 {l}")
            a(f"s_lshl_b32 s{sT0}, s2, 2\nv_mov_b32 v{vT}, s{sT0}\ns_waitcnt vmcnt(0)")
            flag(vT, "1", srdr=rDBG)
            a.label(l)
        if cfg.l2A and cfg.l2A[0] <= c < cfg.l2A[0] + cfg.l2A[1]:
            nb, b = cfg.l2A[1], c - cfg.l2A[0]
            nw, nx = 48 // nb, 32 // nb
            if b == 0:
                a(f"""
                s_lshr_b32 s{sT0}, s2, 3
                s_lshl_b32 s{sT0}, s{sT0}, 2
                s_add_u32 s{sT0}, s{sT0}, s{sJ}
                s_mul_i32 s84, s{sT0}, {12*1024}
                s_and_b32 s{sT1}, s2, 1
                s_lshl_b32 s{sT1}, s{sT1}, 9
                s_add_u32 s84, s84, s{sT1}
                s_lshl_b32 s85, s{sT0}, 12
                s_bfe_u32 s{sT1}, s2, 0x20001
                s_lshl_b32 s{sT1}, s{sT1}, 19
                s_add_u32 s85, s85, s{sT1}
                v_lshrrev_b32 v{vPW}, 2, v{vLANE}
                v_lshlrev_b32 v{vPW}, 10, v{vPW}
                v_and_b32 v{vPX}, 3, v{vLANE}
                v_lshl_add_u32 v{vPW}, v{vPX}, 7, v{vPW}
                v_lshlrev_b32 v{vPX}, 7, v{vLANE}
                """)
            a(f"""
            s_mov_b32 exec_hi, {((1 << nw) - 1) >> 32}
            s_mov_b32 exec_lo, {((1 << nw) - 1) & 0xffffffff}
            buffer_load_dword v38, v{vPW}, {sr(rWA,4)}, s84 offen
            s_mov_b32 exec_hi, 0
            s_mov_b32 exec_lo, {(1 << nx) - 1}
            buffer_load_dword v36, v{vPX}, {sr(rXA,4)}, s85 offen
            s_mov_b64 exec, -1
            s_add_u32 s84, s84, {nw // 4 * 1024}
            s_add_u32 s85, s85, {nx * 128}
            """)
        if c == 0: stamp(1)
        if cfg.pref and c == cfg.prefA[0]:
            a(f"buffer_load_dword v38, v{vPW}, {sr(rWA,4)}, 0 offen {cfg.pref_sc}")
        if cfg.pref and c == cfg.prefA[1]:
            a(f"buffer_load_dword v36, v{vPX}, {sr(rXA,4)}, 0 offen {cfg.pref_sc}")
    gemm("B", lambda c: None, postB)
    stamp(2)
    KOWN, VPK = 232, 240
    vG, vGA = 30, 31
    a(f"v_lshlrev_b32 v{vGA}, 2, v{vLANE}\ns_mov_b64 exec, 0xff\nbuffer_load_dword v{vG}, v{vGA}, {sr(rDBG,4)}, 0 offen sc1\ns_mov_b64 exec, -1")
    if cfg.m16:
        a(f"s_lshl_b32 s{sT0}, s{sRB}, 12\ns_lshl_b32 s{sT1}, s{sH}, 17\ns_add_u32 s{sT1}, s{sT1}, s{sT0}")
        for ri in range(2):
            cvt(KOWN + 4 * ri, ACC + 16 + 8 * ri, 4)
            cvt(VPK + 4 * ri, ACC + 32 + 8 * ri, 4)
            swap16(KOWN + 4 * ri)
            a(f"buffer_store_dwordx4 {vr(VPK+4*ri,4)}, v{vL16}, {sr(rWS,4)}, s{sT1} offen offset:{ri*2048+1024} sc1")
            a(f"buffer_store_dwordx4 {vr(KOWN+4*ri,4)}, v{vKST}, {sr(rWS,4)}, s{sT1} offen offset:{ri*2048} sc1")
    else:
        a(f"""
        s_and_b32 s{sT2}, s{sJ}, 1
        s_lshl_b32 s{sT0}, s{sRB}, 1
        s_add_u32 s{sT0}, s{sT0}, s{sT2}
        s_lshl_b32 s{sT0}, s{sT0}, 11
        s_lshl_b32 s{sT1}, s{sH}, 17
        s_add_u32 s{sT1}, s{sT1}, s{sT0}
        s_xor_b32 s{sT2}, s{sT1}, 0x800
        s_and_b32 s{sT3}, s{sH}, -2
        s_lshl_b32 s{sT3}, s{sT3}, 17
        s_add_u32 s{sT3}, s{sT3}, s{sT0}
        """)
        assert WS_KV == 0
        cvt(KOWN, ACC + 8, 4)
        a(f"buffer_store_dwordx4 {vr(KOWN,4)}, v{vKST}, {sr(rWS,4)}, s{sT1} offen sc1")
        cvt(KOWN + 4, ACC + 16 + 8, 4)
        a(f"buffer_store_dwordx4 {vr(KOWN+4,4)}, v{vKST}, {sr(rWS,4)}, s{sT2} offen sc1")
        cvt(VPK, ACC + 32, 4)
        a(f"buffer_store_dwordx4 {vr(VPK,4)}, v{vVST}, {sr(rWS,4)}, s{sT3} offen offset:1024 sc1")
        cvt(VPK + 4, ACC + 40, 4)
        a(f"buffer_store_dwordx4 {vr(VPK+4,4)}, v{vVST}, {sr(rWS,4)}, s{sT3} offen offset:1536 sc1")
    vq[:] = ["st"] * 4
    nxtB = [lastA + 1]
    def barB(c):
        if c > lastA: wait_for(c)
        a("s_barrier")
        bst(c)
    def loadB(c):
        while nxtB[0] <= min(c + cfg.look, 15):
            issue(nxtB[0]); nxtB[0] += 1
    def flagKV():
        stamp(3)
        l = lab("noflag")
        a(f"s_cmp_lg_u32 s{sW}, 0\ns_cbranch_scc1 {l}")
        poll(vGA, vG, 0xff, srdr=rDBG, first_issued=True)
        a(f"""
        s_mul_i32 s{sT0}, s{sHG}, {128*cfg.nrep}
        s_lshl_b32 s{sT1}, s{sRB}, 2
        s_add_u32 s{sT0}, s{sT0}, s{sT1}
        s_add_u32 s{sT0}, s{sT0}, {FL_KV}
        v_lshl_add_u32 v{vT}, v{vLANE}, 7, s{sT0}
        """)
        flag(vT, str((1 << cfg.nrep) - 1))
        a.label(l)
    assert cfg.coupled
    if cfg.flag_at == 9:
        if cfg.pre9: loadB(7 + cfg.pre9 - 1)
        barB(8); loadB(8)
    qs = 0.25 * math.log2(math.e)
    a(f"s_mov_b32 s{sC}, {f2u(qs)}\ns_mov_b32 s{sC+1}, {f2u(qs)}")
    for qb in range(2):
        qa = ACC + (8 if cfg.m16 else 16) * qb
        for i in range(4):
            a(f"v_pk_mul_f32 {vr(qa+2*i,2)}, {vr(qa+2*i,2)}, {sr(sC,2)}")
        cvt(Qf + 4 * qb, qa, 4)
        if cfg.m16: swap16(Qf + 4 * qb)
    a(f"""
    s_lshl_b32 s{sT0}, s{sJ}, 11
    s_add_u32 s{sT0}, s{sT0}, {L_X}
    v_add_u32 v{vT}, s{sT0}, v{vL16}
    ds_write_b128 v{vT}, {vr(Qf,4)}
    ds_write_b128 v{vT}, {vr(Qf+4,4)} offset:1024
    """)
    for qb in range(2):
        mfma(72 + 32 * qb, KOWN, Qf + 4 * qb, "0")
        mfma(88 + 32 * qb, KOWN + 4, Qf + 4 * qb, "0")
    TMB = 32
    def maxtree(dst, base, n, init=None):
        i = 0
        if init is None:
            a(f"v_max3_f32 v{dst}, v{base}, v{base+1}, v{base+2}"); i = 3
        while i + 1 < n:
            a(f"v_max3_f32 v{dst}, v{dst}, v{base+i}, v{base+i+1}"); i += 2
        if i < n:
            a(f"v_max_f32 v{dst}, v{dst}, v{base+i}")
    maxtree(TMB, 72, 32)
    maxtree(TMB + 1, 104, 32)
    def crossmax(t):
        a(f"v_permlane32_swap_b32 v{t}, v{t+1}\nv_max_f32 v{t}, v{t}, v{t+1}")
    crossmax(TMB)
    a(f"v_sub_f32 v{TMB}, {f2u(-cfg.bias)}, v{TMB}\nv_mov_b32 v{TMB+1}, v{TMB}\nv_permlane32_swap_b32 v{TMB}, v{TMB+1}")
    a(f"""
    s_lshl_b32 s{sT0}, s{sJ}, 9
    s_add_u32 s{sT0}, s{sT0}, {L_XM}
    v_lshl_add_u32 v{vT}, v{vLANE}, 3, s{sT0}
    ds_write_b64 v{vT}, {vr(TMB,2)}
    """)
    def flagKV2():
        a(f"""
        s_mul_i32 s{sT0}, s{sHG}, {128*cfg.nrep}
        s_lshl_b32 s{sT1}, s{sRB}, 2
        s_add_u32 s{sT1}, s{sT0}, s{sT1}
        s_add_u32 s{sT1}, s{sT1}, {FL_KV}
        v_lshl_add_u32 v{vT}, v{vLANE}, 7, s{sT1}
        s_and_b32 s{sT1}, s{sRB}, {cfg.nrep-1}
        s_lshl_b32 s{sT1}, s{sT1}, 7
        s_add_u32 s{sT0}, s{sT0}, s{sT1}
        s_add_u32 s{sT0}, s{sT0}, {FL_KV}
        s_waitcnt lgkmcnt(0)
        """)
        wait_for("st")
        poll(vGA, vG, 0xff, srdr=rDBG, first_issued=True)
        l = lab("noflag")
        a(f"""
        v_lshl_add_u32 v{vGA}, v{vLANE}, 2, s{sT0}
        s_mov_b64 exec, 1
        ds_add_rtn_u32 v{vT1}, v{vCNT}, v{vONE} offset:{C_KV}
        s_waitcnt lgkmcnt(0)
        v_cmp_eq_u32 vcc, 3, v{vT1}
        s_mov_b64 exec, -1
        s_cbranch_vccz {l}
        """)
        flag(vT, str((1 << cfg.nrep) - 1))
        a.label(l)
        stamp(3)
    sb = Stream(cfg.depB, cfg.nB)
    if cfg.flag_at == 8:
        flagKV2()
        barB(8); loadB(8)
        nmfill(TMB)
    elif cfg.flag_at == 9:
        flagKV2()
        nmfill(TMB)
    elif cfg.flag_at == 10:
        nmfill(TMB)
        loadB(7)
        a("s_waitcnt lgkmcnt(0)")
        barB(8)
        if cfg.pre9 == 0:
            loadB(8); flagKV2()
        else:
            flagKV2(); loadB(8)
    for c in range(9, cfg.pollB + 1):
        if c == cfg.pollB:
            a(f"s_mov_b32 exec_hi, 0\nbuffer_load_dword v{vG}, v{vGA}, {sr(rWS,4)}, 0 offen sc1\ns_mov_b64 exec, -1")
            vq.append("kvf")
        barB(c)
        loadB(c)
        if c == 10 and cfg.earlyset:
            att_setup(0, cfg.nB); sb.setup()
        if c == 11 and cfg.earlyset:
            sb.zero()
    sb.q = list(vq)

    WFB = 184
    vWR = 12
    def woaddr():
        a(f"""
        v_bfe_u32 v{vT1}, v{vLANE}, 2, 2
        v_lshrrev_b32 v{vT2}, 5, v{vLANE}
        v_lshl_add_u32 v{vT1}, v{vT2}, 2, v{vT1}
        v_lshlrev_b32 v{vWR}, 7, v{vT1}
        s_lshr_b32 s{sT1}, s{sJ}, 1
        v_bfe_u32 v{vT1}, v{vLANE}, 3, 1
        v_xor_b32 v{vT1}, s{sT1}, v{vT1}
        v_lshl_add_u32 v{vWR}, v{vT1}, 6, v{vWR}
        v_and_b32 v{vT1}, 1, v{vLANE}
        v_lshl_add_u32 v{vWR}, v{vT1}, 5, v{vWR}
        s_and_b32 s{sT1}, s{sJ}, 1
        v_bfe_u32 v{vT1}, v{vLANE}, 4, 1
        v_xor_b32 v{vT1}, s{sT1}, v{vT1}
        v_lshl_add_u32 v{vWR}, v{vT1}, 4, v{vWR}
        v_bfe_u32 v{vT1}, v{vLANE}, 1, 1
        v_lshl_add_u32 v{vWR}, v{vT1}, 3, v{vWR}
        s_lshl_b32 s{sT1}, s{sJ}, 14
        s_add_u32 s{sT1}, s{sT1}, {L_WB}
        v_add_u32 v{vWR}, s{sT1}, v{vWR}
        v_xor_b32 v{vWR+1}, 64, v{vWR}
        """)
    def wofrags(base, g2):
        for hh in range(8):
            a(f"ds_read_b64_tr_b16 {vr(base+32*g2+4*hh,2)}, v{vWR+g2} offset:{hh*2048}")
            a(f"ds_read_b64_tr_b16 {vr(base+32*g2+4*hh+2,2)}, v{vWR+g2} offset:{hh*2048+1024}")
    def upper(base):
        def f0():
            woaddr()
            await_cnt(C_WO, 4)
            wofrags(WFB, 0)
        def f1():
            wofrags(WFB, 1)
        def f2():
            a("s_waitcnt lgkmcnt(0)")
            arrive(C_UP)
        return f0, f1, f2

    vC4, vC1 = 6, 7
    def pretail():
        a(f"s_mul_i32 s{sT0}, s{sJ}, 4608\ns_add_u32 s{sT0}, s{sT0}, {L_XC}\nv_add_u32 v{vC4}, s{sT0}, v{vL16}\nv_lshl_add_u32 v{vC1}, v{vLANE}, 2, s{sT0}")

    def barS(c):
        sb.wait(c)
        a("s_barrier")
        bst(c)
        while nxtB[0] <= min(c + cfg.look, 15):
            issue_chunk(nxtB[0]); sb.push(nxtB[0], 8); nxtB[0] += 1
    for c in range(cfg.pollB + 1, cfg.kvB + 1): barS(c)
    sb.wait("kvf")
    stamp(4)
    poll(vGA, vG, 0xffffffff, first_issued=True)
    barT = cfg.barT
    assert len(barT) == 15 - cfg.kvB
    if not cfg.earlyset:
        att_setup(0, cfg.nB); sb.setup()
    sb.first()
    if not cfg.earlyset: sb.zero()
    for i, t in enumerate(barT):
        if t == 0: barS(cfg.kvB + 1 + i)
    sb.start()
    stamp(5)
    vJ0, vJ1, vJ2 = 9, 10, 11
    def stB(): stamp(6)
    def stB2(): stamp(14)
    assert cfg.depB <= 4
    jobs = {7: [stB], 11: [stB2]}
    for i, t in enumerate(barT):
        if t: jobs.setdefault(t - 1, []).append(lambda c=cfg.kvB + 1 + i: barS(c))
    for i, f in enumerate(upper(L_WB)):
        if f.__name__ not in cfg.skip: jobs.setdefault(cfg.upB + i, []).append(f)
    jobs.setdefault(cfg.nB - 2, []).append(pretail)
    sb.run(jobs, cfg.prioB)
    a("s_branch L_tail")

    a.label("L_attA")
    nA = 64 - cfg.nB
    att_setup(cfg.nB, nA)
    sa = Stream(cfg.depA, nA, init=["pst"] * 4)
    a(f"""
    v_lshrrev_b32 v{vT}, 3, v{vLANE}
    v_bfe_u32 v{vT1}, v{vLANE}, 4, 1
    v_lshlrev_b32 v{vT1}, 2, v{vT1}
    v_and_b32 v{vT2}, 7, v{vLANE}
    v_xor_b32 v{vT1}, v{vT1}, v{vT2}
    v_lshlrev_b32 v{vT1}, 4, v{vT1}
    v_lshl_add_u32 v{vWOA}, v{vT}, 10, v{vT1}
    s_lshl_b32 s{sT0}, s{sHG}, 7
    s_lshl_b32 s{sT1}, s{sJ}, 17
    s_add_u32 s{sT0}, s{sT0}, s{sT1}
    v_add_u32 v{vWOA}, s{sT0}, v{vWOA}
    s_and_b32 s{sWO}, s{sRB}, 7
    s_lshl_b32 s{sWO}, s{sWO}, 1
    s_lshl_b32 s{sWOM}, s{sJ}, 14
    """)
    a(f"""
    v_mov_b32 v{S}, -1
    v_mov_b32 v{S+1}, -1
    v_mov_b32 v{S+2}, -1
    v_mov_b32 v{S+3}, -1
    s_lshl_b32 s{sT0}, s{sRB}, 6
    s_add_u32 s{sT0}, s{sT0}, s{sH}
    s_lshl_b32 s{sT0}, s{sT0}, 10
    s_add_u32 s{sT0}, s{sT0}, {WS_OB}
    s_add_u32 s{sT1}, s{sT0}, 32768
    buffer_store_dwordx4 {vr(S,4)}, v{vL16}, {sr(rWS,4)}, s{sT0} offen sc1
    buffer_store_dwordx4 {vr(S,4)}, v{vL16}, {sr(rWS,4)}, s{sT1} offen sc1
    """)
    sa.push("poison", 2)
    sa.prologue()
    JD = RING + 12 * cfg.depA
    KT = JD + 32
    assert KT + 8 <= 248
    RD = JD
    assert RD + 16 <= 248
    def red0():
        a(f"""
        s_lshr_b32 s{sT0}, s{sRB}, 3
        s_lshl_b32 s{sT1}, s{sHG}, 2
        s_add_u32 s{sJB}, s{sT0}, s{sT1}
        s_lshl_b32 s{sT1}, s{sJB}, 7
        s_lshl_b32 s{sT0}, s{sJ}, 5
        s_add_u32 s{sT1}, s{sT1}, s{sT0}
        s_add_u32 s{sT1}, s{sT1}, {FL_P}
        v_lshl_add_u32 v{vJ0}, v{vLANE}, 2, s{sT1}
        s_mov_b64 exec, 0xff
        buffer_load_dword v{vJ1}, v{vJ0}, {sr(rWS,4)}, 0 offen sc1
        s_mov_b64 exec, -1
        """)
        sa.push("fp")
    def red1():
        sa.wait("fp")
        poll(vJ0, vJ1, 0xff, first_issued=True)
        a(f"""
        s_lshl_b32 s{sJB}, s{sJB}, 3
        s_and_b32 s{sT1}, s{sRB}, 7
        s_add_u32 s{sJB}, s{sJB}, s{sT1}
        s_mul_i32 s{sT1}, s{sJB}, {32*384}
        s_mul_i32 s{sT0}, s{sJ}, {8*384}
        s_add_u32 s{sT1}, s{sT1}, s{sT0}
        s_add_u32 s{sT1}, s{sT1}, {WS_P}
        v_lshrrev_b32 v{vJ1}, 5, v{vLANE}
        v_mul_u32_u24 v{vJ0}, 384, v{vJ1}
        v_and_b32 v{vJ2}, 31, v{vLANE}
        v_lshl_add_u32 v{vJ0}, v{vJ2}, 4, v{vJ0}
        v_lshlrev_b32 v{vJ1}, 2, v{vJ1}
        v_lshl_add_u32 v{vJ1}, v{vJ2}, 3, v{vJ1}
        s_mov_b32 exec_lo, 0x1ffff
        s_mov_b32 exec_hi, 0x1ffff
        """)
        for i in range(4):
            a(f"buffer_load_dwordx4 {vr(RD+4*i,4)}, v{vJ0}, {sr(rWS,4)}, s{sT1} offen offset:{i*768} sc1")
        a("s_mov_b64 exec, -1")
        sa.push("part", 4)
    def red2():
        sa.wait("part")
        a(f"v_pk_add_f32 {vr(RD,2)}, {vr(RD,2)}, {vr(RD+4,2)}\nv_pk_add_f32 {vr(RD+2,2)}, {vr(RD+2,2)}, {vr(RD+6,2)}")
        a(f"v_pk_add_f32 {vr(RD+8,2)}, {vr(RD+8,2)}, {vr(RD+12,2)}\nv_pk_add_f32 {vr(RD+10,2)}, {vr(RD+10,2)}, {vr(RD+14,2)}")
        a(f"v_pk_add_f32 {vr(RD,2)}, {vr(RD,2)}, {vr(RD+8,2)}\nv_pk_add_f32 {vr(RD+2,2)}, {vr(RD+2,2)}, {vr(RD+10,2)}")
        l = lab("notlast")
        a(f"""
        s_mul_i32 s{sT0}, s{sJ}, 800
        s_add_u32 s{sT0}, s{sT0}, {L_XR}
        v_add_u32 v{vJ0}, s{sT0}, v{vL16}
        s_mov_b32 exec_lo, 0x1ffff
        s_mov_b32 exec_hi, 0x1ffff
        ds_write_b128 v{vJ0}, {vr(RD,4)}
        s_mov_b32 s{sJL}, 0
        s_waitcnt lgkmcnt(0)
        s_mov_b64 exec, 1
        ds_add_rtn_u32 v{vJ2}, v{vCNT}, v{vONE} offset:{C_RD}
        s_waitcnt lgkmcnt(0)
        v_cmp_eq_u32 vcc, 3, v{vJ2}
        s_mov_b64 exec, -1
        s_cbranch_vccz {l}
        s_mov_b32 s{sJL}, 1
        v_add_u32 v{vJ0}, {L_XR}, v{vL16}
        """)
        for i in range(4):
            a(f"ds_read_b128 {vr(RD+4*i,4)}, v{vJ0} offset:{i*800}")
        a("s_waitcnt lgkmcnt(0)")
        a(f"v_pk_add_f32 {vr(RD,2)}, {vr(RD,2)}, {vr(RD+4,2)}\nv_pk_add_f32 {vr(RD+2,2)}, {vr(RD+2,2)}, {vr(RD+6,2)}")
        a(f"v_pk_add_f32 {vr(RD+8,2)}, {vr(RD+8,2)}, {vr(RD+12,2)}\nv_pk_add_f32 {vr(RD+10,2)}, {vr(RD+10,2)}, {vr(RD+14,2)}")
        a(f"v_pk_add_f32 {vr(RD,2)}, {vr(RD,2)}, {vr(RD+8,2)}\nv_pk_add_f32 {vr(RD+2,2)}, {vr(RD+2,2)}, {vr(RD+10,2)}")
        a(f"""
        v_permlane32_swap_b32 v{RD}, v{RD+2}
        v_permlane32_swap_b32 v{RD+1}, v{RD+3}
        v_pk_add_f32 {vr(RD,2)}, {vr(RD,2)}, {vr(RD+2,2)}
        v_cvt_pk_bf16_f32 v{RD}, v{RD}, v{RD+1}
        s_lshl_b32 s{sT1}, s{sJB}, 8
        s_add_u32 s{sT1}, s{sT1}, {WS_F}
        s_mov_b32 exec_lo, 0x1ffff
        s_mov_b32 exec_hi, 0x1ffff
        buffer_store_dword v{RD}, v{vJ1}, {sr(rWS,4)}, s{sT1} offen sc1
        s_mov_b64 exec, -1
        """)
        a.label(l)
        sa.mark = len(sa.q)
        sa.push("after", 0)
        sa.stored_at = list(sa.q)
    def red3():
        n_new = sum(1 for t in sa.q if t not in sa.stored_at)
        l = lab("noffl")
        a(f"s_cmp_lg_u32 s{sJL}, 1\ns_cbranch_scc1 {l}")
        a(f"""
        s_lshr_b32 s{sT1}, s{sJB}, 3
        s_lshl_b32 s{sT1}, s{sT1}, 7
        s_and_b32 s{sT0}, s{sJB}, 7
        s_lshl_b32 s{sT0}, s{sT0}, 2
        s_add_u32 s{sT0}, s{sT0}, s{sT1}
        s_add_u32 s{sT0}, s{sT0}, {FL_F}
        v_mov_b32 v{vJ0}, s{sT0}
        s_waitcnt vmcnt({n_new})
        """)
        flag(vJ0, "1")
        a.label(l)
    def wopiece():
        a(f"""
        s_lshl_b32 s{sT0}, s{sWO}, 10
        s_add_u32 m0, s{sT0}, s{sWOM}
        s_lshl_b32 s{sT1}, s{sWO}, 13
        s_add_u32 s{sT0}, s{sT0}, {L_WB}
        buffer_load_dwordx4 v{vWOA}, {sr(rMISC,4)}, s{sT1} offen lds
        s_add_u32 m0, s{sT0}, s{sWOM}
        s_add_u32 s{sWO}, s{sWO}, 1
        s_and_b32 s{sWO}, s{sWO}, 15
        buffer_load_dwordx4 v{vWOA}, {sr(rXB,4)}, s{sT1} offen lds
        """)
        sa.push("wo", 2)
    def wodone():
        sa.wait("wo")
        arrive(C_WO)
    def oa0():
        a(f"""
        s_lshl_b32 s{sT0}, s{sRB}, 7
        s_lshl_b32 s{sT1}, s{sJ}, 5
        s_add_u32 s{sT0}, s{sT0}, s{sT1}
        s_add_u32 s{sT0}, s{sT0}, {FL_OA}
        v_lshl_add_u32 v{vJ0}, v{vLANE}, 2, s{sT0}
        s_mov_b64 exec, 0xff
        buffer_load_dword v{vJ1}, v{vJ0}, {sr(rWS,4)}, 0 offen sc1
        s_mov_b64 exec, -1
        """)
        sa.push("foa")
    def oa1(part):
        def f():
            if part == 0:
                sa.wait("foa")
                poll(vJ0, vJ1, 0xff, first_issued=True)
                await_cnt(C_UP, 4)
            off = (part >> 1) * 32768 + (part & 1) * 4096
            loff = L_WB + off
            a(f"""
            s_lshl_b32 s{sT0}, s{sRB}, 16
            s_lshl_b32 s{sT1}, s{sJ}, 13
            s_add_u32 s{sT0}, s{sT0}, s{sT1}
            s_add_u32 s{sT0}, s{sT0}, {WS_OA + off}
            s_add_u32 m0, s{sT1}, {loff}
            """)
            for i in range(4):
                a(f"buffer_load_dwordx4 v{vL16}, {sr(rWS,4)}, s{sT0} offen offset:{i*1024} sc1 lds")
            sa.push("wo", 4)
        return f
    def job0():
        sa.wait("pst")
        a(f"s_lshl_b32 s{sT0}, s{sH}, 7\ns_lshl_b32 s{sT1}, s{sRB}, 2\ns_add_u32 s{sT0}, s{sT0}, s{sT1}\ns_add_u32 s{sT0}, s{sT0}, {FL_P}\nv_mov_b32 v{vJ0}, s{sT0}")
        flag(vJ0, "1"); sa.push("fl")
    def job1():
        a(f"s_lshl_b32 s{sT0}, s{sH}, 7\ns_add_u32 s{sT0}, s{sT0}, {FL_F}\nv_lshl_add_u32 v{vJ0}, v{vLANE}, 2, s{sT0}")
        a(f"s_mov_b64 exec, 0xff\nbuffer_load_dword v{vJ1}, v{vJ0}, {sr(rWS,4)}, 0 offen sc1\ns_mov_b64 exec, -1")
        sa.push("ff")
        stamp(6)
    def job2():
        sa.wait("ff")
        poll(vJ0, vJ1, 0xff, first_issued=True)
        a(f"""
        v_and_b32 v{vJ0}, 31, v{vLANE}
        v_min_u32 v{vJ0}, 16, v{vJ0}
        v_lshlrev_b32 v{vJ0}, 3, v{vJ0}
        v_lshrrev_b32 v{vJ1}, 5, v{vLANE}
        v_lshl_add_u32 v{vJ0}, v{vJ1}, 8, v{vJ0}
        s_lshl_b32 s{sT0}, s{sH}, 11
        s_add_u32 s{sT0}, s{sT0}, {WS_F}
        """)
        for r4 in range(4):
            a(f"buffer_load_dwordx2 {vr(KT+2*r4,2)}, v{vJ0}, {sr(rWS,4)}, s{sT0} offen offset:{r4*512} sc1")
        sa.push("kt", 4)
        stamp(14)
    def job3a():
        sa.wait("kt")
        for ri in range(2):
            mfma(JD + 16 * ri, KT, PHI + 8 * ri, "0")
        for ri in range(2):
            mfma(JD + 16 * ri, KT + 4, PHI + 8 * ri + 4, JD + 16 * ri)
    def job3b():
        a(f"s_lshl_b32 s{sT0}, s{sRB}, 6\ns_add_u32 s{sT0}, s{sT0}, s{sH}\ns_lshl_b32 s{sT0}, s{sT0}, 10\ns_add_u32 s{sT0}, s{sT0}, {WS_OA}\ns_add_u32 s{sT1}, s{sT0}, 32768")
        if cfg.a3:
            a(f"s_and_b32 s{sT2}, s{sJ}, 1\ns_lshl_b32 s{sT2}, s{sT2}, 15\ns_add_u32 s{sT0}, s{sT0}, s{sT2}\ns_sub_u32 s{sT1}, s{sT1}, s{sT2}")
        for ri in range(2):
            d = JD + 16 * ri
            a(f"v_add_f32 v{d+8}, {f2u(1e-6)}, v{d+8}\nv_rcp_f32 v{d+8}, v{d+8}")
        for ri in range(2):
            d = JD + 16 * ri
            for i in range(4):
                a(f"v_pk_mul_f32 {vr(d+2*i,2)}, {vr(d+2*i,2)}, {vr(d+8,2)} op_sel:[0,0] op_sel_hi:[1,0]")
            cvt(d + 12, d, 4)
            a(f"buffer_store_dwordx4 {vr(d+12,4)}, v{vL16}, {sr(rWS,4)}, s{sT0+ri} offen sc1")
        sa.push("oa", 2)
    def job4():
        sa.wait("oa")
        a(f"s_lshl_b32 s{sT0}, s{sRB}, 7\ns_lshl_b32 s{sT1}, s{sH}, 2\ns_add_u32 s{sT0}, s{sT0}, s{sT1}\ns_add_u32 s{sT0}, s{sT0}, {FL_OA}\nv_mov_b32 v{vJ0}, s{sT0}")
        flag(vJ0, "1"); sa.push("fl")
    jobs = {}
    t0, t1, t2, t3, t4 = cfg.jobT
    for t, f in ((t0, job0), (t1, job1), (t2, job2), (t3, job3a), (t3 + 1, job3b), (t4, job4)): jobs.setdefault(t, []).append(f)
    for t, f in zip(cfg.redT, (red0, red1, red2, red3)): jobs.setdefault(t, []).append(f)
    for t in range(16): jobs.setdefault(t + cfg.woT, []).append(wopiece)
    jobs.setdefault(cfg.woT + 18, []).append(wodone)
    jobs.setdefault(nA - 2, []).append(pretail)
    jobs.setdefault(cfg.oaT[0], []).append(oa0)
    for p in range(4): jobs.setdefault(cfg.oaT[1] + p, []).append(oa1(p))
    assert max(jobs) < nA
    if cfg.skip:
        for t in list(jobs):
            jobs[t] = [f for f in jobs[t] if f.__name__ not in cfg.skip]
    sa.run(jobs, cfg.prioA)
    sa.wait("wo")
    a.label("L_tail")
    stamp(7)

    CK = NM
    def check():
        for q in range(2):
            b = O + 16 * q
            a(f"v_max3_f32 v{CK+q}, abs(v{b}), abs(v{b+1}), abs(v{b+2})\nv_max3_f32 v{CK+q}, v{CK+q}, abs(v{b+3}), abs(v{b+4})")
            a(f"v_max3_f32 v{CK+q}, v{CK+q}, abs(v{b+5}), abs(v{b+6})\nv_max_f32 v{CK+q}, v{CK+q}, abs(v{b+7})")
        a(f"v_pk_add_f32 {vr(CK+2,2)}, {vr(O,2)}, {vr(O+2,2)}")
        for r in (O + 4, O + 6, O + 16, O + 18, O + 20, O + 22):
            a(f"v_pk_add_f32 {vr(CK+2,2)}, {vr(CK+2,2)}, {vr(r,2)}")
        a(f"""
        v_add_f32 v{CK+2}, v{CK+2}, v{O+8}
        v_add_f32 v{CK+3}, v{CK+3}, v{O+24}
        v_max3_f32 v{CK+4}, v{CK}, v{CK+1}, v{O+8}
        v_max_f32 v{CK+4}, v{CK+4}, v{O+24}
        s_mov_b32 s{sT2}, {f2u(2.0 ** -(cfg.bias + 2))}
        s_mov_b32 s{sT3}, {f2u(2.0 ** -112)}
        v_cmp_le_f32 s[84:85], s{sT2}, v{O+8}
        v_cmp_gt_f32 s[86:87], s{sT3}, v{CK}
        v_cmp_le_f32 s[88:89], s{sT2}, v{O+24}
        v_cmp_gt_f32 s[90:91], s{sT3}, v{CK+1}
        v_cmp_u_f32 vcc, v{CK+2}, v{CK+3}
        s_and_b64 s[84:85], s[84:85], s[86:87]
        s_and_b64 s[88:89], s[88:89], s[90:91]
        s_or_b64 s[84:85], s[84:85], s[88:89]
        s_or_b64 s[84:85], s[84:85], vcc
        v_cmp_ngt_f32 vcc, {f2u(2.0 ** 125)}, v{CK+4}
        s_or_b64 vcc, vcc, s[84:85]
        """)
    def badflag():
        l = lab("good")
        if cfg.force_redo:
            a(f"s_mov_b64 vcc, -1")
        a(f"s_cbranch_vccz {l}\nds_write_b32 v{vCNT}, v{vONE}")
        a.label(l)
    def rowaddr(dst, ri):
        a(f"""
        v_and_b32 v{vT1}, 31, v{vLANE}
        s_lshl_b32 s{sT0}, s{sRB}, 1
        s_add_u32 s{sT0}, s{sT0}, {ri}
        s_lshl_b32 s{sT0}, s{sT0}, 5
        v_add_u32 v{vT1}, s{sT0}, v{vT1}
        v_lshlrev_b32 v{dst}, 11, v{vT1}
        v_lshrrev_b32 v{vT1}, 5, v{vLANE}
        v_lshl_add_u32 v{dst}, v{vT1}, 5, v{dst}
        """)
    a(f"s_cmp_lt_u32 s{sW}, 4\ns_cbranch_scc1 L_tailB")
    check()
    badflag()
    a(f"""
    s_lshl_b32 s{sT0}, s{sRB}, 6
    s_add_u32 s{sT0}, s{sT0}, s{sH}
    s_lshl_b32 s{sT0}, s{sT0}, 10
    s_add_u32 s{sT0}, s{sT0}, {WS_OB}
    s_and_b32 s{sT2}, s{sJ}, 1
    s_mul_i32 s{sT1}, s{sT2}, {0 if cfg.m16 else 32768}
    s_add_u32 s84, s{sT0}, s{sT1}
    s_xor_b32 s{sT1}, s{sT1}, 0x8000
    s_add_u32 s85, s{sT0}, s{sT1}
    s_waitcnt lgkmcnt(0)
    s_barrier
    """)
    PB = 104
    a(f"""
    ds_read_b32 v{PB+16}, v{vC1} offset:4096
    ds_read_b32 v{PB+17}, v{vC1} offset:4352
    ds_read_b32 v{CK}, v{vCNT}
    ds_read_b128 {vr(PB,4)}, v{vC4}
    ds_read_b128 {vr(PB+4,4)}, v{vC4} offset:1024
    ds_read_b128 {vr(PB+8,4)}, v{vC4} offset:2048
    ds_read_b128 {vr(PB+12,4)}, v{vC4} offset:3072
    s_waitcnt lgkmcnt(4)
    v_add_f32 v{O+8}, v{O+8}, v{PB+16}
    v_add_f32 v{O+24}, v{O+24}, v{PB+17}
    v_readfirstlane_b32 s{sT1}, v{CK}
    v_rcp_f32 v{O+10}, v{O+8}
    v_rcp_f32 v{O+26}, v{O+24}
    s_andn2_b32 s{sT1}, s{sT1}, s{sREDO}
    s_cmp_lg_u32 s{sT1}, 0
    s_cbranch_scc1 L_slow
    """)
    OS = 124
    for q in range(2):
        b = O + 16 * q
        a(f"s_waitcnt lgkmcnt({2 - 2*q})")
        for i in range(4):
            a(f"v_pk_add_f32 {vr(b+2*i,2)}, {vr(b+2*i,2)}, {vr(PB+8*q+2*i,2)}")
        for i in range(4):
            a(f"v_pk_mul_f32 {vr(b+2*i,2)}, {vr(b+2*i,2)}, {vr(b+10,2)} op_sel:[0,0] op_sel_hi:[1,0]")
        cvt(OS + 4 * q, b, 4)
        for i in range(4):
            a(f"v_min_u32 v{OS+4*q+i}, -2, v{OS+4*q+i}")
        a(f"buffer_store_dwordx4 {vr(OS+4*q,4)}, v{vL16}, {sr(rWS,4)}, s{84+q} offen {cfg.ob_st}")
    l = lab("nohint")
    a(f"s_cmp_lg_u32 s{sW}, {cfg.hintw}\ns_cbranch_scc1 {l}")
    a(f"s_lshl_b32 s{sT0}, s{sRB}, 10\ns_lshl_b32 s{sT1}, s{sHG}, 2\ns_add_u32 s{sT0}, s{sT0}, s{sT1}\ns_add_u32 s{sT0}, s{sT0}, {FL_OB}")
    a(f"v_lshl_add_u32 v{vT}, v{vLANE}, 7, s{sT0}")
    flag(vT, "0xff")
    a.label(l)
    stamp(8)
    vOR, vOST = 5, 7
    PA, PW, PO, PS = 80, 136, 16, 48
    a(f"""
    s_mul_i32 s{sT0}, s{sT2}, {0 if cfg.m16 else 4}
    s_add_u32 s{sT0}, s{sT0}, s{sJ}
    s_lshl_b32 s{sT0}, s{sT0}, 10
    s_add_u32 s{sT0}, s{sT0}, {L_X}
    v_add_u32 v{vT}, s{sT0}, v{vL16}
    ds_write_b128 v{vT}, {vr(OS,4)}
    v_xor_b32 v{vT}, 0x1000, v{vT}
    ds_write_b128 v{vT}, {vr(OS+4,4)}
    v_bfe_u32 v{vT1}, v{vLANE}, 2, 2
    v_lshrrev_b32 v{vT2}, 5, v{vLANE}
    v_lshl_add_u32 v{vT1}, v{vT2}, 2, v{vT1}
    v_lshlrev_b32 v{vWR}, 7, v{vT1}
    s_lshr_b32 s{sT1}, s{sJ}, 1
    v_bfe_u32 v{vT1}, v{vLANE}, 3, 1
    v_xor_b32 v{vT1}, s{sT1}, v{vT1}
    v_lshl_add_u32 v{vWR}, v{vT1}, 6, v{vWR}
    v_and_b32 v{vT1}, 1, v{vLANE}
    v_lshl_add_u32 v{vWR}, v{vT1}, 5, v{vWR}
    v_bfe_u32 v{vT1}, v{vLANE}, 4, 1
    v_lshl_add_u32 v{vWR}, v{vT1}, 4, v{vWR}
    v_bfe_u32 v{vT1}, v{vLANE}, 1, 1
    v_lshl_add_u32 v{vWR}, v{vT1}, 3, v{vWR}
    s_lshl_b32 s{sT0}, s{sT2}, 15
    s_add_u32 s{sT0}, s{sT0}, {L_WB}
    v_add_u32 v{vOR}, s{sT0}, v{vL16}
    s_waitcnt lgkmcnt(0)
    """)
    arrive(C_OB)
    if cfg.tailprio: a("s_setprio 0")
    assert L_WA == 0
    DP = 4
    def rd(q):
        a(f"ds_read_b64_tr_b16 {vr(PW+4*(q%8),2)}, v{vWR} offset:{q*2048}")
        a(f"ds_read_b64_tr_b16 {vr(PW+4*(q%8)+2,2)}, v{vWR} offset:{q*2048+1024}")
        a(f"ds_read_b128 {vr(PO+4*(q%8),4)}, v{vOR} offset:{q*1024}")
    for q in range(DP): rd(q)
    for q in range(32):
        a(f"s_waitcnt lgkmcnt({3*min(DP-1, 31-q)})")
        mfma(PA, PW + 4 * (q % 8), PO + 4 * (q % 8), "0" if q == 0 else PA)
        if q + DP < 32: rd(q + DP)
        if q == 31 - DP:
            if cfg.outA_t:
                a(f"""
                v_lshrrev_b32 v{vT1}, 2, v{vLANE}
                s_lshl_b32 s{sT0}, s{sRB}, 1
                s_add_u32 s{sT0}, s{sT0}, s{sT2}
                s_lshl_b32 s{sT0}, s{sT0}, 5
                v_add_u32 v{vT1}, s{sT0}, v{vT1}
                v_lshlrev_b32 v{vOST}, 11, v{vT1}
                v_and_b32 v{vT1}, 3, v{vLANE}
                v_lshl_add_u32 v{vOST}, v{vT1}, 4, v{vOST}
                v_and_b32 v{vT1}, 31, v{vLANE}
                v_lshlrev_b32 v{vT1}, 6, v{vT1}
                v_lshrrev_b32 v{vT2}, 5, v{vLANE}
                v_lshl_add_u32 v{vT1}, v{vT2}, 5, v{vT1}
                s_mul_i32 s{sT0}, s{sJ}, 4608
                s_add_u32 s{sT0}, s{sT0}, {L_XC}
                v_add_u32 v9, s{sT0}, v{vT1}
                """)
            else:
                rowaddr(vOST, f"s{sT2}")
            a(f"s_lshl_b32 s{sT0}, s{sHG}, 7\ns_lshr_b32 s{sT1}, s{sJ}, 1\ns_lshl_b32 s{sT1}, s{sT1}, 6\ns_add_u32 s{sT0}, s{sT0}, s{sT1}\nv_add_u32 v{vOST}, s{sT0}, v{vOST}")
    arrive(C_OA)
    stamp(9)
    cvt(PS, PA, 8)
    if cfg.outA_t:
        a(f"""
        ds_write_b128 v9, {vr(PS,4)}
        ds_write_b128 v9, {vr(PS+4,4)} offset:16
        v_add_u32 v10, 0x8000, v{vOST}
        s_waitcnt lgkmcnt(0)
        ds_read_b128 {vr(PS+8,4)}, v{vC4}
        ds_read_b128 {vr(PS+12,4)}, v{vC4} offset:1024
        s_waitcnt lgkmcnt(1)
        buffer_store_dwordx4 {vr(PS+8,4)}, v{vOST}, {sr(rOUT,4)}, 0 offen {cfg.outA_sc}
        s_waitcnt lgkmcnt(0)
        buffer_store_dwordx4 {vr(PS+12,4)}, v10, {sr(rOUT,4)}, 0 offen {cfg.outA_sc}
        """)
    else:
        a(f"buffer_store_dwordx4 {vr(PS,4)}, v{vOST}, {sr(rOUT,4)}, 0 offen {cfg.outA_sc}")
        a(f"buffer_store_dwordx4 {vr(PS+4,4)}, v{vOST}, {sr(rOUT,4)}, 0 offen offset:16 {cfg.outA_sc}")
    stamp(10); stamp(11); stamp(12)
    a("s_branch L_fin")

    a.label("L_tailB")
    if cfg.tailprio > 1: a("s_setprio 3")
    a(f"""
    ds_write_b128 v{vC4}, {vr(O,4)}
    ds_write_b128 v{vC4}, {vr(O+4,4)} offset:1024
    ds_write_b32 v{vC1}, v{O+8} offset:4096
    ds_write_b128 v{vC4}, {vr(O+16,4)} offset:2048
    ds_write_b128 v{vC4}, {vr(O+20,4)} offset:3072
    ds_write_b32 v{vC1}, v{O+24} offset:4352
    """)
    check()
    badflag()
    OFB, AB = 16, 104
    vH, vHA, vXW, vXR, vOWN = 248, 249, 9, 10, 11
    sTODO, sREQ, sOWN, sOB, sNEW = 84, 85, 86, 87, 88
    a(f"""
    s_lshl_b32 s{sT0}, s{sRB}, 3
    s_add_u32 s{sT0}, s{sT0}, s{sHG}
    s_lshl_b32 s{sT0}, s{sT0}, 7
    s_lshl_b32 s{sT1}, s{sJ}, 3
    s_add_u32 s{sT0}, s{sT0}, s{sT1}
    s_add_u32 s{sT0}, s{sT0}, {FL_OB}
    v_lshl_add_u32 v{vHA}, v{vLANE}, 2, s{sT0}
    s_lshl_b32 s{sT0}, s{sRB}, 16
    s_lshl_b32 s{sT1}, s{sJ}, 13
    s_add_u32 s{sOB}, s{sT0}, s{sT1}
    s_add_u32 s{sOB}, s{sOB}, {WS_OB}
    s_lshr_b32 s{sT0}, s{sHG}, 1
    s_and_b32 s{sT1}, s{sHG}, 1
    s_lshl_b32 s{sT1}, 1, s{sT1}
    s_cmp_eq_u32 s{sT0}, s{sJ}
    s_cselect_b32 s{sOWN}, s{sT1}, 0
    s_waitcnt lgkmcnt(0)
    s_barrier
    ds_read_b32 v{CK}, v{vCNT}
    s_mov_b64 exec, 3
    buffer_load_dword v{vH}, v{vHA}, {sr(rWS,4)}, 0 offen sc1
    s_mov_b64 exec, -1
    v_pk_mov_b32 {vr(168,2)}, 0, 0
    v_pk_mov_b32 {vr(170,2)}, 0, 0
    s_waitcnt lgkmcnt(0)
    v_readfirstlane_b32 s{sT1}, v{CK}
    s_andn2_b32 s{sT1}, s{sT1}, s{sREDO}
    s_cmp_lg_u32 s{sT1}, 0
    s_cbranch_scc1 L_slow
    """)
    stamp(8)
    if cfg.tailprio: a("s_setprio 2")
    for i in range(4):
        mfma(AB + 16 * i, 168, 168, "0")
    rowaddr(vOST, 0)
    a(f"""
    s_lshl_b32 s{sT0}, s{sHG}, 7
    s_lshr_b32 s{sT1}, s{sJ}, 1
    s_lshl_b32 s{sT1}, s{sT1}, 6
    s_add_u32 s{sT0}, s{sT0}, s{sT1}
    s_and_b32 s{sT1}, s{sJ}, 1
    s_lshl_b32 s{sT1}, s{sT1}, 4
    s_add_u32 s{sT0}, s{sT0}, s{sT1}
    v_add_u32 v{vOST}, s{sT0}, v{vOST}
    s_mul_i32 s{sT0}, s{sJ}, 12288
    v_add_u32 v{vXR}, s{sT0}, v{vL16}
    v_add_u32 v{vOWN}, {L_X}, v{vL16}
    s_andn2_b32 s{sTODO}, 3, s{sOWN}
    s_mov_b32 s{sREQ}, 0
    s_mov_b32 s{sCNT}, {cfg.spin}
    """)
    def mm(g):
        for i in range(4):
            for ri in range(2):
                for g2 in range(2):
                    d = AB + 32 * ri + 16 * g2
                    mfma(d, WFB + 32 * g2 + 4 * (4 * g + i), OFB + 32 * g + 16 * ri + 4 * i, d)
    def oload(g):
        l = lab("nol")
        a(f"s_bitcmp1_b32 s{sNEW}, {g}\ns_cbranch_scc0 {l}")
        for ri in range(2):
            a(f"s_add_u32 s{sT0}, s{sOB}, {g*4096 + ri*32768}")
            for i in range(4):
                a(f"buffer_load_dwordx4 {vr(OFB+32*g+16*ri+4*i,4)}, v{vL16}, {sr(rWS,4)}, s{sT0} offen offset:{i*1024} {cfg.ob_ld}")
        a.label(l)
    def look():
        a(f"""
        s_mov_b64 exec, 3
        v_cmp_ne_u32 vcc, 0, v{vH}
        s_mov_b64 exec, -1
        s_cmp_eq_u32 s{sCNT}, 0
        s_cselect_b32 s{sNEW}, 3, vcc_lo
        s_and_b32 s{sNEW}, s{sNEW}, s{sTODO}
        s_andn2_b32 s{sNEW}, s{sNEW}, s{sREQ}
        """)
        oload(0); oload(1)
    def use(g):
        l, l2 = lab("og"), lab("og")
        b = OFB + 32 * g
        a(f"v_max3_u32 v{vT}, v{b}, v{b+1}, v{b+2}\nv_max3_u32 v{vT1}, v{b+3}, v{b+4}, v{b+5}")
        for i in range(6, 30, 4):
            a(f"v_max3_u32 v{vT}, v{vT}, v{b+i}, v{b+i+1}\nv_max3_u32 v{vT1}, v{vT1}, v{b+i+2}, v{b+i+3}")
        a(f"v_max3_u32 v{vT}, v{vT}, v{b+30}, v{b+31}\nv_max_u32 v{vT}, v{vT}, v{vT1}\nv_cmp_eq_u32 vcc, -1, v{vT}")
        a(f"s_cmp_eq_u32 s{sCNT}, 0\ns_cbranch_scc1 {l2}\ns_cbranch_vccnz {l}")
        a.label(l2)
        mm(g)
        a(f"s_bitset0_b32 s{sTODO}, {g}")
        a.label(l)
    a("s_waitcnt vmcnt(0)")
    look()
    a(f"s_mov_b32 s{sREQ}, s{sNEW}")
    l = lab("noown")
    a(f"s_cmp_eq_u32 s{sOWN}, 0\ns_cbranch_scc1 {l}")
    await_cnt(C_OB, 4)
    for g in range(2):
        l2 = lab("own")
        a(f"s_bitcmp1_b32 s{sOWN}, {g}\ns_cbranch_scc0 {l2}")
        for i in range(8):
            a(f"ds_read_b128 {vr(OFB+32*g+4*i,4)}, v{vOWN} offset:{i*1024}")
        a("s_waitcnt lgkmcnt(0)")
        mm(g)
        a.label(l2)
    a.label(l)
    stamp(9)
    if cfg.prof: a("s_mov_b32 s70, 0")
    a.label("L_otry")
    if cfg.prof:
        a("s_memtime s[98:99]\ns_add_u32 s70, s70, 1\ns_add_u32 s71, s70, 40\ns_min_u32 s71, s71, 47\ns_waitcnt lgkmcnt(0)\ns_mov_b32 m0, s71\nv_writelane_b32 v255, s98, m0")
    a(f"s_cmp_lg_u32 s{sREQ}, 3\ns_cbranch_scc1 L_oone")
    a("s_waitcnt vmcnt(8)")
    use(0)
    a("s_waitcnt vmcnt(0)")
    use(1)
    a(f"s_mov_b32 s{sREQ}, 0\ns_branch L_onext")
    a.label("L_oone")
    l = lab("nopoll")
    a(f"s_andn2_b32 s{sT0}, s{sTODO}, s{sREQ}\ns_cbranch_scc0 {l}")
    if cfg.tsleep: a(f"s_sleep {cfg.tsleep}")
    a(f"s_mov_b64 exec, 3\nbuffer_load_dword v{vH}, v{vHA}, {sr(rWS,4)}, 0 offen sc1\ns_mov_b64 exec, -1")
    a(f"s_max_u32 s{sCNT}, s{sCNT}, 1\ns_sub_u32 s{sCNT}, s{sCNT}, 1")
    a.label(l)
    a("s_waitcnt vmcnt(0)")
    look()
    for g in range(2):
        l = lab("nouse")
        a(f"s_bitcmp1_b32 s{sREQ}, {g}\ns_cbranch_scc0 {l}")
        use(g)
        a.label(l)
    a(f"s_mov_b32 s{sREQ}, s{sNEW}")
    a.label("L_onext")
    a(f"s_cmp_lg_u32 s{sTODO}, 0\ns_cbranch_scc1 L_otry")
    if cfg.prof: a(f"v_writelane_b32 v255, s70, 33\nv_writelane_b32 v255, s{sCNT}, 34")
    stamp(10)
    await_cnt(C_OA, 4)
    stamp(11)
    def grp(ri, g):
        return AB + 32 * ri + 16 * (g >> 1) + 8 * (g & 1)
    for g in range(1, 4):
        a(f"s_xor_b32 s{sT0}, s{sJ}, {g}\ns_mul_i32 s{sT0}, s{sT0}, 12288\ns_add_u32 s{sT0}, s{sT0}, {(g-1)*4096}\nv_add_u32 v{vXW}, s{sT0}, v{vL16}")
        for ri in range(2):
            a(f"ds_write_b128 v{vXW}, {vr(grp(ri,g),4)} offset:{ri*2048}\nds_write_b128 v{vXW}, {vr(grp(ri,g)+4,4)} offset:{ri*2048+1024}")
    a("s_waitcnt lgkmcnt(0)\ns_barrier")
    stamp(12)
    tmp = 16
    for ri in range(2):
        for g in range(3):
            for i in range(2):
                a(f"ds_read_b128 {vr(tmp+24*ri+8*g+4*i,4)}, v{vXR} offset:{g*4096 + ri*2048 + i*1024}")
    a(f"v_add_u32 v{vXW}, 0x10000, v{vOST}")
    for ri in range(2):
        d = grp(ri, 0)
        for g in range(3):
            a(f"s_waitcnt lgkmcnt({10 - 6*ri - 2*g})")
            for i in range(4):
                a(f"v_pk_add_f32 {vr(d+2*i,2)}, {vr(d+2*i,2)}, {vr(tmp+24*ri+8*g+2*i,2)}")
        cvt(64 + 4 * ri, d, 4)
        a(f"buffer_store_dwordx4 {vr(64+4*ri,4)}, v{vXW if ri else vOST}, {sr(rOUT,4)}, 0 offen offset:1024 {cfg.out_sc}")
    a.label("L_fin")
    stamp(13)
    if cfg.diag:
        da, db, base = cfg.diag
        ra = sPROF if da == 0 else 92
        if db == 0:
            a(f"s_mov_b32 s{sT2}, 0")
        elif db == 15:
            a(f"s_waitcnt vmcnt(0)\ns_memrealtime s[{sT0}:{sT1}]\ns_waitcnt lgkmcnt(0)\ns_sub_u32 s{sT2}, s{sT0}, s{ra}")
        elif db == 16:
            a(f"s_waitcnt vmcnt(0)\ns_memtime s[{sT0}:{sT1}]\ns_waitcnt lgkmcnt(0)\ns_sub_u32 s{sT2}, s{sT0}, s100\ns_lshr_b32 s{sT2}, s{sT2}, 4")
        else:
            a(f"s_sub_u32 s{sT2}, s94, s{ra}")
        a(f"s_add_u32 s{sT2}, s{sT2}, {base}\ns_min_u32 s{sT2}, s{sT2}, 30000")
        a(f"s_cmp_lg_u32 s{sW}, 0\ns_cbranch_scc1 L_end")
        if cfg.diag_wb: a("s_waitcnt vmcnt(0)\ns_sleep 100\nbuffer_wbl2 sc1\ns_waitcnt vmcnt(0)")
        a.label("L_diag")
        a(f"s_memrealtime s[{sT0}:{sT1}]\ns_waitcnt lgkmcnt(0)\ns_sub_u32 s{sT0}, s{sT0}, s{sPROF}\ns_cmp_lt_u32 s{sT0}, s{sT2}\ns_cbranch_scc1 L_diag")
    if cfg.prof:
        a("s_waitcnt vmcnt(0)")
        stamp(15)
        a(f"s_getreg_b32 s{sT2}, hwreg(HW_REG_XCC_ID)\nv_writelane_b32 v255, s{sT2}, 32")
        a(f"s_lshl_b32 s{sT0}, s2, 3\ns_add_u32 s{sT0}, s{sT0}, s{sW}\ns_lshl_b32 s{sT0}, s{sT0}, 8\ns_add_u32 s{sT0}, s{sT0}, {WS_PROF}")
        a(f"v_lshlrev_b32 v{vT}, 2, v{vLANE}")
        a(f"buffer_store_dword v255, v{vT}, {sr(rWS,4)}, s{sT0} offen")
        if cfg.tprof:
            a(f"s_add_u32 s{sT0}, s{sT0}, {WS_DBG - WS_PROF}\nbuffer_store_dword v252, v{vT}, {sr(rWS,4)}, s{sT0} offen")
    a("s_endpgm")

    SL = O
    a.label("L_slow")
    a("s_waitcnt vmcnt(0) lgkmcnt(0)")
    a(f"s_mov_b32 s{sREDO}, 1\ns_mov_b32 s{sKV}, s{sKV0}\ns_mov_b32 s{sCNT}, s{sNIT}")
    a(f"v_mov_b32 v{SL}, 0xff800000\nv_mov_b32 v{SL+1}, 0xff800000")
    a.label("L_slow_loop")
    a(f"buffer_load_dwordx4 {vr(RING,4)}, v{vOFFK}, {sr(rWS,4)}, s{sKV} offen sc1\ns_add_u32 s{sKV}, s{sKV}, 2048\ns_and_b32 s{sKV}, s{sKV}, 0x1ffff\ns_waitcnt vmcnt(0)")
    mfma(S, RING, Qf, "0")
    mfma(S + 16, RING, Qf + 4, "0")
    maxtree(SL, S, 16, init=True)
    maxtree(SL + 1, S + 16, 16, init=True)
    a(f"s_sub_u32 s{sCNT}, s{sCNT}, 1\ns_cmp_lg_u32 s{sCNT}, 0\ns_cbranch_scc1 L_slow_loop")
    crossmax(SL)
    a(f"""
    s_lshl_b32 s{sT0}, s{sW}, 8
    s_add_u32 s{sT0}, s{sT0}, {L_X + 28672}
    v_lshl_add_u32 v{vT}, v{vLANE}, 2, s{sT0}
    ds_write_b32 v{vT}, v{SL}
    v_xor_b32 v{vT}, 0x400, v{vT}
    s_waitcnt lgkmcnt(0)
    s_barrier
    ds_read_b32 v{SL+1}, v{vT}
    s_waitcnt lgkmcnt(0)
    v_max_f32 v{SL}, v{SL}, v{SL+1}
    v_sub_f32 v{SL}, 0, v{SL}
    v_mov_b32 v{SL+1}, v{SL}
    v_permlane32_swap_b32 v{SL}, v{SL+1}
    """)
    nmfill(SL)
    sr2 = Stream(2, 2)
    sr2.prologue(single=True)
    a(f"s_lshr_b32 s{sCNT}, s{sNIT}, 1\ns_nop 7\ns_nop 3")
    a.label("L_redo_loop")
    sr2.tile(0, looped=True)
    sr2.tile(1, looped=True)
    a(f"s_sub_u32 s{sCNT}, s{sCNT}, 1\ns_cmp_lg_u32 s{sCNT}, 0\ns_cbranch_scc1 L_redo_loop")
    smf(O + 16, sr2.ring(1)[2], S + 16 + 8)
    a("s_waitcnt vmcnt(0)\ns_branch L_tail")
    a.label("L_end")
    a("s_endpgm")
    npad = a.pad()
    head = open(f"cdna_kernels/{NAME}.s.ref").read().split("; Override launch")[0]
    txt = head + f"""; Generated by gen/gen.py (hand-written generator).
; @launch grid=(256,1,1) block=(512,1,1) lds={LDS_SIZE}
.amdgcn_target "amdgcn-amd-amdhsa--gfx950"
.text
.globl {NAME}_kernel
.p2align 8
.type {NAME}_kernel,@function
{NAME}_kernel:
""" + a.text() + f""".section .rodata,"a"
.p2align 6
.amdhsa_kernel {NAME}_kernel
  .amdhsa_next_free_vgpr 256
  .amdhsa_next_free_sgpr 102
  .amdhsa_accum_offset 256
  .amdhsa_group_segment_fixed_size 0
  .amdhsa_kernarg_size 80
  .amdhsa_user_sgpr_count 2
  .amdhsa_user_sgpr_kernarg_segment_ptr 1
  .amdhsa_system_sgpr_workgroup_id_x 1
.end_amdhsa_kernel
"""
    return txt, npad

if __name__ == "__main__":
    kw = {}
    out = f"cdna_kernels/{NAME}.s"
    for arg in sys.argv[1:]:
        k, v = arg.split("=", 1)
        if k == "out":
            out = v
        else:
            kw[k] = eval(v)
    txt, npad = gen(Cfg(**kw))
    open(out, "w").write(txt)
    print("wrote", out, "nop states inserted:", npad, "lines:", txt.count("\n"))
```

```python
import math, struct, sys
from asmlib import Asm, vr, sr

NAME = "concat_heads__linear_kernel_hedgehog__softmax_full_mha__prompt"

def f2u(x):
    return struct.unpack("<I", struct.pack("<f", x))[0]

class Cfg:
    prof = False
    stop = 99
    mapping = "N"
    force_redo = False
    nrep = 8
    bias = 100.0
    out_sc = "sc1"
    prio = True
    pref_sc = ''
    rot = (4, 4, 2)
    rotA = (1, 2, 1)
    sprefB = 0
    look = 2
    nB = 24
    depB, depA = 4, 4
    redT = (8, 10, 12, 15)
    jobT = (0, 20, 22, 24, 27)
    prioB = ((0, 0),)
    prioA = ((0, 3),)
    kvrot = True
    diag_wb = False
    split_ld = False
    earlyset = True
    gprio = (2, 0, 2)
    abar = True
    swo = False
    sslowAx = True
    outB_t = True
    hs = 32
    prebar = 0
    m16 = True
    tailprio = 1
    ob_st = 'sc1'
    ob_ld = 'sc1'
    l2A = None
    pre9 = 1
    bnear = False
    sslow = 'b'
    sslowA = (0, 6)
    outA_t = True
    outA_sc = 'sc1'
    nfirst = 1
    gat_at = -1
    a3 = True
    slowpref = ''
    tprof = False
    skip = ()
    tailmode = 0
    drq = 4
    aload = 10
    hintw = 7
    tsleep = 0
    coupled = True
    lastA = 9
    flag_at = 10
    pollB = 13
    kvB = 14
    barT = (0,)
    woT = 1
    upA, upB = 26, 17
    oaT = (35, 36)
    itB = 9
    redB = 5
    hold8 = 1
    onepoll = True
    psleep = 2
    hold9 = False
    prB = (4, 1)
    prA = (3, 1)
    wopref = False
    oa_first = True
    spref = None
    codepref = 'xcd'
    ninit = 2
    pref = 'uniq'
    prefA = (99, 99)
    spin = 1 << 21
    diag = None
    def __init__(self, **kw):
        for k, v in kw.items():
            assert hasattr(self, k), k
            setattr(self, k, v)
        if self.m16: self.a3 = False

WS_KV = 0
WS_OA = 4 << 20
WS_OB = 6 << 20
WS_P = 8 << 20
WS_F = 11 << 20
WS_FL = (11 << 20) + 65536
FL_P = WS_FL
FL_F = FL_P + 4096
FL_OA = FL_F + 4096
FL_KV = FL_OA + 4096
FL_OB = FL_KV + 8192
WS_PROF = 12 << 20
WS_DBG = 13 << 20
WS_SIZE = 16 << 20

L_WA = 0
L_WB = 65536
L_X = 131072
L_XM = L_X + 8192
L_XC = L_X + 10240
L_XV = L_X + 12288
L_XR = L_X + 28672
L_BAD = L_X + 32512
C_KV, C_WO, C_GO, C_RD, C_OA, C_OB, C_UP, C_DR = 4, 8, 12, 16, 20, 24, 28, 68
LDS_SIZE = 163840

sW, sJ, sRB, sHG, sH = 3, 4, 5, 6, 7
rXB, rWB, rXA, rWA, rWS, rOUT, rMISC, rDBG = 8, 12, 16, 20, 24, 28, 32, 36
kAX, kAW, kAP, kAO, kBX, kBW, kBO, kOUT, kDBG, kWS = range(40, 60, 2)
sM, sO0, sO1, sO2 = 60, 61, 62, 63
sC = 64
sVM = 66
sCNT, sKV, sKVMAX, sWO, sWOM, sREDO = 68, 69, 70, 71, 72, 73
sT0, sT1, sT2, sT3 = 74, 75, 76, 77
sSPIN = 78
sKV0 = 79
sROT = 82
sROTA = 70
sNIT = 83
sJB, sJL = 90, 91
sPROF = 80

vL16, vLANE = 0, 1
vT = 2
vX0, vX1, vWq, vWk, vWv = 3, 4, 5, 6, 7
vXA = 8
vQK, vV = 12, 13
vPX, vPW = 34, 35
vXB = 24
vT1, vT2 = 14, 15
vCNT, vONE = 254, 253
vOFFV, vIDX = 250, 251
vWOA = 5
Qf = 16
PHI = 24
NM = 40
O = 72
S = 104
RING = 136
SCR = 184
FR = 104
ACC = 184

def gen(cfg):
    a = Asm()
    uid = [0]
    def lab(p):
        uid[0] += 1
        return f"L_{p}_{uid[0]}"
    nstamp = [0]
    def stamp(idx):
        if cfg.prof:
            a(f"s_memrealtime s[96:97]\ns_memtime s[98:99]\ns_waitcnt lgkmcnt(0)\nv_writelane_b32 v255, s96, {idx}\nv_writelane_b32 v255, s98, {16+idx}")
        elif cfg.diag and idx in cfg.diag[:2]:
            a(f"s_memrealtime {sr(92 if idx == cfg.diag[0] else 94, 2)}\ns_waitcnt lgkmcnt(0)")
    def srd(r, k, size):
        a(f"s_mov_b32 s{r}, s{k}\ns_mov_b32 s{r+1}, s{k+1}\ns_mov_b32 s{r+2}, {size}\ns_mov_b32 s{r+3}, 0x00020000")
    def mfma(d, x, y, c):
        cc = c if isinstance(c, str) else vr(c, 16)
        a(f"v_mfma_f32_32x32x16_bf16 {vr(d,16)}, {vr(x,4)}, {vr(y,4)}, {cc}")
    def cvt(d, s0, n):
        for i in range(n):
            a(f"v_cvt_pk_bf16_f32 v{d+i}, v{s0+2*i}, v{s0+2*i+1}")
    def poll(vaddr, vdst, mask, srdr=rWS, soff="0", first_issued=False, sleep=0):
        lp, dn = lab("poll"), lab("polld")
        a(f"s_mov_b64 exec, {mask}" if isinstance(mask, str) else f"s_mov_b32 exec_lo, {mask & 0xffffffff}\ns_mov_b32 exec_hi, {mask >> 32}")
        a(f"s_mov_b32 s{sSPIN}, {cfg.spin}")
        if first_issued:
            a(f"v_cmp_eq_u32 vcc, 0, v{vdst}\ns_cbranch_vccz {dn}")
        a.label(lp)
        if sleep: a(f"s_sleep {sleep}")
        a(f"buffer_load_dword v{vdst}, v{vaddr}, {sr(srdr,4)}, {soff} offen sc1")
        a(f"s_sub_u32 s{sSPIN}, s{sSPIN}, 1\ns_cbranch_scc1 {dn}")
        a(f"s_waitcnt vmcnt(0)\nv_cmp_eq_u32 vcc, 0, v{vdst}\ns_cbranch_vccnz {lp}")
        a.label(dn)
        a("s_mov_b64 exec, -1")
    def flag(vaddr, mask, soff="0", srdr=rWS):
        a(f"v_mov_b32 v{vT2}, 1")
        mask = int(mask, 0)
        a(f"s_mov_b32 exec_lo, {mask & 0xffffffff}\ns_mov_b32 exec_hi, {mask >> 32}")
        a(f"buffer_store_dword v{vT2}, v{vaddr}, {sr(srdr,4)}, {soff} offen sc1")
        a("s_mov_b64 exec, -1")

    def nmfill(src):
        assert src % 2 == 0
        for i in range(0, 16, 2):
            a(f"v_pk_mov_b32 {vr(NM+i,2)}, {vr(src,2)}, {vr(src,2)} op_sel:[0,0]\nv_pk_mov_b32 {vr(NM+16+i,2)}, {vr(src,2)}, {vr(src,2)} op_sel:[1,1]")
    def arrive(off):
        a(f"s_mov_b64 exec, 1\nds_add_u32 v{vCNT}, v{vONE} offset:{off}\ns_mov_b64 exec, -1")
    def await_cnt(off, target):
        lp, dn = lab("cw"), lab("cwd")
        a(f"s_mov_b64 exec, 1\ns_mov_b32 s{sSPIN}, {cfg.spin * 16}")
        a.label(lp)
        a(f"ds_read_b32 v{vT2}, v{vCNT} offset:{off}\ns_sub_u32 s{sSPIN}, s{sSPIN}, 1\ns_cbranch_scc1 {dn}")
        a(f"s_waitcnt lgkmcnt(0)\nv_cmp_gt_u32 vcc, {target}, v{vT2}\ns_cbranch_vccnz {lp}")
        a.label(dn)
        a("s_mov_b64 exec, -1")

    a(f"s_cmp_ge_u32 s2, 256\ns_cbranch_scc1 L_end")
    a(f"s_load_dwordx2 {sr(rXB,2)}, s[0:1], 32\ns_load_dwordx2 {sr(rWB,2)}, s[0:1], 40")
    a(f"s_load_dwordx16 s[40:55], s[0:1], 0\ns_load_dwordx4 s[56:59], s[0:1], 64")
    if cfg.prof or cfg.diag:
        a(f"s_memrealtime {sr(sPROF,2)}\ns_memtime s[100:101]")
    def code_prefetch(tag):
        a(f"s_getpc_b64 s[{sT0}:{sT1}]")
        a.label(f"L_pc{tag}")
        a(f"s_sub_u32 s{sT0}, s{sT0}, L_pc{tag}-{NAME}_kernel\ns_subb_u32 s{sT1}, s{sT1}, 0")
        a(f"s_lshr_b32 s{sT2}, s2, 3\ns_lshl_b32 s{sT2}, s{sT2}, 2\ns_add_u32 s{sT2}, s{sT2}, s{sJ}\ns_mul_i32 s{sT2}, s{sT2}, 3")
        a(f"v_min_u32 v{vT}, 2, v{vLANE}\nv_add_u32 v{vT}, s{sT2}, v{vT}")
        a(f"v_lshlrev_b32 v{vT}, 7, v{vT}\nv_min_u32 v{vT}, L_end-{NAME}_kernel, v{vT}")
        a(f"global_load_dword v39, v{vT}, s[{sT0}:{sT1}]")
    a(f"v_lshrrev_b32 v{vT}, 6, v0\nv_and_b32 v{vLANE}, 63, v0\nv_readfirstlane_b32 s{sW}, v{vT}")
    if cfg.mapping == "R":
        a(f"s_and_b32 s{sT0}, s2, 7\ns_lshl_b32 s{sT0}, s{sT0}, 2\ns_bfe_u32 s{sT1}, s2, 0x20003\ns_add_u32 s{sRB}, s{sT0}, s{sT1}\ns_lshr_b32 s{sHG}, s2, 5")
    elif cfg.mapping == "H":
        a(f"s_and_b32 s{sHG}, s2, 7\ns_lshr_b32 s{sRB}, s2, 3")
    elif cfg.mapping == "M":
        a(f"s_and_b32 s{sT0}, s2, 3\ns_lshl_b32 s{sT0}, s{sT0}, 1\ns_bfe_u32 s{sT1}, s2, 0x10003\ns_add_u32 s{sHG}, s{sT0}, s{sT1}")
        a(f"s_bfe_u32 s{sT0}, s2, 0x10002\ns_lshl_b32 s{sT0}, s{sT0}, 4\ns_lshr_b32 s{sT1}, s2, 4\ns_add_u32 s{sRB}, s{sT0}, s{sT1}")
    elif cfg.mapping == "N":
        a(f"s_and_b32 s{sT0}, s2, 1\ns_lshl_b32 s{sT0}, s{sT0}, 2\ns_bfe_u32 s{sT1}, s2, 0x20003\ns_add_u32 s{sHG}, s{sT0}, s{sT1}")
        a(f"s_bfe_u32 s{sT0}, s2, 0x20001\ns_lshl_b32 s{sT0}, s{sT0}, 3\ns_lshr_b32 s{sT1}, s2, 5\ns_add_u32 s{sRB}, s{sT0}, s{sT1}")
    a(f"s_and_b32 s{sJ}, s{sW}, 3")
    def rotation(reg, rot):
        if rot:
            a(f"s_mul_i32 s{reg}, s{sHG}, {rot[1]}\ns_mul_i32 s{sT0}, s{sRB}, {rot[0]}\ns_add_u32 s{reg}, s{reg}, s{sT0}")
            a(f"s_lshr_b32 s{sT0}, s{sHG}, 2\ns_mul_i32 s{sT0}, s{sT0}, {rot[2]}\ns_add_u32 s{reg}, s{reg}, s{sT0}")
    def late_setup():
        a(f"s_lshl_b32 s{sH}, s{sHG}, 2\ns_add_u32 s{sH}, s{sH}, s{sJ}")
        a(f"v_lshlrev_b32 v{vL16}, 4, v{vLANE}\nv_mov_b32 v{vCNT}, {L_BAD}\nv_mov_b32 v{vONE}, 1")
        rotation(sROTA, cfg.rotA)
    def xslow(reg, k):
        a(f"""
        s_lshr_b32 s{sT0}, s2, 3
        s_lshl_b32 s{sT0}, s{sT0}, 2
        s_add_u32 s{sT0}, s{sT0}, s{sJ}
        s_lshl_b32 s{sT0}, s{sT0}, 12
        s_bfe_u32 s{sT1}, s2, 0x20001
        s_lshl_b32 s{sT1}, s{sT1}, 19
        s_add_u32 s{sT0}, s{sT0}, s{sT1}
        s_add_u32 s{sT0}, s{sT0}, 384
        s_add_u32 s{reg}, s{k}, s{sT0}
        s_addc_u32 s{reg+1}, s{k+1}, 0
        """)
    def loader_addrs():
        a(f"s_lshl_b32 s{sM}, s{sJ}, 11")
        a(f"""
        v_lshrrev_b32 v{vT1}, 3, v{vLANE}
        v_and_b32 v{vT2}, 7, v{vLANE}
        s_lshl_b32 s{sT0}, s{sRB}, 6
        s_lshl_b32 s{sT1}, s{sJ}, 4
        s_add_u32 s{sT0}, s{sT0}, s{sT1}
        v_add_u32 v{vT}, s{sT0}, v{vT1}
        v_lshlrev_b32 v{vT}, 10, v{vT}
        v_lshrrev_b32 v{vX0}, 1, v{vT1}
        v_xor_b32 v{vX0}, v{vX0}, v{vT2}
        v_lshl_add_u32 v{vX0}, v{vX0}, 4, v{vT}
        v_add_u32 v{vX1}, 0x2000, v{vX0}
        v_xor_b32 v{vX1}, 64, v{vX1}
        v_add_u32 v{vT}, s{sT1}, v{vT1}
        v_mul_u32_u24 v{vT}, 0xc00, v{vT}
        s_lshl_b32 s{sT2}, s{sHG}, 7
        v_add_u32 v{vT}, s{sT2}, v{vT}
        v_bfe_u32 v{vT1}, v{vLANE}, 4, 1
        v_lshlrev_b32 v{vWq}, 1, v{vT1}
        v_xor_b32 v{vWq}, v{vWq}, v{vT2}
        v_xor_b32 v{vWk}, 4, v{vWq}
        """)
        if cfg.m16:
            a(f"v_lshl_add_u32 v{vWq}, v{vWq}, 4, v{vT}\nv_lshl_add_u32 v{vWk}, v{vWk}, 4, v{vT}")
        else:
            a(f"""
            v_lshlrev_b32 v{vWv}, 2, v{vT1}
            v_xor_b32 v{vWv}, v{vWv}, v{vT2}
            v_lshl_add_u32 v{vWq}, v{vWq}, 4, v{vT}
            v_lshl_add_u32 v{vWk}, v{vWk}, 4, v{vT}
            v_lshl_add_u32 v{vWv}, v{vWv}, 4, v{vT}
            v_add_u32 v{vWk}, 0x400, v{vWk}
            v_add_u32 v{vWv}, 0x800, v{vWv}
            """)
    def kernargs():
        a(f"s_mov_b32 s{rXB+2}, {2048*1024}\ns_mov_b32 s{rXB+3}, 0x00020000\ns_mov_b32 s{rWB+2}, {512*3072}\ns_mov_b32 s{rWB+3}, 0x00020000")
        a("s_waitcnt lgkmcnt(0)")
        if cfg.prof:
            a(f"v_writelane_b32 v255, s{sPROF}, 0\nv_writelane_b32 v255, s100, 16")
    def binit():
        if cfg.pref:
            assert cfg.mapping == "N"
            nw, nx = (48, 32) if cfg.pref == "xcd" else (12, 16)
            a(f"""
            s_lshr_b32 s{sT0}, s2, 3
            s_lshl_b32 s{sT1}, s{sT0}, 2
            s_add_u32 s{sT1}, s{sT1}, s{sJ}
            s_mul_i32 s{sT2}, s{sT1}, {nw}
            s_bfe_u32 s{sT3}, s2, 0x20001
            """)
            if cfg.pref != "xcd":
                a(f"s_mul_i32 s{sT0}, s{sT3}, 1536\ns_add_u32 s{sT2}, s{sT2}, s{sT0}")
            a(f"""
            v_min_u32 v{vT}, {nw-1}, v{vLANE}
            v_add_u32 v{vT}, s{sT2}, v{vT}
            v_lshrrev_b32 v{vT1}, 2, v{vT}
            v_and_b32 v{vT}, 3, v{vT}
            v_lshlrev_b32 v{vT}, 7, v{vT}
            v_lshl_add_u32 v{vPW}, v{vT1}, 10, v{vT}
            s_and_b32 s{sT2}, s2, 1
            s_lshl_b32 s{sT0}, s{sT2}, 9
            v_add_u32 v{vPW}, s{sT0}, v{vPW}
            s_mul_i32 s{sT1}, s{sT1}, {nx*128}
            s_lshl_b32 s{sT3}, s{sT3}, 19
            s_add_u32 s{sT1}, s{sT1}, s{sT3}
            """)
            if cfg.pref != "xcd":
                a(f"s_lshl_b32 s{sT2}, s{sT2}, 18\ns_add_u32 s{sT1}, s{sT1}, s{sT2}")
            a(f"""
            v_min_u32 v{vT}, {nx-1}, v{vLANE}
            v_lshl_add_u32 v{vPX}, v{vT}, 7, s{sT1}
            """)
        kernargs()
        if cfg.pref:
            a(f"buffer_load_dword v36, v{vPW}, {sr(rWB,4)}, 0 offen {cfg.pref_sc}\nbuffer_load_dword v37, v{vPX}, {sr(rXB,4)}, 0 offen {cfg.pref_sc}")
    if cfg.bnear:
        a(f"s_cmp_ge_u32 s{sW}, 4\ns_cbranch_scc1 L_roleA")
        binit()
        code_prefetch("B")
        a("s_branch L_roleB")
        a.label("L_roleA")
    else:
        a(f"s_cmp_lt_u32 s{sW}, 4\ns_cbranch_scc1 L_roleB")
    loader_addrs()
    rotation(sROT, cfg.rot)
    kernargs()

    def chunk_pieces(c):
        rx, rw = (rXB, rWB) if c < 8 else (rXA, rWA)
        cc = c % 8
        slot = (c % 4) * 32768
        if (cfg.rot if c < 8 else cfg.rotA):
            head = f"s_add_u32 s{sO0}, s{sROT if c < 8 else sROTA}, {cc}\ns_and_b32 s{sO0}, s{sO0}, 7\ns_mul_i32 s{sO1}, s{sO0}, {64*3072}\n"
            head += f"s_lshl_b32 s{sO0}, s{sO0}, 7\ns_add_u32 s{sO2}, s{sO1}, {8*3072}\n"
        else:
            head = f"s_mov_b32 s{sO0}, {128*cc}\ns_mov_b32 s{sO1}, {cc*64*3072}\ns_mov_b32 s{sO2}, {cc*64*3072+8*3072}\n"
        ld = []
        for par in range(2):
            ld.append(f"s_add_u32 m0, s{sM}, {slot + par*1024}\nbuffer_load_dwordx4 v{vX0+par}, {sr(rx,4)}, s{sO0} offen lds\n")
            for seg in range(3):
                if cfg.m16:
                    ld.append(f"s_add_u32 m0, s{sM}, {slot + 8192*(1+seg) + par*1024 - seg*1024}\nbuffer_load_dwordx4 v{vWq+par}, {sr(rw,4)}, s{sO1+par} offen offset:{seg*1024} lds\n")
                else:
                    ld.append(f"s_add_u32 m0, s{sM}, {slot + 8192*(1+seg) + par*1024}\nbuffer_load_dwordx4 v{vWq+seg}, {sr(rw,4)}, s{sO1+par} offen lds\n")
        ld[0] = head + ld[0]
        return ld
    def issue_chunk(c):
        for t in chunk_pieces(c): a(t)

    def compute_addrs(role):
        if cfg.m16:
            a(f"""
            v_and_b32 v{vT}, 15, v{vLANE}
            v_lshrrev_b32 v{vT1}, 4, v{vLANE}
            v_lshrrev_b32 v{vT2}, 1, v{vT}
            v_xor_b32 v{vT2}, v{vT2}, v{vT1}
            v_lshlrev_b32 v{vT2}, 4, v{vT2}
            v_lshl_add_u32 v{vXA}, v{vT}, 7, v{vT2}
            v_xor_b32 v{vXA+1}, 64, v{vXA}
            v_bfe_u32 v{vT}, v{vLANE}, 2, 2
            v_lshl_add_u32 v{vT}, v{vT1}, 3, v{vT}
            v_lshlrev_b32 v{vT}, 7, v{vT}
            v_and_b32 v{vT2}, 3, v{vLANE}
            v_lshl_add_u32 v{vT}, v{vT2}, 3, v{vT}
            v_bfe_u32 v{vT1}, v{vLANE}, 3, 2
            v_xor_b32 v{vT1}, s{sJ}, v{vT1}
            v_lshl_add_u32 v{vQK}, v{vT1}, 5, v{vT}
            v_add_u32 v{vQK}, 0x2000, v{vQK}
            """)
            return
        a(f"""
        v_and_b32 v{vT}, 31, v{vLANE}
        v_lshrrev_b32 v{vT1}, 5, v{vLANE}
        v_bfe_u32 v{vT2}, v{vLANE}, 1, 3
        v_xor_b32 v{vT2}, v{vT2}, v{vT1}
        v_lshlrev_b32 v{vT2}, 4, v{vT2}
        v_lshl_add_u32 v{vXA}, v{vT}, 7, v{vT2}
        v_xor_b32 v{vXA+1}, 32, v{vXA}
        v_xor_b32 v{vXA+2}, 64, v{vXA}
        v_xor_b32 v{vXA+3}, 0x60, v{vXA}
        v_bfe_u32 v{vT}, v{vLANE}, 2, 2
        v_lshl_add_u32 v{vT}, v{vT1}, 3, v{vT}
        v_lshlrev_b32 v{vT}, 7, v{vT}
        v_and_b32 v{vT1}, 3, v{vLANE}
        v_lshl_add_u32 v{vT}, v{vT1}, 3, v{vT}
        v_bfe_u32 v{vT1}, v{vLANE}, 4, 1
        v_bfe_u32 v{vT2}, v{vLANE}, 3, 1
        v_lshl_add_u32 v{vQK}, v{vT1}, 1, v{vT2}
        v_xor_b32 v{vQK}, s{sJ}, v{vQK}
        v_lshl_add_u32 v{vQK}, v{vQK}, 5, v{vT}
        v_lshl_add_u32 v{vQK}, v{vT1}, 13, v{vQK}
        v_add_u32 v{vQK}, 0x2000, v{vQK}
        v_lshlrev_b32 v{vT2}, 1, v{vT2}
        """)
        if role == "B" or cfg.a3:
            a(f"s_and_b32 s{sT0}, s{sJ}, 2\nv_add_u32 v{vT1}, s{sT0}, v{vT1}\nv_xor_b32 v{vV}, v{vT1}, v{vT2}")
        else:
            a(f"v_xor_b32 v{vV}, s{sJ}, v{vT2}")
        a(f"v_lshl_add_u32 v{vV}, v{vV}, 5, v{vT}\nv_add_u32 v{vV}, 0x6000, v{vV}")
        if role == "B" or cfg.a3:
            a(f"s_and_b32 s{sT0}, s{sJ}, 1\ns_lshl_b32 s{sT0}, s{sT0}, 12")
            for i in range(4):
                a(f"v_add_u32 v{vXA+i}, s{sT0}, v{vXA+i}\nv_xor_b32 v{vXB+i}, 0x1000, v{vXA+i}")

    def gemm16(role, pre_barrier, post_barrier):
        c0 = 0 if role == "B" else 8
        def m16(d, x, y, first):
            a(f"v_mfma_f32_16x16x32_bf16 {vr(d,4)}, {vr(x,4)}, {vr(y,4)}, {'0' if first else vr(d,4)}")
        def fr(buf):
            b = FR + 28 * buf
            return dict(x=b, q=b + 16, k=b + 20, v=b + 24)
        def reads(n, part):
            c, ks, f = c0 + n // 2, n % 2, fr(n % 2)
            so = (c % 2) * 32768
            nm, seg = (("k", 1), ("q", 0), ("v", 2))[part]
            a(f"ds_read_b64_tr_b16 {vr(f[nm],2)}, v{vQK} offset:{so + seg*8192 + ks*4096}")
            a(f"ds_read_b64_tr_b16 {vr(f[nm]+2,2)}, v{vQK} offset:{so + seg*8192 + ks*4096 + 512}")
            if part < 2:
                for T in (2 * part, 2 * part + 1):
                    a(f"ds_read_b128 {vr(f['x']+4*T,4)}, v{vXA+ks} offset:{so + T*2048}")
        pre_barrier(c0)
        a("s_barrier")
        for p in range(3): reads(0, p)
        post_barrier(c0)
        for n in range(16):
            c, ks, f = c0 + n // 2, n % 2, fr(n % 2)
            z = n == 0
            Q = lambda T: m16(ACC + 4 * T, f["q"], f["x"] + 4 * T, z)
            K = lambda T: m16(ACC + 16 + 4 * T, f["k"], f["x"] + 4 * T, z)
            V = lambda T: m16(ACC + 32 + 4 * T, f["x"] + 4 * T, f["v"], z)
            nx = (lambda p: reads(n + 1, p)) if n < 15 else (lambda p: None)
            w = (lambda k: a(f"s_waitcnt lgkmcnt({k})")) if ks == 0 else (lambda k: None)
            if ks == 1:
                a("s_waitcnt lgkmcnt(0)")
                allm = [lambda: K(0), lambda: K(1), lambda: Q(0), lambda: Q(1), lambda: K(2), lambda: K(3), lambda: Q(2), lambda: Q(3),
                        lambda: V(0), lambda: V(1), lambda: V(2), lambda: V(3)]
                if n == 15 and role == "A": arrive(4 * 16)
                for m_ in allm[:cfg.prebar]: m_()
                if n < 15:
                    pre_barrier(c + 1)
                    a("s_barrier")
                    post_barrier(c + 1)
                    if (c + 1) % 2 == 0:
                        for r in (vQK, vXA, vXA + 1):
                            a(f"v_xor_b32 v{r}, 0x10000, v{r}")
                rest = allm[cfg.prebar:]
                per = max(1, len(rest) // 4)
                for p in range(3):
                    nx(p)
                    for m_ in rest[:per]: m_()
                    rest = rest[per:]
                for m_ in rest: m_()
                continue
            w(6); K(0); K(1); nx(0)
            w(6); Q(0); Q(1); K(2); K(3); nx(1); Q(2); Q(3)
            w(8); V(0); V(1); nx(2); V(2); V(3)
    def swap16(r):
        a(f"v_permlane16_swap_b32 v{r}, v{r+2}\nv_permlane16_swap_b32 v{r+1}, v{r+3}")
    def gemm(role, pre_barrier, post_barrier, mid=lambda: None):
        if cfg.m16: return gemm16(role, pre_barrier, post_barrier)
        c0 = 0 if role == "B" else 8
        def fr(buf):
            b = FR + 16 * buf
            return dict(x0=b, x1=b + 4, qk=b + 8, v=b + 12)
        def reads(n, part):
            c, kk, f = c0 + n // 4, n % 4, fr(n % 2)
            so = (c % 2) * 32768
            if part == 0:
                a(f"ds_read_b64_tr_b16 {vr(f['qk'],2)}, v{vQK} offset:{so + kk*2048}")
                a(f"ds_read_b64_tr_b16 {vr(f['qk']+2,2)}, v{vQK} offset:{so + kk*2048 + 512}")
                a(f"ds_read_b128 {vr(f['x0'],4)}, v{vXA+kk} offset:{so}")
            else:
                if role == "B" or cfg.a3:
                    a(f"ds_read_b128 {vr(f['x1'],4)}, v{vXB+kk} offset:{so}")
                else:
                    a(f"ds_read_b128 {vr(f['x1'],4)}, v{vXA+kk} offset:{so + 4096}")
                a(f"ds_read_b64_tr_b16 {vr(f['v'],2)}, v{vV} offset:{so + kk*2048}")
                a(f"ds_read_b64_tr_b16 {vr(f['v']+2,2)}, v{vV} offset:{so + kk*2048 + 512}")
        def tgt(c): return 8 if (c == 9 and not cfg.hold8) else 4
        pre_barrier(c0)
        if role == "B" or cfg.coupled:
            a("s_barrier")
        else:
            arrive(4 * c0); await_cnt(4 * c0, tgt(c0))
        reads(0, 0); reads(0, 1)
        post_barrier(c0)
        for n in range(32):
            c, kk, f = c0 + n // 4, n % 4, fr(n % 2)
            cz = (lambda r: "0") if n == 0 else (lambda r: r)
            def toggle():
                if (c + 1) % 2 == 0 and n < 31:
                    for r in [vQK, vXA, vV, vXA + 1, vXA + 2, vXA + 3] + ([vXB + i for i in range(4)] if (role == "B" or cfg.a3) else []):
                        a(f"v_xor_b32 v{r}, 0x10000, v{r}")
            if kk == 3 and role == "A" and not cfg.coupled:
                a("s_waitcnt lgkmcnt(0)")
                pre_barrier(c + 1)
                arrive(4 * (c + 1))
                mfma(ACC, f["qk"], f["x0"], ACC)
                mfma(ACC + 16, f["qk"], f["x1"], ACC + 16)
                toggle()
                if n < 31:
                    await_cnt(4 * (c + 1), tgt(c + 1))
                    reads(n + 1, 0); reads(n + 1, 1)
                post_barrier(c + 1)
                mfma(ACC + 32, f["x0"], f["v"], ACC + 32)
                mid()
                mfma(ACC + 48, f["x1"], f["v"], ACC + 48)
                mid()
                continue
            if kk == 3:
                a("s_waitcnt lgkmcnt(0)")
                if n < 31:
                    pre_barrier(c + 1)
                    a("s_barrier")
                    post_barrier(c + 1)
                elif role == "A" and not cfg.a3:
                    arrive(4 * 16)
                elif not cfg.hold8 and not cfg.coupled:
                    arrive(4 * 9)
                toggle()
            else:
                a("s_waitcnt lgkmcnt(3)")
            mfma(ACC, f["qk"], f["x0"], cz(ACC))
            if n < 31: reads(n + 1, 0)
            if kk != 3: a("s_waitcnt lgkmcnt(3)")
            mfma(ACC + 16, f["qk"], f["x1"], cz(ACC + 16))
            if n < 31: reads(n + 1, 1)
            mfma(ACC + 32, f["x0"], f["v"], cz(ACC + 32))
            if role == "A" and not cfg.a3:
                mid()
                mfma(ACC + 48, f["x1"], f["v"], cz(ACC + 48))
                mid()

    vOFFK = 8
    def smf(d, va, p):
        a(f"v_smfmac_f32_32x32x32_bf16 {vr(d,16)}, {vr(va,4)}, {vr(p,8)}, v{vIDX}")
    def att_setup(first, ntiles):
        a(f"""
        s_mov_b32 s{sREDO}, 0
        s_lshl_b32 s{sT0}, s{sH}, 17
        v_add_u32 v{vOFFK}, s{sT0}, v{vL16}
        v_lshrrev_b32 v{vT}, 5, v{vLANE}
        v_and_b32 v{vT1}, 15, v{vLANE}
        v_lshlrev_b32 v{vT1}, 4, v{vT1}
        v_lshl_add_u32 v{vOFFV}, v{vT}, 8, v{vT1}
        v_add_u32 v{vOFFV}, s{sT0}, v{vOFFV}
        v_mov_b32 v{vIDX}, 0xdddd
        s_mov_b32 s{sVM}, 0xffff
        s_mov_b32 s{sVM+1}, 0xffff
        s_mov_b32 s{sNIT}, {ntiles}
        """)
        if cfg.kvrot:
            a(f"s_and_b32 s{sKV0}, s{sRB}, 7\ns_lshl_b32 s{sKV0}, s{sKV0}, 14\ns_add_u32 s{sKV0}, s{sKV0}, {first*2048}\ns_and_b32 s{sKV0}, s{sKV0}, 0x1ffff")
        else:
            a(f"s_mov_b32 s{sKV0}, {first*2048}")
    class Stream:
        def __init__(self, depth, ntiles, init=()):
            self.d, self.n, self.q = depth, ntiles, list(init)
        def ring(self, t):
            b = RING + 12 * (t % self.d)
            return b, b + 4, b + 8
        def push(self, tag, n=1):
            self.q.extend([tag] * n)
        def wait(self, tag):
            idx = [i for i, t in enumerate(self.q) if t == tag]
            if idx:
                a(f"s_waitcnt vmcnt({len(self.q) - 1 - idx[-1]})")
                self.q = self.q[idx[-1] + 1:]
        def kload(self, t, single=False):
            o = 0 if single else (t % 2) * 2048
            a(f"buffer_load_dwordx4 {vr(self.ring(t)[0],4)}, v{vOFFK}, {sr(rWS,4)}, s{sKV} offen offset:{o} sc1")
            self.push(("k", t))
        def vload(self, t, single=False):
            k, v0, v1 = self.ring(t)
            o = 0 if single else (t % 2) * 2048
            a(f"s_mov_b64 exec, {sr(sVM,2)}")
            a(f"buffer_load_dwordx4 {vr(v0,4)}, v{vOFFV}, {sr(rWS,4)}, s{sKV} offen offset:{o+1024} sc1")
            a(f"buffer_load_dwordx4 {vr(v1,4)}, v{vOFFV}, {sr(rWS,4)}, s{sKV} offen offset:{o+1536} sc1")
            a(f"s_mov_b64 exec, -1")
            if single or t % 2 == 1:
                a(f"s_add_u32 s{sKV}, s{sKV}, {2048 if single else 4096}\ns_and_b32 s{sKV}, s{sKV}, 0x1ffff")
            self.push(("kv", t), 2)
        def kvload(self, t, single=False):
            self.kload(t, single); self.vload(t, single)
        def setup(self, single=False):
            a(f"s_mov_b32 s{sKV}, s{sKV0}")
            a(f"v_and_b32 v{vT}, 27, v{vLANE}\nv_cmp_eq_u32 vcc, 16, v{vT}\nv_mov_b32 v{vT}, 0x3f803f80\nv_cndmask_b32 v{vT}, 0, v{vT}, vcc")
            for t in range(self.d):
                for i in range(4, 12):
                    a(f"v_mov_b32 v{RING+12*t+i}, v{vT}")
        def zero(self, single=False):
            for i in range(32):
                a(f"v_mov_b32 v{O+i}, 0")
            if single:
                for i in range(8):
                    a(f"v_mov_b32 v{S+16+8+i}, 0")
        def first(self, single=False):
            for t in range(self.d - 1): self.kvload(t, single)
            if cfg.split_ld and not single: self.kload(self.d - 1)
        def start(self, single=False):
            self.wait(("k", 0) if (cfg.split_ld and not single) else ("kv", 0))
            mfma(S, self.ring(0)[0], Qf, NM)
        def prologue(self, single=False):
            self.setup(single); self.first(single); self.zero(single); self.start(single)
        def tile(self, t, looped=False, extra=None):
            k, v0, v1 = self.ring(t)
            split = cfg.split_ld and not looped
            for qb in range(2):
                cur, oth = S + 16 * qb, S + 16 * (1 - qb)
                def ex(i): a(f"v_exp_f32 v{cur+i}, v{cur+i}")
                ex(0); ex(1)
                if qb == 0:
                    if looped or t > 0: smf(O + 16, self.ring(t - 1)[2], oth + 8)
                    ex(2)
                    if looped or t + self.d - 1 < self.n:
                        if split: self.vload(t + self.d - 1)
                        else: self.kvload(t + self.d - 1, looped)
                    ex(3); ex(4)
                    mfma(oth, k, Qf + 4, NM + 16)
                    ex(5)
                    if split and t + self.d < self.n: self.kload(t + self.d)
                    for i in range(6, 10): ex(i)
                    if split: self.wait(("k", t + 1) if (cfg.split_ld == 2 and t + 1 < self.n) else ("kv", t))
                else:
                    smf(O, v1, oth + 8)
                    ex(2); ex(3)
                    if looped: a(f"s_waitcnt vmcnt({3 * (self.d - 2)})")
                    elif t + 1 < self.n: self.wait(("k" if split else "kv", t + 1))
                    ex(4)
                    if looped or t + 1 < self.n: mfma(oth, self.ring(t + 1)[0], Qf, NM)
                    for i in range(5, 10): ex(i)
                smf(O + 16 * qb, v0, cur)
                ex(10)
                if extra and qb == 1: extra()
                for i in range(11, 16): ex(i)
        def run(self, jobs, prio):
            pr = dict(prio) if cfg.prio else {}
            for t in range(self.n):
                if t in pr: a(f"s_setprio {pr[t]}")
                if cfg.tprof: a(f"s_memtime s[98:99]\ns_waitcnt lgkmcnt(0)\nv_writelane_b32 v252, s98, {t}")
                self.tile(t, extra=(lambda: [f() for f in jobs.get(t, [])]))
            smf(O + 16, self.ring(self.n - 1)[2], S + 16 + 8)

    if cfg.prof: stamp(4)
    vq = []
    def issue(c):
        issue_chunk(c); vq.extend([c] * 8)
    def wait_for(tag):
        n = len(vq) - 1 - max(i for i, t in enumerate(vq) if t == tag)
        a(f"s_waitcnt vmcnt({n})")
    for c in range(cfg.nfirst):
        issue(c)
    late_setup()
    if cfg.gprio[0]: a(f"s_setprio {cfg.gprio[0]}")
    srd(rXA, kAX, 2048 * 1024)
    srd(rWA, kAW, 512 * 3072)
    srd(rWS, kWS, WS_SIZE)
    srd(rOUT, kOUT, 2048 * 2048)
    srd(rMISC, kAP, 32 * 512)
    WP, IDP = 248, 40
    vMASK = 252
    def gather():
        a(f"""
        v_lshrrev_b32 v{vT}, 5, v{vLANE}
        v_and_b32 v{vT1}, 15, v{vLANE}
        v_lshlrev_b32 v{vT1}, 1, v{vT1}
        v_lshl_add_u32 v{vT}, v{vT}, {8 if cfg.m16 else 7}, v{vT1}
        s_lshl_b32 s{sT0}, s{sH}, 9
        """)
        for jj in range(8):
            a(f"buffer_load_ushort v{48+jj}, v{vT}, {sr(rMISC,4)}, s{sT0} offen offset:{(jj if cfg.m16 else 8*(jj>>2)+(jj&3))*32}")
        vq.extend(["g"] * 8)
    if cfg.gat_at < 0: gather()
    compute_addrs("A")
    a(f"""
    v_bfe_u32 v{vT}, v{vLANE}, 2, 1
    v_lshrrev_b32 v{vT1}, 5, v{vLANE}
    v_xor_b32 v{vT}, v{vT}, v{vT1}
    v_lshlrev_b32 v{vT}, 3, v{vT}
    v_bfe_u32 v{vT1}, v{vLANE}, 3, 2
    v_lshl_add_u32 v{vT}, v{vT1}, 1, v{vT}
    v_bfe_u32 v{vT1}, v{vLANE}, 1, 1
    v_add_u32 v{vT}, v{vT}, v{vT1}
    v_and_b32 v{vT1}, 1, v{vLANE}
    v_lshlrev_b32 v{vT1}, 4, v{vT1}
    v_mov_b32 v{vT2}, 0x3f80
    v_lshlrev_b32 v{vT1}, v{vT1}, v{vT2}
    """)
    for q in range(8):
        a(f"v_cmp_eq_u32 vcc, {q}, v{vT}\nv_cndmask_b32 v{IDP+q}, 0, v{vT1}, vcc")
    a(f"v_bfe_u32 v{vT}, v{vLANE}, 4, 1\nv_add_u32 v{vMASK}, -1, v{vT}")
    def spf_setup():
        assert cfg.mapping == "N"
        a(f"""
        s_lshr_b32 s{sT0}, s2, 3
        s_lshl_b32 s{sT0}, s{sT0}, 2
        s_add_u32 s{sT0}, s{sT0}, s{sJ}
        s_bfe_u32 s{sT1}, s2, 0x20001
        s_and_b32 s{sT2}, s2, 1
        s_mul_i32 s84, s{sT1}, {384*1024}
        s_mul_i32 s85, s{sT0}, 3072
        s_add_u32 s84, s84, s85
        s_lshl_b32 s85, s{sT2}, 9
        s_add_u32 s84, s84, s85
        s_add_u32 s84, s{kAW}, s84
        s_addc_u32 s85, s{kAW+1}, 0
        s_lshl_b32 s86, s{sT1}, 19
        s_lshl_b32 s87, s{sT2}, 18
        s_add_u32 s86, s86, s87
        s_lshl_b32 s87, s{sT0}, 11
        s_add_u32 s86, s86, s87
        s_add_u32 s86, s{kAX}, s86
        s_addc_u32 s87, s{kAX+1}, 0
        """)
        spf = [f"s_load_dword s88, s[84:85], {b*1024 + i*64}" for b in range(3) for i in range(8)]
        spf += [f"s_load_dword s88, s[86:87], {i*64}" for i in range(32)]
        return spf
    spf = spf_setup() if cfg.spref else []
    if cfg.sslowA:
        a(f"""
        s_lshr_b32 s{sT0}, s2, 3
        s_lshl_b32 s{sT0}, s{sT0}, 2
        s_add_u32 s{sT0}, s{sT0}, s{sJ}
        s_mul_i32 s{sT0}, s{sT0}, {12*1024}
        s_and_b32 s{sT1}, s2, 1
        s_lshl_b32 s{sT1}, s{sT1}, 9
        s_add_u32 s{sT0}, s{sT0}, s{sT1}
        s_add_u32 s{sT0}, s{sT0}, 384
        s_add_u32 s86, s{kAW}, s{sT0}
        s_addc_u32 s87, s{kAW+1}, 0
        """)
        spf = [f"s_load_dword s{88+h}, s[86:87], {i*1024+64*h}" for i in range(12) for h in range(2)]
        if cfg.sslowAx:
            xslow(84, kAX)
            spf += [f"s_load_dword s{88+h}, s[84:85], {i*1024+64*h}" for i in range(4) for h in range(2)]
        cfg.spref = cfg.sslowA
    for c in range(cfg.nfirst, cfg.ninit):
        issue(c)
    if cfg.prof: stamp(5)
    nxt = cfg.ninit
    lastA = cfg.lastA if cfg.coupled else (7 if cfg.hold8 else (8 if cfg.hold9 else 9))
    for c in range(8):
        wait_for(c)
        a("s_barrier")
        while nxt <= min(c + cfg.look, lastA):
            issue(nxt); nxt += 1
        if spf and c >= cfg.spref[0]:
            for t in spf[:cfg.spref[1]]: a(t)
            spf = spf[cfg.spref[1]:]
        if c == cfg.gat_at: gather()
        if c == 7:
            if cfg.gat_at >= 0: wait_for("g")
            a(f"v_bfe_u32 v{vT}, v{vLANE}, 4, 1\nv_lshlrev_b32 v{vT1}, 15, v{vT}\nv_lshl_or_b32 v{vT}, v{vT}, 31, v{vT1}")
            for q in range(4):
                a(f"v_lshl_or_b32 v{WP+q}, v{49+2*q}, 16, v{48+2*q}\nv_xor_b32 v{WP+q}, v{WP+q}, v{vT}")
    nxtA = [nxt]
    pend = []
    def preA(c):
        while pend and pend[0][0] <= c: midA()
        if c <= (lastA if cfg.coupled else 15): wait_for(c)
    def postA(c):
        while not cfg.coupled and nxtA[0] <= min(c + cfg.look, 15):
            pend.extend((nxtA[0], t) for t in chunk_pieces(nxtA[0])); nxtA[0] += 1
    def midA():
        for _ in range(2 if len(set(c for c, t in pend)) > 1 else 1):
            if pend:
                c, t = pend.pop(0)
                a(t); vq.append(c)
    if cfg.hold8 and not cfg.coupled:
        await_cnt(C_WO, 4)
        for c in range(8, 8 + cfg.hold8):
            issue(c)
        nxtA[0] = 8 + cfg.hold8
    assert not spf
    a("s_waitcnt lgkmcnt(0)")
    if cfg.prio: a(f"s_setprio {cfg.gprio[1]}")
    stamp(1)
    gemm("A", preA, postA, midA)
    stamp(2)
    if cfg.prio and cfg.gprio[1] != 3: a("s_setprio 3")
    assert cfg.coupled and cfg.kvB < 15
    srd(rMISC, kAO, 512 * 1024)
    srd(rXB, kBO, 512 * 1024)
    if cfg.wopref:
        a(f"""
        s_and_b32 s{sT0}, s{sRB}, 7
        s_lshl_b32 s{sT0}, s{sT0}, 2
        s_add_u32 s{sT0}, s{sT0}, s{sJ}
        s_lshl_b32 s{sT0}, s{sT0}, 14
        s_lshl_b32 s{sT1}, s{sHG}, 7
        s_add_u32 s{sT0}, s{sT0}, s{sT1}
        v_lshlrev_b32 v3, 10, v{vLANE}
        s_mov_b64 exec, 0xffff
        buffer_load_dword v4, v3, {sr(rMISC,4)}, s{sT0} offen
        buffer_load_dword v5, v3, {sr(rXB,4)}, s{sT0} offen
        s_mov_b64 exec, -1
        """)
    X = [48, 64, 80, 96]
    KF, QF2, VP, PK, TT, PT, TM = 112, 120, 128, 144, 152, 168, 176
    L2E = math.log2(math.e)
    a(f"s_mov_b32 s{sC}, {f2u(L2E)}\ns_mov_b32 s{sC+1}, {f2u(L2E)}\ns_mov_b32 s{sT3}, 0x3f803f80")
    for ri in range(2):
        cvt(KF + 4 * ri, (ACC + 16 + 8 * ri) if cfg.m16 else (ACC + 16 * ri + 8), 4)
    if cfg.m16: swap16(KF); swap16(KF + 4)
    for ri in range(2):
        mfma(X[ri], WP, KF + 4 * ri, "0")
    for ri in range(2):
        cvt(QF2 + 4 * ri, (ACC + 8 * ri) if cfg.m16 else (ACC + 16 * ri), 4)
    if cfg.m16: swap16(QF2); swap16(QF2 + 4)
    for ri in range(2):
        mfma(X[2 + ri], WP, QF2 + 4 * ri, "0")
    if cfg.a3:
        cvt(VP, ACC + 32, 8)
        a(f"""
        s_lshl_b32 s{sT0}, s{sJ}, 11
        s_add_u32 s{sT0}, s{sT0}, {L_XV}
        v_add_u32 v{vT}, s{sT0}, v{vL16}
        ds_write_b128 v{vT}, {vr(VP,4)}
        ds_write_b128 v{vT}, {vr(VP+4,4)} offset:1024
        s_and_b32 s{sT1}, s{sJ}, 1
        s_lshl_b32 s{sT1}, s{sT1}, 8
        s_add_u32 s{sT0}, s{sT0}, s{sT1}
        v_and_b32 v{vT}, 0x2f, v{vLANE}
        v_lshl_add_u32 v9, v{vT}, 4, s{sT0}
        v_xor_b32 v10, 0x800, v9
        s_waitcnt lgkmcnt(0)
        """)
        assert L_XV % 4096 == 0
        arrive(4 * 16)
    elif cfg.m16:
        for T in range(4):
            cvt(VP + 4 * T, ACC + 32 + 4 * T, 2)
            a(f"v_mov_b32 v{VP+4*T+2}, s{sT3}\nv_mov_b32 v{VP+4*T+3}, s{sT3}")
        for T in range(4): swap16(VP + 4 * T)
        for T in range(4):
            a(f"v_permlane32_swap_b32 v{VP+4*T}, v{VP+4*T+2}\nv_permlane32_swap_b32 v{VP+4*T+1}, v{VP+4*T+3}")
    else:
        for ri in range(2):
            cvt(VP + 8 * ri, ACC + 32 + 16 * ri, 8)
            for i in range(8):
                a(f"v_bfi_b32 v{VP+8*ri+i}, v{vMASK}, v{VP+8*ri+i}, s{sT3}")
    def getv():
        if not cfg.a3: return
        await_cnt(4 * 16, 4)
        for aa in range(2):
            a(f"ds_read_b128 {vr(VP+8*aa,4)}, v{9+aa}\nds_read_b128 {vr(VP+8*aa+4,4)}, v{9+aa} offset:1024")
    def fixv():
        if not cfg.a3: return
        a("s_waitcnt lgkmcnt(0)")
        for i in range(16):
            a(f"v_bfi_b32 v{VP+i}, v{vMASK}, v{VP+i}, s{sT3}")
    def softmax2(x, dst):
        t, u = TM, TM + 1
        for base, r in ((x, t), (x + 8, u)):
            a(f"v_max3_f32 v{r}, v{base}, v{base+1}, v{base+2}\nv_max3_f32 v{r}, v{r}, v{base+3}, v{base+4}")
            a(f"v_max3_f32 v{r}, v{r}, v{base+5}, v{base+6}\nv_max_f32 v{r}, v{r}, v{base+7}")
        a(f"v_permlane32_swap_b32 v{t}, v{u}\nv_max_f32 v{t}, v{t}, v{u}")
        a(f"v_mul_f32 v{t}, {f2u(-L2E)}, v{t}\nv_mov_b32 v{u}, v{t}\nv_permlane32_swap_b32 v{t}, v{u}")
        for i in range(8):
            sel = "op_sel:[0,0,0] op_sel_hi:[1,1,0]" if i < 4 else "op_sel:[0,0,1] op_sel_hi:[1,1,1]"
            a(f"v_pk_fma_f32 {vr(x+2*i,2)}, {vr(x+2*i,2)}, {sr(sC,2)}, {vr(t,2)} {sel}")
        for i in range(16):
            a(f"v_exp_f32 v{x+i}, v{x+i}")
        p, q = TM + 2, TM + 4
        a(f"v_pk_add_f32 {vr(p,2)}, {vr(x,2)}, {vr(x+2,2)}\nv_pk_add_f32 {vr(q,2)}, {vr(x+8,2)}, {vr(x+10,2)}")
        a(f"v_pk_add_f32 {vr(p,2)}, {vr(p,2)}, {vr(x+4,2)}\nv_pk_add_f32 {vr(q,2)}, {vr(q,2)}, {vr(x+12,2)}")
        a(f"v_pk_add_f32 {vr(p,2)}, {vr(p,2)}, {vr(x+6,2)}\nv_pk_add_f32 {vr(q,2)}, {vr(q,2)}, {vr(x+14,2)}")
        a(f"v_add_f32 v{t}, v{p}, v{p+1}\nv_add_f32 v{u}, v{q}, v{q+1}")
        a(f"v_permlane32_swap_b32 v{t}, v{u}\nv_add_f32 v{t}, v{t}, v{u}\nv_rcp_f32 v{t}, v{t}")
        a(f"v_mov_b32 v{u}, v{t}\nv_permlane32_swap_b32 v{t}, v{u}")
        for i in range(8):
            sel = "op_sel:[0,0] op_sel_hi:[1,0]" if i < 4 else "op_sel:[0,1] op_sel_hi:[1,1]"
            a(f"v_pk_mul_f32 {vr(x+2*i,2)}, {vr(x+2*i,2)}, {vr(t,2)} {sel}")
        cvt(dst, x, 8)
    KVA = ACC
    softmax2(X[0], PK)
    mfma(TT, PK, IDP, "0")
    mfma(TT, PK + 4, IDP + 4, TT)
    getv()
    softmax2(X[1], PK)
    fixv()
    cvt(PT, TT, 8)
    mfma(TT, PK, IDP, "0")
    mfma(TT, PK + 4, IDP + 4, TT)
    mfma(KVA, PT, VP, "0")
    mfma(KVA, PT + 4, VP + 4, KVA)
    softmax2(X[2], PHI)
    cvt(PT, TT, 8)
    mfma(KVA, PT, VP + 8, KVA)
    mfma(KVA, PT + 4, VP + 12, KVA)
    a(f"""
    v_lshrrev_b32 v{vT}, 5, v{vLANE}
    v_mul_u32_u24 v{vT}, {32*384}, v{vT}
    v_and_b32 v{vT1}, 31, v{vLANE}
    v_lshl_add_u32 v{vT}, v{vT1}, 4, v{vT}
    s_mul_i32 s{sT0}, s{sH}, {8*32*384}
    s_mul_i32 s{sT1}, s{sRB}, 384
    s_add_u32 s{sT0}, s{sT0}, s{sT1}
    s_add_u32 s{sT0}, s{sT0}, {WS_P}
    s_mov_b32 exec_lo, 0x1ffff
    s_mov_b32 exec_hi, 0x1ffff
    """)
    for r4 in range(4):
        a(f"buffer_store_dwordx4 {vr(KVA+4*r4,4)}, v{vT}, {sr(rWS,4)}, s{sT0} offen sc1")
        if r4 < 3: a(f"s_add_u32 s{sT0}, s{sT0}, {2*32*384}")
    a("s_mov_b64 exec, -1")
    softmax2(X[3], PHI + 8)
    a(f"""
    s_lshl_b32 s{sT0}, s{sJ}, 11
    s_add_u32 s{sT0}, s{sT0}, {L_X}
    v_add_u32 v{vT}, s{sT0}, v{vL16}
    ds_read_b128 {vr(Qf,4)}, v{vT}
    ds_read_b128 {vr(Qf+4,4)}, v{vT} offset:1024
    s_lshl_b32 s{sT0}, s{sJ}, 9
    s_add_u32 s{sT0}, s{sT0}, {L_XM}
    v_lshl_add_u32 v{vT}, v{vLANE}, 3, s{sT0}
    ds_read_b64 {vr(TM,2)}, v{vT}
    s_waitcnt vmcnt(4)
    """)
    if cfg.a3: a("s_waitcnt lgkmcnt(0)")
    else: await_cnt(4 * 16, 4)
    nmfill(TM)
    stamp(3)
    a("s_branch L_attA")

    a.label("L_roleB")
    if not cfg.bnear:
        code_prefetch("B")
        binit()
    late_setup()
    loader_addrs()
    srd(rXA, kAX, 2048 * 1024)
    srd(rWA, kAW, 512 * 3072)
    srd(rWS, kWS, WS_SIZE)
    srd(rOUT, kOUT, 2048 * 2048)
    srd(rDBG, kDBG, 256)
    if cfg.pref and cfg.prefA[0] < 0:
        a(f"buffer_load_dword v38, v{vPW}, {sr(rWA,4)}, 0 offen {cfg.pref_sc}")
        a(f"buffer_load_dword v36, v{vPX}, {sr(rXA,4)}, 0 offen {cfg.pref_sc}")
    if cfg.slowpref:
        a(f"""
        s_lshr_b32 s{sT0}, s2, 3
        s_lshl_b32 s{sT0}, s{sT0}, 2
        s_add_u32 s{sT0}, s{sT0}, s{sJ}
        s_mul_i32 s{sT1}, s{sT0}, {12*1024}
        s_and_b32 s{sT2}, s2, 1
        s_lshl_b32 s{sT2}, s{sT2}, 9
        s_add_u32 s{sT1}, s{sT1}, s{sT2}
        s_add_u32 s{sT1}, s{sT1}, 384
        v_lshlrev_b32 v{vT}, 10, v{vLANE}
        s_lshl_b32 s{sT0}, s{sT0}, 12
        s_bfe_u32 s{sT2}, s2, 0x20001
        s_lshl_b32 s{sT2}, s{sT2}, 19
        s_add_u32 s{sT0}, s{sT0}, s{sT2}
        s_add_u32 s{sT0}, s{sT0}, 384
        s_mov_b64 exec, 0xfff
        """)
        if "b" in cfg.slowpref: a(f"buffer_load_dword v36, v{vT}, {sr(rWB,4)}, s{sT1} offen")
        if "a" in cfg.slowpref: a(f"buffer_load_dword v38, v{vT}, {sr(rWA,4)}, s{sT1} offen")
        a("s_mov_b64 exec, 15")
        if "x" in cfg.slowpref:
            if "b" in cfg.slowpref: a(f"buffer_load_dword v37, v{vT}, {sr(rXB,4)}, s{sT0} offen")
            if "a" in cfg.slowpref: a(f"buffer_load_dword v36, v{vT}, {sr(rXA,4)}, s{sT0} offen")
        a("s_mov_b64 exec, -1")
    if cfg.sslow:
        l = lab("noss")
        a(f"""
        s_bitcmp1_b32 s2, 0
        s_cbranch_scc1 {l}
        s_lshr_b32 s{sT0}, s2, 3
        s_lshl_b32 s{sT0}, s{sT0}, 2
        s_add_u32 s{sT0}, s{sT0}, s{sJ}
        s_mul_i32 s{sT0}, s{sT0}, {12*1024}
        s_add_u32 s{sT0}, s{sT0}, 384
        s_add_u32 s84, s{kBW}, s{sT0}
        s_addc_u32 s85, s{kBW+1}, 0
        s_add_u32 s86, s{kAW}, s{sT0}
        s_addc_u32 s87, s{kAW+1}, 0
        """)
        for ch, reg in (("b", 84), ("a", 86)):
            if ch in cfg.sslow:
                for i in range(12):
                    a(f"s_load_dword s88, s[{reg}:{reg+1}], {i*1024}\ns_load_dword s89, s[{reg}:{reg+1}], {i*1024+64}")
        a.label(l)
        if "x" in cfg.sslow:
            xslow(84, kBX)
            for i in range(4):
                a(f"s_load_dword s88, s[84:85], {i*1024}\ns_load_dword s89, s[84:85], {i*1024+64}")
    if cfg.sprefB:
        for t in spf_setup()[:cfg.sprefB]: a(t)
    compute_addrs("B")
    a(f"s_cmp_lt_u32 s2, 8\ns_cselect_b32 s{sREDO}, s{sW}, 0")
    a(f"s_cmp_lg_u32 s{sREDO}, 1\ns_cbranch_scc1 L_noreset")
    a(f"v_mov_b32 v16, 0\nv_mov_b32 v17, 0\nv_mov_b32 v18, 0\nv_mov_b32 v19, 0")
    assert cfg.nrep == 8
    nres = -(-(FL_OB + 1024 * cfg.hs - WS_FL) // 8192)
    a(f"s_mul_i32 s{sT1}, s2, {nres*1024}\ns_add_u32 s{sT1}, s{sT1}, {WS_FL}")
    for i in range(nres):
        a(f"buffer_store_dwordx4 v[16:19], v{vL16}, {sr(rWS,4)}, s{sT1} offen offset:{(i%4)*1024} sc1")
        if i % 4 == 3: a(f"s_add_u32 s{sT1}, s{sT1}, 4096")
    a.label("L_noreset")
    a(f"v_lshl_add_u32 v{vT}, v{vLANE}, 2, v{vCNT}\nv_mov_b32 v{vT1}, 0\nds_write_b32 v{vT}, v{vT1}")
    vKST, vVST = 28, 29
    if cfg.m16:
        a(f"""
        v_and_b32 v{vKST}, 0x23, v{vLANE}
        v_bfe_u32 v{vT}, v{vLANE}, 2, 2
        v_lshl_or_b32 v{vKST}, v{vT}, 3, v{vKST}
        v_bfe_u32 v{vT}, v{vLANE}, 4, 1
        v_lshl_or_b32 v{vKST}, v{vT}, 2, v{vKST}
        v_lshlrev_b32 v{vKST}, 4, v{vKST}
        s_waitcnt lgkmcnt(0)
        """)
    else: a(f"""
    v_and_b32 v{vKST}, 0x33, v{vLANE}
    v_and_b32 v{vT}, 4, v{vLANE}
    v_lshl_or_b32 v{vKST}, v{vT}, 1, v{vKST}
    v_bfe_u32 v{vT}, v{vLANE}, 3, 1
    v_lshl_or_b32 v{vKST}, v{vT}, 2, v{vKST}
    v_lshlrev_b32 v{vKST}, 4, v{vKST}
    v_bfe_u32 v{vT}, v{vLANE}, 4, 1
    v_lshlrev_b32 v{vVST}, 17, v{vT}
    v_lshrrev_b32 v{vT}, 5, v{vLANE}
    v_lshl_add_u32 v{vVST}, v{vT}, 8, v{vVST}
    v_and_b32 v{vT}, 15, v{vLANE}
    v_lshl_add_u32 v{vVST}, v{vT}, 4, v{vVST}
    s_waitcnt lgkmcnt(0)
    """)
    def bst(c):
        if cfg.tprof: a(f"s_memtime s[98:99]\ns_waitcnt lgkmcnt(0)\nv_writelane_b32 v252, s98, {48+c}")
    def postB(c):
        if c > 0: bst(c)
        if c == 5:
            l = lab("nogate")
            a(f"s_cmp_lg_u32 s{sREDO}, 1\ns_cbranch_scc1 {l}")
            a(f"s_lshl_b32 s{sT0}, s2, 2\nv_mov_b32 v{vT}, s{sT0}\ns_waitcnt vmcnt(0)")
            flag(vT, "1", srdr=rDBG)
            a.label(l)
        if cfg.l2A and cfg.l2A[0] <= c < cfg.l2A[0] + cfg.l2A[1]:
            nb, b = cfg.l2A[1], c - cfg.l2A[0]
            nw, nx = 48 // nb, 32 // nb
            if b == 0:
                a(f"""
                s_lshr_b32 s{sT0}, s2, 3
                s_lshl_b32 s{sT0}, s{sT0}, 2
                s_add_u32 s{sT0}, s{sT0}, s{sJ}
                s_mul_i32 s84, s{sT0}, {12*1024}
                s_and_b32 s{sT1}, s2, 1
                s_lshl_b32 s{sT1}, s{sT1}, 9
                s_add_u32 s84, s84, s{sT1}
                s_lshl_b32 s85, s{sT0}, 12
                s_bfe_u32 s{sT1}, s2, 0x20001
                s_lshl_b32 s{sT1}, s{sT1}, 19
                s_add_u32 s85, s85, s{sT1}
                v_lshrrev_b32 v{vPW}, 2, v{vLANE}
                v_lshlrev_b32 v{vPW}, 10, v{vPW}
                v_and_b32 v{vPX}, 3, v{vLANE}
                v_lshl_add_u32 v{vPW}, v{vPX}, 7, v{vPW}
                v_lshlrev_b32 v{vPX}, 7, v{vLANE}
                """)
            a(f"""
            s_mov_b32 exec_hi, {((1 << nw) - 1) >> 32}
            s_mov_b32 exec_lo, {((1 << nw) - 1) & 0xffffffff}
            buffer_load_dword v38, v{vPW}, {sr(rWA,4)}, s84 offen
            s_mov_b32 exec_hi, 0
            s_mov_b32 exec_lo, {(1 << nx) - 1}
            buffer_load_dword v36, v{vPX}, {sr(rXA,4)}, s85 offen
            s_mov_b64 exec, -1
            s_add_u32 s84, s84, {nw // 4 * 1024}
            s_add_u32 s85, s85, {nx * 128}
            """)
        if c == 0: stamp(1)
        if cfg.pref and c == cfg.prefA[0]:
            a(f"buffer_load_dword v38, v{vPW}, {sr(rWA,4)}, 0 offen {cfg.pref_sc}")
        if cfg.pref and c == cfg.prefA[1]:
            a(f"buffer_load_dword v36, v{vPX}, {sr(rXA,4)}, 0 offen {cfg.pref_sc}")
    gemm("B", lambda c: None, postB)
    stamp(2)
    KOWN, VPK = 232, 240
    if cfg.gprio[2]: a(f"s_setprio {cfg.gprio[2]}")
    vG, vGA = 30, 31
    a(f"v_lshlrev_b32 v{vGA}, 2, v{vLANE}\ns_mov_b64 exec, 0xff\nbuffer_load_dword v{vG}, v{vGA}, {sr(rDBG,4)}, 0 offen sc1\ns_mov_b64 exec, -1")
    if cfg.m16:
        a(f"s_lshl_b32 s{sT0}, s{sRB}, 12\ns_lshl_b32 s{sT1}, s{sH}, 17\ns_add_u32 s{sT1}, s{sT1}, s{sT0}")
        for ri in range(2):
            cvt(KOWN + 4 * ri, ACC + 16 + 8 * ri, 4)
            cvt(VPK + 4 * ri, ACC + 32 + 8 * ri, 4)
            swap16(KOWN + 4 * ri)
            a(f"buffer_store_dwordx4 {vr(VPK+4*ri,4)}, v{vL16}, {sr(rWS,4)}, s{sT1} offen offset:{ri*2048+1024} sc1")
            a(f"buffer_store_dwordx4 {vr(KOWN+4*ri,4)}, v{vKST}, {sr(rWS,4)}, s{sT1} offen offset:{ri*2048} sc1")
    else:
        a(f"""
        s_and_b32 s{sT2}, s{sJ}, 1
        s_lshl_b32 s{sT0}, s{sRB}, 1
        s_add_u32 s{sT0}, s{sT0}, s{sT2}
        s_lshl_b32 s{sT0}, s{sT0}, 11
        s_lshl_b32 s{sT1}, s{sH}, 17
        s_add_u32 s{sT1}, s{sT1}, s{sT0}
        s_xor_b32 s{sT2}, s{sT1}, 0x800
        s_and_b32 s{sT3}, s{sH}, -2
        s_lshl_b32 s{sT3}, s{sT3}, 17
        s_add_u32 s{sT3}, s{sT3}, s{sT0}
        """)
        assert WS_KV == 0
        cvt(KOWN, ACC + 8, 4)
        a(f"buffer_store_dwordx4 {vr(KOWN,4)}, v{vKST}, {sr(rWS,4)}, s{sT1} offen sc1")
        cvt(KOWN + 4, ACC + 16 + 8, 4)
        a(f"buffer_store_dwordx4 {vr(KOWN+4,4)}, v{vKST}, {sr(rWS,4)}, s{sT2} offen sc1")
        cvt(VPK, ACC + 32, 4)
        a(f"buffer_store_dwordx4 {vr(VPK,4)}, v{vVST}, {sr(rWS,4)}, s{sT3} offen offset:1024 sc1")
        cvt(VPK + 4, ACC + 40, 4)
        a(f"buffer_store_dwordx4 {vr(VPK+4,4)}, v{vVST}, {sr(rWS,4)}, s{sT3} offen offset:1536 sc1")
    vq[:] = ["st"] * 4
    nxtB = [lastA + 1]
    def barB(c):
        if c > lastA: wait_for(c)
        a("s_barrier")
        bst(c)
    def loadB(c):
        while nxtB[0] <= min(c + cfg.look, 15):
            issue(nxtB[0]); nxtB[0] += 1
    def flagKV():
        stamp(3)
        l = lab("noflag")
        a(f"s_cmp_lg_u32 s{sW}, 0\ns_cbranch_scc1 {l}")
        poll(vGA, vG, 0xff, srdr=rDBG, first_issued=True)
        a(f"""
        s_mul_i32 s{sT0}, s{sHG}, {128*cfg.nrep}
        s_lshl_b32 s{sT1}, s{sRB}, 2
        s_add_u32 s{sT0}, s{sT0}, s{sT1}
        s_add_u32 s{sT0}, s{sT0}, {FL_KV}
        v_lshl_add_u32 v{vT}, v{vLANE}, 7, s{sT0}
        """)
        flag(vT, str((1 << cfg.nrep) - 1))
        a.label(l)
    assert cfg.coupled
    if cfg.flag_at == 9:
        if cfg.pre9: loadB(7 + cfg.pre9 - 1)
        barB(8); loadB(8)
    qs = 0.25 * math.log2(math.e)
    a(f"s_mov_b32 s{sC}, {f2u(qs)}\ns_mov_b32 s{sC+1}, {f2u(qs)}")
    for qb in range(2):
        qa = ACC + (8 if cfg.m16 else 16) * qb
        for i in range(4):
            a(f"v_pk_mul_f32 {vr(qa+2*i,2)}, {vr(qa+2*i,2)}, {sr(sC,2)}")
        cvt(Qf + 4 * qb, qa, 4)
        if cfg.m16: swap16(Qf + 4 * qb)
    a(f"""
    s_lshl_b32 s{sT0}, s{sJ}, 11
    s_add_u32 s{sT0}, s{sT0}, {L_X}
    v_add_u32 v{vT}, s{sT0}, v{vL16}
    ds_write_b128 v{vT}, {vr(Qf,4)}
    ds_write_b128 v{vT}, {vr(Qf+4,4)} offset:1024
    """)
    for qb in range(2):
        mfma(72 + 32 * qb, KOWN, Qf + 4 * qb, "0")
        mfma(88 + 32 * qb, KOWN + 4, Qf + 4 * qb, "0")
    TMB = 32
    def maxtree(dst, base, n, init=None):
        i = 0
        if init is None:
            a(f"v_max3_f32 v{dst}, v{base}, v{base+1}, v{base+2}"); i = 3
        while i + 1 < n:
            a(f"v_max3_f32 v{dst}, v{dst}, v{base+i}, v{base+i+1}"); i += 2
        if i < n:
            a(f"v_max_f32 v{dst}, v{dst}, v{base+i}")
    maxtree(TMB, 72, 32)
    maxtree(TMB + 1, 104, 32)
    def crossmax(t):
        a(f"v_permlane32_swap_b32 v{t}, v{t+1}\nv_max_f32 v{t}, v{t}, v{t+1}")
    crossmax(TMB)
    a(f"v_sub_f32 v{TMB}, {f2u(-cfg.bias)}, v{TMB}\nv_mov_b32 v{TMB+1}, v{TMB}\nv_permlane32_swap_b32 v{TMB}, v{TMB+1}")
    a(f"""
    s_lshl_b32 s{sT0}, s{sJ}, 9
    s_add_u32 s{sT0}, s{sT0}, {L_XM}
    v_lshl_add_u32 v{vT}, v{vLANE}, 3, s{sT0}
    ds_write_b64 v{vT}, {vr(TMB,2)}
    """)
    def flagKV2():
        a(f"""
        s_mul_i32 s{sT0}, s{sHG}, {128*cfg.nrep}
        s_lshl_b32 s{sT1}, s{sRB}, 2
        s_add_u32 s{sT1}, s{sT0}, s{sT1}
        s_add_u32 s{sT1}, s{sT1}, {FL_KV}
        v_lshl_add_u32 v{vT}, v{vLANE}, 7, s{sT1}
        s_and_b32 s{sT1}, s{sRB}, {cfg.nrep-1}
        s_lshl_b32 s{sT1}, s{sT1}, 7
        s_add_u32 s{sT0}, s{sT0}, s{sT1}
        s_add_u32 s{sT0}, s{sT0}, {FL_KV}
        s_waitcnt lgkmcnt(0)
        """)
        wait_for("st")
        poll(vGA, vG, 0xff, srdr=rDBG, first_issued=True)
        l = lab("noflag")
        a(f"""
        v_lshl_add_u32 v{vGA}, v{vLANE}, 2, s{sT0}
        s_mov_b64 exec, 1
        ds_add_rtn_u32 v{vT1}, v{vCNT}, v{vONE} offset:{C_KV}
        s_waitcnt lgkmcnt(0)
        v_cmp_eq_u32 vcc, 3, v{vT1}
        s_mov_b64 exec, -1
        s_cbranch_vccz {l}
        """)
        flag(vT, str((1 << cfg.nrep) - 1))
        a.label(l)
        stamp(3)
    sb = Stream(cfg.depB, cfg.nB)
    if cfg.flag_at == 8:
        flagKV2()
        barB(8); loadB(8)
        nmfill(TMB)
    elif cfg.flag_at == 9:
        flagKV2()
        nmfill(TMB)
    elif cfg.flag_at == 10:
        nmfill(TMB)
        loadB(7)
        a("s_waitcnt lgkmcnt(0)")
        barB(8)
        if cfg.pre9 == 0:
            loadB(8); flagKV2()
        else:
            flagKV2(); loadB(8)
    for c in range(9, cfg.pollB + 1):
        if c == cfg.pollB:
            a(f"s_mov_b32 exec_hi, 0\nbuffer_load_dword v{vG}, v{vGA}, {sr(rWS,4)}, 0 offen sc1\ns_mov_b64 exec, -1")
            vq.append("kvf")
        barB(c)
        loadB(c)
        if cfg.swo and c == 9:
            a(f"""
            s_lshr_b32 s{sT0}, s2, 3
            s_lshl_b32 s{sT0}, s{sT0}, 2
            s_add_u32 s{sT0}, s{sT0}, s{sJ}
            s_lshl_b32 s{sT0}, s{sT0}, 12
            s_and_b32 s{sT1}, s2, 1
            s_lshl_b32 s{sT1}, s{sT1}, 9
            s_add_u32 s{sT0}, s{sT0}, s{sT1}
            s_add_u32 s{sT0}, s{sT0}, 384
            s_add_u32 s84, s{kAO}, s{sT0}
            s_addc_u32 s85, s{kAO+1}, 0
            s_add_u32 s86, s{kBO}, s{sT0}
            s_addc_u32 s87, s{kBO+1}, 0
            """)
        if cfg.swo and 9 <= c <= 12:
            for reg in (84, 86):
                a(f"s_load_dword s88, s[{reg}:{reg+1}], {(c-9)*1024}\ns_load_dword s89, s[{reg}:{reg+1}], {(c-9)*1024+64}")
        if c == 10 and cfg.earlyset:
            att_setup(0, cfg.nB); sb.setup()
        if c == 11 and cfg.earlyset:
            sb.zero()
    sb.q = list(vq)

    WFB = 184
    vWR = 12
    def woaddr():
        a(f"""
        v_bfe_u32 v{vT1}, v{vLANE}, 2, 2
        v_lshrrev_b32 v{vT2}, 5, v{vLANE}
        v_lshl_add_u32 v{vT1}, v{vT2}, 2, v{vT1}
        v_lshlrev_b32 v{vWR}, 7, v{vT1}
        s_lshr_b32 s{sT1}, s{sJ}, 1
        v_bfe_u32 v{vT1}, v{vLANE}, 3, 1
        v_xor_b32 v{vT1}, s{sT1}, v{vT1}
        v_lshl_add_u32 v{vWR}, v{vT1}, 6, v{vWR}
        v_and_b32 v{vT1}, 1, v{vLANE}
        v_lshl_add_u32 v{vWR}, v{vT1}, 5, v{vWR}
        s_and_b32 s{sT1}, s{sJ}, 1
        v_bfe_u32 v{vT1}, v{vLANE}, 4, 1
        v_xor_b32 v{vT1}, s{sT1}, v{vT1}
        v_lshl_add_u32 v{vWR}, v{vT1}, 4, v{vWR}
        v_bfe_u32 v{vT1}, v{vLANE}, 1, 1
        v_lshl_add_u32 v{vWR}, v{vT1}, 3, v{vWR}
        s_lshl_b32 s{sT1}, s{sJ}, 14
        s_add_u32 s{sT1}, s{sT1}, {L_WB}
        v_add_u32 v{vWR}, s{sT1}, v{vWR}
        v_xor_b32 v{vWR+1}, 64, v{vWR}
        """)
    def wofrags(base, g2):
        for hh in range(8):
            a(f"ds_read_b64_tr_b16 {vr(base+32*g2+4*hh,2)}, v{vWR+g2} offset:{hh*2048}")
            a(f"ds_read_b64_tr_b16 {vr(base+32*g2+4*hh+2,2)}, v{vWR+g2} offset:{hh*2048+1024}")
    def upper(base):
        def f0():
            woaddr()
            await_cnt(C_WO, 4)
            wofrags(WFB, 0)
        def f1():
            wofrags(WFB, 1)
        def f2():
            a("s_waitcnt lgkmcnt(0)")
            arrive(C_UP)
        return f0, f1, f2

    vC4, vC1 = 6, 7
    vH, vHA = 248, 249
    sOB, sOB1, sOWN = 61, 62, 63
    def pretail():
        a(f"s_mul_i32 s{sT0}, s{sJ}, 4608\ns_add_u32 s{sT0}, s{sT0}, {L_XC}\nv_add_u32 v{vC4}, s{sT0}, v{vL16}\nv_lshl_add_u32 v{vC1}, v{vLANE}, 2, s{sT0}")
    def pretailA():
        pretail()
        assert cfg.m16
        a(f"""
        s_lshl_b32 s{sT0}, s{sRB}, 6
        s_add_u32 s{sT0}, s{sT0}, s{sH}
        s_lshl_b32 s{sT0}, s{sT0}, 10
        s_add_u32 s{sOB}, s{sT0}, {WS_OB}
        s_add_u32 s{sOB1}, s{sOB}, 0x8000
        s_mul_i32 s{sT0}, s{sRB}, {32*cfg.hs}
        s_lshr_b32 s{sT1}, s{sHG}, 1
        s_mul_i32 s{sT1}, s{sT1}, {cfg.hs}
        s_add_u32 s{sT0}, s{sT0}, s{sT1}
        s_and_b32 s{sT1}, s{sHG}, 1
        s_lshl_b32 s{sT1}, s{sT1}, 2
        s_add_u32 s{sT0}, s{sT0}, s{sT1}
        s_add_u32 s{sT0}, s{sT0}, {FL_OB}
        v_mul_u32_u24 v{vHA}, {4*cfg.hs}, v{vLANE}
        v_add_u32 v{vHA}, s{sT0}, v{vHA}
        """)
    def pretailB():
        pretail()
        a(f"""
        s_lshl_b32 s{sT0}, s{sRB}, 3
        s_add_u32 s{sT0}, s{sT0}, s{sHG}
        s_lshl_b32 s{sT0}, s{sT0}, 2
        s_add_u32 s{sT0}, s{sT0}, s{sJ}
        s_mul_i32 s{sT0}, s{sT0}, {cfg.hs}
        s_add_u32 s{sT0}, s{sT0}, {FL_OB}
        v_lshl_add_u32 v{vHA}, v{vLANE}, 2, s{sT0}
        s_lshl_b32 s{sT0}, s{sRB}, 16
        s_lshl_b32 s{sT1}, s{sJ}, 13
        s_add_u32 s{sOB}, s{sT0}, s{sT1}
        s_add_u32 s{sOB}, s{sOB}, {WS_OB}
        s_lshr_b32 s{sT0}, s{sHG}, 1
        s_and_b32 s{sT1}, s{sHG}, 1
        s_lshl_b32 s{sT1}, 1, s{sT1}
        s_cmp_eq_u32 s{sT0}, s{sJ}
        s_cselect_b32 s{sOWN}, s{sT1}, 0
        """)

    def barS(c):
        sb.wait(c)
        a("s_barrier")
        bst(c)
        while nxtB[0] <= min(c + cfg.look, 15):
            issue_chunk(nxtB[0]); sb.push(nxtB[0], 8); nxtB[0] += 1
    for c in range(cfg.pollB + 1, cfg.kvB + 1): barS(c)
    sb.wait("kvf")
    stamp(4)
    poll(vGA, vG, 0xffffffff, first_issued=True)
    barT = cfg.barT
    assert len(barT) == 15 - cfg.kvB
    if not cfg.earlyset:
        att_setup(0, cfg.nB); sb.setup()
    sb.first()
    if not cfg.earlyset: sb.zero()
    for i, t in enumerate(barT):
        if t == 0: barS(cfg.kvB + 1 + i)
    sb.start()
    stamp(5)
    vJ0, vJ1, vJ2 = 9, 10, 11
    def stB(): stamp(6)
    def stB2(): stamp(14)
    assert cfg.depB <= 4
    jobs = {7: [stB], 11: [stB2]}
    for i, t in enumerate(barT):
        if t: jobs.setdefault(t - 1, []).append(lambda c=cfg.kvB + 1 + i: barS(c))
    for i, f in enumerate(upper(L_WB)):
        if f.__name__ not in cfg.skip: jobs.setdefault(cfg.upB + i, []).append(f)
    jobs.setdefault(cfg.nB - 2, []).append(pretailB)
    sb.run(jobs, cfg.prioB)
    a("s_branch L_tail")

    a.label("L_attA")
    nA = 64 - cfg.nB
    att_setup(cfg.nB, nA)
    sa = Stream(cfg.depA, nA, init=["pst"] * 4)
    a(f"""
    v_lshrrev_b32 v{vT}, 3, v{vLANE}
    v_bfe_u32 v{vT1}, v{vLANE}, 4, 1
    v_lshlrev_b32 v{vT1}, 2, v{vT1}
    v_and_b32 v{vT2}, 7, v{vLANE}
    v_xor_b32 v{vT1}, v{vT1}, v{vT2}
    v_lshlrev_b32 v{vT1}, 4, v{vT1}
    v_lshl_add_u32 v{vWOA}, v{vT}, 10, v{vT1}
    s_lshl_b32 s{sT0}, s{sHG}, 7
    s_lshl_b32 s{sT1}, s{sJ}, 17
    s_add_u32 s{sT0}, s{sT0}, s{sT1}
    v_add_u32 v{vWOA}, s{sT0}, v{vWOA}
    s_and_b32 s{sWO}, s{sRB}, 7
    s_lshl_b32 s{sWO}, s{sWO}, 1
    s_lshl_b32 s{sWOM}, s{sJ}, 14
    """)
    a(f"""
    v_mov_b32 v{S}, -1
    v_mov_b32 v{S+1}, -1
    v_mov_b32 v{S+2}, -1
    v_mov_b32 v{S+3}, -1
    s_lshl_b32 s{sT0}, s{sRB}, 6
    s_add_u32 s{sT0}, s{sT0}, s{sH}
    s_lshl_b32 s{sT0}, s{sT0}, 10
    s_add_u32 s{sT0}, s{sT0}, {WS_OB}
    s_add_u32 s{sT1}, s{sT0}, 32768
    buffer_store_dwordx4 {vr(S,4)}, v{vL16}, {sr(rWS,4)}, s{sT0} offen sc1
    buffer_store_dwordx4 {vr(S,4)}, v{vL16}, {sr(rWS,4)}, s{sT1} offen sc1
    """)
    sa.push("poison", 2)
    sa.prologue()
    JD = RING + 12 * cfg.depA
    KT = JD + 32
    assert KT + 8 <= 248
    RD = JD
    assert RD + 16 <= 248
    def red0():
        a(f"""
        s_lshr_b32 s{sT0}, s{sRB}, 3
        s_lshl_b32 s{sT1}, s{sHG}, 2
        s_add_u32 s{sJB}, s{sT0}, s{sT1}
        s_lshl_b32 s{sT1}, s{sJB}, 7
        s_lshl_b32 s{sT0}, s{sJ}, 5
        s_add_u32 s{sT1}, s{sT1}, s{sT0}
        s_add_u32 s{sT1}, s{sT1}, {FL_P}
        v_lshl_add_u32 v{vJ0}, v{vLANE}, 2, s{sT1}
        s_mov_b64 exec, 0xff
        buffer_load_dword v{vJ1}, v{vJ0}, {sr(rWS,4)}, 0 offen sc1
        s_mov_b64 exec, -1
        """)
        sa.push("fp")
    def red1():
        sa.wait("fp")
        poll(vJ0, vJ1, 0xff, first_issued=True)
        a(f"""
        s_lshl_b32 s{sJB}, s{sJB}, 3
        s_and_b32 s{sT1}, s{sRB}, 7
        s_add_u32 s{sJB}, s{sJB}, s{sT1}
        s_mul_i32 s{sT1}, s{sJB}, {32*384}
        s_mul_i32 s{sT0}, s{sJ}, {8*384}
        s_add_u32 s{sT1}, s{sT1}, s{sT0}
        s_add_u32 s{sT1}, s{sT1}, {WS_P}
        v_lshrrev_b32 v{vJ1}, 5, v{vLANE}
        v_mul_u32_u24 v{vJ0}, 384, v{vJ1}
        v_and_b32 v{vJ2}, 31, v{vLANE}
        v_lshl_add_u32 v{vJ0}, v{vJ2}, 4, v{vJ0}
        v_lshlrev_b32 v{vJ1}, 2, v{vJ1}
        v_lshl_add_u32 v{vJ1}, v{vJ2}, 3, v{vJ1}
        s_mov_b32 exec_lo, 0x1ffff
        s_mov_b32 exec_hi, 0x1ffff
        """)
        for i in range(4):
            a(f"buffer_load_dwordx4 {vr(RD+4*i,4)}, v{vJ0}, {sr(rWS,4)}, s{sT1} offen offset:{i*768} sc1")
        a("s_mov_b64 exec, -1")
        sa.push("part", 4)
    def red2():
        sa.wait("part")
        a(f"v_pk_add_f32 {vr(RD,2)}, {vr(RD,2)}, {vr(RD+4,2)}\nv_pk_add_f32 {vr(RD+2,2)}, {vr(RD+2,2)}, {vr(RD+6,2)}")
        a(f"v_pk_add_f32 {vr(RD+8,2)}, {vr(RD+8,2)}, {vr(RD+12,2)}\nv_pk_add_f32 {vr(RD+10,2)}, {vr(RD+10,2)}, {vr(RD+14,2)}")
        a(f"v_pk_add_f32 {vr(RD,2)}, {vr(RD,2)}, {vr(RD+8,2)}\nv_pk_add_f32 {vr(RD+2,2)}, {vr(RD+2,2)}, {vr(RD+10,2)}")
        l = lab("notlast")
        a(f"""
        s_mul_i32 s{sT0}, s{sJ}, 800
        s_add_u32 s{sT0}, s{sT0}, {L_XR}
        v_add_u32 v{vJ0}, s{sT0}, v{vL16}
        s_mov_b32 exec_lo, 0x1ffff
        s_mov_b32 exec_hi, 0x1ffff
        ds_write_b128 v{vJ0}, {vr(RD,4)}
        s_mov_b32 s{sJL}, 0
        s_waitcnt lgkmcnt(0)
        s_mov_b64 exec, 1
        ds_add_rtn_u32 v{vJ2}, v{vCNT}, v{vONE} offset:{C_RD}
        s_waitcnt lgkmcnt(0)
        v_cmp_eq_u32 vcc, 3, v{vJ2}
        s_mov_b64 exec, -1
        s_cbranch_vccz {l}
        s_mov_b32 s{sJL}, 1
        v_add_u32 v{vJ0}, {L_XR}, v{vL16}
        """)
        for i in range(4):
            a(f"ds_read_b128 {vr(RD+4*i,4)}, v{vJ0} offset:{i*800}")
        a("s_waitcnt lgkmcnt(0)")
        a(f"v_pk_add_f32 {vr(RD,2)}, {vr(RD,2)}, {vr(RD+4,2)}\nv_pk_add_f32 {vr(RD+2,2)}, {vr(RD+2,2)}, {vr(RD+6,2)}")
        a(f"v_pk_add_f32 {vr(RD+8,2)}, {vr(RD+8,2)}, {vr(RD+12,2)}\nv_pk_add_f32 {vr(RD+10,2)}, {vr(RD+10,2)}, {vr(RD+14,2)}")
        a(f"v_pk_add_f32 {vr(RD,2)}, {vr(RD,2)}, {vr(RD+8,2)}\nv_pk_add_f32 {vr(RD+2,2)}, {vr(RD+2,2)}, {vr(RD+10,2)}")
        a(f"""
        v_permlane32_swap_b32 v{RD}, v{RD+2}
        v_permlane32_swap_b32 v{RD+1}, v{RD+3}
        v_pk_add_f32 {vr(RD,2)}, {vr(RD,2)}, {vr(RD+2,2)}
        v_cvt_pk_bf16_f32 v{RD}, v{RD}, v{RD+1}
        s_lshl_b32 s{sT1}, s{sJB}, 8
        s_add_u32 s{sT1}, s{sT1}, {WS_F}
        s_mov_b32 exec_lo, 0x1ffff
        s_mov_b32 exec_hi, 0x1ffff
        buffer_store_dword v{RD}, v{vJ1}, {sr(rWS,4)}, s{sT1} offen sc1
        s_mov_b64 exec, -1
        """)
        a.label(l)
        sa.mark = len(sa.q)
        sa.push("after", 0)
        sa.stored_at = list(sa.q)
    def red3():
        n_new = sum(1 for t in sa.q if t not in sa.stored_at)
        l = lab("noffl")
        a(f"s_cmp_lg_u32 s{sJL}, 1\ns_cbranch_scc1 {l}")
        a(f"""
        s_lshr_b32 s{sT1}, s{sJB}, 3
        s_lshl_b32 s{sT1}, s{sT1}, 7
        s_and_b32 s{sT0}, s{sJB}, 7
        s_lshl_b32 s{sT0}, s{sT0}, 2
        s_add_u32 s{sT0}, s{sT0}, s{sT1}
        s_add_u32 s{sT0}, s{sT0}, {FL_F}
        v_mov_b32 v{vJ0}, s{sT0}
        s_waitcnt vmcnt({n_new})
        """)
        flag(vJ0, "1")
        a.label(l)
    def wopiece():
        a(f"""
        s_lshl_b32 s{sT0}, s{sWO}, 10
        s_add_u32 m0, s{sT0}, s{sWOM}
        s_lshl_b32 s{sT1}, s{sWO}, 13
        s_add_u32 s{sT0}, s{sT0}, {L_WB}
        buffer_load_dwordx4 v{vWOA}, {sr(rMISC,4)}, s{sT1} offen lds
        s_add_u32 m0, s{sT0}, s{sWOM}
        s_add_u32 s{sWO}, s{sWO}, 1
        s_and_b32 s{sWO}, s{sWO}, 15
        buffer_load_dwordx4 v{vWOA}, {sr(rXB,4)}, s{sT1} offen lds
        """)
        sa.push("wo", 2)
    def wodone():
        sa.wait("wo")
        arrive(C_WO)
    def oa0():
        a(f"""
        s_lshl_b32 s{sT0}, s{sRB}, 7
        s_lshl_b32 s{sT1}, s{sJ}, 5
        s_add_u32 s{sT0}, s{sT0}, s{sT1}
        s_add_u32 s{sT0}, s{sT0}, {FL_OA}
        v_lshl_add_u32 v{vJ0}, v{vLANE}, 2, s{sT0}
        s_mov_b64 exec, 0xff
        buffer_load_dword v{vJ1}, v{vJ0}, {sr(rWS,4)}, 0 offen sc1
        s_mov_b64 exec, -1
        """)
        sa.push("foa")
    def oa1(part):
        def f():
            if part == 0:
                sa.wait("foa")
                poll(vJ0, vJ1, 0xff, first_issued=True)
                await_cnt(C_UP, 4)
            off = (part >> 1) * 32768 + (part & 1) * 4096
            loff = L_WB + off
            a(f"""
            s_lshl_b32 s{sT0}, s{sRB}, 16
            s_lshl_b32 s{sT1}, s{sJ}, 13
            s_add_u32 s{sT0}, s{sT0}, s{sT1}
            s_add_u32 s{sT0}, s{sT0}, {WS_OA + off}
            s_add_u32 m0, s{sT1}, {loff}
            """)
            for i in range(4):
                a(f"buffer_load_dwordx4 v{vL16}, {sr(rWS,4)}, s{sT0} offen offset:{i*1024} sc1 lds")
            sa.push("wo", 4)
        return f
    def job0():
        sa.wait("pst")
        a(f"s_lshl_b32 s{sT0}, s{sH}, 7\ns_lshl_b32 s{sT1}, s{sRB}, 2\ns_add_u32 s{sT0}, s{sT0}, s{sT1}\ns_add_u32 s{sT0}, s{sT0}, {FL_P}\nv_mov_b32 v{vJ0}, s{sT0}")
        flag(vJ0, "1"); sa.push("fl")
    def job1():
        a(f"s_lshl_b32 s{sT0}, s{sH}, 7\ns_add_u32 s{sT0}, s{sT0}, {FL_F}\nv_lshl_add_u32 v{vJ0}, v{vLANE}, 2, s{sT0}")
        a(f"s_mov_b64 exec, 0xff\nbuffer_load_dword v{vJ1}, v{vJ0}, {sr(rWS,4)}, 0 offen sc1\ns_mov_b64 exec, -1")
        sa.push("ff")
        stamp(6)
    def job2():
        sa.wait("ff")
        poll(vJ0, vJ1, 0xff, first_issued=True)
        a(f"""
        v_and_b32 v{vJ0}, 31, v{vLANE}
        v_min_u32 v{vJ0}, 16, v{vJ0}
        v_lshlrev_b32 v{vJ0}, 3, v{vJ0}
        v_lshrrev_b32 v{vJ1}, 5, v{vLANE}
        v_lshl_add_u32 v{vJ0}, v{vJ1}, 8, v{vJ0}
        s_lshl_b32 s{sT0}, s{sH}, 11
        s_add_u32 s{sT0}, s{sT0}, {WS_F}
        """)
        for r4 in range(4):
            a(f"buffer_load_dwordx2 {vr(KT+2*r4,2)}, v{vJ0}, {sr(rWS,4)}, s{sT0} offen offset:{r4*512} sc1")
        sa.push("kt", 4)
        stamp(14)
    def job3a():
        sa.wait("kt")
        for ri in range(2):
            mfma(JD + 16 * ri, KT, PHI + 8 * ri, "0")
        for ri in range(2):
            mfma(JD + 16 * ri, KT + 4, PHI + 8 * ri + 4, JD + 16 * ri)
    def job3b():
        a(f"s_lshl_b32 s{sT0}, s{sRB}, 6\ns_add_u32 s{sT0}, s{sT0}, s{sH}\ns_lshl_b32 s{sT0}, s{sT0}, 10\ns_add_u32 s{sT0}, s{sT0}, {WS_OA}\ns_add_u32 s{sT1}, s{sT0}, 32768")
        if cfg.a3:
            a(f"s_and_b32 s{sT2}, s{sJ}, 1\ns_lshl_b32 s{sT2}, s{sT2}, 15\ns_add_u32 s{sT0}, s{sT0}, s{sT2}\ns_sub_u32 s{sT1}, s{sT1}, s{sT2}")
        for ri in range(2):
            d = JD + 16 * ri
            a(f"v_add_f32 v{d+8}, {f2u(1e-6)}, v{d+8}\nv_rcp_f32 v{d+8}, v{d+8}")
        for ri in range(2):
            d = JD + 16 * ri
            for i in range(4):
                a(f"v_pk_mul_f32 {vr(d+2*i,2)}, {vr(d+2*i,2)}, {vr(d+8,2)} op_sel:[0,0] op_sel_hi:[1,0]")
            cvt(d + 12, d, 4)
            a(f"buffer_store_dwordx4 {vr(d+12,4)}, v{vL16}, {sr(rWS,4)}, s{sT0+ri} offen sc1")
        sa.push("oa", 2)
    def job4():
        sa.wait("oa")
        a(f"s_lshl_b32 s{sT0}, s{sRB}, 7\ns_lshl_b32 s{sT1}, s{sH}, 2\ns_add_u32 s{sT0}, s{sT0}, s{sT1}\ns_add_u32 s{sT0}, s{sT0}, {FL_OA}\nv_mov_b32 v{vJ0}, s{sT0}")
        flag(vJ0, "1"); sa.push("fl")
    jobs = {}
    t0, t1, t2, t3, t4 = cfg.jobT
    for t, f in ((t0, job0), (t1, job1), (t2, job2), (t3, job3a), (t3 + 1, job3b), (t4, job4)): jobs.setdefault(t, []).append(f)
    for t, f in zip(cfg.redT, (red0, red1, red2, red3)): jobs.setdefault(t, []).append(f)
    for t in range(16): jobs.setdefault(t + cfg.woT, []).append(wopiece)
    jobs.setdefault(cfg.woT + 18, []).append(wodone)
    jobs.setdefault(nA - 2, []).append(pretailA)
    jobs.setdefault(cfg.oaT[0], []).append(oa0)
    for p in range(4): jobs.setdefault(cfg.oaT[1] + p, []).append(oa1(p))
    assert max(jobs) < nA
    if cfg.skip:
        for t in list(jobs):
            jobs[t] = [f for f in jobs[t] if f.__name__ not in cfg.skip]
    sa.run(jobs, cfg.prioA)
    sa.wait("wo")
    a("; ======== tail: join the two key ranges, publish o, output projections")
    a.label("L_tail")
    stamp(7)

    CK = NM
    def check():
        for q in range(2):
            b = O + 16 * q
            a(f"v_max3_f32 v{CK+q}, abs(v{b}), abs(v{b+1}), abs(v{b+2})\nv_max3_f32 v{CK+q}, v{CK+q}, abs(v{b+3}), abs(v{b+4})")
            a(f"v_max3_f32 v{CK+q}, v{CK+q}, abs(v{b+5}), abs(v{b+6})\nv_max_f32 v{CK+q}, v{CK+q}, abs(v{b+7})")
        a(f"v_pk_add_f32 {vr(CK+2,2)}, {vr(O,2)}, {vr(O+2,2)}")
        for r in (O + 4, O + 6, O + 16, O + 18, O + 20, O + 22):
            a(f"v_pk_add_f32 {vr(CK+2,2)}, {vr(CK+2,2)}, {vr(r,2)}")
        a(f"""
        v_add_f32 v{CK+2}, v{CK+2}, v{O+8}
        v_add_f32 v{CK+3}, v{CK+3}, v{O+24}
        v_max3_f32 v{CK+4}, v{CK}, v{CK+1}, v{O+8}
        v_max_f32 v{CK+4}, v{CK+4}, v{O+24}
        s_mov_b32 s{sT2}, {f2u(2.0 ** -(cfg.bias + 2))}
        s_mov_b32 s{sT3}, {f2u(2.0 ** -112)}
        v_cmp_le_f32 s[84:85], s{sT2}, v{O+8}
        v_cmp_gt_f32 s[86:87], s{sT3}, v{CK}
        v_cmp_le_f32 s[88:89], s{sT2}, v{O+24}
        v_cmp_gt_f32 s[90:91], s{sT3}, v{CK+1}
        v_cmp_u_f32 vcc, v{CK+2}, v{CK+3}
        s_and_b64 s[84:85], s[84:85], s[86:87]
        s_and_b64 s[88:89], s[88:89], s[90:91]
        s_or_b64 s[84:85], s[84:85], s[88:89]
        s_or_b64 s[84:85], s[84:85], vcc
        v_cmp_ngt_f32 vcc, {f2u(2.0 ** 125)}, v{CK+4}
        s_or_b64 vcc, vcc, s[84:85]
        """)
    def badflag():
        l = lab("good")
        if cfg.force_redo:
            a(f"s_mov_b64 vcc, -1")
        a(f"s_cbranch_vccz {l}\nds_write_b32 v{vCNT}, v{vONE}")
        a.label(l)
    def rowaddr(dst, ri):
        a(f"""
        v_and_b32 v{vT1}, 31, v{vLANE}
        s_lshl_b32 s{sT0}, s{sRB}, 1
        s_add_u32 s{sT0}, s{sT0}, {ri}
        s_lshl_b32 s{sT0}, s{sT0}, 5
        v_add_u32 v{vT1}, s{sT0}, v{vT1}
        v_lshlrev_b32 v{dst}, 11, v{vT1}
        v_lshrrev_b32 v{vT1}, 5, v{vLANE}
        v_lshl_add_u32 v{dst}, v{vT1}, 5, v{dst}
        """)
    a(f"s_cmp_lt_u32 s{sW}, 4\ns_cbranch_scc1 L_tailB")
    check()
    badflag()
    a("s_waitcnt lgkmcnt(0)\ns_barrier")
    PB = 104
    a(f"""
    ds_read_b32 v{PB+16}, v{vC1} offset:4096
    ds_read_b32 v{PB+17}, v{vC1} offset:4352
    ds_read_b32 v{CK}, v{vCNT}
    ds_read_b128 {vr(PB,4)}, v{vC4}
    ds_read_b128 {vr(PB+4,4)}, v{vC4} offset:1024
    ds_read_b128 {vr(PB+8,4)}, v{vC4} offset:2048
    ds_read_b128 {vr(PB+12,4)}, v{vC4} offset:3072
    s_waitcnt lgkmcnt(4)
    v_add_f32 v{O+8}, v{O+8}, v{PB+16}
    v_add_f32 v{O+24}, v{O+24}, v{PB+17}
    v_readfirstlane_b32 s{sT1}, v{CK}
    v_rcp_f32 v{O+10}, v{O+8}
    v_rcp_f32 v{O+26}, v{O+24}
    s_andn2_b32 s{sT1}, s{sT1}, s{sREDO}
    s_cmp_lg_u32 s{sT1}, 0
    s_cbranch_scc1 L_slow
    """)
    OS = 124
    for q in range(2):
        b = O + 16 * q
        a(f"s_waitcnt lgkmcnt({2 - 2*q})")
        for i in range(4):
            a(f"v_pk_add_f32 {vr(b+2*i,2)}, {vr(b+2*i,2)}, {vr(PB+8*q+2*i,2)}")
        for i in range(4):
            a(f"v_pk_mul_f32 {vr(b+2*i,2)}, {vr(b+2*i,2)}, {vr(b+10,2)} op_sel:[0,0] op_sel_hi:[1,0]")
        cvt(OS + 4 * q, b, 4)
        for i in range(4):
            a(f"v_min_u32 v{OS+4*q+i}, -2, v{OS+4*q+i}")
        a(f"buffer_store_dwordx4 {vr(OS+4*q,4)}, v{vL16}, {sr(rWS,4)}, s{sOB+q} offen {cfg.ob_st}")
    l = lab("nohint")
    a(f"s_cmp_lg_u32 s{sW}, {cfg.hintw}\ns_cbranch_scc1 {l}")
    flag(vHA, "0xff")
    a.label(l)
    stamp(8)
    vOR, vOST = 5, 7
    PA, PW, PO, PS = 80, 136, 16, 48
    a(f"""
    s_and_b32 s{sT2}, s{sJ}, 1
    s_lshl_b32 s{sT0}, s{sJ}, 10
    s_add_u32 s{sT0}, s{sT0}, {L_X}
    v_add_u32 v{vT}, s{sT0}, v{vL16}
    ds_write_b128 v{vT}, {vr(OS,4)}
    v_xor_b32 v{vT}, 0x1000, v{vT}
    ds_write_b128 v{vT}, {vr(OS+4,4)}
    v_bfe_u32 v{vT1}, v{vLANE}, 2, 2
    v_lshrrev_b32 v{vT2}, 5, v{vLANE}
    v_lshl_add_u32 v{vT1}, v{vT2}, 2, v{vT1}
    v_lshlrev_b32 v{vWR}, 7, v{vT1}
    s_lshr_b32 s{sT1}, s{sJ}, 1
    v_bfe_u32 v{vT1}, v{vLANE}, 3, 1
    v_xor_b32 v{vT1}, s{sT1}, v{vT1}
    v_lshl_add_u32 v{vWR}, v{vT1}, 6, v{vWR}
    v_and_b32 v{vT1}, 1, v{vLANE}
    v_lshl_add_u32 v{vWR}, v{vT1}, 5, v{vWR}
    v_bfe_u32 v{vT1}, v{vLANE}, 4, 1
    v_lshl_add_u32 v{vWR}, v{vT1}, 4, v{vWR}
    v_bfe_u32 v{vT1}, v{vLANE}, 1, 1
    v_lshl_add_u32 v{vWR}, v{vT1}, 3, v{vWR}
    s_lshl_b32 s{sT0}, s{sT2}, 15
    s_add_u32 s{sT0}, s{sT0}, {L_WB}
    v_add_u32 v{vOR}, s{sT0}, v{vL16}
    s_waitcnt lgkmcnt(0)
    """)
    arrive(C_OB)
    if cfg.tailprio: a("s_setprio 0")
    assert L_WA == 0
    DP = 4
    def rd(q):
        a(f"ds_read_b64_tr_b16 {vr(PW+4*(q%8),2)}, v{vWR} offset:{q*2048}")
        a(f"ds_read_b64_tr_b16 {vr(PW+4*(q%8)+2,2)}, v{vWR} offset:{q*2048+1024}")
        a(f"ds_read_b128 {vr(PO+4*(q%8),4)}, v{vOR} offset:{q*1024}")
    for q in range(DP): rd(q)
    for q in range(32):
        a(f"s_waitcnt lgkmcnt({3*min(DP-1, 31-q)})")
        mfma(PA, PW + 4 * (q % 8), PO + 4 * (q % 8), "0" if q == 0 else PA)
        if q + DP < 32: rd(q + DP)
        if q == 31 - DP:
            if cfg.outA_t:
                a(f"""
                v_lshrrev_b32 v{vT1}, 2, v{vLANE}
                s_lshl_b32 s{sT0}, s{sRB}, 1
                s_add_u32 s{sT0}, s{sT0}, s{sT2}
                s_lshl_b32 s{sT0}, s{sT0}, 5
                v_add_u32 v{vT1}, s{sT0}, v{vT1}
                v_lshlrev_b32 v{vOST}, 11, v{vT1}
                v_and_b32 v{vT1}, 3, v{vLANE}
                v_lshl_add_u32 v{vOST}, v{vT1}, 4, v{vOST}
                v_and_b32 v{vT1}, 31, v{vLANE}
                v_lshlrev_b32 v{vT1}, 6, v{vT1}
                v_lshrrev_b32 v{vT2}, 5, v{vLANE}
                v_lshl_add_u32 v{vT1}, v{vT2}, 5, v{vT1}
                s_mul_i32 s{sT0}, s{sJ}, 4608
                s_add_u32 s{sT0}, s{sT0}, {L_XC}
                v_add_u32 v9, s{sT0}, v{vT1}
                """)
            else:
                rowaddr(vOST, f"s{sT2}")
            a(f"s_lshl_b32 s{sT0}, s{sHG}, 7\ns_lshr_b32 s{sT1}, s{sJ}, 1\ns_lshl_b32 s{sT1}, s{sT1}, 6\ns_add_u32 s{sT0}, s{sT0}, s{sT1}\nv_add_u32 v{vOST}, s{sT0}, v{vOST}")
    arrive(C_OA)
    stamp(9)
    cvt(PS, PA, 8)
    if cfg.outA_t:
        a(f"""
        ds_write_b128 v9, {vr(PS,4)}
        ds_write_b128 v9, {vr(PS+4,4)} offset:16
        v_add_u32 v10, 0x8000, v{vOST}
        s_waitcnt lgkmcnt(0)
        ds_read_b128 {vr(PS+8,4)}, v{vC4}
        ds_read_b128 {vr(PS+12,4)}, v{vC4} offset:1024
        s_waitcnt lgkmcnt(1)
        buffer_store_dwordx4 {vr(PS+8,4)}, v{vOST}, {sr(rOUT,4)}, 0 offen {cfg.outA_sc}
        s_waitcnt lgkmcnt(0)
        buffer_store_dwordx4 {vr(PS+12,4)}, v10, {sr(rOUT,4)}, 0 offen {cfg.outA_sc}
        """)
    else:
        a(f"buffer_store_dwordx4 {vr(PS,4)}, v{vOST}, {sr(rOUT,4)}, 0 offen {cfg.outA_sc}")
        a(f"buffer_store_dwordx4 {vr(PS+4,4)}, v{vOST}, {sr(rOUT,4)}, 0 offen offset:16 {cfg.outA_sc}")
    stamp(10); stamp(11); stamp(12)
    if cfg.abar:
        a("s_barrier" + ("\ns_barrier" if cfg.outB_t else ""))
    a("s_branch L_fin")

    a.label("L_tailB")
    if cfg.tailprio > 1: a("s_setprio 3")
    a(f"""
    ds_write_b128 v{vC4}, {vr(O,4)}
    ds_write_b128 v{vC4}, {vr(O+4,4)} offset:1024
    ds_write_b32 v{vC1}, v{O+8} offset:4096
    ds_write_b128 v{vC4}, {vr(O+16,4)} offset:2048
    ds_write_b128 v{vC4}, {vr(O+20,4)} offset:3072
    ds_write_b32 v{vC1}, v{O+24} offset:4352
    """)
    check()
    badflag()
    OFB, AB = 16, 104
    vXW, vXR, vOWN = 9, 10, 11
    sTODO, sREQ, sNEW = 84, 85, 88
    a(f"""
    s_waitcnt lgkmcnt(0)
    s_barrier
    ds_read_b32 v{CK}, v{vCNT}
    s_mov_b64 exec, 3
    buffer_load_dword v{vH}, v{vHA}, {sr(rWS,4)}, 0 offen sc1
    s_mov_b64 exec, -1
    v_pk_mov_b32 {vr(168,2)}, 0, 0
    v_pk_mov_b32 {vr(170,2)}, 0, 0
    s_waitcnt lgkmcnt(0)
    v_readfirstlane_b32 s{sT1}, v{CK}
    s_andn2_b32 s{sT1}, s{sT1}, s{sREDO}
    s_cmp_lg_u32 s{sT1}, 0
    s_cbranch_scc1 L_slow
    """)
    stamp(8)
    if cfg.tailprio: a("s_setprio 2")
    for i in range(4):
        mfma(AB + 16 * i, 168, 168, "0")
    rowaddr(vOST, 0)
    a(f"""
    s_lshl_b32 s{sT0}, s{sHG}, 7
    s_lshr_b32 s{sT1}, s{sJ}, 1
    s_lshl_b32 s{sT1}, s{sT1}, 6
    s_add_u32 s{sT0}, s{sT0}, s{sT1}
    s_and_b32 s{sT1}, s{sJ}, 1
    s_lshl_b32 s{sT1}, s{sT1}, 4
    s_add_u32 s{sT0}, s{sT0}, s{sT1}
    v_add_u32 v{vOST}, s{sT0}, v{vOST}
    s_mul_i32 s{sT0}, s{sJ}, 12288
    v_add_u32 v{vXR}, s{sT0}, v{vL16}
    v_add_u32 v{vOWN}, {L_X}, v{vL16}
    s_andn2_b32 s{sTODO}, 3, s{sOWN}
    s_mov_b32 s{sREQ}, 0
    s_mov_b32 s{sCNT}, {cfg.spin}
    """)
    def mm(g):
        for i in range(4):
            for ri in range(2):
                for g2 in range(2):
                    d = AB + 32 * ri + 16 * g2
                    mfma(d, WFB + 32 * g2 + 4 * (4 * g + i), OFB + 32 * g + 16 * ri + 4 * i, d)
    def oload(g):
        l = lab("nol")
        a(f"s_bitcmp1_b32 s{sNEW}, {g}\ns_cbranch_scc0 {l}")
        for ri in range(2):
            a(f"s_add_u32 s{sT0}, s{sOB}, {g*4096 + ri*32768}")
            for i in range(4):
                a(f"buffer_load_dwordx4 {vr(OFB+32*g+16*ri+4*i,4)}, v{vL16}, {sr(rWS,4)}, s{sT0} offen offset:{i*1024} {cfg.ob_ld}")
        a.label(l)
    def look():
        a(f"""
        s_mov_b64 exec, 3
        v_cmp_ne_u32 vcc, 0, v{vH}
        s_mov_b64 exec, -1
        s_cmp_eq_u32 s{sCNT}, 0
        s_cselect_b32 s{sNEW}, 3, vcc_lo
        s_and_b32 s{sNEW}, s{sNEW}, s{sTODO}
        s_andn2_b32 s{sNEW}, s{sNEW}, s{sREQ}
        """)
        oload(0); oload(1)
    def use(g):
        l, l2 = lab("og"), lab("og")
        b = OFB + 32 * g
        a(f"v_max3_u32 v{vT}, v{b}, v{b+1}, v{b+2}\nv_max3_u32 v{vT1}, v{b+3}, v{b+4}, v{b+5}")
        for i in range(6, 30, 4):
            a(f"v_max3_u32 v{vT}, v{vT}, v{b+i}, v{b+i+1}\nv_max3_u32 v{vT1}, v{vT1}, v{b+i+2}, v{b+i+3}")
        a(f"v_max3_u32 v{vT}, v{vT}, v{b+30}, v{b+31}\nv_max_u32 v{vT}, v{vT}, v{vT1}\nv_cmp_eq_u32 vcc, -1, v{vT}")
        a(f"s_cmp_eq_u32 s{sCNT}, 0\ns_cbranch_scc1 {l2}\ns_cbranch_vccnz {l}")
        a.label(l2)
        mm(g)
        a(f"s_bitset0_b32 s{sTODO}, {g}")
        a.label(l)
    a("s_waitcnt vmcnt(0)")
    look()
    a(f"s_mov_b32 s{sREQ}, s{sNEW}")
    l = lab("noown")
    a(f"s_cmp_eq_u32 s{sOWN}, 0\ns_cbranch_scc1 {l}")
    await_cnt(C_OB, 4)
    for g in range(2):
        l2 = lab("own")
        a(f"s_bitcmp1_b32 s{sOWN}, {g}\ns_cbranch_scc0 {l2}")
        for i in range(8):
            a(f"ds_read_b128 {vr(OFB+32*g+4*i,4)}, v{vOWN} offset:{i*1024}")
        a("s_waitcnt lgkmcnt(0)")
        mm(g)
        a.label(l2)
    a.label(l)
    stamp(9)
    if cfg.prof: a("s_mov_b32 s70, 0")
    a.label("L_otry")
    if cfg.prof:
        a("s_memtime s[98:99]\ns_add_u32 s70, s70, 1\ns_add_u32 s71, s70, 40\ns_min_u32 s71, s71, 47\ns_waitcnt lgkmcnt(0)\ns_mov_b32 m0, s71\nv_writelane_b32 v255, s98, m0")
    a(f"s_cmp_lg_u32 s{sREQ}, 3\ns_cbranch_scc1 L_oone")
    a("s_waitcnt vmcnt(8)")
    use(0)
    a("s_waitcnt vmcnt(0)")
    use(1)
    a(f"s_mov_b32 s{sREQ}, 0\ns_branch L_onext")
    a.label("L_oone")
    l = lab("nopoll")
    a(f"s_andn2_b32 s{sT0}, s{sTODO}, s{sREQ}\ns_cbranch_scc0 {l}")
    if cfg.tsleep: a(f"s_sleep {cfg.tsleep}")
    a(f"s_mov_b64 exec, 3\nbuffer_load_dword v{vH}, v{vHA}, {sr(rWS,4)}, 0 offen sc1\ns_mov_b64 exec, -1")
    a(f"s_max_u32 s{sCNT}, s{sCNT}, 1\ns_sub_u32 s{sCNT}, s{sCNT}, 1")
    a.label(l)
    a("s_waitcnt vmcnt(0)")
    look()
    for g in range(2):
        l = lab("nouse")
        a(f"s_bitcmp1_b32 s{sREQ}, {g}\ns_cbranch_scc0 {l}")
        use(g)
        a.label(l)
    a(f"s_mov_b32 s{sREQ}, s{sNEW}")
    a.label("L_onext")
    a(f"s_cmp_lg_u32 s{sTODO}, 0\ns_cbranch_scc1 L_otry")
    if cfg.prof: a(f"v_writelane_b32 v255, s70, 33\nv_writelane_b32 v255, s{sCNT}, 34")
    stamp(10)
    await_cnt(C_OA, 4)
    stamp(11)
    def grp(ri, g):
        return AB + 32 * ri + 16 * (g >> 1) + 8 * (g & 1)
    for g in range(1, 4):
        a(f"s_xor_b32 s{sT0}, s{sJ}, {g}\ns_mul_i32 s{sT0}, s{sT0}, 12288\ns_add_u32 s{sT0}, s{sT0}, {(g-1)*4096}\nv_add_u32 v{vXW}, s{sT0}, v{vL16}")
        for ri in range(2):
            a(f"ds_write_b128 v{vXW}, {vr(grp(ri,g),4)} offset:{ri*2048}\nds_write_b128 v{vXW}, {vr(grp(ri,g)+4,4)} offset:{ri*2048+1024}")
    a("s_waitcnt lgkmcnt(0)\ns_barrier")
    stamp(12)
    tmp = 16
    for ri in range(2):
        for g in range(3):
            for i in range(2):
                a(f"ds_read_b128 {vr(tmp+24*ri+8*g+4*i,4)}, v{vXR} offset:{g*4096 + ri*2048 + i*1024}")
    if cfg.outB_t:
        a(f"""
        v_and_b32 v{vT1}, 31, v{vLANE}
        v_lshlrev_b32 v{vXW}, 7, v{vT1}
        v_lshrrev_b32 v{vT1}, 5, v{vLANE}
        v_lshl_add_u32 v{vXW}, v{vT1}, 5, v{vXW}
        s_lshr_b32 s{sT0}, s{sJ}, 1
        s_lshl_b32 s{sT0}, s{sT0}, 6
        s_and_b32 s{sT1}, s{sJ}, 1
        s_lshl_b32 s{sT1}, s{sT1}, 4
        s_add_u32 s{sT0}, s{sT0}, s{sT1}
        s_add_u32 s{sT0}, s{sT0}, {L_X}
        v_add_u32 v{vXW}, s{sT0}, v{vXW}
        """)
    else:
        a(f"v_add_u32 v{vXW}, 0x10000, v{vOST}")
    for ri in range(2):
        d = grp(ri, 0)
        for g in range(3):
            a(f"s_waitcnt lgkmcnt({10 - 6*ri - 2*g + (1 if (cfg.outB_t and ri) else 0)})")
            for i in range(4):
                a(f"v_pk_add_f32 {vr(d+2*i,2)}, {vr(d+2*i,2)}, {vr(tmp+24*ri+8*g+2*i,2)}")
        cvt(64 + 4 * ri, d, 4)
        if cfg.outB_t:
            a(f"ds_write_b128 v{vXW}, {vr(64+4*ri,4)} offset:{ri*4096}")
        else:
            a(f"buffer_store_dwordx4 {vr(64+4*ri,4)}, v{vXW if ri else vOST}, {sr(rOUT,4)}, 0 offen offset:1024 {cfg.out_sc}")
    if cfg.outB_t:
        a(f"""
        s_lshl_b32 s{sT0}, s{sJ}, 11
        v_add_u32 v{vOWN}, s{sT0}, v{vOWN}
        v_lshrrev_b32 v{vT1}, 3, v{vLANE}
        v_lshlrev_b32 v{vOST}, 11, v{vT1}
        v_and_b32 v{vT1}, 7, v{vLANE}
        v_lshl_add_u32 v{vOST}, v{vT1}, 4, v{vOST}
        s_lshl_b32 s{sT0}, s{sRB}, 2
        s_add_u32 s{sT0}, s{sT0}, s{sJ}
        s_lshl_b32 s{sT0}, s{sT0}, 15
        s_lshl_b32 s{sT1}, s{sHG}, 7
        s_add_u32 s{sT0}, s{sT0}, s{sT1}
        s_add_u32 s{sT1}, s{sT0}, 0x4000
        s_waitcnt lgkmcnt(0)
        s_barrier
        ds_read_b128 {vr(72,4)}, v{vOWN}
        ds_read_b128 {vr(76,4)}, v{vOWN} offset:1024
        s_waitcnt lgkmcnt(1)
        buffer_store_dwordx4 {vr(72,4)}, v{vOST}, {sr(rOUT,4)}, s{sT0} offen offset:1024 {cfg.out_sc}
        s_waitcnt lgkmcnt(0)
        buffer_store_dwordx4 {vr(76,4)}, v{vOST}, {sr(rOUT,4)}, s{sT1} offen offset:1024 {cfg.out_sc}
        """)
    a.label("L_fin")
    stamp(13)
    if cfg.diag:
        da, db, base = cfg.diag
        ra = sPROF if da == 0 else 92
        if db == 0:
            a(f"s_mov_b32 s{sT2}, 0")
        elif db == 15:
            a(f"s_waitcnt vmcnt(0)\ns_memrealtime s[{sT0}:{sT1}]\ns_waitcnt lgkmcnt(0)\ns_sub_u32 s{sT2}, s{sT0}, s{ra}")
        elif db == 16:
            a(f"s_waitcnt vmcnt(0)\ns_memtime s[{sT0}:{sT1}]\ns_waitcnt lgkmcnt(0)\ns_sub_u32 s{sT2}, s{sT0}, s100\ns_lshr_b32 s{sT2}, s{sT2}, 4")
        else:
            a(f"s_sub_u32 s{sT2}, s94, s{ra}")
        a(f"s_add_u32 s{sT2}, s{sT2}, {base}\ns_min_u32 s{sT2}, s{sT2}, 30000")
        a(f"s_cmp_lg_u32 s{sW}, 0\ns_cbranch_scc1 L_end")
        if cfg.diag_wb: a("s_waitcnt vmcnt(0)\ns_sleep 100\nbuffer_wbl2 sc1\ns_waitcnt vmcnt(0)")
        a.label("L_diag")
        a(f"s_memrealtime s[{sT0}:{sT1}]\ns_waitcnt lgkmcnt(0)\ns_sub_u32 s{sT0}, s{sT0}, s{sPROF}\ns_cmp_lt_u32 s{sT0}, s{sT2}\ns_cbranch_scc1 L_diag")
    if cfg.prof:
        a("s_waitcnt vmcnt(0)")
        stamp(15)
        a(f"s_getreg_b32 s{sT2}, hwreg(HW_REG_XCC_ID)\nv_writelane_b32 v255, s{sT2}, 32")
        a(f"s_lshl_b32 s{sT0}, s2, 3\ns_add_u32 s{sT0}, s{sT0}, s{sW}\ns_lshl_b32 s{sT0}, s{sT0}, 8\ns_add_u32 s{sT0}, s{sT0}, {WS_PROF}")
        a(f"v_lshlrev_b32 v{vT}, 2, v{vLANE}")
        a(f"buffer_store_dword v255, v{vT}, {sr(rWS,4)}, s{sT0} offen")
        if cfg.tprof:
            a(f"s_add_u32 s{sT0}, s{sT0}, {WS_DBG - WS_PROF}\nbuffer_store_dword v252, v{vT}, {sr(rWS,4)}, s{sT0} offen")
    a("s_endpgm")

    SL = O
    a.label("L_slow")
    a("s_waitcnt vmcnt(0) lgkmcnt(0)")
    a(f"s_mov_b32 s{sREDO}, 1\ns_mov_b32 s{sKV}, s{sKV0}\ns_mov_b32 s{sCNT}, s{sNIT}")
    a(f"v_mov_b32 v{SL}, 0xff800000\nv_mov_b32 v{SL+1}, 0xff800000")
    a.label("L_slow_loop")
    a(f"buffer_load_dwordx4 {vr(RING,4)}, v{vOFFK}, {sr(rWS,4)}, s{sKV} offen sc1\ns_add_u32 s{sKV}, s{sKV}, 2048\ns_and_b32 s{sKV}, s{sKV}, 0x1ffff\ns_waitcnt vmcnt(0)")
    mfma(S, RING, Qf, "0")
    mfma(S + 16, RING, Qf + 4, "0")
    maxtree(SL, S, 16, init=True)
    maxtree(SL + 1, S + 16, 16, init=True)
    a(f"s_sub_u32 s{sCNT}, s{sCNT}, 1\ns_cmp_lg_u32 s{sCNT}, 0\ns_cbranch_scc1 L_slow_loop")
    crossmax(SL)
    a(f"""
    s_lshl_b32 s{sT0}, s{sW}, 8
    s_add_u32 s{sT0}, s{sT0}, {L_X + 28672}
    v_lshl_add_u32 v{vT}, v{vLANE}, 2, s{sT0}
    ds_write_b32 v{vT}, v{SL}
    v_xor_b32 v{vT}, 0x400, v{vT}
    s_waitcnt lgkmcnt(0)
    s_barrier
    ds_read_b32 v{SL+1}, v{vT}
    s_waitcnt lgkmcnt(0)
    v_max_f32 v{SL}, v{SL}, v{SL+1}
    v_sub_f32 v{SL}, 0, v{SL}
    v_mov_b32 v{SL+1}, v{SL}
    v_permlane32_swap_b32 v{SL}, v{SL+1}
    """)
    nmfill(SL)
    sr2 = Stream(2, 2)
    sr2.prologue(single=True)
    a(f"s_lshr_b32 s{sCNT}, s{sNIT}, 1\ns_nop 7\ns_nop 3")
    a.label("L_redo_loop")
    sr2.tile(0, looped=True)
    sr2.tile(1, looped=True)
    a(f"s_sub_u32 s{sCNT}, s{sCNT}, 1\ns_cmp_lg_u32 s{sCNT}, 0\ns_cbranch_scc1 L_redo_loop")
    smf(O + 16, sr2.ring(1)[2], S + 16 + 8)
    a("s_waitcnt vmcnt(0)\ns_branch L_tail")
    a.label("L_end")
    a("s_endpgm")
    npad = a.pad()
    head = open(f"cdna_kernels/{NAME}.s.ref").read().split("; Override launch")[0]
    txt = head + f"""; Written with a generator script of my own (gen/gen.py); no compiler output.
;
; One persistent launch, 256 workgroups x 8 waves, one workgroup per CU.  Workgroup (rb, hg) owns rows
; 64*rb..64*rb+63 and heads 4*hg..4*hg+3 of both branches; wave j and wave j+4 share head 4*hg+j.
;   waves 0-3 (role B): qkv projection of the softmax branch, publish K/V, stage operands for role A,
;                       24 of the 64 key tiles of the attention, output projection of the softmax branch
;   waves 4-7 (role A): stage operands for role B, qkv projection and feature maps of the linear branch,
;                       40 key tiles, kv reduction and o of the linear branch, its output projection
; Attention: S^T = K Q^T - offset (offset in the MFMA's C operand), v_exp_f32 in place, and P V through the
; 2:4-sparse MFMA, whose index picks the high halves of the fp32 P registers (bf16 by truncation); a row of
; ones in the V operand gives the row sums from the same P.
; Softmax offset: maximum over the workgroup's own 64 keys, +{cfg.bias:.0f} in log2 units.  That maximum is a lower
; bound of the row maximum, so a term can only underflow if it is below 2^-{126-cfg.bias:.0f} of the row's largest term
; (less than half an fp32 ulp of it).  After the loop every wave checks its sums; on overflow, NaN or a row
; about to underflow the whole workgroup recomputes with the true row maximum (L_slow).
; Hand-offs between workgroups go through d_ws with sc1 stores and sc1 loads.  Flags are cleared in-launch by
; workgroups 0-7, which then set d_debug[0..7]; nobody touches a flag before seeing all eight.  o of the
; softmax branch carries its own validity: its words are first set to all ones (never a data value) and a
; consumer uses a block only when none of its words is all ones.  Every wait loop is bounded.
; @launch grid=(256,1,1) block=(512,1,1) lds={LDS_SIZE}
.amdgcn_target "amdgcn-amd-amdhsa--gfx950"
.text
.globl {NAME}_kernel
.p2align 8
.type {NAME}_kernel,@function
{NAME}_kernel:
""" + a.text() + f""".section .rodata,"a"
.p2align 6
.amdhsa_kernel {NAME}_kernel
  .amdhsa_next_free_vgpr 256
  .amdhsa_next_free_sgpr 102
  .amdhsa_accum_offset 256
  .amdhsa_group_segment_fixed_size 0
  .amdhsa_kernarg_size 80
  .amdhsa_user_sgpr_count 2
  .amdhsa_user_sgpr_kernarg_segment_ptr 1
  .amdhsa_system_sgpr_workgroup_id_x 1
.end_amdhsa_kernel
"""
    return txt, npad

if __name__ == "__main__":
    kw = {}
    out = f"cdna_kernels/{NAME}.s"
    for arg in sys.argv[1:]:
        k, v = arg.split("=", 1)
        if k == "out":
            out = v
        else:
            kw[k] = eval(v)
    txt, npad = gen(Cfg(**kw))
    open(out, "w").write(txt)
    print("wrote", out, "nop states inserted:", npad, "lines:", txt.count("\n"))
```

```python
import math, struct, sys
from asmlib import Asm, vr, sr

NAME = "concat_heads__linear_kernel_hedgehog__softmax_full_mha__prompt"

def f2u(x):
    return struct.unpack("<I", struct.pack("<f", x))[0]

class Cfg:
    prof = False
    stop = 99
    mapping = "N"
    force_redo = False
    nrep = 8
    bias = 100.0
    out_sc = "sc1"
    prio = True
    pref_sc = ''
    rot = (4, 4, 2)
    rotA = (1, 2, 1)
    sprefB = 0
    look = 2
    nB = 24
    depB, depA = 4, 4
    redT = (8, 10, 12, 15)
    jobT = (0, 20, 22, 24, 27)
    prioB = ((0, 0),)
    prioA = ((0, 3),)
    kvrot = True
    diag_wb = False
    split_ld = False
    earlyset = True
    weave = False
    woB = None
    poisT = 18
    fin8 = True
    peek = True
    hintpos = 2
    gprio = (2, 0, 2)
    abar = True
    swo = False
    sslowAx = True
    outB_t = True
    hs = 32
    prebar = 0
    m16 = True
    tailprio = 1
    ob_st = 'sc1'
    ob_ld = 'sc1'
    l2A = None
    pre9 = 1
    bnear = False
    sslow = 'b'
    sslowA = (0, 6)
    outA_t = True
    outA_sc = 'sc1'
    nfirst = 1
    gat_at = -1
    a3 = True
    slowpref = ''
    tprof = False
    skip = ()
    tailmode = 0
    drq = 4
    aload = 10
    hintw = 7
    tsleep = 0
    coupled = True
    lastA = 9
    flag_at = 10
    pollB = 13
    kvB = 14
    barT = (0,)
    woT = 1
    upA, upB = 26, 17
    oaT = (35, 36)
    itB = 9
    redB = 5
    hold8 = 1
    onepoll = True
    psleep = 2
    hold9 = False
    prB = (4, 1)
    prA = (3, 1)
    wopref = False
    oa_first = True
    spref = None
    codepref = 'xcd'
    ninit = 2
    pref = 'uniq'
    prefA = (99, 99)
    spin = 1 << 21
    diag = None
    def __init__(self, **kw):
        for k, v in kw.items():
            assert hasattr(self, k), k
            setattr(self, k, v)
        if self.m16: self.a3 = False

WS_KV = 0
WS_OA = 4 << 20
WS_OB = 6 << 20
WS_P = 8 << 20
WS_F = 11 << 20
WS_FL = (11 << 20) + 65536
FL_P = WS_FL
FL_F = FL_P + 4096
FL_OA = FL_F + 4096
FL_KV = FL_OA + 4096
FL_OB = FL_KV + 8192
WS_PROF = 12 << 20
WS_DBG = 13 << 20
WS_SIZE = 16 << 20

L_WA = 0
L_WB = 65536
L_X = 131072
L_XM = L_X + 8192
L_XC = L_X + 10240
L_XV = L_X + 12288
L_XR = L_X + 28672
L_BAD = L_X + 32512
C_KV, C_WO, C_GO, C_RD, C_OA, C_OB, C_UP, C_DR = 4, 8, 12, 16, 20, 24, 28, 68
LDS_SIZE = 163840

sW, sJ, sRB, sHG, sH = 3, 4, 5, 6, 7
rXB, rWB, rXA, rWA, rWS, rOUT, rMISC, rDBG = 8, 12, 16, 20, 24, 28, 32, 36
kAX, kAW, kAP, kAO, kBX, kBW, kBO, kOUT, kDBG, kWS = range(40, 60, 2)
sM, sO0, sO1, sO2 = 60, 61, 62, 63
sC = 64
sVM = 66
sCNT, sKV, sKVMAX, sWO, sWOM, sREDO = 68, 69, 70, 71, 72, 73
sT0, sT1, sT2, sT3 = 74, 75, 76, 77
sSPIN = 78
sKV0 = 79
sROT = 82
sROTA = 70
sNIT = 83
sJB, sJL = 90, 91
sPROF = 80

vL16, vLANE = 0, 1
vT = 2
vX0, vX1, vWq, vWk, vWv = 3, 4, 5, 6, 7
vXA = 8
vQK, vV = 12, 13
vPX, vPW = 34, 35
vXB = 24
vT1, vT2 = 14, 15
vCNT, vONE = 254, 253
vOFFV, vIDX = 250, 251
vWOA = 5
Qf = 16
PHI = 24
NM = 40
O = 72
S = 104
RING = 136
SCR = 184
FR = 104
ACC = 184

def gen(cfg):
    a = Asm()
    uid = [0]
    def lab(p):
        uid[0] += 1
        return f"L_{p}_{uid[0]}"
    nstamp = [0]
    def stamp(idx):
        if cfg.prof:
            a(f"s_memrealtime s[96:97]\ns_memtime s[98:99]\ns_waitcnt lgkmcnt(0)\nv_writelane_b32 v255, s96, {idx}\nv_writelane_b32 v255, s98, {16+idx}")
        elif cfg.diag and idx in cfg.diag[:2]:
            a(f"s_memrealtime {sr(92 if idx == cfg.diag[0] else 94, 2)}\ns_waitcnt lgkmcnt(0)")
    def srd(r, k, size):
        a(f"s_mov_b32 s{r}, s{k}\ns_mov_b32 s{r+1}, s{k+1}\ns_mov_b32 s{r+2}, {size}\ns_mov_b32 s{r+3}, 0x00020000")
    def mfma(d, x, y, c):
        cc = c if isinstance(c, str) else vr(c, 16)
        a(f"v_mfma_f32_32x32x16_bf16 {vr(d,16)}, {vr(x,4)}, {vr(y,4)}, {cc}")
    def cvt(d, s0, n):
        for i in range(n):
            a(f"v_cvt_pk_bf16_f32 v{d+i}, v{s0+2*i}, v{s0+2*i+1}")
    def poll(vaddr, vdst, mask, srdr=rWS, soff="0", first_issued=False, sleep=0):
        lp, dn = lab("poll"), lab("polld")
        a(f"s_mov_b64 exec, {mask}" if isinstance(mask, str) else f"s_mov_b32 exec_lo, {mask & 0xffffffff}\ns_mov_b32 exec_hi, {mask >> 32}")
        a(f"s_mov_b32 s{sSPIN}, {cfg.spin}")
        if first_issued:
            a(f"v_cmp_eq_u32 vcc, 0, v{vdst}\ns_cbranch_vccz {dn}")
        a.label(lp)
        if sleep: a(f"s_sleep {sleep}")
        a(f"buffer_load_dword v{vdst}, v{vaddr}, {sr(srdr,4)}, {soff} offen sc1")
        a(f"s_sub_u32 s{sSPIN}, s{sSPIN}, 1\ns_cbranch_scc1 {dn}")
        a(f"s_waitcnt vmcnt(0)\nv_cmp_eq_u32 vcc, 0, v{vdst}\ns_cbranch_vccnz {lp}")
        a.label(dn)
        a("s_mov_b64 exec, -1")
    def flag(vaddr, mask, soff="0", srdr=rWS):
        a(f"v_mov_b32 v{vT2}, 1")
        mask = int(mask, 0)
        a(f"s_mov_b32 exec_lo, {mask & 0xffffffff}\ns_mov_b32 exec_hi, {mask >> 32}")
        a(f"buffer_store_dword v{vT2}, v{vaddr}, {sr(srdr,4)}, {soff} offen sc1")
        a("s_mov_b64 exec, -1")

    def nmfill(src):
        assert src % 2 == 0
        for i in range(0, 16, 2):
            a(f"v_pk_mov_b32 {vr(NM+i,2)}, {vr(src,2)}, {vr(src,2)} op_sel:[0,0]\nv_pk_mov_b32 {vr(NM+16+i,2)}, {vr(src,2)}, {vr(src,2)} op_sel:[1,1]")
    def arrive(off):
        a(f"s_mov_b64 exec, 1\nds_add_u32 v{vCNT}, v{vONE} offset:{off}\ns_mov_b64 exec, -1")
    def await_cnt(off, target):
        lp, dn = lab("cw"), lab("cwd")
        a(f"s_mov_b64 exec, 1\ns_mov_b32 s{sSPIN}, {cfg.spin * 16}")
        a.label(lp)
        a(f"ds_read_b32 v{vT2}, v{vCNT} offset:{off}\ns_sub_u32 s{sSPIN}, s{sSPIN}, 1\ns_cbranch_scc1 {dn}")
        a(f"s_waitcnt lgkmcnt(0)\nv_cmp_gt_u32 vcc, {target}, v{vT2}\ns_cbranch_vccnz {lp}")
        a.label(dn)
        a("s_mov_b64 exec, -1")

    a(f"s_cmp_ge_u32 s2, 256\ns_cbranch_scc1 L_end")
    a(f"s_load_dwordx2 {sr(rXB,2)}, s[0:1], 32\ns_load_dwordx2 {sr(rWB,2)}, s[0:1], 40")
    a(f"s_load_dwordx16 s[40:55], s[0:1], 0\ns_load_dwordx4 s[56:59], s[0:1], 64")
    if cfg.prof or cfg.diag:
        a(f"s_memrealtime {sr(sPROF,2)}\ns_memtime s[100:101]")
    def code_prefetch(tag):
        a(f"s_getpc_b64 s[{sT0}:{sT1}]")
        a.label(f"L_pc{tag}")
        a(f"s_sub_u32 s{sT0}, s{sT0}, L_pc{tag}-{NAME}_kernel\ns_subb_u32 s{sT1}, s{sT1}, 0")
        a(f"s_lshr_b32 s{sT2}, s2, 3\ns_lshl_b32 s{sT2}, s{sT2}, 2\ns_add_u32 s{sT2}, s{sT2}, s{sJ}\ns_mul_i32 s{sT2}, s{sT2}, 3")
        a(f"v_min_u32 v{vT}, 2, v{vLANE}\nv_add_u32 v{vT}, s{sT2}, v{vT}")
        a(f"v_lshlrev_b32 v{vT}, 7, v{vT}\nv_min_u32 v{vT}, L_end-{NAME}_kernel, v{vT}")
        a(f"global_load_dword v39, v{vT}, s[{sT0}:{sT1}]")
    a(f"v_lshrrev_b32 v{vT}, 6, v0\nv_and_b32 v{vLANE}, 63, v0\nv_readfirstlane_b32 s{sW}, v{vT}")
    if cfg.mapping == "R":
        a(f"s_and_b32 s{sT0}, s2, 7\ns_lshl_b32 s{sT0}, s{sT0}, 2\ns_bfe_u32 s{sT1}, s2, 0x20003\ns_add_u32 s{sRB}, s{sT0}, s{sT1}\ns_lshr_b32 s{sHG}, s2, 5")
    elif cfg.mapping == "H":
        a(f"s_and_b32 s{sHG}, s2, 7\ns_lshr_b32 s{sRB}, s2, 3")
    elif cfg.mapping == "M":
        a(f"s_and_b32 s{sT0}, s2, 3\ns_lshl_b32 s{sT0}, s{sT0}, 1\ns_bfe_u32 s{sT1}, s2, 0x10003\ns_add_u32 s{sHG}, s{sT0}, s{sT1}")
        a(f"s_bfe_u32 s{sT0}, s2, 0x10002\ns_lshl_b32 s{sT0}, s{sT0}, 4\ns_lshr_b32 s{sT1}, s2, 4\ns_add_u32 s{sRB}, s{sT0}, s{sT1}")
    elif cfg.mapping == "N":
        a(f"s_and_b32 s{sT0}, s2, 1\ns_lshl_b32 s{sT0}, s{sT0}, 2\ns_bfe_u32 s{sT1}, s2, 0x20003\ns_add_u32 s{sHG}, s{sT0}, s{sT1}")
        a(f"s_bfe_u32 s{sT0}, s2, 0x20001\ns_lshl_b32 s{sT0}, s{sT0}, 3\ns_lshr_b32 s{sT1}, s2, 5\ns_add_u32 s{sRB}, s{sT0}, s{sT1}")
    a(f"s_and_b32 s{sJ}, s{sW}, 3")
    def rotation(reg, rot):
        if rot:
            a(f"s_mul_i32 s{reg}, s{sHG}, {rot[1]}\ns_mul_i32 s{sT0}, s{sRB}, {rot[0]}\ns_add_u32 s{reg}, s{reg}, s{sT0}")
            a(f"s_lshr_b32 s{sT0}, s{sHG}, 2\ns_mul_i32 s{sT0}, s{sT0}, {rot[2]}\ns_add_u32 s{reg}, s{reg}, s{sT0}")
    def late_setup():
        a(f"s_lshl_b32 s{sH}, s{sHG}, 2\ns_add_u32 s{sH}, s{sH}, s{sJ}")
        a(f"v_lshlrev_b32 v{vL16}, 4, v{vLANE}\nv_mov_b32 v{vCNT}, {L_BAD}\nv_mov_b32 v{vONE}, 1")
        rotation(sROTA, cfg.rotA)
    def xslow(reg, k):
        a(f"""
        s_lshr_b32 s{sT0}, s2, 3
        s_lshl_b32 s{sT0}, s{sT0}, 2
        s_add_u32 s{sT0}, s{sT0}, s{sJ}
        s_lshl_b32 s{sT0}, s{sT0}, 12
        s_bfe_u32 s{sT1}, s2, 0x20001
        s_lshl_b32 s{sT1}, s{sT1}, 19
        s_add_u32 s{sT0}, s{sT0}, s{sT1}
        s_add_u32 s{sT0}, s{sT0}, 384
        s_add_u32 s{reg}, s{k}, s{sT0}
        s_addc_u32 s{reg+1}, s{k+1}, 0
        """)
    def loader_addrs():
        a(f"s_lshl_b32 s{sM}, s{sJ}, 11")
        a(f"""
        v_lshrrev_b32 v{vT1}, 3, v{vLANE}
        v_and_b32 v{vT2}, 7, v{vLANE}
        s_lshl_b32 s{sT0}, s{sRB}, 6
        s_lshl_b32 s{sT1}, s{sJ}, 4
        s_add_u32 s{sT0}, s{sT0}, s{sT1}
        v_add_u32 v{vT}, s{sT0}, v{vT1}
        v_lshlrev_b32 v{vT}, 10, v{vT}
        v_lshrrev_b32 v{vX0}, 1, v{vT1}
        v_xor_b32 v{vX0}, v{vX0}, v{vT2}
        v_lshl_add_u32 v{vX0}, v{vX0}, 4, v{vT}
        v_add_u32 v{vX1}, 0x2000, v{vX0}
        v_xor_b32 v{vX1}, 64, v{vX1}
        v_add_u32 v{vT}, s{sT1}, v{vT1}
        v_mul_u32_u24 v{vT}, 0xc00, v{vT}
        s_lshl_b32 s{sT2}, s{sHG}, 7
        v_add_u32 v{vT}, s{sT2}, v{vT}
        v_bfe_u32 v{vT1}, v{vLANE}, 4, 1
        v_lshlrev_b32 v{vWq}, 1, v{vT1}
        v_xor_b32 v{vWq}, v{vWq}, v{vT2}
        v_xor_b32 v{vWk}, 4, v{vWq}
        """)
        if cfg.m16:
            a(f"v_lshl_add_u32 v{vWq}, v{vWq}, 4, v{vT}\nv_lshl_add_u32 v{vWk}, v{vWk}, 4, v{vT}")
        else:
            a(f"""
            v_lshlrev_b32 v{vWv}, 2, v{vT1}
            v_xor_b32 v{vWv}, v{vWv}, v{vT2}
            v_lshl_add_u32 v{vWq}, v{vWq}, 4, v{vT}
            v_lshl_add_u32 v{vWk}, v{vWk}, 4, v{vT}
            v_lshl_add_u32 v{vWv}, v{vWv}, 4, v{vT}
            v_add_u32 v{vWk}, 0x400, v{vWk}
            v_add_u32 v{vWv}, 0x800, v{vWv}
            """)
    def kernargs():
        a(f"s_mov_b32 s{rXB+2}, {2048*1024}\ns_mov_b32 s{rXB+3}, 0x00020000\ns_mov_b32 s{rWB+2}, {512*3072}\ns_mov_b32 s{rWB+3}, 0x00020000")
        a("s_waitcnt lgkmcnt(0)")
        if cfg.prof:
            a(f"v_writelane_b32 v255, s{sPROF}, 0\nv_writelane_b32 v255, s100, 16")
    def binit():
        if cfg.pref:
            assert cfg.mapping == "N"
            nw, nx = (48, 32) if cfg.pref == "xcd" else (12, 16)
            a(f"""
            s_lshr_b32 s{sT0}, s2, 3
            s_lshl_b32 s{sT1}, s{sT0}, 2
            s_add_u32 s{sT1}, s{sT1}, s{sJ}
            s_mul_i32 s{sT2}, s{sT1}, {nw}
            s_bfe_u32 s{sT3}, s2, 0x20001
            """)
            if cfg.pref != "xcd":
                a(f"s_mul_i32 s{sT0}, s{sT3}, 1536\ns_add_u32 s{sT2}, s{sT2}, s{sT0}")
            a(f"""
            v_min_u32 v{vT}, {nw-1}, v{vLANE}
            v_add_u32 v{vT}, s{sT2}, v{vT}
            v_lshrrev_b32 v{vT1}, 2, v{vT}
            v_and_b32 v{vT}, 3, v{vT}
            v_lshlrev_b32 v{vT}, 7, v{vT}
            v_lshl_add_u32 v{vPW}, v{vT1}, 10, v{vT}
            s_and_b32 s{sT2}, s2, 1
            s_lshl_b32 s{sT0}, s{sT2}, 9
            v_add_u32 v{vPW}, s{sT0}, v{vPW}
            s_mul_i32 s{sT1}, s{sT1}, {nx*128}
            s_lshl_b32 s{sT3}, s{sT3}, 19
            s_add_u32 s{sT1}, s{sT1}, s{sT3}
            """)
            if cfg.pref != "xcd":
                a(f"s_lshl_b32 s{sT2}, s{sT2}, 18\ns_add_u32 s{sT1}, s{sT1}, s{sT2}")
            a(f"""
            v_min_u32 v{vT}, {nx-1}, v{vLANE}
            v_lshl_add_u32 v{vPX}, v{vT}, 7, s{sT1}
            """)
        kernargs()
        if cfg.pref:
            a(f"buffer_load_dword v36, v{vPW}, {sr(rWB,4)}, 0 offen {cfg.pref_sc}\nbuffer_load_dword v37, v{vPX}, {sr(rXB,4)}, 0 offen {cfg.pref_sc}")
    if cfg.bnear:
        a(f"s_cmp_ge_u32 s{sW}, 4\ns_cbranch_scc1 L_roleA")
        binit()
        code_prefetch("B")
        a("s_branch L_roleB")
        a.label("L_roleA")
    else:
        a(f"s_cmp_lt_u32 s{sW}, 4\ns_cbranch_scc1 L_roleB")
    loader_addrs()
    rotation(sROT, cfg.rot)
    kernargs()

    def chunk_pieces(c):
        rx, rw = (rXB, rWB) if c < 8 else (rXA, rWA)
        cc = c % 8
        slot = (c % 4) * 32768
        if (cfg.rot if c < 8 else cfg.rotA):
            head = f"s_add_u32 s{sO0}, s{sROT if c < 8 else sROTA}, {cc}\ns_and_b32 s{sO0}, s{sO0}, 7\ns_mul_i32 s{sO1}, s{sO0}, {64*3072}\n"
            head += f"s_lshl_b32 s{sO0}, s{sO0}, 7\ns_add_u32 s{sO2}, s{sO1}, {8*3072}\n"
        else:
            head = f"s_mov_b32 s{sO0}, {128*cc}\ns_mov_b32 s{sO1}, {cc*64*3072}\ns_mov_b32 s{sO2}, {cc*64*3072+8*3072}\n"
        ld = []
        for par in range(2):
            ld.append(f"s_add_u32 m0, s{sM}, {slot + par*1024}\nbuffer_load_dwordx4 v{vX0+par}, {sr(rx,4)}, s{sO0} offen lds\n")
            for seg in range(3):
                if cfg.m16:
                    ld.append(f"s_add_u32 m0, s{sM}, {slot + 8192*(1+seg) + par*1024 - seg*1024}\nbuffer_load_dwordx4 v{vWq+par}, {sr(rw,4)}, s{sO1+par} offen offset:{seg*1024} lds\n")
                else:
                    ld.append(f"s_add_u32 m0, s{sM}, {slot + 8192*(1+seg) + par*1024}\nbuffer_load_dwordx4 v{vWq+seg}, {sr(rw,4)}, s{sO1+par} offen lds\n")
        ld[0] = head + ld[0]
        return ld
    def issue_chunk(c):
        for t in chunk_pieces(c): a(t)

    def compute_addrs(role):
        if cfg.m16:
            a(f"""
            v_and_b32 v{vT}, 15, v{vLANE}
            v_lshrrev_b32 v{vT1}, 4, v{vLANE}
            v_lshrrev_b32 v{vT2}, 1, v{vT}
            v_xor_b32 v{vT2}, v{vT2}, v{vT1}
            v_lshlrev_b32 v{vT2}, 4, v{vT2}
            v_lshl_add_u32 v{vXA}, v{vT}, 7, v{vT2}
            v_xor_b32 v{vXA+1}, 64, v{vXA}
            v_bfe_u32 v{vT}, v{vLANE}, 2, 2
            v_lshl_add_u32 v{vT}, v{vT1}, 3, v{vT}
            v_lshlrev_b32 v{vT}, 7, v{vT}
            v_and_b32 v{vT2}, 3, v{vLANE}
            v_lshl_add_u32 v{vT}, v{vT2}, 3, v{vT}
            v_bfe_u32 v{vT1}, v{vLANE}, 3, 2
            v_xor_b32 v{vT1}, s{sJ}, v{vT1}
            v_lshl_add_u32 v{vQK}, v{vT1}, 5, v{vT}
            v_add_u32 v{vQK}, 0x2000, v{vQK}
            """)
            return
        a(f"""
        v_and_b32 v{vT}, 31, v{vLANE}
        v_lshrrev_b32 v{vT1}, 5, v{vLANE}
        v_bfe_u32 v{vT2}, v{vLANE}, 1, 3
        v_xor_b32 v{vT2}, v{vT2}, v{vT1}
        v_lshlrev_b32 v{vT2}, 4, v{vT2}
        v_lshl_add_u32 v{vXA}, v{vT}, 7, v{vT2}
        v_xor_b32 v{vXA+1}, 32, v{vXA}
        v_xor_b32 v{vXA+2}, 64, v{vXA}
        v_xor_b32 v{vXA+3}, 0x60, v{vXA}
        v_bfe_u32 v{vT}, v{vLANE}, 2, 2
        v_lshl_add_u32 v{vT}, v{vT1}, 3, v{vT}
        v_lshlrev_b32 v{vT}, 7, v{vT}
        v_and_b32 v{vT1}, 3, v{vLANE}
        v_lshl_add_u32 v{vT}, v{vT1}, 3, v{vT}
        v_bfe_u32 v{vT1}, v{vLANE}, 4, 1
        v_bfe_u32 v{vT2}, v{vLANE}, 3, 1
        v_lshl_add_u32 v{vQK}, v{vT1}, 1, v{vT2}
        v_xor_b32 v{vQK}, s{sJ}, v{vQK}
        v_lshl_add_u32 v{vQK}, v{vQK}, 5, v{vT}
        v_lshl_add_u32 v{vQK}, v{vT1}, 13, v{vQK}
        v_add_u32 v{vQK}, 0x2000, v{vQK}
        v_lshlrev_b32 v{vT2}, 1, v{vT2}
        """)
        if role == "B" or cfg.a3:
            a(f"s_and_b32 s{sT0}, s{sJ}, 2\nv_add_u32 v{vT1}, s{sT0}, v{vT1}\nv_xor_b32 v{vV}, v{vT1}, v{vT2}")
        else:
            a(f"v_xor_b32 v{vV}, s{sJ}, v{vT2}")
        a(f"v_lshl_add_u32 v{vV}, v{vV}, 5, v{vT}\nv_add_u32 v{vV}, 0x6000, v{vV}")
        if role == "B" or cfg.a3:
            a(f"s_and_b32 s{sT0}, s{sJ}, 1\ns_lshl_b32 s{sT0}, s{sT0}, 12")
            for i in range(4):
                a(f"v_add_u32 v{vXA+i}, s{sT0}, v{vXA+i}\nv_xor_b32 v{vXB+i}, 0x1000, v{vXA+i}")

    def gemm16(role, pre_barrier, post_barrier):
        c0 = 0 if role == "B" else 8
        def m16(d, x, y, first):
            a(f"v_mfma_f32_16x16x32_bf16 {vr(d,4)}, {vr(x,4)}, {vr(y,4)}, {'0' if first else vr(d,4)}")
        def fr(buf):
            b = FR + 28 * buf
            return dict(x=b, q=b + 16, k=b + 20, v=b + 24)
        def reads(n, part):
            c, ks, f = c0 + n // 2, n % 2, fr(n % 2)
            so = (c % 2) * 32768
            nm, seg = (("k", 1), ("q", 0), ("v", 2))[part]
            a(f"ds_read_b64_tr_b16 {vr(f[nm],2)}, v{vQK} offset:{so + seg*8192 + ks*4096}")
            a(f"ds_read_b64_tr_b16 {vr(f[nm]+2,2)}, v{vQK} offset:{so + seg*8192 + ks*4096 + 512}")
            if part < 2:
                for T in (2 * part, 2 * part + 1):
                    a(f"ds_read_b128 {vr(f['x']+4*T,4)}, v{vXA+ks} offset:{so + T*2048}")
        pre_barrier(c0)
        a("s_barrier")
        for p in range(3): reads(0, p)
        post_barrier(c0)
        for n in range(16):
            c, ks, f = c0 + n // 2, n % 2, fr(n % 2)
            z = n == 0
            Q = lambda T: m16(ACC + 4 * T, f["q"], f["x"] + 4 * T, z)
            K = lambda T: m16(ACC + 16 + 4 * T, f["k"], f["x"] + 4 * T, z)
            V = lambda T: m16(ACC + 32 + 4 * T, f["x"] + 4 * T, f["v"], z)
            nx = (lambda p: reads(n + 1, p)) if n < 15 else (lambda p: None)
            w = (lambda k: a(f"s_waitcnt lgkmcnt({k})")) if ks == 0 else (lambda k: None)
            if ks == 1:
                a("s_waitcnt lgkmcnt(0)")
                allm = [lambda: K(0), lambda: K(1), lambda: Q(0), lambda: Q(1), lambda: K(2), lambda: K(3), lambda: Q(2), lambda: Q(3),
                        lambda: V(0), lambda: V(1), lambda: V(2), lambda: V(3)]
                if n == 15 and role == "A": arrive(4 * 16)
                for m_ in allm[:cfg.prebar]: m_()
                if n < 15:
                    pre_barrier(c + 1)
                    a("s_barrier")
                    post_barrier(c + 1)
                    if (c + 1) % 2 == 0:
                        for r in (vQK, vXA, vXA + 1):
                            a(f"v_xor_b32 v{r}, 0x10000, v{r}")
                rest = allm[cfg.prebar:]
                per = max(1, len(rest) // 4)
                for p in range(3):
                    nx(p)
                    for m_ in rest[:per]: m_()
                    rest = rest[per:]
                for m_ in rest: m_()
                continue
            w(6); K(0); K(1); nx(0)
            w(6); Q(0); Q(1); K(2); K(3); nx(1); Q(2); Q(3)
            w(8); V(0); V(1); nx(2); V(2); V(3)
    def swap16(r):
        a(f"v_permlane16_swap_b32 v{r}, v{r+2}\nv_permlane16_swap_b32 v{r+1}, v{r+3}")
    def gemm(role, pre_barrier, post_barrier, mid=lambda: None):
        if cfg.m16: return gemm16(role, pre_barrier, post_barrier)
        c0 = 0 if role == "B" else 8
        def fr(buf):
            b = FR + 16 * buf
            return dict(x0=b, x1=b + 4, qk=b + 8, v=b + 12)
        def reads(n, part):
            c, kk, f = c0 + n // 4, n % 4, fr(n % 2)
            so = (c % 2) * 32768
            if part == 0:
                a(f"ds_read_b64_tr_b16 {vr(f['qk'],2)}, v{vQK} offset:{so + kk*2048}")
                a(f"ds_read_b64_tr_b16 {vr(f['qk']+2,2)}, v{vQK} offset:{so + kk*2048 + 512}")
                a(f"ds_read_b128 {vr(f['x0'],4)}, v{vXA+kk} offset:{so}")
            else:
                if role == "B" or cfg.a3:
                    a(f"ds_read_b128 {vr(f['x1'],4)}, v{vXB+kk} offset:{so}")
                else:
                    a(f"ds_read_b128 {vr(f['x1'],4)}, v{vXA+kk} offset:{so + 4096}")
                a(f"ds_read_b64_tr_b16 {vr(f['v'],2)}, v{vV} offset:{so + kk*2048}")
                a(f"ds_read_b64_tr_b16 {vr(f['v']+2,2)}, v{vV} offset:{so + kk*2048 + 512}")
        def tgt(c): return 8 if (c == 9 and not cfg.hold8) else 4
        pre_barrier(c0)
        if role == "B" or cfg.coupled:
            a("s_barrier")
        else:
            arrive(4 * c0); await_cnt(4 * c0, tgt(c0))
        reads(0, 0); reads(0, 1)
        post_barrier(c0)
        for n in range(32):
            c, kk, f = c0 + n // 4, n % 4, fr(n % 2)
            cz = (lambda r: "0") if n == 0 else (lambda r: r)
            def toggle():
                if (c + 1) % 2 == 0 and n < 31:
                    for r in [vQK, vXA, vV, vXA + 1, vXA + 2, vXA + 3] + ([vXB + i for i in range(4)] if (role == "B" or cfg.a3) else []):
                        a(f"v_xor_b32 v{r}, 0x10000, v{r}")
            if kk == 3 and role == "A" and not cfg.coupled:
                a("s_waitcnt lgkmcnt(0)")
                pre_barrier(c + 1)
                arrive(4 * (c + 1))
                mfma(ACC, f["qk"], f["x0"], ACC)
                mfma(ACC + 16, f["qk"], f["x1"], ACC + 16)
                toggle()
                if n < 31:
                    await_cnt(4 * (c + 1), tgt(c + 1))
                    reads(n + 1, 0); reads(n + 1, 1)
                post_barrier(c + 1)
                mfma(ACC + 32, f["x0"], f["v"], ACC + 32)
                mid()
                mfma(ACC + 48, f["x1"], f["v"], ACC + 48)
                mid()
                continue
            if kk == 3:
                a("s_waitcnt lgkmcnt(0)")
                if n < 31:
                    pre_barrier(c + 1)
                    a("s_barrier")
                    post_barrier(c + 1)
                elif role == "A" and not cfg.a3:
                    arrive(4 * 16)
                elif not cfg.hold8 and not cfg.coupled:
                    arrive(4 * 9)
                toggle()
            else:
                a("s_waitcnt lgkmcnt(3)")
            mfma(ACC, f["qk"], f["x0"], cz(ACC))
            if n < 31: reads(n + 1, 0)
            if kk != 3: a("s_waitcnt lgkmcnt(3)")
            mfma(ACC + 16, f["qk"], f["x1"], cz(ACC + 16))
            if n < 31: reads(n + 1, 1)
            mfma(ACC + 32, f["x0"], f["v"], cz(ACC + 32))
            if role == "A" and not cfg.a3:
                mid()
                mfma(ACC + 48, f["x1"], f["v"], cz(ACC + 48))
                mid()

    vOFFK = 8
    def smf(d, va, p):
        a(f"v_smfmac_f32_32x32x32_bf16 {vr(d,16)}, {vr(va,4)}, {vr(p,8)}, v{vIDX}")
    def att_setup(first, ntiles):
        a(f"""
        s_mov_b32 s{sREDO}, 0
        s_lshl_b32 s{sT0}, s{sH}, 17
        v_add_u32 v{vOFFK}, s{sT0}, v{vL16}
        v_lshrrev_b32 v{vT}, 5, v{vLANE}
        v_and_b32 v{vT1}, 15, v{vLANE}
        v_lshlrev_b32 v{vT1}, 4, v{vT1}
        v_lshl_add_u32 v{vOFFV}, v{vT}, 8, v{vT1}
        v_add_u32 v{vOFFV}, s{sT0}, v{vOFFV}
        v_mov_b32 v{vIDX}, 0xdddd
        s_mov_b32 s{sVM}, 0xffff
        s_mov_b32 s{sVM+1}, 0xffff
        s_mov_b32 s{sNIT}, {ntiles}
        """)
        if cfg.kvrot:
            a(f"s_and_b32 s{sKV0}, s{sRB}, 7\ns_lshl_b32 s{sKV0}, s{sKV0}, 14\ns_add_u32 s{sKV0}, s{sKV0}, {first*2048}\ns_and_b32 s{sKV0}, s{sKV0}, 0x1ffff")
        else:
            a(f"s_mov_b32 s{sKV0}, {first*2048}")
    class Stream:
        def __init__(self, depth, ntiles, init=()):
            self.d, self.n, self.q = depth, ntiles, list(init)
        def ring(self, t):
            b = RING + 12 * (t % self.d)
            return b, b + 4, b + 8
        def push(self, tag, n=1):
            self.q.extend([tag] * n)
        def wait(self, tag):
            idx = [i for i, t in enumerate(self.q) if t == tag]
            if idx:
                a(f"s_waitcnt vmcnt({len(self.q) - 1 - idx[-1]})")
                self.q = self.q[idx[-1] + 1:]
        def kload(self, t, single=False):
            o = 0 if single else (t % 2) * 2048
            a(f"buffer_load_dwordx4 {vr(self.ring(t)[0],4)}, v{vOFFK}, {sr(rWS,4)}, s{sKV} offen offset:{o} sc1")
            self.push(("k", t))
        def vload(self, t, single=False):
            k, v0, v1 = self.ring(t)
            o = 0 if single else (t % 2) * 2048
            a(f"s_mov_b64 exec, {sr(sVM,2)}")
            a(f"buffer_load_dwordx4 {vr(v0,4)}, v{vOFFV}, {sr(rWS,4)}, s{sKV} offen offset:{o+1024} sc1")
            a(f"buffer_load_dwordx4 {vr(v1,4)}, v{vOFFV}, {sr(rWS,4)}, s{sKV} offen offset:{o+1536} sc1")
            a(f"s_mov_b64 exec, -1")
            if single or t % 2 == 1:
                a(f"s_add_u32 s{sKV}, s{sKV}, {2048 if single else 4096}\ns_and_b32 s{sKV}, s{sKV}, 0x1ffff")
            self.push(("kv", t), 2)
        def kvload(self, t, single=False):
            self.kload(t, single); self.vload(t, single)
        def setup(self, single=False):
            a(f"s_mov_b32 s{sKV}, s{sKV0}")
            a(f"v_and_b32 v{vT}, 27, v{vLANE}\nv_cmp_eq_u32 vcc, 16, v{vT}\nv_mov_b32 v{vT}, 0x3f803f80\nv_cndmask_b32 v{vT}, 0, v{vT}, vcc")
            for t in range(self.d):
                for i in range(4, 12):
                    a(f"v_mov_b32 v{RING+12*t+i}, v{vT}")
        def zero(self, single=False):
            for i in range(32):
                a(f"v_mov_b32 v{O+i}, 0")
            if single:
                for i in range(8):
                    a(f"v_mov_b32 v{S+16+8+i}, 0")
        def first(self, single=False):
            for t in range(self.d - 1): self.kvload(t, single)
            if cfg.split_ld and not single: self.kload(self.d - 1)
        def start(self, single=False):
            self.wait(("k", 0) if (cfg.split_ld and not single) else ("kv", 0))
            mfma(S, self.ring(0)[0], Qf, NM)
        def prologue(self, single=False):
            self.setup(single); self.first(single); self.zero(single); self.start(single)
        def tile(self, t, looped=False, extra=None):
            k, v0, v1 = self.ring(t)
            split = cfg.split_ld and not looped
            for qb in range(2):
                cur, oth = S + 16 * qb, S + 16 * (1 - qb)
                def ex(i): a(f"v_exp_f32 v{cur+i}, v{cur+i}")
                ex(0); ex(1)
                if qb == 0:
                    if looped or t > 0: smf(O + 16, self.ring(t - 1)[2], oth + 8)
                    ex(2)
                    if looped or t + self.d - 1 < self.n:
                        if split: self.vload(t + self.d - 1)
                        else: self.kvload(t + self.d - 1, looped)
                    ex(3); ex(4)
                    mfma(oth, k, Qf + 4, NM + 16)
                    ex(5)
                    if split and t + self.d < self.n: self.kload(t + self.d)
                    for i in range(6, 10): ex(i)
                    if split: self.wait(("k", t + 1) if (cfg.split_ld == 2 and t + 1 < self.n) else ("kv", t))
                else:
                    smf(O, v1, oth + 8)
                    ex(2); ex(3)
                    if looped: a(f"s_waitcnt vmcnt({3 * (self.d - 2)})")
                    elif t + 1 < self.n: self.wait(("k" if split else "kv", t + 1))
                    ex(4)
                    if looped or t + 1 < self.n: mfma(oth, self.ring(t + 1)[0], Qf, NM)
                    for i in range(5, 10): ex(i)
                smf(O + 16 * qb, v0, cur)
                ex(10)
                if extra and qb == 1: extra()
                for i in range(11, 16): ex(i)
        def run(self, jobs, prio):
            pr = dict(prio) if cfg.prio else {}
            for t in range(self.n):
                if t in pr: a(f"s_setprio {pr[t]}")
                if cfg.tprof: a(f"s_memtime s[98:99]\ns_waitcnt lgkmcnt(0)\nv_writelane_b32 v252, s98, {t}")
                self.tile(t, extra=(lambda: [f() for f in jobs.get(t, [])]))
            smf(O + 16, self.ring(self.n - 1)[2], S + 16 + 8)

    if cfg.prof: stamp(4)
    vq = []
    def issue(c):
        issue_chunk(c); vq.extend([c] * 8)
    def wait_for(tag):
        n = len(vq) - 1 - max(i for i, t in enumerate(vq) if t == tag)
        a(f"s_waitcnt vmcnt({n})")
    for c in range(cfg.nfirst):
        issue(c)
    late_setup()
    if cfg.gprio[0]: a(f"s_setprio {cfg.gprio[0]}")
    srd(rXA, kAX, 2048 * 1024)
    srd(rWA, kAW, 512 * 3072)
    srd(rWS, kWS, WS_SIZE)
    srd(rOUT, kOUT, 2048 * 2048)
    srd(rMISC, kAP, 32 * 512)
    WP, IDP = 248, 40
    vMASK = 252
    def gather():
        a(f"""
        v_lshrrev_b32 v{vT}, 5, v{vLANE}
        v_and_b32 v{vT1}, 15, v{vLANE}
        v_lshlrev_b32 v{vT1}, 1, v{vT1}
        v_lshl_add_u32 v{vT}, v{vT}, {8 if cfg.m16 else 7}, v{vT1}
        s_lshl_b32 s{sT0}, s{sH}, 9
        """)
        for jj in range(8):
            a(f"buffer_load_ushort v{48+jj}, v{vT}, {sr(rMISC,4)}, s{sT0} offen offset:{(jj if cfg.m16 else 8*(jj>>2)+(jj&3))*32}")
        vq.extend(["g"] * 8)
    if cfg.gat_at < 0: gather()
    compute_addrs("A")
    a(f"""
    v_bfe_u32 v{vT}, v{vLANE}, 2, 1
    v_lshrrev_b32 v{vT1}, 5, v{vLANE}
    v_xor_b32 v{vT}, v{vT}, v{vT1}
    v_lshlrev_b32 v{vT}, 3, v{vT}
    v_bfe_u32 v{vT1}, v{vLANE}, 3, 2
    v_lshl_add_u32 v{vT}, v{vT1}, 1, v{vT}
    v_bfe_u32 v{vT1}, v{vLANE}, 1, 1
    v_add_u32 v{vT}, v{vT}, v{vT1}
    v_and_b32 v{vT1}, 1, v{vLANE}
    v_lshlrev_b32 v{vT1}, 4, v{vT1}
    v_mov_b32 v{vT2}, 0x3f80
    v_lshlrev_b32 v{vT1}, v{vT1}, v{vT2}
    """)
    for q in range(8):
        a(f"v_cmp_eq_u32 vcc, {q}, v{vT}\nv_cndmask_b32 v{IDP+q}, 0, v{vT1}, vcc")
    if not cfg.m16: a(f"v_bfe_u32 v{vT}, v{vLANE}, 4, 1\nv_add_u32 v{vMASK}, -1, v{vT}")
    def spf_setup():
        assert cfg.mapping == "N"
        a(f"""
        s_lshr_b32 s{sT0}, s2, 3
        s_lshl_b32 s{sT0}, s{sT0}, 2
        s_add_u32 s{sT0}, s{sT0}, s{sJ}
        s_bfe_u32 s{sT1}, s2, 0x20001
        s_and_b32 s{sT2}, s2, 1
        s_mul_i32 s84, s{sT1}, {384*1024}
        s_mul_i32 s85, s{sT0}, 3072
        s_add_u32 s84, s84, s85
        s_lshl_b32 s85, s{sT2}, 9
        s_add_u32 s84, s84, s85
        s_add_u32 s84, s{kAW}, s84
        s_addc_u32 s85, s{kAW+1}, 0
        s_lshl_b32 s86, s{sT1}, 19
        s_lshl_b32 s87, s{sT2}, 18
        s_add_u32 s86, s86, s87
        s_lshl_b32 s87, s{sT0}, 11
        s_add_u32 s86, s86, s87
        s_add_u32 s86, s{kAX}, s86
        s_addc_u32 s87, s{kAX+1}, 0
        """)
        spf = [f"s_load_dword s88, s[84:85], {b*1024 + i*64}" for b in range(3) for i in range(8)]
        spf += [f"s_load_dword s88, s[86:87], {i*64}" for i in range(32)]
        return spf
    spf = spf_setup() if cfg.spref else []
    if cfg.sslowA:
        a(f"""
        s_lshr_b32 s{sT0}, s2, 3
        s_lshl_b32 s{sT0}, s{sT0}, 2
        s_add_u32 s{sT0}, s{sT0}, s{sJ}
        s_mul_i32 s{sT0}, s{sT0}, {12*1024}
        s_and_b32 s{sT1}, s2, 1
        s_lshl_b32 s{sT1}, s{sT1}, 9
        s_add_u32 s{sT0}, s{sT0}, s{sT1}
        s_add_u32 s{sT0}, s{sT0}, 384
        s_add_u32 s86, s{kAW}, s{sT0}
        s_addc_u32 s87, s{kAW+1}, 0
        """)
        spf = [f"s_load_dword s{88+h}, s[86:87], {i*1024+64*h}" for i in range(12) for h in range(2)]
        if cfg.sslowAx:
            xslow(84, kAX)
            spf += [f"s_load_dword s{88+h}, s[84:85], {i*1024+64*h}" for i in range(4) for h in range(2)]
        cfg.spref = cfg.sslowA
    for c in range(cfg.nfirst, cfg.ninit):
        issue(c)
    if cfg.prof: stamp(5)
    nxt = cfg.ninit
    lastA = cfg.lastA if cfg.coupled else (7 if cfg.hold8 else (8 if cfg.hold9 else 9))
    for c in range(8):
        wait_for(c)
        a("s_barrier")
        while nxt <= min(c + cfg.look, lastA):
            issue(nxt); nxt += 1
        if spf and c >= cfg.spref[0]:
            for t in spf[:cfg.spref[1]]: a(t)
            spf = spf[cfg.spref[1]:]
        if c == cfg.gat_at: gather()
        if c == 7:
            if cfg.gat_at >= 0: wait_for("g")
            a(f"v_bfe_u32 v{vT}, v{vLANE}, 4, 1\nv_lshlrev_b32 v{vT1}, 15, v{vT}\nv_lshl_or_b32 v{vT}, v{vT}, 31, v{vT1}")
            for q in range(4):
                a(f"v_lshl_or_b32 v{WP+q}, v{49+2*q}, 16, v{48+2*q}\nv_xor_b32 v{WP+q}, v{WP+q}, v{vT}")
    nxtA = [nxt]
    pend = []
    def preA(c):
        while pend and pend[0][0] <= c: midA()
        if c <= (lastA if cfg.coupled else 15): wait_for(c)
    def postA(c):
        while not cfg.coupled and nxtA[0] <= min(c + cfg.look, 15):
            pend.extend((nxtA[0], t) for t in chunk_pieces(nxtA[0])); nxtA[0] += 1
    def midA():
        for _ in range(2 if len(set(c for c, t in pend)) > 1 else 1):
            if pend:
                c, t = pend.pop(0)
                a(t); vq.append(c)
    if cfg.hold8 and not cfg.coupled:
        await_cnt(C_WO, 4)
        for c in range(8, 8 + cfg.hold8):
            issue(c)
        nxtA[0] = 8 + cfg.hold8
    assert not spf
    a("s_waitcnt lgkmcnt(0)")
    if cfg.prio: a(f"s_setprio {cfg.gprio[1]}")
    stamp(1)
    gemm("A", preA, postA, midA)
    stamp(2)
    if cfg.prio and cfg.gprio[1] != 3: a("s_setprio 3")
    assert cfg.coupled and cfg.kvB < 15
    srd(rMISC, kAO, 512 * 1024)
    srd(rXB, kBO, 512 * 1024)
    if cfg.wopref:
        a(f"""
        s_and_b32 s{sT0}, s{sRB}, 7
        s_lshl_b32 s{sT0}, s{sT0}, 2
        s_add_u32 s{sT0}, s{sT0}, s{sJ}
        s_lshl_b32 s{sT0}, s{sT0}, 14
        s_lshl_b32 s{sT1}, s{sHG}, 7
        s_add_u32 s{sT0}, s{sT0}, s{sT1}
        v_lshlrev_b32 v3, 10, v{vLANE}
        s_mov_b64 exec, 0xffff
        buffer_load_dword v4, v3, {sr(rMISC,4)}, s{sT0} offen
        buffer_load_dword v5, v3, {sr(rXB,4)}, s{sT0} offen
        s_mov_b64 exec, -1
        """)
    X = [48, 64, 80, 96]
    KF, QF2, VP, PK, TT, PT, TM = 112, 120, 128, 144, 152, 168, 176
    L2E = math.log2(math.e)
    a(f"s_mov_b32 s{sC}, {f2u(L2E)}\ns_mov_b32 s{sC+1}, {f2u(L2E)}\ns_mov_b32 s{sT3}, 0x3f803f80")
    for ri in range(2):
        cvt(KF + 4 * ri, (ACC + 16 + 8 * ri) if cfg.m16 else (ACC + 16 * ri + 8), 4)
    if cfg.m16: swap16(KF); swap16(KF + 4)
    for ri in range(2):
        mfma(X[ri], WP, KF + 4 * ri, "0")
    for ri in range(2):
        cvt(QF2 + 4 * ri, (ACC + 8 * ri) if cfg.m16 else (ACC + 16 * ri), 4)
    if cfg.m16: swap16(QF2); swap16(QF2 + 4)
    for ri in range(2):
        mfma(X[2 + ri], WP, QF2 + 4 * ri, "0")
    if cfg.a3:
        cvt(VP, ACC + 32, 8)
        a(f"""
        s_lshl_b32 s{sT0}, s{sJ}, 11
        s_add_u32 s{sT0}, s{sT0}, {L_XV}
        v_add_u32 v{vT}, s{sT0}, v{vL16}
        ds_write_b128 v{vT}, {vr(VP,4)}
        ds_write_b128 v{vT}, {vr(VP+4,4)} offset:1024
        s_and_b32 s{sT1}, s{sJ}, 1
        s_lshl_b32 s{sT1}, s{sT1}, 8
        s_add_u32 s{sT0}, s{sT0}, s{sT1}
        v_and_b32 v{vT}, 0x2f, v{vLANE}
        v_lshl_add_u32 v9, v{vT}, 4, s{sT0}
        v_xor_b32 v10, 0x800, v9
        s_waitcnt lgkmcnt(0)
        """)
        assert L_XV % 4096 == 0
        arrive(4 * 16)
    elif cfg.m16:
        for T in range(4):
            cvt(VP + 4 * T, ACC + 32 + 4 * T, 2)
            a(f"v_mov_b32 v{VP+4*T+2}, s{sT3}\nv_mov_b32 v{VP+4*T+3}, s{sT3}")
        for T in range(4): swap16(VP + 4 * T)
        for T in range(4):
            a(f"v_permlane32_swap_b32 v{VP+4*T}, v{VP+4*T+2}\nv_permlane32_swap_b32 v{VP+4*T+1}, v{VP+4*T+3}")
    else:
        for ri in range(2):
            cvt(VP + 8 * ri, ACC + 32 + 16 * ri, 8)
            for i in range(8):
                a(f"v_bfi_b32 v{VP+8*ri+i}, v{vMASK}, v{VP+8*ri+i}, s{sT3}")
    def getv():
        if not cfg.a3: return
        await_cnt(4 * 16, 4)
        for aa in range(2):
            a(f"ds_read_b128 {vr(VP+8*aa,4)}, v{9+aa}\nds_read_b128 {vr(VP+8*aa+4,4)}, v{9+aa} offset:1024")
    def fixv():
        if not cfg.a3: return
        a("s_waitcnt lgkmcnt(0)")
        for i in range(16):
            a(f"v_bfi_b32 v{VP+i}, v{vMASK}, v{VP+i}, s{sT3}")
    def softmax_list(x, dst, tm):
        L = []
        t, u, p, q = tm, tm + 1, tm + 2, tm + 4
        for k in range(4):
            for base, r in ((x, t), (x + 8, u)):
                L.append([f"v_max3_f32 v{r}, v{base}, v{base+1}, v{base+2}", f"v_max3_f32 v{r}, v{r}, v{base+3}, v{base+4}",
                          f"v_max3_f32 v{r}, v{r}, v{base+5}, v{base+6}", f"v_max_f32 v{r}, v{r}, v{base+7}"][k])
        L += [f"v_permlane32_swap_b32 v{t}, v{u}", f"v_max_f32 v{t}, v{t}, v{u}", f"v_mul_f32 v{t}, {f2u(-L2E)}, v{t}",
              f"v_mov_b32 v{u}, v{t}", f"v_permlane32_swap_b32 v{t}, v{u}"]
        for i in range(8):
            sel = "op_sel:[0,0,0] op_sel_hi:[1,1,0]" if i < 4 else "op_sel:[0,0,1] op_sel_hi:[1,1,1]"
            L.append(f"v_pk_fma_f32 {vr(x+2*i,2)}, {vr(x+2*i,2)}, {sr(sC,2)}, {vr(t,2)} {sel}")
        L += [f"v_exp_f32 v{x+i}, v{x+i}" for i in range(16)]
        L += [f"v_pk_add_f32 {vr(p,2)}, {vr(x,2)}, {vr(x+2,2)}", f"v_pk_add_f32 {vr(q,2)}, {vr(x+8,2)}, {vr(x+10,2)}",
              f"v_pk_add_f32 {vr(p,2)}, {vr(p,2)}, {vr(x+4,2)}", f"v_pk_add_f32 {vr(q,2)}, {vr(q,2)}, {vr(x+12,2)}",
              f"v_pk_add_f32 {vr(p,2)}, {vr(p,2)}, {vr(x+6,2)}", f"v_pk_add_f32 {vr(q,2)}, {vr(q,2)}, {vr(x+14,2)}",
              f"v_add_f32 v{t}, v{p}, v{p+1}", f"v_add_f32 v{u}, v{q}, v{q+1}",
              f"v_permlane32_swap_b32 v{t}, v{u}", f"v_add_f32 v{t}, v{t}, v{u}", f"v_rcp_f32 v{t}, v{t}",
              f"v_mov_b32 v{u}, v{t}", f"v_permlane32_swap_b32 v{t}, v{u}"]
        for i in range(8):
            sel = "op_sel:[0,0] op_sel_hi:[1,0]" if i < 4 else "op_sel:[0,1] op_sel_hi:[1,1]"
            L.append(f"v_pk_mul_f32 {vr(x+2*i,2)}, {vr(x+2*i,2)}, {vr(t,2)} {sel}")
        L += [f"v_cvt_pk_bf16_f32 v{dst+i}, v{x+2*i}, v{x+2*i+1}" for i in range(8)]
        return L
    def weave(l1, l2, lead=2):
        out, l2 = l1[:lead], list(l2)
        for ins in l1[lead:]:
            out += [l2.pop(0), ins]
        return out + l2
    KVA = ACC
    def pstore():
        a(f"""
        v_lshrrev_b32 v{vT}, 5, v{vLANE}
        v_mul_u32_u24 v{vT}, {32*384}, v{vT}
        v_and_b32 v{vT1}, 31, v{vLANE}
        v_lshl_add_u32 v{vT}, v{vT1}, 4, v{vT}
        s_mul_i32 s{sT0}, s{sH}, {8*32*384}
        s_mul_i32 s{sT1}, s{sRB}, 384
        s_add_u32 s{sT0}, s{sT0}, s{sT1}
        s_add_u32 s{sT0}, s{sT0}, {WS_P}
        s_mov_b32 exec_lo, 0x1ffff
        s_mov_b32 exec_hi, 0x1ffff
        """)
        for r4 in range(4):
            a(f"buffer_store_dwordx4 {vr(KVA+4*r4,4)}, v{vT}, {sr(rWS,4)}, s{sT0} offen sc1")
            if r4 < 3: a(f"s_add_u32 s{sT0}, s{sT0}, {2*32*384}")
        a("s_mov_b64 exec, -1")
    if cfg.weave:
        assert cfg.m16
        TM2, TT2, PT2 = Qf, X[0], X[1]
        for ins in weave(softmax_list(X[0], PK, TM), softmax_list(X[1], PHI, TM2)): a(ins)
        mfma(TT, PK, IDP, "0")
        mfma(TT2, PHI, IDP, "0")
        mfma(TT, PK + 4, IDP + 4, TT)
        mfma(TT2, PHI + 4, IDP + 4, TT2)
        qs_ = weave(softmax_list(X[2], PHI, TM), softmax_list(X[3], PHI + 8, TM2))
        for ins in qs_[:26]: a(ins)
        cvt(PT, TT, 8)
        mfma(KVA, PT, VP, "0")
        mfma(KVA, PT + 4, VP + 4, KVA)
        cvt(PT2, TT2, 8)
        mfma(KVA, PT2, VP + 8, KVA)
        mfma(KVA, PT2 + 4, VP + 12, KVA)
        for ins in qs_[26:50]: a(ins)
        pstore()
        for ins in qs_[50:]: a(ins)
    else:
        def softmax2(x, dst):
            for ins in softmax_list(x, dst, TM): a(ins)
        softmax2(X[0], PK)
        mfma(TT, PK, IDP, "0")
        mfma(TT, PK + 4, IDP + 4, TT)
        getv()
        softmax2(X[1], PK)
        fixv()
        cvt(PT, TT, 8)
        mfma(TT, PK, IDP, "0")
        mfma(TT, PK + 4, IDP + 4, TT)
        mfma(KVA, PT, VP, "0")
        mfma(KVA, PT + 4, VP + 4, KVA)
        softmax2(X[2], PHI)
        cvt(PT, TT, 8)
        mfma(KVA, PT, VP + 8, KVA)
        mfma(KVA, PT + 4, VP + 12, KVA)
        pstore()
        softmax2(X[3], PHI + 8)
    a(f"""
    s_lshl_b32 s{sT0}, s{sJ}, 11
    s_add_u32 s{sT0}, s{sT0}, {L_X}
    v_add_u32 v{vT}, s{sT0}, v{vL16}
    ds_read_b128 {vr(Qf,4)}, v{vT}
    ds_read_b128 {vr(Qf+4,4)}, v{vT} offset:1024
    s_lshl_b32 s{sT0}, s{sJ}, 9
    s_add_u32 s{sT0}, s{sT0}, {L_XM}
    v_lshl_add_u32 v{vT}, v{vLANE}, 3, s{sT0}
    ds_read_b64 {vr(TM,2)}, v{vT}
    s_waitcnt vmcnt(4)
    """)
    if cfg.a3: a("s_waitcnt lgkmcnt(0)")
    else: await_cnt(4 * 16, 4)
    nmfill(TM)
    stamp(3)
    a("s_branch L_attA")

    a.label("L_roleB")
    if not cfg.bnear:
        code_prefetch("B")
        binit()
    late_setup()
    loader_addrs()
    srd(rXA, kAX, 2048 * 1024)
    srd(rWA, kAW, 512 * 3072)
    srd(rWS, kWS, WS_SIZE)
    srd(rOUT, kOUT, 2048 * 2048)
    srd(rDBG, kDBG, 256)
    if cfg.pref and cfg.prefA[0] < 0:
        a(f"buffer_load_dword v38, v{vPW}, {sr(rWA,4)}, 0 offen {cfg.pref_sc}")
        a(f"buffer_load_dword v36, v{vPX}, {sr(rXA,4)}, 0 offen {cfg.pref_sc}")
    if cfg.slowpref:
        a(f"""
        s_lshr_b32 s{sT0}, s2, 3
        s_lshl_b32 s{sT0}, s{sT0}, 2
        s_add_u32 s{sT0}, s{sT0}, s{sJ}
        s_mul_i32 s{sT1}, s{sT0}, {12*1024}
        s_and_b32 s{sT2}, s2, 1
        s_lshl_b32 s{sT2}, s{sT2}, 9
        s_add_u32 s{sT1}, s{sT1}, s{sT2}
        s_add_u32 s{sT1}, s{sT1}, 384
        v_lshlrev_b32 v{vT}, 10, v{vLANE}
        s_lshl_b32 s{sT0}, s{sT0}, 12
        s_bfe_u32 s{sT2}, s2, 0x20001
        s_lshl_b32 s{sT2}, s{sT2}, 19
        s_add_u32 s{sT0}, s{sT0}, s{sT2}
        s_add_u32 s{sT0}, s{sT0}, 384
        s_mov_b64 exec, 0xfff
        """)
        if "b" in cfg.slowpref: a(f"buffer_load_dword v36, v{vT}, {sr(rWB,4)}, s{sT1} offen")
        if "a" in cfg.slowpref: a(f"buffer_load_dword v38, v{vT}, {sr(rWA,4)}, s{sT1} offen")
        a("s_mov_b64 exec, 15")
        if "x" in cfg.slowpref:
            if "b" in cfg.slowpref: a(f"buffer_load_dword v37, v{vT}, {sr(rXB,4)}, s{sT0} offen")
            if "a" in cfg.slowpref: a(f"buffer_load_dword v36, v{vT}, {sr(rXA,4)}, s{sT0} offen")
        a("s_mov_b64 exec, -1")
    if cfg.sslow:
        l = lab("noss")
        a(f"""
        s_bitcmp1_b32 s2, 0
        s_cbranch_scc1 {l}
        s_lshr_b32 s{sT0}, s2, 3
        s_lshl_b32 s{sT0}, s{sT0}, 2
        s_add_u32 s{sT0}, s{sT0}, s{sJ}
        s_mul_i32 s{sT0}, s{sT0}, {12*1024}
        s_add_u32 s{sT0}, s{sT0}, 384
        s_add_u32 s84, s{kBW}, s{sT0}
        s_addc_u32 s85, s{kBW+1}, 0
        s_add_u32 s86, s{kAW}, s{sT0}
        s_addc_u32 s87, s{kAW+1}, 0
        """)
        for ch, reg in (("b", 84), ("a", 86)):
            if ch in cfg.sslow:
                for i in range(12):
                    a(f"s_load_dword s88, s[{reg}:{reg+1}], {i*1024}\ns_load_dword s89, s[{reg}:{reg+1}], {i*1024+64}")
        a.label(l)
        if "x" in cfg.sslow:
            xslow(84, kBX)
            for i in range(4):
                a(f"s_load_dword s88, s[84:85], {i*1024}\ns_load_dword s89, s[84:85], {i*1024+64}")
    if cfg.sprefB:
        for t in spf_setup()[:cfg.sprefB]: a(t)
    compute_addrs("B")
    a(f"s_cmp_lt_u32 s2, 8\ns_cselect_b32 s{sREDO}, s{sW}, 0")
    a(f"s_cmp_lg_u32 s{sREDO}, 1\ns_cbranch_scc1 L_noreset")
    a(f"v_mov_b32 v16, 0\nv_mov_b32 v17, 0\nv_mov_b32 v18, 0\nv_mov_b32 v19, 0")
    assert cfg.nrep == 8
    nres = -(-(FL_OB + 1024 * cfg.hs - WS_FL) // 8192)
    a(f"s_mul_i32 s{sT1}, s2, {nres*1024}\ns_add_u32 s{sT1}, s{sT1}, {WS_FL}")
    for i in range(nres):
        a(f"buffer_store_dwordx4 v[16:19], v{vL16}, {sr(rWS,4)}, s{sT1} offen offset:{(i%4)*1024} sc1")
        if i % 4 == 3: a(f"s_add_u32 s{sT1}, s{sT1}, 4096")
    a.label("L_noreset")
    a(f"v_lshl_add_u32 v{vT}, v{vLANE}, 2, v{vCNT}\nv_mov_b32 v{vT1}, 0\nds_write_b32 v{vT}, v{vT1}")
    vKST, vVST = 28, 29
    if cfg.m16:
        a(f"""
        v_and_b32 v{vKST}, 0x23, v{vLANE}
        v_bfe_u32 v{vT}, v{vLANE}, 2, 2
        v_lshl_or_b32 v{vKST}, v{vT}, 3, v{vKST}
        v_bfe_u32 v{vT}, v{vLANE}, 4, 1
        v_lshl_or_b32 v{vKST}, v{vT}, 2, v{vKST}
        v_lshlrev_b32 v{vKST}, 4, v{vKST}
        s_waitcnt lgkmcnt(0)
        """)
    else: a(f"""
    v_and_b32 v{vKST}, 0x33, v{vLANE}
    v_and_b32 v{vT}, 4, v{vLANE}
    v_lshl_or_b32 v{vKST}, v{vT}, 1, v{vKST}
    v_bfe_u32 v{vT}, v{vLANE}, 3, 1
    v_lshl_or_b32 v{vKST}, v{vT}, 2, v{vKST}
    v_lshlrev_b32 v{vKST}, 4, v{vKST}
    v_bfe_u32 v{vT}, v{vLANE}, 4, 1
    v_lshlrev_b32 v{vVST}, 17, v{vT}
    v_lshrrev_b32 v{vT}, 5, v{vLANE}
    v_lshl_add_u32 v{vVST}, v{vT}, 8, v{vVST}
    v_and_b32 v{vT}, 15, v{vLANE}
    v_lshl_add_u32 v{vVST}, v{vT}, 4, v{vVST}
    s_waitcnt lgkmcnt(0)
    """)
    def bst(c):
        if cfg.tprof: a(f"s_memtime s[98:99]\ns_waitcnt lgkmcnt(0)\nv_writelane_b32 v252, s98, {48+c}")
    def postB(c):
        if c > 0: bst(c)
        if c == 5:
            l = lab("nogate")
            a(f"s_cmp_lg_u32 s{sREDO}, 1\ns_cbranch_scc1 {l}")
            a(f"s_lshl_b32 s{sT0}, s2, 2\nv_mov_b32 v{vT}, s{sT0}\ns_waitcnt vmcnt(0)")
            flag(vT, "1", srdr=rDBG)
            a.label(l)
        if cfg.l2A and cfg.l2A[0] <= c < cfg.l2A[0] + cfg.l2A[1]:
            nb, b = cfg.l2A[1], c - cfg.l2A[0]
            nw, nx = 48 // nb, 32 // nb
            if b == 0:
                a(f"""
                s_lshr_b32 s{sT0}, s2, 3
                s_lshl_b32 s{sT0}, s{sT0}, 2
                s_add_u32 s{sT0}, s{sT0}, s{sJ}
                s_mul_i32 s84, s{sT0}, {12*1024}
                s_and_b32 s{sT1}, s2, 1
                s_lshl_b32 s{sT1}, s{sT1}, 9
                s_add_u32 s84, s84, s{sT1}
                s_lshl_b32 s85, s{sT0}, 12
                s_bfe_u32 s{sT1}, s2, 0x20001
                s_lshl_b32 s{sT1}, s{sT1}, 19
                s_add_u32 s85, s85, s{sT1}
                v_lshrrev_b32 v{vPW}, 2, v{vLANE}
                v_lshlrev_b32 v{vPW}, 10, v{vPW}
                v_and_b32 v{vPX}, 3, v{vLANE}
                v_lshl_add_u32 v{vPW}, v{vPX}, 7, v{vPW}
                v_lshlrev_b32 v{vPX}, 7, v{vLANE}
                """)
            a(f"""
            s_mov_b32 exec_hi, {((1 << nw) - 1) >> 32}
            s_mov_b32 exec_lo, {((1 << nw) - 1) & 0xffffffff}
            buffer_load_dword v38, v{vPW}, {sr(rWA,4)}, s84 offen
            s_mov_b32 exec_hi, 0
            s_mov_b32 exec_lo, {(1 << nx) - 1}
            buffer_load_dword v36, v{vPX}, {sr(rXA,4)}, s85 offen
            s_mov_b64 exec, -1
            s_add_u32 s84, s84, {nw // 4 * 1024}
            s_add_u32 s85, s85, {nx * 128}
            """)
        if c == 0: stamp(1)
        if cfg.pref and c == cfg.prefA[0]:
            a(f"buffer_load_dword v38, v{vPW}, {sr(rWA,4)}, 0 offen {cfg.pref_sc}")
        if cfg.pref and c == cfg.prefA[1]:
            a(f"buffer_load_dword v36, v{vPX}, {sr(rXA,4)}, 0 offen {cfg.pref_sc}")
    gemm("B", lambda c: None, postB)
    stamp(2)
    KOWN, VPK = 232, 240
    if cfg.gprio[2]: a(f"s_setprio {cfg.gprio[2]}")
    vG, vGA = 30, 31
    a(f"v_lshlrev_b32 v{vGA}, 2, v{vLANE}\ns_mov_b64 exec, 0xff\nbuffer_load_dword v{vG}, v{vGA}, {sr(rDBG,4)}, 0 offen sc1\ns_mov_b64 exec, -1")
    if cfg.m16:
        a(f"s_lshl_b32 s{sT0}, s{sRB}, 12\ns_lshl_b32 s{sT1}, s{sH}, 17\ns_add_u32 s{sT1}, s{sT1}, s{sT0}")
        for ri in range(2):
            cvt(KOWN + 4 * ri, ACC + 16 + 8 * ri, 4)
            cvt(VPK + 4 * ri, ACC + 32 + 8 * ri, 4)
            swap16(KOWN + 4 * ri)
            a(f"buffer_store_dwordx4 {vr(VPK+4*ri,4)}, v{vL16}, {sr(rWS,4)}, s{sT1} offen offset:{ri*2048+1024} sc1")
            a(f"buffer_store_dwordx4 {vr(KOWN+4*ri,4)}, v{vKST}, {sr(rWS,4)}, s{sT1} offen offset:{ri*2048} sc1")
    else:
        a(f"""
        s_and_b32 s{sT2}, s{sJ}, 1
        s_lshl_b32 s{sT0}, s{sRB}, 1
        s_add_u32 s{sT0}, s{sT0}, s{sT2}
        s_lshl_b32 s{sT0}, s{sT0}, 11
        s_lshl_b32 s{sT1}, s{sH}, 17
        s_add_u32 s{sT1}, s{sT1}, s{sT0}
        s_xor_b32 s{sT2}, s{sT1}, 0x800
        s_and_b32 s{sT3}, s{sH}, -2
        s_lshl_b32 s{sT3}, s{sT3}, 17
        s_add_u32 s{sT3}, s{sT3}, s{sT0}
        """)
        assert WS_KV == 0
        cvt(KOWN, ACC + 8, 4)
        a(f"buffer_store_dwordx4 {vr(KOWN,4)}, v{vKST}, {sr(rWS,4)}, s{sT1} offen sc1")
        cvt(KOWN + 4, ACC + 16 + 8, 4)
        a(f"buffer_store_dwordx4 {vr(KOWN+4,4)}, v{vKST}, {sr(rWS,4)}, s{sT2} offen sc1")
        cvt(VPK, ACC + 32, 4)
        a(f"buffer_store_dwordx4 {vr(VPK,4)}, v{vVST}, {sr(rWS,4)}, s{sT3} offen offset:1024 sc1")
        cvt(VPK + 4, ACC + 40, 4)
        a(f"buffer_store_dwordx4 {vr(VPK+4,4)}, v{vVST}, {sr(rWS,4)}, s{sT3} offen offset:1536 sc1")
    vq[:] = ["st"] * 4
    nxtB = [lastA + 1]
    def barB(c):
        if c > lastA: wait_for(c)
        a("s_barrier")
        bst(c)
    def loadB(c):
        while nxtB[0] <= min(c + cfg.look, 15):
            issue(nxtB[0]); nxtB[0] += 1
    def flagKV():
        stamp(3)
        l = lab("noflag")
        a(f"s_cmp_lg_u32 s{sW}, 0\ns_cbranch_scc1 {l}")
        poll(vGA, vG, 0xff, srdr=rDBG, first_issued=True)
        a(f"""
        s_mul_i32 s{sT0}, s{sHG}, {128*cfg.nrep}
        s_lshl_b32 s{sT1}, s{sRB}, 2
        s_add_u32 s{sT0}, s{sT0}, s{sT1}
        s_add_u32 s{sT0}, s{sT0}, {FL_KV}
        v_lshl_add_u32 v{vT}, v{vLANE}, 7, s{sT0}
        """)
        flag(vT, str((1 << cfg.nrep) - 1))
        a.label(l)
    assert cfg.coupled
    if cfg.flag_at == 9:
        if cfg.pre9: loadB(7 + cfg.pre9 - 1)
        barB(8); loadB(8)
    qs = 0.25 * math.log2(math.e)
    a(f"s_mov_b32 s{sC}, {f2u(qs)}\ns_mov_b32 s{sC+1}, {f2u(qs)}")
    for qb in range(2):
        qa = ACC + (8 if cfg.m16 else 16) * qb
        for i in range(4):
            a(f"v_pk_mul_f32 {vr(qa+2*i,2)}, {vr(qa+2*i,2)}, {sr(sC,2)}")
        cvt(Qf + 4 * qb, qa, 4)
        if cfg.m16: swap16(Qf + 4 * qb)
    a(f"""
    s_lshl_b32 s{sT0}, s{sJ}, 11
    s_add_u32 s{sT0}, s{sT0}, {L_X}
    v_add_u32 v{vT}, s{sT0}, v{vL16}
    ds_write_b128 v{vT}, {vr(Qf,4)}
    ds_write_b128 v{vT}, {vr(Qf+4,4)} offset:1024
    """)
    for qb in range(2):
        mfma(72 + 32 * qb, KOWN, Qf + 4 * qb, "0")
        mfma(88 + 32 * qb, KOWN + 4, Qf + 4 * qb, "0")
    TMB = 32
    def maxtree(dst, base, n, init=None):
        i = 0
        if init is None:
            a(f"v_max3_f32 v{dst}, v{base}, v{base+1}, v{base+2}"); i = 3
        while i + 1 < n:
            a(f"v_max3_f32 v{dst}, v{dst}, v{base+i}, v{base+i+1}"); i += 2
        if i < n:
            a(f"v_max_f32 v{dst}, v{dst}, v{base+i}")
    maxtree(TMB, 72, 32)
    maxtree(TMB + 1, 104, 32)
    def crossmax(t):
        a(f"v_permlane32_swap_b32 v{t}, v{t+1}\nv_max_f32 v{t}, v{t}, v{t+1}")
    crossmax(TMB)
    a(f"v_sub_f32 v{TMB}, {f2u(-cfg.bias)}, v{TMB}\nv_mov_b32 v{TMB+1}, v{TMB}\nv_permlane32_swap_b32 v{TMB}, v{TMB+1}")
    a(f"""
    s_lshl_b32 s{sT0}, s{sJ}, 9
    s_add_u32 s{sT0}, s{sT0}, {L_XM}
    v_lshl_add_u32 v{vT}, v{vLANE}, 3, s{sT0}
    ds_write_b64 v{vT}, {vr(TMB,2)}
    """)
    def flagKV2():
        a(f"""
        s_mul_i32 s{sT0}, s{sHG}, {128*cfg.nrep}
        s_lshl_b32 s{sT1}, s{sRB}, 2
        s_add_u32 s{sT1}, s{sT0}, s{sT1}
        s_add_u32 s{sT1}, s{sT1}, {FL_KV}
        v_lshl_add_u32 v{vT}, v{vLANE}, 7, s{sT1}
        s_and_b32 s{sT1}, s{sRB}, {cfg.nrep-1}
        s_lshl_b32 s{sT1}, s{sT1}, 7
        s_add_u32 s{sT0}, s{sT0}, s{sT1}
        s_add_u32 s{sT0}, s{sT0}, {FL_KV}
        s_waitcnt lgkmcnt(0)
        """)
        wait_for("st")
        poll(vGA, vG, 0xff, srdr=rDBG, first_issued=True)
        l = lab("noflag")
        a(f"""
        v_lshl_add_u32 v{vGA}, v{vLANE}, 2, s{sT0}
        s_mov_b64 exec, 1
        ds_add_rtn_u32 v{vT1}, v{vCNT}, v{vONE} offset:{C_KV}
        s_waitcnt lgkmcnt(0)
        v_cmp_eq_u32 vcc, 3, v{vT1}
        s_mov_b64 exec, -1
        s_cbranch_vccz {l}
        """)
        flag(vT, str((1 << cfg.nrep) - 1))
        a.label(l)
        stamp(3)
    sb = Stream(cfg.depB, cfg.nB)
    if cfg.flag_at == 8:
        flagKV2()
        barB(8); loadB(8)
        nmfill(TMB)
    elif cfg.flag_at == 9:
        flagKV2()
        nmfill(TMB)
    elif cfg.flag_at == 10:
        nmfill(TMB)
        loadB(7)
        a("s_waitcnt lgkmcnt(0)")
        barB(8)
        if cfg.pre9 == 0:
            loadB(8); flagKV2()
        else:
            flagKV2(); loadB(8)
    for c in range(9, cfg.pollB + 1):
        if c == cfg.pollB:
            a(f"s_mov_b32 exec_hi, 0\nbuffer_load_dword v{vG}, v{vGA}, {sr(rWS,4)}, 0 offen sc1\ns_mov_b64 exec, -1")
            vq.append("kvf")
        barB(c)
        loadB(c)
        if cfg.swo and c == 9:
            a(f"""
            s_lshr_b32 s{sT0}, s2, 3
            s_lshl_b32 s{sT0}, s{sT0}, 2
            s_add_u32 s{sT0}, s{sT0}, s{sJ}
            s_lshl_b32 s{sT0}, s{sT0}, 12
            s_and_b32 s{sT1}, s2, 1
            s_lshl_b32 s{sT1}, s{sT1}, 9
            s_add_u32 s{sT0}, s{sT0}, s{sT1}
            s_add_u32 s{sT0}, s{sT0}, 384
            s_add_u32 s84, s{kAO}, s{sT0}
            s_addc_u32 s85, s{kAO+1}, 0
            s_add_u32 s86, s{kBO}, s{sT0}
            s_addc_u32 s87, s{kBO+1}, 0
            """)
        if cfg.swo and 9 <= c <= 12:
            for reg in (84, 86):
                a(f"s_load_dword s88, s[{reg}:{reg+1}], {(c-9)*1024}\ns_load_dword s89, s[{reg}:{reg+1}], {(c-9)*1024+64}")
        if c == 10 and cfg.earlyset:
            att_setup(0, cfg.nB); sb.setup()
        if c == 11 and cfg.earlyset:
            sb.zero()
    sb.q = list(vq)

    WFB = 184
    vWR = 12
    def woaddr():
        a(f"""
        v_bfe_u32 v{vT1}, v{vLANE}, 2, 2
        v_lshrrev_b32 v{vT2}, 5, v{vLANE}
        v_lshl_add_u32 v{vT1}, v{vT2}, 2, v{vT1}
        v_lshlrev_b32 v{vWR}, 7, v{vT1}
        s_lshr_b32 s{sT1}, s{sJ}, 1
        v_bfe_u32 v{vT1}, v{vLANE}, 3, 1
        v_xor_b32 v{vT1}, s{sT1}, v{vT1}
        v_lshl_add_u32 v{vWR}, v{vT1}, 6, v{vWR}
        v_and_b32 v{vT1}, 1, v{vLANE}
        v_lshl_add_u32 v{vWR}, v{vT1}, 5, v{vWR}
        s_and_b32 s{sT1}, s{sJ}, 1
        v_bfe_u32 v{vT1}, v{vLANE}, 4, 1
        v_xor_b32 v{vT1}, s{sT1}, v{vT1}
        v_lshl_add_u32 v{vWR}, v{vT1}, 4, v{vWR}
        v_bfe_u32 v{vT1}, v{vLANE}, 1, 1
        v_lshl_add_u32 v{vWR}, v{vT1}, 3, v{vWR}
        s_lshl_b32 s{sT1}, s{sJ}, 14
        s_add_u32 s{sT1}, s{sT1}, {L_WB}
        v_add_u32 v{vWR}, s{sT1}, v{vWR}
        v_xor_b32 v{vWR+1}, 64, v{vWR}
        """)
    def wofrags(base, g2):
        for hh in range(8):
            a(f"ds_read_b64_tr_b16 {vr(base+32*g2+4*hh,2)}, v{vWR+g2} offset:{hh*2048}")
            a(f"ds_read_b64_tr_b16 {vr(base+32*g2+4*hh+2,2)}, v{vWR+g2} offset:{hh*2048+1024}")
    def upper(base):
        def f0():
            woaddr()
            await_cnt(C_WO, 4)
            wofrags(WFB, 0)
        def f1():
            wofrags(WFB, 1)
        def f2():
            a("s_waitcnt lgkmcnt(0)")
            arrive(C_UP)
        return f0, f1, f2

    def wosetup():
        a(f"""
        v_lshrrev_b32 v{vT}, 3, v{vLANE}
        v_bfe_u32 v{vT1}, v{vLANE}, 4, 1
        v_lshlrev_b32 v{vT1}, 2, v{vT1}
        v_and_b32 v{vT2}, 7, v{vLANE}
        v_xor_b32 v{vT1}, v{vT1}, v{vT2}
        v_lshlrev_b32 v{vT1}, 4, v{vT1}
        v_lshl_add_u32 v{vWOA}, v{vT}, 10, v{vT1}
        s_lshl_b32 s{sT0}, s{sHG}, 7
        s_lshl_b32 s{sT1}, s{sJ}, 17
        s_add_u32 s{sT0}, s{sT0}, s{sT1}
        v_add_u32 v{vWOA}, s{sT0}, v{vWOA}
        s_and_b32 s{sWO}, s{sRB}, 7
        s_lshl_b32 s{sWO}, s{sWO}, 1
        s_lshl_b32 s{sWOM}, s{sJ}, 14
        """)
    def wopiece(st):
        a(f"""
        s_lshl_b32 s{sT0}, s{sWO}, 10
        s_add_u32 m0, s{sT0}, s{sWOM}
        s_lshl_b32 s{sT1}, s{sWO}, 13
        s_add_u32 s{sT0}, s{sT0}, {L_WB}
        buffer_load_dwordx4 v{vWOA}, {sr(rMISC,4)}, s{sT1} offen lds
        s_add_u32 m0, s{sT0}, s{sWOM}
        s_add_u32 s{sWO}, s{sWO}, 1
        s_and_b32 s{sWO}, s{sWO}, 15
        buffer_load_dwordx4 v{vWOA}, {sr(rXB,4)}, s{sT1} offen lds
        """)
        st.push("wo", 2)
    def wodone(st):
        st.wait("wo")
        arrive(C_WO)
    vC4, vC1 = 6, 7
    vH, vHA = 248, 249
    sOB, sOB1, sOWN = 61, 62, 63
    def pretail():
        a(f"s_mul_i32 s{sT0}, s{sJ}, 4608\ns_add_u32 s{sT0}, s{sT0}, {L_XC}\nv_add_u32 v{vC4}, s{sT0}, v{vL16}\nv_lshl_add_u32 v{vC1}, v{vLANE}, 2, s{sT0}")
    def pretailA():
        pretail()
        assert cfg.m16
        a(f"""
        s_lshl_b32 s{sT0}, s{sRB}, 6
        s_add_u32 s{sT0}, s{sT0}, s{sH}
        s_lshl_b32 s{sT0}, s{sT0}, 10
        s_add_u32 s{sOB}, s{sT0}, {WS_OB}
        s_add_u32 s{sOB1}, s{sOB}, 0x8000
        s_mul_i32 s{sT0}, s{sRB}, {32*cfg.hs}
        s_lshr_b32 s{sT1}, s{sHG}, 1
        s_mul_i32 s{sT1}, s{sT1}, {cfg.hs}
        s_add_u32 s{sT0}, s{sT0}, s{sT1}
        s_and_b32 s{sT1}, s{sHG}, 1
        s_lshl_b32 s{sT1}, s{sT1}, 2
        s_add_u32 s{sT0}, s{sT0}, s{sT1}
        s_add_u32 s{sT0}, s{sT0}, {FL_OB}
        v_mul_u32_u24 v{vHA}, {4*cfg.hs}, v{vLANE}
        v_add_u32 v{vHA}, s{sT0}, v{vHA}
        """)
    def hint():
        l = lab("nohint")
        a(f"s_cmp_lg_u32 s{sW}, {cfg.hintw}\ns_cbranch_scc1 {l}")
        flag(vHA, "0xff")
        a.label(l)
    def pretailB():
        pretail()
        a(f"""
        s_lshl_b32 s{sT0}, s{sRB}, 3
        s_add_u32 s{sT0}, s{sT0}, s{sHG}
        s_lshl_b32 s{sT0}, s{sT0}, 2
        s_add_u32 s{sT0}, s{sT0}, s{sJ}
        s_mul_i32 s{sT0}, s{sT0}, {cfg.hs}
        s_add_u32 s{sT0}, s{sT0}, {FL_OB}
        v_lshl_add_u32 v{vHA}, v{vLANE}, 2, s{sT0}
        s_lshl_b32 s{sT0}, s{sRB}, 16
        s_lshl_b32 s{sT1}, s{sJ}, 13
        s_add_u32 s{sOB}, s{sT0}, s{sT1}
        s_add_u32 s{sOB}, s{sOB}, {WS_OB}
        s_lshr_b32 s{sT0}, s{sHG}, 1
        s_and_b32 s{sT1}, s{sHG}, 1
        s_lshl_b32 s{sT1}, 1, s{sT1}
        s_cmp_eq_u32 s{sT0}, s{sJ}
        s_cselect_b32 s{sOWN}, s{sT1}, 0
        """)

    def barS(c):
        sb.wait(c)
        a("s_barrier")
        bst(c)
        while nxtB[0] <= min(c + cfg.look, 15):
            issue_chunk(nxtB[0]); sb.push(nxtB[0], 8); nxtB[0] += 1
    for c in range(cfg.pollB + 1, cfg.kvB + 1): barS(c)
    sb.wait("kvf")
    stamp(4)
    poll(vGA, vG, 0xffffffff, first_issued=True)
    barT = cfg.barT
    assert len(barT) == 15 - cfg.kvB
    if not cfg.earlyset:
        att_setup(0, cfg.nB); sb.setup()
    sb.first()
    if not cfg.earlyset: sb.zero()
    for i, t in enumerate(barT):
        if t == 0: barS(cfg.kvB + 1 + i)
    sb.start()
    stamp(5)
    vJ0, vJ1, vJ2 = 9, 10, 11
    def stB(): stamp(6)
    def stB2(): stamp(14)
    assert cfg.depB <= 4
    jobs = {7: [stB], 11: [stB2]}
    for i, t in enumerate(barT):
        if t: jobs.setdefault(t - 1, []).append(lambda c=cfg.kvB + 1 + i: barS(c))
    for i, f in enumerate(upper(L_WB)):
        if f.__name__ not in cfg.skip: jobs.setdefault(cfg.upB + i, []).append(f)
    if cfg.woB:
        def wo0():
            srd(rMISC, kAO, 512 * 1024); srd(rXB, kBO, 512 * 1024)
            wosetup()
            await_cnt(4 * 16, 4)
        t0_, per = cfg.woB
        jobs.setdefault(t0_, []).append(wo0)
        for i in range(16): jobs.setdefault(t0_ + i // per, []).append(lambda: wopiece(sb))
        assert cfg.upB >= t0_ + 16 // per + 1
        jobs.setdefault(cfg.upB, []).insert(0, lambda: wodone(sb))
    jobs.setdefault(cfg.nB - 2, []).append(pretailB)
    sb.run(jobs, cfg.prioB)
    a("s_branch L_tail")

    a.label("L_attA")
    nA = 64 - cfg.nB
    att_setup(cfg.nB, nA)
    sa = Stream(cfg.depA, nA, init=["pst"] * 4)
    if not cfg.woB: wosetup()
    PZ = 240
    def poison():
        a(f"""
        v_mov_b32 v{PZ}, -1
        v_mov_b32 v{PZ+1}, -1
        v_mov_b32 v{PZ+2}, -1
        v_mov_b32 v{PZ+3}, -1
        s_lshl_b32 s{sT0}, s{sRB}, 6
        s_add_u32 s{sT0}, s{sT0}, s{sH}
        s_lshl_b32 s{sT0}, s{sT0}, 10
        s_add_u32 s{sT0}, s{sT0}, {WS_OB}
        s_add_u32 s{sT1}, s{sT0}, 32768
        buffer_store_dwordx4 {vr(PZ,4)}, v{vL16}, {sr(rWS,4)}, s{sT0} offen sc1
        buffer_store_dwordx4 {vr(PZ,4)}, v{vL16}, {sr(rWS,4)}, s{sT1} offen sc1
        """)
        sa.push("poison", 2)
    if cfg.poisT < 0: poison()
    sa.prologue()
    JD = RING + 12 * cfg.depA
    KT = JD + 32
    assert KT + 8 <= 248
    RD = JD
    assert RD + 16 <= 248
    def red0():
        a(f"""
        s_lshr_b32 s{sT0}, s{sRB}, 3
        s_lshl_b32 s{sT1}, s{sHG}, 2
        s_add_u32 s{sJB}, s{sT0}, s{sT1}
        s_lshl_b32 s{sT1}, s{sJB}, 7
        s_lshl_b32 s{sT0}, s{sJ}, 5
        s_add_u32 s{sT1}, s{sT1}, s{sT0}
        s_add_u32 s{sT1}, s{sT1}, {FL_P}
        v_lshl_add_u32 v{vJ0}, v{vLANE}, 2, s{sT1}
        s_mov_b64 exec, 0xff
        buffer_load_dword v{vJ1}, v{vJ0}, {sr(rWS,4)}, 0 offen sc1
        s_mov_b64 exec, -1
        """)
        sa.push("fp")
    def red1():
        sa.wait("fp")
        poll(vJ0, vJ1, 0xff, first_issued=True)
        a(f"""
        s_lshl_b32 s{sJB}, s{sJB}, 3
        s_and_b32 s{sT1}, s{sRB}, 7
        s_add_u32 s{sJB}, s{sJB}, s{sT1}
        s_mul_i32 s{sT1}, s{sJB}, {32*384}
        s_mul_i32 s{sT0}, s{sJ}, {8*384}
        s_add_u32 s{sT1}, s{sT1}, s{sT0}
        s_add_u32 s{sT1}, s{sT1}, {WS_P}
        v_lshrrev_b32 v{vJ1}, 5, v{vLANE}
        v_mul_u32_u24 v{vJ0}, 384, v{vJ1}
        v_and_b32 v{vJ2}, 31, v{vLANE}
        v_lshl_add_u32 v{vJ0}, v{vJ2}, 4, v{vJ0}
        v_lshlrev_b32 v{vJ1}, 2, v{vJ1}
        v_lshl_add_u32 v{vJ1}, v{vJ2}, 3, v{vJ1}
        s_mov_b32 exec_lo, 0x1ffff
        s_mov_b32 exec_hi, 0x1ffff
        """)
        for i in range(4):
            a(f"buffer_load_dwordx4 {vr(RD+4*i,4)}, v{vJ0}, {sr(rWS,4)}, s{sT1} offen offset:{i*768} sc1")
        a("s_mov_b64 exec, -1")
        sa.push("part", 4)
    def red2():
        sa.wait("part")
        a(f"v_pk_add_f32 {vr(RD,2)}, {vr(RD,2)}, {vr(RD+4,2)}\nv_pk_add_f32 {vr(RD+2,2)}, {vr(RD+2,2)}, {vr(RD+6,2)}")
        a(f"v_pk_add_f32 {vr(RD+8,2)}, {vr(RD+8,2)}, {vr(RD+12,2)}\nv_pk_add_f32 {vr(RD+10,2)}, {vr(RD+10,2)}, {vr(RD+14,2)}")
        a(f"v_pk_add_f32 {vr(RD,2)}, {vr(RD,2)}, {vr(RD+8,2)}\nv_pk_add_f32 {vr(RD+2,2)}, {vr(RD+2,2)}, {vr(RD+10,2)}")
        l = lab("notlast")
        a(f"""
        s_mul_i32 s{sT0}, s{sJ}, 800
        s_add_u32 s{sT0}, s{sT0}, {L_XR}
        v_add_u32 v{vJ0}, s{sT0}, v{vL16}
        s_mov_b32 exec_lo, 0x1ffff
        s_mov_b32 exec_hi, 0x1ffff
        ds_write_b128 v{vJ0}, {vr(RD,4)}
        s_mov_b32 s{sJL}, 0
        s_waitcnt lgkmcnt(0)
        s_mov_b64 exec, 1
        ds_add_rtn_u32 v{vJ2}, v{vCNT}, v{vONE} offset:{C_RD}
        s_waitcnt lgkmcnt(0)
        v_cmp_eq_u32 vcc, 3, v{vJ2}
        s_mov_b64 exec, -1
        s_cbranch_vccz {l}
        s_mov_b32 s{sJL}, 1
        v_add_u32 v{vJ0}, {L_XR}, v{vL16}
        """)
        for i in range(4):
            a(f"ds_read_b128 {vr(RD+4*i,4)}, v{vJ0} offset:{i*800}")
        a("s_waitcnt lgkmcnt(0)")
        a(f"v_pk_add_f32 {vr(RD,2)}, {vr(RD,2)}, {vr(RD+4,2)}\nv_pk_add_f32 {vr(RD+2,2)}, {vr(RD+2,2)}, {vr(RD+6,2)}")
        a(f"v_pk_add_f32 {vr(RD+8,2)}, {vr(RD+8,2)}, {vr(RD+12,2)}\nv_pk_add_f32 {vr(RD+10,2)}, {vr(RD+10,2)}, {vr(RD+14,2)}")
        a(f"v_pk_add_f32 {vr(RD,2)}, {vr(RD,2)}, {vr(RD+8,2)}\nv_pk_add_f32 {vr(RD+2,2)}, {vr(RD+2,2)}, {vr(RD+10,2)}")
        a(f"""
        v_permlane32_swap_b32 v{RD}, v{RD+2}
        v_permlane32_swap_b32 v{RD+1}, v{RD+3}
        v_pk_add_f32 {vr(RD,2)}, {vr(RD,2)}, {vr(RD+2,2)}
        v_cvt_pk_bf16_f32 v{RD}, v{RD}, v{RD+1}
        s_lshl_b32 s{sT1}, s{sJB}, 8
        s_add_u32 s{sT1}, s{sT1}, {WS_F}
        s_mov_b32 exec_lo, 0x1ffff
        s_mov_b32 exec_hi, 0x1ffff
        buffer_store_dword v{RD}, v{vJ1}, {sr(rWS,4)}, s{sT1} offen sc1
        s_mov_b64 exec, -1
        """)
        a.label(l)
        sa.mark = len(sa.q)
        sa.push("after", 0)
        sa.stored_at = list(sa.q)
    def red3():
        n_new = sum(1 for t in sa.q if t not in sa.stored_at)
        l = lab("noffl")
        a(f"s_cmp_lg_u32 s{sJL}, 1\ns_cbranch_scc1 {l}")
        a(f"""
        s_lshr_b32 s{sT1}, s{sJB}, 3
        s_lshl_b32 s{sT1}, s{sT1}, 7
        s_and_b32 s{sT0}, s{sJB}, 7
        s_lshl_b32 s{sT0}, s{sT0}, 2
        s_add_u32 s{sT0}, s{sT0}, s{sT1}
        s_add_u32 s{sT0}, s{sT0}, {FL_F}
        v_mov_b32 v{vJ0}, s{sT0}
        s_waitcnt vmcnt({n_new})
        """)
        flag(vJ0, "1")
        a.label(l)
    def oa0():
        a(f"""
        s_lshl_b32 s{sT0}, s{sRB}, 7
        s_lshl_b32 s{sT1}, s{sJ}, 5
        s_add_u32 s{sT0}, s{sT0}, s{sT1}
        s_add_u32 s{sT0}, s{sT0}, {FL_OA}
        v_lshl_add_u32 v{vJ0}, v{vLANE}, 2, s{sT0}
        s_mov_b64 exec, 0xff
        buffer_load_dword v{vJ1}, v{vJ0}, {sr(rWS,4)}, 0 offen sc1
        s_mov_b64 exec, -1
        """)
        sa.push("foa")
    def oa1(part):
        def f():
            if part == 0:
                sa.wait("foa")
                poll(vJ0, vJ1, 0xff, first_issued=True)
                await_cnt(C_UP, 4)
            off = (part >> 1) * 32768 + (part & 1) * 4096
            loff = L_WB + off
            a(f"""
            s_lshl_b32 s{sT0}, s{sRB}, 16
            s_lshl_b32 s{sT1}, s{sJ}, 13
            s_add_u32 s{sT0}, s{sT0}, s{sT1}
            s_add_u32 s{sT0}, s{sT0}, {WS_OA + off}
            s_add_u32 m0, s{sT1}, {loff}
            """)
            for i in range(4):
                a(f"buffer_load_dwordx4 v{vL16}, {sr(rWS,4)}, s{sT0} offen offset:{i*1024} sc1 lds")
            sa.push("wo", 4)
        return f
    def job0():
        sa.wait("pst")
        a(f"s_lshl_b32 s{sT0}, s{sH}, 7\ns_lshl_b32 s{sT1}, s{sRB}, 2\ns_add_u32 s{sT0}, s{sT0}, s{sT1}\ns_add_u32 s{sT0}, s{sT0}, {FL_P}\nv_mov_b32 v{vJ0}, s{sT0}")
        flag(vJ0, "1"); sa.push("fl")
    def job1():
        a(f"s_lshl_b32 s{sT0}, s{sH}, 7\ns_add_u32 s{sT0}, s{sT0}, {FL_F}\nv_lshl_add_u32 v{vJ0}, v{vLANE}, 2, s{sT0}")
        a(f"s_mov_b64 exec, 0xff\nbuffer_load_dword v{vJ1}, v{vJ0}, {sr(rWS,4)}, 0 offen sc1\ns_mov_b64 exec, -1")
        sa.push("ff")
        stamp(6)
    def job2():
        sa.wait("ff")
        poll(vJ0, vJ1, 0xff, first_issued=True)
        a(f"""
        v_and_b32 v{vJ0}, 31, v{vLANE}
        v_min_u32 v{vJ0}, 16, v{vJ0}
        v_lshlrev_b32 v{vJ0}, 3, v{vJ0}
        v_lshrrev_b32 v{vJ1}, 5, v{vLANE}
        v_lshl_add_u32 v{vJ0}, v{vJ1}, 8, v{vJ0}
        s_lshl_b32 s{sT0}, s{sH}, 11
        s_add_u32 s{sT0}, s{sT0}, {WS_F}
        """)
        for r4 in range(4):
            a(f"buffer_load_dwordx2 {vr(KT+2*r4,2)}, v{vJ0}, {sr(rWS,4)}, s{sT0} offen offset:{r4*512} sc1")
        sa.push("kt", 4)
        stamp(14)
    def job3a():
        sa.wait("kt")
        for ri in range(2):
            mfma(JD + 16 * ri, KT, PHI + 8 * ri, "0")
        for ri in range(2):
            mfma(JD + 16 * ri, KT + 4, PHI + 8 * ri + 4, JD + 16 * ri)
    def job3b():
        a(f"s_lshl_b32 s{sT0}, s{sRB}, 6\ns_add_u32 s{sT0}, s{sT0}, s{sH}\ns_lshl_b32 s{sT0}, s{sT0}, 10\ns_add_u32 s{sT0}, s{sT0}, {WS_OA}\ns_add_u32 s{sT1}, s{sT0}, 32768")
        if cfg.a3:
            a(f"s_and_b32 s{sT2}, s{sJ}, 1\ns_lshl_b32 s{sT2}, s{sT2}, 15\ns_add_u32 s{sT0}, s{sT0}, s{sT2}\ns_sub_u32 s{sT1}, s{sT1}, s{sT2}")
        for ri in range(2):
            d = JD + 16 * ri
            a(f"v_add_f32 v{d+8}, {f2u(1e-6)}, v{d+8}\nv_rcp_f32 v{d+8}, v{d+8}")
        for ri in range(2):
            d = JD + 16 * ri
            for i in range(4):
                a(f"v_pk_mul_f32 {vr(d+2*i,2)}, {vr(d+2*i,2)}, {vr(d+8,2)} op_sel:[0,0] op_sel_hi:[1,0]")
            cvt(d + 12, d, 4)
            a(f"buffer_store_dwordx4 {vr(d+12,4)}, v{vL16}, {sr(rWS,4)}, s{sT0+ri} offen sc1")
        sa.push("oa", 2)
    def job4():
        sa.wait("oa")
        a(f"s_lshl_b32 s{sT0}, s{sRB}, 7\ns_lshl_b32 s{sT1}, s{sH}, 2\ns_add_u32 s{sT0}, s{sT0}, s{sT1}\ns_add_u32 s{sT0}, s{sT0}, {FL_OA}\nv_mov_b32 v{vJ0}, s{sT0}")
        flag(vJ0, "1"); sa.push("fl")
    jobs = {}
    t0, t1, t2, t3, t4 = cfg.jobT
    for t, f in ((t0, job0), (t1, job1), (t2, job2), (t3, job3a), (t3 + 1, job3b), (t4, job4)): jobs.setdefault(t, []).append(f)
    for t, f in zip(cfg.redT, (red0, red1, red2, red3)): jobs.setdefault(t, []).append(f)
    if not cfg.woB:
        for t in range(16): jobs.setdefault(t + cfg.woT, []).append(lambda: wopiece(sa))
    if not cfg.woB: jobs.setdefault(cfg.woT + 18, []).append(lambda: wodone(sa))
    jobs.setdefault(nA - 2 + min(0, cfg.hintpos + 2), []).append(pretailA)
    if cfg.hintpos <= -2: jobs.setdefault(nA + 1 + cfg.hintpos, []).append(hint)
    if cfg.poisT >= 0: jobs.setdefault(cfg.poisT, []).append(poison)
    jobs.setdefault(cfg.oaT[0], []).append(oa0)
    for p in range(4): jobs.setdefault(cfg.oaT[1] + p, []).append(oa1(p))
    assert max(jobs) < nA
    if cfg.skip:
        for t in list(jobs):
            jobs[t] = [f for f in jobs[t] if f.__name__ not in cfg.skip]
    sa.run(jobs, cfg.prioA)
    sa.wait("wo")
    a("; ======== tail: join the two key ranges, publish o, output projections")
    a.label("L_tail")
    stamp(7)

    CK = NM
    def check():
        for q in range(2):
            b = O + 16 * q
            a(f"v_maximum3_f32 v{CK+q}, abs(v{b}), abs(v{b+1}), abs(v{b+2})\nv_maximum3_f32 v{CK+2+q}, abs(v{b+3}), abs(v{b+4}), abs(v{b+5})")
            a(f"v_maximum3_f32 v{CK+q}, v{CK+q}, abs(v{b+6}), abs(v{b+7})\nv_maximum3_f32 v{CK+q}, v{CK+q}, v{CK+2+q}, v{CK+2+q}")
        a(f"""
        s_mov_b32 s{sT2}, {f2u(2.0 ** -(cfg.bias + 2))}
        s_mov_b32 s{sT3}, {f2u(2.0 ** -112)}
        v_maximum3_f32 v{CK+4}, v{CK}, v{CK+1}, v{O+8}
        v_cmp_le_f32 s[84:85], s{sT2}, v{O+8}
        v_cmp_gt_f32 s[86:87], s{sT3}, v{CK}
        v_maximum3_f32 v{CK+4}, v{CK+4}, v{O+24}, v{O+24}
        v_cmp_le_f32 s[88:89], s{sT2}, v{O+24}
        v_cmp_gt_f32 s[90:91], s{sT3}, v{CK+1}
        v_cmp_ngt_f32 vcc, {f2u(2.0 ** 125)}, v{CK+4}
        s_and_b64 s[84:85], s[84:85], s[86:87]
        s_and_b64 s[88:89], s[88:89], s[90:91]
        s_or_b64 s[84:85], s[84:85], s[88:89]
        s_or_b64 vcc, vcc, s[84:85]
        """)
    def badflag():
        l = lab("good")
        if cfg.force_redo:
            a(f"s_mov_b64 vcc, -1")
        a(f"s_cbranch_vccz {l}\nds_write_b32 v{vCNT}, v{vONE}")
        a.label(l)
    def rowaddr(dst, ri):
        a(f"""
        v_and_b32 v{vT1}, 31, v{vLANE}
        s_lshl_b32 s{sT0}, s{sRB}, 1
        s_add_u32 s{sT0}, s{sT0}, {ri}
        s_lshl_b32 s{sT0}, s{sT0}, 5
        v_add_u32 v{vT1}, s{sT0}, v{vT1}
        v_lshlrev_b32 v{dst}, 11, v{vT1}
        v_lshrrev_b32 v{vT1}, 5, v{vLANE}
        v_lshl_add_u32 v{dst}, v{vT1}, 5, v{dst}
        """)
    a(f"s_cmp_lt_u32 s{sW}, 4\ns_cbranch_scc1 L_tailB")
    if cfg.hintpos == -1: hint()
    check()
    badflag()
    a("s_waitcnt lgkmcnt(0)\ns_barrier")
    PB = 104
    a(f"""
    ds_read_b32 v{PB+16}, v{vC1} offset:4096
    ds_read_b32 v{PB+17}, v{vC1} offset:4352
    ds_read_b32 v{CK}, v{vCNT}
    ds_read_b128 {vr(PB,4)}, v{vC4}
    ds_read_b128 {vr(PB+4,4)}, v{vC4} offset:1024
    ds_read_b128 {vr(PB+8,4)}, v{vC4} offset:2048
    ds_read_b128 {vr(PB+12,4)}, v{vC4} offset:3072
    s_waitcnt lgkmcnt(4)
    v_add_f32 v{O+8}, v{O+8}, v{PB+16}
    v_add_f32 v{O+24}, v{O+24}, v{PB+17}
    v_readfirstlane_b32 s{sT1}, v{CK}
    v_rcp_f32 v{O+10}, v{O+8}
    v_rcp_f32 v{O+26}, v{O+24}
    s_andn2_b32 s{sT1}, s{sT1}, s{sREDO}
    s_cmp_lg_u32 s{sT1}, 0
    s_cbranch_scc1 L_slow
    """)
    OS = 124
    for q in range(2):
        if cfg.hintpos == q: hint()
        b = O + 16 * q
        a(f"s_waitcnt lgkmcnt({2 - 2*q})")
        for i in range(4):
            a(f"v_pk_add_f32 {vr(b+2*i,2)}, {vr(b+2*i,2)}, {vr(PB+8*q+2*i,2)}")
        for i in range(4):
            a(f"v_pk_mul_f32 {vr(b+2*i,2)}, {vr(b+2*i,2)}, {vr(b+10,2)} op_sel:[0,0] op_sel_hi:[1,0]")
        cvt(OS + 4 * q, b, 4)
        for i in range(4):
            a(f"v_min_u32 v{OS+4*q+i}, -2, v{OS+4*q+i}")
        a(f"buffer_store_dwordx4 {vr(OS+4*q,4)}, v{vL16}, {sr(rWS,4)}, s{sOB+q} offen {cfg.ob_st}")
    if cfg.hintpos == 2: hint()
    stamp(8)
    vOR, vOST = 5, 7
    PA, PW, PO, PS = 80, 136, 16, 48
    a(f"""
    s_and_b32 s{sT2}, s{sJ}, 1
    s_lshl_b32 s{sT0}, s{sJ}, 10
    s_add_u32 s{sT0}, s{sT0}, {L_X}
    v_add_u32 v{vT}, s{sT0}, v{vL16}
    ds_write_b128 v{vT}, {vr(OS,4)}
    v_xor_b32 v{vT}, 0x1000, v{vT}
    ds_write_b128 v{vT}, {vr(OS+4,4)}
    v_bfe_u32 v{vT1}, v{vLANE}, 2, 2
    v_lshrrev_b32 v{vT2}, 5, v{vLANE}
    v_lshl_add_u32 v{vT1}, v{vT2}, 2, v{vT1}
    v_lshlrev_b32 v{vWR}, 7, v{vT1}
    s_lshr_b32 s{sT1}, s{sJ}, 1
    v_bfe_u32 v{vT1}, v{vLANE}, 3, 1
    v_xor_b32 v{vT1}, s{sT1}, v{vT1}
    v_lshl_add_u32 v{vWR}, v{vT1}, 6, v{vWR}
    v_and_b32 v{vT1}, 1, v{vLANE}
    v_lshl_add_u32 v{vWR}, v{vT1}, 5, v{vWR}
    v_bfe_u32 v{vT1}, v{vLANE}, 4, 1
    v_lshl_add_u32 v{vWR}, v{vT1}, 4, v{vWR}
    v_bfe_u32 v{vT1}, v{vLANE}, 1, 1
    v_lshl_add_u32 v{vWR}, v{vT1}, 3, v{vWR}
    s_lshl_b32 s{sT0}, s{sT2}, 15
    s_add_u32 s{sT0}, s{sT0}, {L_WB}
    v_add_u32 v{vOR}, s{sT0}, v{vL16}
    s_waitcnt lgkmcnt(0)
    """)
    arrive(C_OB)
    if cfg.tailprio: a("s_setprio 0")
    assert L_WA == 0
    DP = 4
    def rd(q):
        a(f"ds_read_b64_tr_b16 {vr(PW+4*(q%8),2)}, v{vWR} offset:{q*2048}")
        a(f"ds_read_b64_tr_b16 {vr(PW+4*(q%8)+2,2)}, v{vWR} offset:{q*2048+1024}")
        a(f"ds_read_b128 {vr(PO+4*(q%8),4)}, v{vOR} offset:{q*1024}")
    for q in range(DP): rd(q)
    for q in range(32):
        a(f"s_waitcnt lgkmcnt({3*min(DP-1, 31-q)})")
        mfma(PA, PW + 4 * (q % 8), PO + 4 * (q % 8), "0" if q == 0 else PA)
        if q + DP < 32: rd(q + DP)
        if cfg.hintpos == 10 + q: hint()
        if q == 31 - DP:
            if cfg.outA_t:
                a(f"""
                v_lshrrev_b32 v{vT1}, 2, v{vLANE}
                s_lshl_b32 s{sT0}, s{sRB}, 1
                s_add_u32 s{sT0}, s{sT0}, s{sT2}
                s_lshl_b32 s{sT0}, s{sT0}, 5
                v_add_u32 v{vT1}, s{sT0}, v{vT1}
                v_lshlrev_b32 v{vOST}, 11, v{vT1}
                v_and_b32 v{vT1}, 3, v{vLANE}
                v_lshl_add_u32 v{vOST}, v{vT1}, 4, v{vOST}
                v_and_b32 v{vT1}, 31, v{vLANE}
                v_lshlrev_b32 v{vT1}, 6, v{vT1}
                v_lshrrev_b32 v{vT2}, 5, v{vLANE}
                v_lshl_add_u32 v{vT1}, v{vT2}, 5, v{vT1}
                s_mul_i32 s{sT0}, s{sJ}, 4608
                s_add_u32 s{sT0}, s{sT0}, {L_XC}
                v_add_u32 v9, s{sT0}, v{vT1}
                """)
            else:
                rowaddr(vOST, f"s{sT2}")
            a(f"s_lshl_b32 s{sT0}, s{sHG}, 7\ns_lshr_b32 s{sT1}, s{sJ}, 1\ns_lshl_b32 s{sT1}, s{sT1}, 6\ns_add_u32 s{sT0}, s{sT0}, s{sT1}\nv_add_u32 v{vOST}, s{sT0}, v{vOST}")
    arrive(C_OA)
    stamp(9)
    cvt(PS, PA, 8)
    if cfg.outA_t:
        a(f"""
        ds_write_b128 v9, {vr(PS,4)}
        ds_write_b128 v9, {vr(PS+4,4)} offset:16
        v_add_u32 v10, 0x8000, v{vOST}
        s_waitcnt lgkmcnt(0)
        ds_read_b128 {vr(PS+8,4)}, v{vC4}
        ds_read_b128 {vr(PS+12,4)}, v{vC4} offset:1024
        s_waitcnt lgkmcnt(1)
        buffer_store_dwordx4 {vr(PS+8,4)}, v{vOST}, {sr(rOUT,4)}, 0 offen {cfg.outA_sc}
        s_waitcnt lgkmcnt(0)
        buffer_store_dwordx4 {vr(PS+12,4)}, v10, {sr(rOUT,4)}, 0 offen {cfg.outA_sc}
        """)
    else:
        a(f"buffer_store_dwordx4 {vr(PS,4)}, v{vOST}, {sr(rOUT,4)}, 0 offen {cfg.outA_sc}")
        a(f"buffer_store_dwordx4 {vr(PS+4,4)}, v{vOST}, {sr(rOUT,4)}, 0 offen offset:16 {cfg.outA_sc}")
    stamp(10); stamp(11); stamp(12)
    if cfg.fin8:
        a("s_branch L_fin8")
    elif cfg.abar:
        a("s_barrier" + ("\ns_barrier" if cfg.outB_t else ""))
    a("s_branch L_fin")

    a.label("L_tailB")
    if cfg.tailprio > 1: a("s_setprio 3")
    a(f"""
    ds_write_b128 v{vC4}, {vr(O,4)}
    ds_write_b128 v{vC4}, {vr(O+4,4)} offset:1024
    ds_write_b32 v{vC1}, v{O+8} offset:4096
    ds_write_b128 v{vC4}, {vr(O+16,4)} offset:2048
    ds_write_b128 v{vC4}, {vr(O+20,4)} offset:3072
    ds_write_b32 v{vC1}, v{O+24} offset:4352
    """)
    check()
    badflag()
    OFB, AB = 16, 104
    vXW, vXR, vOWN = 9, 10, 11
    sTODO, sREQ, sNEW = 84, 85, 88
    a(f"""
    s_waitcnt lgkmcnt(0)
    s_barrier
    ds_read_b32 v{CK}, v{vCNT}
    s_mov_b64 exec, 3
    buffer_load_dword v{vH}, v{vHA}, {sr(rWS,4)}, 0 offen sc1
    s_mov_b64 exec, -1
    v_pk_mov_b32 {vr(168,2)}, 0, 0
    v_pk_mov_b32 {vr(170,2)}, 0, 0
    s_waitcnt lgkmcnt(0)
    v_readfirstlane_b32 s{sT1}, v{CK}
    s_andn2_b32 s{sT1}, s{sT1}, s{sREDO}
    s_cmp_lg_u32 s{sT1}, 0
    s_cbranch_scc1 L_slow
    """)
    stamp(8)
    if cfg.tailprio: a("s_setprio 2")
    for i in range(4):
        mfma(AB + 16 * i, 168, 168, "0")
    rowaddr(vOST, 0)
    a(f"""
    s_lshl_b32 s{sT0}, s{sHG}, 7
    s_lshr_b32 s{sT1}, s{sJ}, 1
    s_lshl_b32 s{sT1}, s{sT1}, 6
    s_add_u32 s{sT0}, s{sT0}, s{sT1}
    s_and_b32 s{sT1}, s{sJ}, 1
    s_lshl_b32 s{sT1}, s{sT1}, 4
    s_add_u32 s{sT0}, s{sT0}, s{sT1}
    v_add_u32 v{vOST}, s{sT0}, v{vOST}
    v_add_u32 v{vOWN}, {L_X}, v{vL16}
    """)
    if cfg.fin8:
        a(f"""
        s_lshr_b32 s{sT0}, s{sJ}, 1
        s_lshl_b32 s{sT0}, s{sT0}, 2
        s_and_b32 s{sT1}, s{sJ}, 1
        s_add_u32 s{sT0}, s{sT0}, s{sT1}
        v_lshrrev_b32 v{vT1}, 5, v{vLANE}
        v_lshl_add_u32 v{vT1}, v{vT1}, 1, s{sT0}
        v_and_b32 v{vT2}, 7, v{vLANE}
        v_xor_b32 v{vT1}, v{vT1}, v{vT2}
        v_and_b32 v{vT2}, 31, v{vLANE}
        v_lshlrev_b32 v{vT2}, 7, v{vT2}
        v_lshl_add_u32 v{vXR}, v{vT1}, 4, v{vT2}
        s_lshl_b32 s{sT0}, s{sJ}, 14
        v_add_u32 v{vXR}, s{sT0}, v{vXR}
        """)
    else:
        a(f"s_mul_i32 s{sT0}, s{sJ}, 12288\nv_add_u32 v{vXR}, s{sT0}, v{vL16}")
    a(f"""
    s_andn2_b32 s{sTODO}, 3, s{sOWN}
    s_mov_b32 s{sREQ}, 0
    s_mov_b32 s{sCNT}, {cfg.spin}
    """)
    def mm(g):
        for ri in range(2):
            for i in range(4):
                for g2 in range(2):
                    d = AB + 32 * ri + 16 * g2
                    mfma(d, WFB + 32 * g2 + 4 * (4 * g + i), OFB + 32 * g + 16 * ri + 4 * i, d)
    def oload(g):
        l = lab("nol")
        a(f"s_bitcmp1_b32 s{sNEW}, {g}\ns_cbranch_scc0 {l}")
        for ri in range(2):
            a(f"s_add_u32 s{sT0}, s{sOB}, {g*4096 + ri*32768}")
            for i in range(4):
                a(f"buffer_load_dwordx4 {vr(OFB+32*g+16*ri+4*i,4)}, v{vL16}, {sr(rWS,4)}, s{sT0} offen offset:{i*1024} {cfg.ob_ld}")
        a.label(l)
    def look():
        a(f"""
        s_mov_b64 exec, 3
        v_cmp_ne_u32 vcc, 0, v{vH}
        s_mov_b64 exec, -1
        s_cmp_eq_u32 s{sCNT}, 0
        s_cselect_b32 s{sNEW}, 3, vcc_lo
        s_and_b32 s{sNEW}, s{sNEW}, s{sTODO}
        s_andn2_b32 s{sNEW}, s{sNEW}, s{sREQ}
        """)
        oload(0); oload(1)
    def use(g):
        l, l2 = lab("og"), lab("og")
        b = OFB + 32 * g
        a(f"v_max3_u32 v{vT}, v{b}, v{b+1}, v{b+2}\nv_max3_u32 v{vT1}, v{b+3}, v{b+4}, v{b+5}")
        for i in range(6, 30, 4):
            a(f"v_max3_u32 v{vT}, v{vT}, v{b+i}, v{b+i+1}\nv_max3_u32 v{vT1}, v{vT1}, v{b+i+2}, v{b+i+3}")
        a(f"v_max3_u32 v{vT}, v{vT}, v{b+30}, v{b+31}\nv_max_u32 v{vT}, v{vT}, v{vT1}\nv_cmp_eq_u32 vcc, -1, v{vT}")
        a(f"s_cmp_eq_u32 s{sCNT}, 0\ns_cbranch_scc1 {l2}\ns_cbranch_vccnz {l}")
        a.label(l2)
        mm(g)
        a(f"s_bitset0_b32 s{sTODO}, {g}")
        a.label(l)
    a("s_waitcnt vmcnt(0)")
    look()
    a(f"s_mov_b32 s{sREQ}, s{sNEW}")
    l = lab("noown")
    a(f"s_cmp_eq_u32 s{sOWN}, 0\ns_cbranch_scc1 {l}")
    await_cnt(C_OB, 4)
    for g in range(2):
        l2 = lab("own")
        a(f"s_bitcmp1_b32 s{sOWN}, {g}\ns_cbranch_scc0 {l2}")
        for i in range(8):
            a(f"ds_read_b128 {vr(OFB+32*g+4*i,4)}, v{vOWN} offset:{i*1024}")
        a("s_waitcnt lgkmcnt(0)")
        mm(g)
        a.label(l2)
    a.label(l)
    stamp(9)
    if cfg.prof: a("s_mov_b32 s70, 0")
    a.label("L_otry")
    if cfg.prof:
        a("s_memtime s[98:99]\ns_add_u32 s70, s70, 1\ns_add_u32 s71, s70, 40\ns_min_u32 s71, s71, 47\ns_waitcnt lgkmcnt(0)\ns_mov_b32 m0, s71\nv_writelane_b32 v255, s98, m0")
    if cfg.peek:
        a(f"ds_read_b32 v{vT2}, v{vCNT} offset:{C_OA}")
    a(f"s_cmp_lg_u32 s{sREQ}, 3\ns_cbranch_scc1 L_oone")
    a("s_waitcnt vmcnt(8)")
    use(0)
    a("s_waitcnt vmcnt(0)")
    use(1)
    a(f"s_mov_b32 s{sREQ}, 0\ns_branch L_onext")
    a.label("L_oone")
    l = lab("nopoll")
    a(f"s_andn2_b32 s{sT0}, s{sTODO}, s{sREQ}\ns_cbranch_scc0 {l}")
    if cfg.tsleep: a(f"s_sleep {cfg.tsleep}")
    a(f"s_mov_b64 exec, 3\nbuffer_load_dword v{vH}, v{vHA}, {sr(rWS,4)}, 0 offen sc1\ns_mov_b64 exec, -1")
    a(f"s_max_u32 s{sCNT}, s{sCNT}, 1\ns_sub_u32 s{sCNT}, s{sCNT}, 1")
    a.label(l)
    a("s_waitcnt vmcnt(0)")
    look()
    for g in range(2):
        l = lab("nouse")
        a(f"s_bitcmp1_b32 s{sREQ}, {g}\ns_cbranch_scc0 {l}")
        use(g)
        a.label(l)
    a(f"s_mov_b32 s{sREQ}, s{sNEW}")
    a.label("L_onext")
    a(f"s_cmp_lg_u32 s{sTODO}, 0\ns_cbranch_scc1 L_otry")
    if cfg.prof: a(f"v_writelane_b32 v255, s70, 33\nv_writelane_b32 v255, s{sCNT}, 34")
    stamp(10)
    if cfg.peek:
        l = lab("seen")
        a(f"s_waitcnt lgkmcnt(0)\nv_cmp_gt_u32 vcc, 4, v{vT2}\ns_cbranch_vccz {l}")
        await_cnt(C_OA, 4)
        a.label(l)
    else:
        await_cnt(C_OA, 4)
    stamp(11)
    def grp(ri, g):
        return AB + 32 * ri + 16 * (g >> 1) + 8 * (g & 1)
    if cfg.fin8:
        for g in range(1, 4):
            a(f"v_xor_b32 v{168+g}, {(4*(g>>1) + (g&1))*16}, v{vXR}")
        for ri in range(2):
            for g in range(4):
                for i in range(2):
                    a(f"ds_write_b128 v{168+g if g else vXR}, {vr(grp(ri,g)+4*i,4)} offset:{ri*4096 + i*8192}")
        a.label("L_fin8")
        a(f"""
        v_lshrrev_b32 v{vT1}, 3, v{vLANE}
        v_and_b32 v{vT2}, 7, v{vLANE}
        v_lshlrev_b32 v{vOST}, 11, v{vT1}
        v_lshl_add_u32 v{vOST}, v{vT2}, 4, v{vOST}
        v_xor_b32 v{vT2}, v{vT2}, v{vT1}
        v_lshlrev_b32 v{vT2}, 4, v{vT2}
        v_lshl_add_u32 v{vT2}, v{vT1}, 7, v{vT2}
        s_lshl_b32 s{sT0}, s{sW}, 10
        v_add_u32 v{vT}, s{sT0}, v{vT2}
        s_lshl_b32 s{sT0}, s{sRB}, 3
        s_add_u32 s{sT0}, s{sT0}, s{sW}
        s_lshl_b32 s{sT0}, s{sT0}, 14
        s_lshl_b32 s{sT1}, s{sHG}, 7
        s_add_u32 s{sT0}, s{sT0}, s{sT1}
        s_waitcnt lgkmcnt(0)
        s_barrier
        """)
        stamp(12)
        for p in range(4):
            for i in range(2):
                a(f"ds_read_b128 {vr(64+8*p+4*i,4)}, v{vT} offset:{p*16384 + i*8192}")
        for p in range(1, 4):
            a(f"s_waitcnt lgkmcnt({6-2*p})")
            for i in range(4):
                a(f"v_pk_add_f32 {vr(64+2*i,2)}, {vr(64+2*i,2)}, {vr(64+8*p+2*i,2)}")
        cvt(96, 64, 4)
        a(f"buffer_store_dwordx4 {vr(96,4)}, v{vOST}, {sr(rOUT,4)}, s{sT0} offen offset:1024 {cfg.out_sc}")
    else:
        for g in range(1, 4):
            a(f"s_xor_b32 s{sT0}, s{sJ}, {g}\ns_mul_i32 s{sT0}, s{sT0}, 12288\ns_add_u32 s{sT0}, s{sT0}, {(g-1)*4096}\nv_add_u32 v{vXW}, s{sT0}, v{vL16}")
            for ri in range(2):
                a(f"ds_write_b128 v{vXW}, {vr(grp(ri,g),4)} offset:{ri*2048}\nds_write_b128 v{vXW}, {vr(grp(ri,g)+4,4)} offset:{ri*2048+1024}")
        a("s_waitcnt lgkmcnt(0)\ns_barrier")
        stamp(12)
        tmp = 16
        for ri in range(2):
            for g in range(3):
                for i in range(2):
                    a(f"ds_read_b128 {vr(tmp+24*ri+8*g+4*i,4)}, v{vXR} offset:{g*4096 + ri*2048 + i*1024}")
        if cfg.outB_t:
            a(f"""
            v_and_b32 v{vT1}, 31, v{vLANE}
            v_lshlrev_b32 v{vXW}, 7, v{vT1}
            v_lshrrev_b32 v{vT1}, 5, v{vLANE}
            v_lshl_add_u32 v{vXW}, v{vT1}, 5, v{vXW}
            s_lshr_b32 s{sT0}, s{sJ}, 1
            s_lshl_b32 s{sT0}, s{sT0}, 6
            s_and_b32 s{sT1}, s{sJ}, 1
            s_lshl_b32 s{sT1}, s{sT1}, 4
            s_add_u32 s{sT0}, s{sT0}, s{sT1}
            s_add_u32 s{sT0}, s{sT0}, {L_X}
            v_add_u32 v{vXW}, s{sT0}, v{vXW}
            """)
        else:
            a(f"v_add_u32 v{vXW}, 0x10000, v{vOST}")
        for ri in range(2):
            d = grp(ri, 0)
            for g in range(3):
                a(f"s_waitcnt lgkmcnt({10 - 6*ri - 2*g + (1 if (cfg.outB_t and ri) else 0)})")
                for i in range(4):
                    a(f"v_pk_add_f32 {vr(d+2*i,2)}, {vr(d+2*i,2)}, {vr(tmp+24*ri+8*g+2*i,2)}")
            cvt(64 + 4 * ri, d, 4)
            if cfg.outB_t:
                a(f"ds_write_b128 v{vXW}, {vr(64+4*ri,4)} offset:{ri*4096}")
            else:
                a(f"buffer_store_dwordx4 {vr(64+4*ri,4)}, v{vXW if ri else vOST}, {sr(rOUT,4)}, 0 offen offset:1024 {cfg.out_sc}")
        if cfg.outB_t:
            a(f"""
            s_lshl_b32 s{sT0}, s{sJ}, 11
            v_add_u32 v{vOWN}, s{sT0}, v{vOWN}
            v_lshrrev_b32 v{vT1}, 3, v{vLANE}
            v_lshlrev_b32 v{vOST}, 11, v{vT1}
            v_and_b32 v{vT1}, 7, v{vLANE}
            v_lshl_add_u32 v{vOST}, v{vT1}, 4, v{vOST}
            s_lshl_b32 s{sT0}, s{sRB}, 2
            s_add_u32 s{sT0}, s{sT0}, s{sJ}
            s_lshl_b32 s{sT0}, s{sT0}, 15
            s_lshl_b32 s{sT1}, s{sHG}, 7
            s_add_u32 s{sT0}, s{sT0}, s{sT1}
            s_add_u32 s{sT1}, s{sT0}, 0x4000
            s_waitcnt lgkmcnt(0)
            s_barrier
            ds_read_b128 {vr(72,4)}, v{vOWN}
            ds_read_b128 {vr(76,4)}, v{vOWN} offset:1024
            s_waitcnt lgkmcnt(1)
            buffer_store_dwordx4 {vr(72,4)}, v{vOST}, {sr(rOUT,4)}, s{sT0} offen offset:1024 {cfg.out_sc}
            s_waitcnt lgkmcnt(0)
            buffer_store_dwordx4 {vr(76,4)}, v{vOST}, {sr(rOUT,4)}, s{sT1} offen offset:1024 {cfg.out_sc}
            """)
    a.label("L_fin")
    stamp(13)
    if cfg.diag:
        da, db, base = cfg.diag
        ra = sPROF if da == 0 else 92
        if db == 0:
            a(f"s_mov_b32 s{sT2}, 0")
        elif db == 15:
            a(f"s_waitcnt vmcnt(0)\ns_memrealtime s[{sT0}:{sT1}]\ns_waitcnt lgkmcnt(0)\ns_sub_u32 s{sT2}, s{sT0}, s{ra}")
        elif db == 16:
            a(f"s_waitcnt vmcnt(0)\ns_memtime s[{sT0}:{sT1}]\ns_waitcnt lgkmcnt(0)\ns_sub_u32 s{sT2}, s{sT0}, s100\ns_lshr_b32 s{sT2}, s{sT2}, 4")
        else:
            a(f"s_sub_u32 s{sT2}, s94, s{ra}")
        a(f"s_add_u32 s{sT2}, s{sT2}, {base}\ns_min_u32 s{sT2}, s{sT2}, 30000")
        a(f"s_cmp_lg_u32 s{sW}, 0\ns_cbranch_scc1 L_end")
        if cfg.diag_wb: a("s_waitcnt vmcnt(0)\ns_sleep 100\nbuffer_wbl2 sc1\ns_waitcnt vmcnt(0)")
        a.label("L_diag")
        a(f"s_memrealtime s[{sT0}:{sT1}]\ns_waitcnt lgkmcnt(0)\ns_sub_u32 s{sT0}, s{sT0}, s{sPROF}\ns_cmp_lt_u32 s{sT0}, s{sT2}\ns_cbranch_scc1 L_diag")
    if cfg.prof:
        a("s_waitcnt vmcnt(0)")
        stamp(15)
        a(f"s_getreg_b32 s{sT2}, hwreg(HW_REG_XCC_ID)\nv_writelane_b32 v255, s{sT2}, 32")
        a(f"s_lshl_b32 s{sT0}, s2, 3\ns_add_u32 s{sT0}, s{sT0}, s{sW}\ns_lshl_b32 s{sT0}, s{sT0}, 8\ns_add_u32 s{sT0}, s{sT0}, {WS_PROF}")
        a(f"v_lshlrev_b32 v{vT}, 2, v{vLANE}")
        a(f"buffer_store_dword v255, v{vT}, {sr(rWS,4)}, s{sT0} offen")
        if cfg.tprof:
            a(f"s_add_u32 s{sT0}, s{sT0}, {WS_DBG - WS_PROF}\nbuffer_store_dword v252, v{vT}, {sr(rWS,4)}, s{sT0} offen")
    a("s_endpgm")

    SL = O
    a.label("L_slow")
    a("s_waitcnt vmcnt(0) lgkmcnt(0)")
    a(f"s_mov_b32 s{sREDO}, 1\ns_mov_b32 s{sKV}, s{sKV0}\ns_mov_b32 s{sCNT}, s{sNIT}")
    a(f"v_mov_b32 v{SL}, 0xff800000\nv_mov_b32 v{SL+1}, 0xff800000")
    a.label("L_slow_loop")
    a(f"buffer_load_dwordx4 {vr(RING,4)}, v{vOFFK}, {sr(rWS,4)}, s{sKV} offen sc1\ns_add_u32 s{sKV}, s{sKV}, 2048\ns_and_b32 s{sKV}, s{sKV}, 0x1ffff\ns_waitcnt vmcnt(0)")
    mfma(S, RING, Qf, "0")
    mfma(S + 16, RING, Qf + 4, "0")
    maxtree(SL, S, 16, init=True)
    maxtree(SL + 1, S + 16, 16, init=True)
    a(f"s_sub_u32 s{sCNT}, s{sCNT}, 1\ns_cmp_lg_u32 s{sCNT}, 0\ns_cbranch_scc1 L_slow_loop")
    crossmax(SL)
    a(f"""
    s_lshl_b32 s{sT0}, s{sW}, 8
    s_add_u32 s{sT0}, s{sT0}, {L_X + 28672}
    v_lshl_add_u32 v{vT}, v{vLANE}, 2, s{sT0}
    ds_write_b32 v{vT}, v{SL}
    v_xor_b32 v{vT}, 0x400, v{vT}
    s_waitcnt lgkmcnt(0)
    s_barrier
    ds_read_b32 v{SL+1}, v{vT}
    s_waitcnt lgkmcnt(0)
    v_max_f32 v{SL}, v{SL}, v{SL+1}
    v_sub_f32 v{SL}, 0, v{SL}
    v_mov_b32 v{SL+1}, v{SL}
    v_permlane32_swap_b32 v{SL}, v{SL+1}
    """)
    nmfill(SL)
    sr2 = Stream(2, 2)
    sr2.prologue(single=True)
    a(f"s_lshr_b32 s{sCNT}, s{sNIT}, 1\ns_nop 7\ns_nop 3")
    a.label("L_redo_loop")
    sr2.tile(0, looped=True)
    sr2.tile(1, looped=True)
    a(f"s_sub_u32 s{sCNT}, s{sCNT}, 1\ns_cmp_lg_u32 s{sCNT}, 0\ns_cbranch_scc1 L_redo_loop")
    smf(O + 16, sr2.ring(1)[2], S + 16 + 8)
    a("s_waitcnt vmcnt(0)\ns_branch L_tail")
    a.label("L_end")
    a("s_endpgm")
    npad = a.pad()
    head = open(f"cdna_kernels/{NAME}.s.ref").read().split("; Override launch")[0]
    txt = head + f"""; Written with a generator script of my own (gen/gen.py); no compiler output.
;
; One persistent launch, 256 workgroups x 8 waves, one workgroup per CU.  Workgroup (rb, hg) owns rows
; 64*rb..64*rb+63 and heads 4*hg..4*hg+3 of both branches; wave j and wave j+4 share head 4*hg+j.
;   waves 0-3 (role B): qkv projection of the softmax branch, publish K/V, stage operands for role A,
;                       24 of the 64 key tiles of the attention, output projection of the softmax branch
;   waves 4-7 (role A): stage operands for role B, qkv projection and feature maps of the linear branch,
;                       40 key tiles, kv reduction and o of the linear branch, its output projection
; Attention: S^T = K Q^T - offset (offset in the MFMA's C operand), v_exp_f32 in place, and P V through the
; 2:4-sparse MFMA, whose index picks the high halves of the fp32 P registers (bf16 by truncation); a row of
; ones in the V operand gives the row sums from the same P.
; Softmax offset: maximum over the workgroup's own 64 keys, +{cfg.bias:.0f} in log2 units.  That maximum is a lower
; bound of the row maximum, so a term can only underflow if it is below 2^-{126-cfg.bias:.0f} of the row's largest term
; (less than half an fp32 ulp of it).  After the loop every wave checks its sums; on overflow, NaN or a row
; about to underflow the whole workgroup recomputes with the true row maximum (L_slow).
; Hand-offs between workgroups go through d_ws with sc1 stores and sc1 loads.  Flags are cleared in-launch by
; workgroups 0-7, which then set d_debug[0..7]; nobody touches a flag before seeing all eight.  o of the
; softmax branch carries its own validity: its words are first set to all ones (never a data value) and a
; consumer uses a block only when none of its words is all ones.  Every wait loop is bounded.
; @launch grid=(256,1,1) block=(512,1,1) lds={LDS_SIZE}
.amdgcn_target "amdgcn-amd-amdhsa--gfx950"
.text
.globl {NAME}_kernel
.p2align 8
.type {NAME}_kernel,@function
{NAME}_kernel:
""" + a.text() + f""".section .rodata,"a"
.p2align 6
.amdhsa_kernel {NAME}_kernel
  .amdhsa_next_free_vgpr 256
  .amdhsa_next_free_sgpr 102
  .amdhsa_accum_offset 256
  .amdhsa_group_segment_fixed_size 0
  .amdhsa_kernarg_size 80
  .amdhsa_user_sgpr_count 2
  .amdhsa_user_sgpr_kernarg_segment_ptr 1
  .amdhsa_system_sgpr_workgroup_id_x 1
.end_amdhsa_kernel
"""
    return txt, npad

if __name__ == "__main__":
    kw = {}
    out = f"cdna_kernels/{NAME}.s"
    for arg in sys.argv[1:]:
        k, v = arg.split("=", 1)
        if k == "out":
            out = v
        else:
            kw[k] = eval(v)
    txt, npad = gen(Cfg(**kw))
    open(out, "w").write(txt)
    print("wrote", out, "nop states inserted:", npad, "lines:", txt.count("\n"))
```

```python
import math, struct, sys
from asmlib import Asm, vr, sr

NAME = "concat_heads__linear_kernel_hedgehog__softmax_full_mha__prompt"

def f2u(x):
    return struct.unpack("<I", struct.pack("<f", x))[0]

class Cfg:
    prof = False
    stop = 99
    mapping = "N"
    force_redo = False
    nrep = 8
    bias = 100.0
    out_sc = "sc1"
    prio = True
    pref_sc = ''
    rot = (4, 4, 2)
    rotA = (1, 2, 1)
    sprefB = 0
    look = 2
    nB = 24
    depB, depA = 3, 4
    redT = (8, 10, 12, 15)
    jobT = (0, 20, 22, 24, 27)
    prioB = ((0, 0),)
    prioA = ((0, 3),)
    kvrot = True
    diag_wb = False
    split_ld = False
    earlyset = True
    jitter = 0
    weave = False
    woB = None
    poisT = 18
    fin8 = True
    peek = True
    hintpos = 2
    gprio = (2, 0, 2)
    abar = True
    swo = False
    sslowAx = True
    outB_t = True
    hs = 32
    prebar = 0
    m16 = True
    tailprio = 1
    ob_st = 'sc1'
    ob_ld = 'sc1'
    l2A = None
    pre9 = 1
    bnear = False
    sslow = 'b'
    sslowA = (0, 6)
    outA_t = True
    outA_sc = 'sc1'
    nfirst = 1
    gat_at = -1
    a3 = True
    slowpref = ''
    tprof = False
    skip = ()
    tailmode = 0
    drq = 4
    aload = 10
    hintw = 7
    tsleep = 0
    coupled = True
    lastA = 9
    flag_at = 10
    pollB = 13
    kvB = 14
    barT = (0,)
    woT = 1
    upA, upB = 26, 17
    oaT = (35, 36)
    itB = 9
    redB = 5
    hold8 = 1
    onepoll = True
    psleep = 2
    hold9 = False
    prB = (4, 1)
    prA = (3, 1)
    wopref = False
    oa_first = True
    spref = None
    codepref = 'xcd'
    ninit = 2
    pref = 'uniq'
    prefA = (99, 99)
    spin = 1 << 21
    diag = None
    def __init__(self, **kw):
        for k, v in kw.items():
            assert hasattr(self, k), k
            setattr(self, k, v)
        if self.m16: self.a3 = False

WS_KV = 0
WS_OA = 4 << 20
WS_OB = 6 << 20
WS_P = 8 << 20
WS_F = 11 << 20
WS_FL = (11 << 20) + 65536
FL_P = WS_FL
FL_F = FL_P + 4096
FL_OA = FL_F + 4096
FL_KV = FL_OA + 4096
FL_OB = FL_KV + 8192
WS_PROF = 12 << 20
WS_DBG = 13 << 20
WS_SIZE = 16 << 20

L_WA = 0
L_WB = 65536
L_X = 131072
L_XM = L_X + 8192
L_XC = L_X + 10240
L_XV = L_X + 12288
L_XR = L_X + 28672
L_BAD = L_X + 32512
C_KV, C_WO, C_GO, C_RD, C_OA, C_OB, C_UP, C_DR = 4, 8, 12, 16, 20, 24, 28, 68
LDS_SIZE = 163840

sW, sJ, sRB, sHG, sH = 3, 4, 5, 6, 7
rXB, rWB, rXA, rWA, rWS, rOUT, rMISC, rDBG = 8, 12, 16, 20, 24, 28, 32, 36
kAX, kAW, kAP, kAO, kBX, kBW, kBO, kOUT, kDBG, kWS = range(40, 60, 2)
sM, sO0, sO1, sO2 = 60, 61, 62, 63
sC = 64
sVM = 66
sCNT, sKV, sKVMAX, sWO, sWOM, sREDO = 68, 69, 70, 71, 72, 73
sT0, sT1, sT2, sT3 = 74, 75, 76, 77
sSPIN = 78
sKV0 = 79
sROT = 82
sROTA = 70
sNIT = 83
sJB, sJL = 90, 91
sPROF = 80

vL16, vLANE = 0, 1
vT = 2
vX0, vX1, vWq, vWk, vWv = 3, 4, 5, 6, 7
vXA = 8
vQK, vV = 12, 13
vPX, vPW = 34, 35
vXB = 24
vT1, vT2 = 14, 15
vCNT, vONE = 254, 253
vOFFV, vIDX = 250, 251
vWOA = 5
Qf = 16
PHI = 24
NM = 40
O = 72
S = 104
RING = 136
SCR = 184
FR = 104
ACC = 184

def gen(cfg):
    a = Asm()
    uid = [0]
    def lab(p):
        uid[0] += 1
        return f"L_{p}_{uid[0]}"
    nstamp = [0]
    def jit(idx):
        if cfg.jitter:
            l, d = lab("jit"), lab("jitd")
            a(f"s_mul_i32 s96, s2, {2654435 + 977*idx}\ns_mul_i32 s97, s{sW}, {40503 + 31*idx}\ns_add_u32 s96, s96, s97\ns_add_u32 s96, s96, {cfg.jitter*7919*(idx+1)}")
            a(f"s_mul_i32 s96, s96, 0x9e3779b1\ns_lshr_b32 s96, s96, 28\ns_cmp_ge_u32 s96, 6\ns_cbranch_scc1 {d}")
            a.label(l)
            a(f"s_sleep 40\ns_sub_u32 s96, s96, 1\ns_cbranch_scc0 {l}")
            a.label(d)
    def stamp(idx):
        jit(idx)
        if cfg.prof:
            a(f"s_memrealtime s[96:97]\ns_memtime s[98:99]\ns_waitcnt lgkmcnt(0)\nv_writelane_b32 v255, s96, {idx}\nv_writelane_b32 v255, s98, {16+idx}")
        elif cfg.diag and idx in cfg.diag[:2]:
            a(f"s_memrealtime {sr(92 if idx == cfg.diag[0] else 94, 2)}\ns_waitcnt lgkmcnt(0)")
    def srd(r, k, size):
        a(f"s_mov_b32 s{r}, s{k}\ns_mov_b32 s{r+1}, s{k+1}\ns_mov_b32 s{r+2}, {size}\ns_mov_b32 s{r+3}, 0x00020000")
    def mfma(d, x, y, c):
        cc = c if isinstance(c, str) else vr(c, 16)
        a(f"v_mfma_f32_32x32x16_bf16 {vr(d,16)}, {vr(x,4)}, {vr(y,4)}, {cc}")
    def cvt(d, s0, n):
        for i in range(n):
            a(f"v_cvt_pk_bf16_f32 v{d+i}, v{s0+2*i}, v{s0+2*i+1}")
    def poll(vaddr, vdst, mask, srdr=rWS, soff="0", first_issued=False, sleep=0):
        lp, dn = lab("poll"), lab("polld")
        a(f"s_mov_b64 exec, {mask}" if isinstance(mask, str) else f"s_mov_b32 exec_lo, {mask & 0xffffffff}\ns_mov_b32 exec_hi, {mask >> 32}")
        a(f"s_mov_b32 s{sSPIN}, {cfg.spin}")
        if first_issued:
            a(f"v_cmp_eq_u32 vcc, 0, v{vdst}\ns_cbranch_vccz {dn}")
        a.label(lp)
        if sleep: a(f"s_sleep {sleep}")
        a(f"buffer_load_dword v{vdst}, v{vaddr}, {sr(srdr,4)}, {soff} offen sc1")
        a(f"s_sub_u32 s{sSPIN}, s{sSPIN}, 1\ns_cbranch_scc1 {dn}")
        a(f"s_waitcnt vmcnt(0)\nv_cmp_eq_u32 vcc, 0, v{vdst}\ns_cbranch_vccnz {lp}")
        a.label(dn)
        a("s_mov_b64 exec, -1")
    def flag(vaddr, mask, soff="0", srdr=rWS):
        a(f"v_mov_b32 v{vT2}, 1")
        mask = int(mask, 0)
        a(f"s_mov_b32 exec_lo, {mask & 0xffffffff}\ns_mov_b32 exec_hi, {mask >> 32}")
        a(f"buffer_store_dword v{vT2}, v{vaddr}, {sr(srdr,4)}, {soff} offen sc1")
        a("s_mov_b64 exec, -1")

    def nmfill(src):
        assert src % 2 == 0
        for i in range(0, 16, 2):
            a(f"v_pk_mov_b32 {vr(NM+i,2)}, {vr(src,2)}, {vr(src,2)} op_sel:[0,0]\nv_pk_mov_b32 {vr(NM+16+i,2)}, {vr(src,2)}, {vr(src,2)} op_sel:[1,1]")
    def arrive(off):
        a(f"s_mov_b64 exec, 1\nds_add_u32 v{vCNT}, v{vONE} offset:{off}\ns_mov_b64 exec, -1")
    def await_cnt(off, target):
        lp, dn = lab("cw"), lab("cwd")
        a(f"s_mov_b64 exec, 1\ns_mov_b32 s{sSPIN}, {cfg.spin * 16}")
        a.label(lp)
        a(f"ds_read_b32 v{vT2}, v{vCNT} offset:{off}\ns_sub_u32 s{sSPIN}, s{sSPIN}, 1\ns_cbranch_scc1 {dn}")
        a(f"s_waitcnt lgkmcnt(0)\nv_cmp_gt_u32 vcc, {target}, v{vT2}\ns_cbranch_vccnz {lp}")
        a.label(dn)
        a("s_mov_b64 exec, -1")

    a(f"s_cmp_ge_u32 s2, 256\ns_cbranch_scc1 L_end")
    a(f"s_load_dwordx2 {sr(rXB,2)}, s[0:1], 32\ns_load_dwordx2 {sr(rWB,2)}, s[0:1], 40")
    a(f"s_load_dwordx16 s[40:55], s[0:1], 0\ns_load_dwordx4 s[56:59], s[0:1], 64")
    if cfg.prof or cfg.diag:
        a(f"s_memrealtime {sr(sPROF,2)}\ns_memtime s[100:101]")
    def code_prefetch(tag):
        a(f"s_getpc_b64 s[{sT0}:{sT1}]")
        a.label(f"L_pc{tag}")
        a(f"s_sub_u32 s{sT0}, s{sT0}, L_pc{tag}-{NAME}_kernel\ns_subb_u32 s{sT1}, s{sT1}, 0")
        a(f"s_lshr_b32 s{sT2}, s2, 3\ns_lshl_b32 s{sT2}, s{sT2}, 2\ns_add_u32 s{sT2}, s{sT2}, s{sJ}\ns_mul_i32 s{sT2}, s{sT2}, 3")
        a(f"v_min_u32 v{vT}, 2, v{vLANE}\nv_add_u32 v{vT}, s{sT2}, v{vT}")
        a(f"v_lshlrev_b32 v{vT}, 7, v{vT}\nv_min_u32 v{vT}, L_end-{NAME}_kernel, v{vT}")
        a(f"global_load_dword v39, v{vT}, s[{sT0}:{sT1}]")
    a(f"v_lshrrev_b32 v{vT}, 6, v0\nv_and_b32 v{vLANE}, 63, v0\nv_readfirstlane_b32 s{sW}, v{vT}")
    if cfg.mapping == "R":
        a(f"s_and_b32 s{sT0}, s2, 7\ns_lshl_b32 s{sT0}, s{sT0}, 2\ns_bfe_u32 s{sT1}, s2, 0x20003\ns_add_u32 s{sRB}, s{sT0}, s{sT1}\ns_lshr_b32 s{sHG}, s2, 5")
    elif cfg.mapping == "H":
        a(f"s_and_b32 s{sHG}, s2, 7\ns_lshr_b32 s{sRB}, s2, 3")
    elif cfg.mapping == "M":
        a(f"s_and_b32 s{sT0}, s2, 3\ns_lshl_b32 s{sT0}, s{sT0}, 1\ns_bfe_u32 s{sT1}, s2, 0x10003\ns_add_u32 s{sHG}, s{sT0}, s{sT1}")
        a(f"s_bfe_u32 s{sT0}, s2, 0x10002\ns_lshl_b32 s{sT0}, s{sT0}, 4\ns_lshr_b32 s{sT1}, s2, 4\ns_add_u32 s{sRB}, s{sT0}, s{sT1}")
    elif cfg.mapping == "N":
        a(f"s_and_b32 s{sT0}, s2, 1\ns_lshl_b32 s{sT0}, s{sT0}, 2\ns_bfe_u32 s{sT1}, s2, 0x20003\ns_add_u32 s{sHG}, s{sT0}, s{sT1}")
        a(f"s_bfe_u32 s{sT0}, s2, 0x20001\ns_lshl_b32 s{sT0}, s{sT0}, 3\ns_lshr_b32 s{sT1}, s2, 5\ns_add_u32 s{sRB}, s{sT0}, s{sT1}")
    a(f"s_and_b32 s{sJ}, s{sW}, 3")
    def rotation(reg, rot):
        if rot:
            a(f"s_mul_i32 s{reg}, s{sHG}, {rot[1]}\ns_mul_i32 s{sT0}, s{sRB}, {rot[0]}\ns_add_u32 s{reg}, s{reg}, s{sT0}")
            a(f"s_lshr_b32 s{sT0}, s{sHG}, 2\ns_mul_i32 s{sT0}, s{sT0}, {rot[2]}\ns_add_u32 s{reg}, s{reg}, s{sT0}")
    def late_setup():
        a(f"s_lshl_b32 s{sH}, s{sHG}, 2\ns_add_u32 s{sH}, s{sH}, s{sJ}")
        a(f"v_lshlrev_b32 v{vL16}, 4, v{vLANE}\nv_mov_b32 v{vCNT}, {L_BAD}\nv_mov_b32 v{vONE}, 1")
        rotation(sROTA, cfg.rotA)
    def xslow(reg, k):
        a(f"""
        s_lshr_b32 s{sT0}, s2, 3
        s_lshl_b32 s{sT0}, s{sT0}, 2
        s_add_u32 s{sT0}, s{sT0}, s{sJ}
        s_lshl_b32 s{sT0}, s{sT0}, 12
        s_bfe_u32 s{sT1}, s2, 0x20001
        s_lshl_b32 s{sT1}, s{sT1}, 19
        s_add_u32 s{sT0}, s{sT0}, s{sT1}
        s_add_u32 s{sT0}, s{sT0}, 384
        s_add_u32 s{reg}, s{k}, s{sT0}
        s_addc_u32 s{reg+1}, s{k+1}, 0
        """)
    def loader_addrs():
        a(f"s_lshl_b32 s{sM}, s{sJ}, 11")
        a(f"""
        v_lshrrev_b32 v{vT1}, 3, v{vLANE}
        v_and_b32 v{vT2}, 7, v{vLANE}
        s_lshl_b32 s{sT0}, s{sRB}, 6
        s_lshl_b32 s{sT1}, s{sJ}, 4
        s_add_u32 s{sT0}, s{sT0}, s{sT1}
        v_add_u32 v{vT}, s{sT0}, v{vT1}
        v_lshlrev_b32 v{vT}, 10, v{vT}
        v_lshrrev_b32 v{vX0}, 1, v{vT1}
        v_xor_b32 v{vX0}, v{vX0}, v{vT2}
        v_lshl_add_u32 v{vX0}, v{vX0}, 4, v{vT}
        v_add_u32 v{vX1}, 0x2000, v{vX0}
        v_xor_b32 v{vX1}, 64, v{vX1}
        v_add_u32 v{vT}, s{sT1}, v{vT1}
        v_mul_u32_u24 v{vT}, 0xc00, v{vT}
        s_lshl_b32 s{sT2}, s{sHG}, 7
        v_add_u32 v{vT}, s{sT2}, v{vT}
        v_bfe_u32 v{vT1}, v{vLANE}, 4, 1
        v_lshlrev_b32 v{vWq}, 1, v{vT1}
        v_xor_b32 v{vWq}, v{vWq}, v{vT2}
        v_xor_b32 v{vWk}, 4, v{vWq}
        """)
        if cfg.m16:
            a(f"v_lshl_add_u32 v{vWq}, v{vWq}, 4, v{vT}\nv_lshl_add_u32 v{vWk}, v{vWk}, 4, v{vT}")
        else:
            a(f"""
            v_lshlrev_b32 v{vWv}, 2, v{vT1}
            v_xor_b32 v{vWv}, v{vWv}, v{vT2}
            v_lshl_add_u32 v{vWq}, v{vWq}, 4, v{vT}
            v_lshl_add_u32 v{vWk}, v{vWk}, 4, v{vT}
            v_lshl_add_u32 v{vWv}, v{vWv}, 4, v{vT}
            v_add_u32 v{vWk}, 0x400, v{vWk}
            v_add_u32 v{vWv}, 0x800, v{vWv}
            """)
    def kernargs():
        a(f"s_mov_b32 s{rXB+2}, {2048*1024}\ns_mov_b32 s{rXB+3}, 0x00020000\ns_mov_b32 s{rWB+2}, {512*3072}\ns_mov_b32 s{rWB+3}, 0x00020000")
        a("s_waitcnt lgkmcnt(0)")
        if cfg.prof:
            a(f"v_writelane_b32 v255, s{sPROF}, 0\nv_writelane_b32 v255, s100, 16")
    def binit():
        if cfg.pref:
            assert cfg.mapping == "N"
            nw, nx = (48, 32) if cfg.pref == "xcd" else (12, 16)
            a(f"""
            s_lshr_b32 s{sT0}, s2, 3
            s_lshl_b32 s{sT1}, s{sT0}, 2
            s_add_u32 s{sT1}, s{sT1}, s{sJ}
            s_mul_i32 s{sT2}, s{sT1}, {nw}
            s_bfe_u32 s{sT3}, s2, 0x20001
            """)
            if cfg.pref != "xcd":
                a(f"s_mul_i32 s{sT0}, s{sT3}, 1536\ns_add_u32 s{sT2}, s{sT2}, s{sT0}")
            a(f"""
            v_min_u32 v{vT}, {nw-1}, v{vLANE}
            v_add_u32 v{vT}, s{sT2}, v{vT}
            v_lshrrev_b32 v{vT1}, 2, v{vT}
            v_and_b32 v{vT}, 3, v{vT}
            v_lshlrev_b32 v{vT}, 7, v{vT}
            v_lshl_add_u32 v{vPW}, v{vT1}, 10, v{vT}
            s_and_b32 s{sT2}, s2, 1
            s_lshl_b32 s{sT0}, s{sT2}, 9
            v_add_u32 v{vPW}, s{sT0}, v{vPW}
            s_mul_i32 s{sT1}, s{sT1}, {nx*128}
            s_lshl_b32 s{sT3}, s{sT3}, 19
            s_add_u32 s{sT1}, s{sT1}, s{sT3}
            """)
            if cfg.pref != "xcd":
                a(f"s_lshl_b32 s{sT2}, s{sT2}, 18\ns_add_u32 s{sT1}, s{sT1}, s{sT2}")
            a(f"""
            v_min_u32 v{vT}, {nx-1}, v{vLANE}
            v_lshl_add_u32 v{vPX}, v{vT}, 7, s{sT1}
            """)
        kernargs()
        if cfg.pref:
            a(f"buffer_load_dword v36, v{vPW}, {sr(rWB,4)}, 0 offen {cfg.pref_sc}\nbuffer_load_dword v37, v{vPX}, {sr(rXB,4)}, 0 offen {cfg.pref_sc}")
    if cfg.bnear:
        a(f"s_cmp_ge_u32 s{sW}, 4\ns_cbranch_scc1 L_roleA")
        binit()
        code_prefetch("B")
        a("s_branch L_roleB")
        a.label("L_roleA")
    else:
        a(f"s_cmp_lt_u32 s{sW}, 4\ns_cbranch_scc1 L_roleB")
    loader_addrs()
    rotation(sROT, cfg.rot)
    kernargs()

    def chunk_pieces(c):
        rx, rw = (rXB, rWB) if c < 8 else (rXA, rWA)
        cc = c % 8
        slot = (c % 4) * 32768
        if (cfg.rot if c < 8 else cfg.rotA):
            head = f"s_add_u32 s{sO0}, s{sROT if c < 8 else sROTA}, {cc}\ns_and_b32 s{sO0}, s{sO0}, 7\ns_mul_i32 s{sO1}, s{sO0}, {64*3072}\n"
            head += f"s_lshl_b32 s{sO0}, s{sO0}, 7\ns_add_u32 s{sO2}, s{sO1}, {8*3072}\n"
        else:
            head = f"s_mov_b32 s{sO0}, {128*cc}\ns_mov_b32 s{sO1}, {cc*64*3072}\ns_mov_b32 s{sO2}, {cc*64*3072+8*3072}\n"
        ld = []
        for par in range(2):
            ld.append(f"s_add_u32 m0, s{sM}, {slot + par*1024}\nbuffer_load_dwordx4 v{vX0+par}, {sr(rx,4)}, s{sO0} offen lds\n")
            for seg in range(3):
                if cfg.m16:
                    ld.append(f"s_add_u32 m0, s{sM}, {slot + 8192*(1+seg) + par*1024 - seg*1024}\nbuffer_load_dwordx4 v{vWq+par}, {sr(rw,4)}, s{sO1+par} offen offset:{seg*1024} lds\n")
                else:
                    ld.append(f"s_add_u32 m0, s{sM}, {slot + 8192*(1+seg) + par*1024}\nbuffer_load_dwordx4 v{vWq+seg}, {sr(rw,4)}, s{sO1+par} offen lds\n")
        ld[0] = head + ld[0]
        return ld
    def issue_chunk(c):
        for t in chunk_pieces(c): a(t)

    def compute_addrs(role):
        if cfg.m16:
            a(f"""
            v_and_b32 v{vT}, 15, v{vLANE}
            v_lshrrev_b32 v{vT1}, 4, v{vLANE}
            v_lshrrev_b32 v{vT2}, 1, v{vT}
            v_xor_b32 v{vT2}, v{vT2}, v{vT1}
            v_lshlrev_b32 v{vT2}, 4, v{vT2}
            v_lshl_add_u32 v{vXA}, v{vT}, 7, v{vT2}
            v_xor_b32 v{vXA+1}, 64, v{vXA}
            v_bfe_u32 v{vT}, v{vLANE}, 2, 2
            v_lshl_add_u32 v{vT}, v{vT1}, 3, v{vT}
            v_lshlrev_b32 v{vT}, 7, v{vT}
            v_and_b32 v{vT2}, 3, v{vLANE}
            v_lshl_add_u32 v{vT}, v{vT2}, 3, v{vT}
            v_bfe_u32 v{vT1}, v{vLANE}, 3, 2
            v_xor_b32 v{vT1}, s{sJ}, v{vT1}
            v_lshl_add_u32 v{vQK}, v{vT1}, 5, v{vT}
            v_add_u32 v{vQK}, 0x2000, v{vQK}
            """)
            return
        a(f"""
        v_and_b32 v{vT}, 31, v{vLANE}
        v_lshrrev_b32 v{vT1}, 5, v{vLANE}
        v_bfe_u32 v{vT2}, v{vLANE}, 1, 3
        v_xor_b32 v{vT2}, v{vT2}, v{vT1}
        v_lshlrev_b32 v{vT2}, 4, v{vT2}
        v_lshl_add_u32 v{vXA}, v{vT}, 7, v{vT2}
        v_xor_b32 v{vXA+1}, 32, v{vXA}
        v_xor_b32 v{vXA+2}, 64, v{vXA}
        v_xor_b32 v{vXA+3}, 0x60, v{vXA}
        v_bfe_u32 v{vT}, v{vLANE}, 2, 2
        v_lshl_add_u32 v{vT}, v{vT1}, 3, v{vT}
        v_lshlrev_b32 v{vT}, 7, v{vT}
        v_and_b32 v{vT1}, 3, v{vLANE}
        v_lshl_add_u32 v{vT}, v{vT1}, 3, v{vT}
        v_bfe_u32 v{vT1}, v{vLANE}, 4, 1
        v_bfe_u32 v{vT2}, v{vLANE}, 3, 1
        v_lshl_add_u32 v{vQK}, v{vT1}, 1, v{vT2}
        v_xor_b32 v{vQK}, s{sJ}, v{vQK}
        v_lshl_add_u32 v{vQK}, v{vQK}, 5, v{vT}
        v_lshl_add_u32 v{vQK}, v{vT1}, 13, v{vQK}
        v_add_u32 v{vQK}, 0x2000, v{vQK}
        v_lshlrev_b32 v{vT2}, 1, v{vT2}
        """)
        if role == "B" or cfg.a3:
            a(f"s_and_b32 s{sT0}, s{sJ}, 2\nv_add_u32 v{vT1}, s{sT0}, v{vT1}\nv_xor_b32 v{vV}, v{vT1}, v{vT2}")
        else:
            a(f"v_xor_b32 v{vV}, s{sJ}, v{vT2}")
        a(f"v_lshl_add_u32 v{vV}, v{vV}, 5, v{vT}\nv_add_u32 v{vV}, 0x6000, v{vV}")
        if role == "B" or cfg.a3:
            a(f"s_and_b32 s{sT0}, s{sJ}, 1\ns_lshl_b32 s{sT0}, s{sT0}, 12")
            for i in range(4):
                a(f"v_add_u32 v{vXA+i}, s{sT0}, v{vXA+i}\nv_xor_b32 v{vXB+i}, 0x1000, v{vXA+i}")

    def gemm16(role, pre_barrier, post_barrier):
        c0 = 0 if role == "B" else 8
        def m16(d, x, y, first):
            a(f"v_mfma_f32_16x16x32_bf16 {vr(d,4)}, {vr(x,4)}, {vr(y,4)}, {'0' if first else vr(d,4)}")
        def fr(buf):
            b = FR + 28 * buf
            return dict(x=b, q=b + 16, k=b + 20, v=b + 24)
        def reads(n, part):
            c, ks, f = c0 + n // 2, n % 2, fr(n % 2)
            so = (c % 2) * 32768
            nm, seg = (("k", 1), ("q", 0), ("v", 2))[part]
            a(f"ds_read_b64_tr_b16 {vr(f[nm],2)}, v{vQK} offset:{so + seg*8192 + ks*4096}")
            a(f"ds_read_b64_tr_b16 {vr(f[nm]+2,2)}, v{vQK} offset:{so + seg*8192 + ks*4096 + 512}")
            if part < 2:
                for T in (2 * part, 2 * part + 1):
                    a(f"ds_read_b128 {vr(f['x']+4*T,4)}, v{vXA+ks} offset:{so + T*2048}")
        pre_barrier(c0)
        a("s_barrier")
        for p in range(3): reads(0, p)
        post_barrier(c0)
        for n in range(16):
            c, ks, f = c0 + n // 2, n % 2, fr(n % 2)
            z = n == 0
            Q = lambda T: m16(ACC + 4 * T, f["q"], f["x"] + 4 * T, z)
            K = lambda T: m16(ACC + 16 + 4 * T, f["k"], f["x"] + 4 * T, z)
            V = lambda T: m16(ACC + 32 + 4 * T, f["x"] + 4 * T, f["v"], z)
            nx = (lambda p: reads(n + 1, p)) if n < 15 else (lambda p: None)
            w = (lambda k: a(f"s_waitcnt lgkmcnt({k})")) if ks == 0 else (lambda k: None)
            if ks == 1:
                a("s_waitcnt lgkmcnt(0)")
                allm = [lambda: K(0), lambda: K(1), lambda: Q(0), lambda: Q(1), lambda: K(2), lambda: K(3), lambda: Q(2), lambda: Q(3),
                        lambda: V(0), lambda: V(1), lambda: V(2), lambda: V(3)]
                if n == 15 and role == "A": arrive(4 * 16)
                for m_ in allm[:cfg.prebar]: m_()
                if n < 15:
                    pre_barrier(c + 1)
                    a("s_barrier")
                    post_barrier(c + 1)
                    if (c + 1) % 2 == 0:
                        for r in (vQK, vXA, vXA + 1):
                            a(f"v_xor_b32 v{r}, 0x10000, v{r}")
                rest = allm[cfg.prebar:]
                per = max(1, len(rest) // 4)
                for p in range(3):
                    nx(p)
                    for m_ in rest[:per]: m_()
                    rest = rest[per:]
                for m_ in rest: m_()
                continue
            w(6); K(0); K(1); nx(0)
            w(6); Q(0); Q(1); K(2); K(3); nx(1); Q(2); Q(3)
            w(8); V(0); V(1); nx(2); V(2); V(3)
    def swap16(r):
        a(f"v_permlane16_swap_b32 v{r}, v{r+2}\nv_permlane16_swap_b32 v{r+1}, v{r+3}")
    def gemm(role, pre_barrier, post_barrier, mid=lambda: None):
        if cfg.m16: return gemm16(role, pre_barrier, post_barrier)
        c0 = 0 if role == "B" else 8
        def fr(buf):
            b = FR + 16 * buf
            return dict(x0=b, x1=b + 4, qk=b + 8, v=b + 12)
        def reads(n, part):
            c, kk, f = c0 + n // 4, n % 4, fr(n % 2)
            so = (c % 2) * 32768
            if part == 0:
                a(f"ds_read_b64_tr_b16 {vr(f['qk'],2)}, v{vQK} offset:{so + kk*2048}")
                a(f"ds_read_b64_tr_b16 {vr(f['qk']+2,2)}, v{vQK} offset:{so + kk*2048 + 512}")
                a(f"ds_read_b128 {vr(f['x0'],4)}, v{vXA+kk} offset:{so}")
            else:
                if role == "B" or cfg.a3:
                    a(f"ds_read_b128 {vr(f['x1'],4)}, v{vXB+kk} offset:{so}")
                else:
                    a(f"ds_read_b128 {vr(f['x1'],4)}, v{vXA+kk} offset:{so + 4096}")
                a(f"ds_read_b64_tr_b16 {vr(f['v'],2)}, v{vV} offset:{so + kk*2048}")
                a(f"ds_read_b64_tr_b16 {vr(f['v']+2,2)}, v{vV} offset:{so + kk*2048 + 512}")
        def tgt(c): return 8 if (c == 9 and not cfg.hold8) else 4
        pre_barrier(c0)
        if role == "B" or cfg.coupled:
            a("s_barrier")
        else:
            arrive(4 * c0); await_cnt(4 * c0, tgt(c0))
        reads(0, 0); reads(0, 1)
        post_barrier(c0)
        for n in range(32):
            c, kk, f = c0 + n // 4, n % 4, fr(n % 2)
            cz = (lambda r: "0") if n == 0 else (lambda r: r)
            def toggle():
                if (c + 1) % 2 == 0 and n < 31:
                    for r in [vQK, vXA, vV, vXA + 1, vXA + 2, vXA + 3] + ([vXB + i for i in range(4)] if (role == "B" or cfg.a3) else []):
                        a(f"v_xor_b32 v{r}, 0x10000, v{r}")
            if kk == 3 and role == "A" and not cfg.coupled:
                a("s_waitcnt lgkmcnt(0)")
                pre_barrier(c + 1)
                arrive(4 * (c + 1))
                mfma(ACC, f["qk"], f["x0"], ACC)
                mfma(ACC + 16, f["qk"], f["x1"], ACC + 16)
                toggle()
                if n < 31:
                    await_cnt(4 * (c + 1), tgt(c + 1))
                    reads(n + 1, 0); reads(n + 1, 1)
                post_barrier(c + 1)
                mfma(ACC + 32, f["x0"], f["v"], ACC + 32)
                mid()
                mfma(ACC + 48, f["x1"], f["v"], ACC + 48)
                mid()
                continue
            if kk == 3:
                a("s_waitcnt lgkmcnt(0)")
                if n < 31:
                    pre_barrier(c + 1)
                    a("s_barrier")
                    post_barrier(c + 1)
                elif role == "A" and not cfg.a3:
                    arrive(4 * 16)
                elif not cfg.hold8 and not cfg.coupled:
                    arrive(4 * 9)
                toggle()
            else:
                a("s_waitcnt lgkmcnt(3)")
            mfma(ACC, f["qk"], f["x0"], cz(ACC))
            if n < 31: reads(n + 1, 0)
            if kk != 3: a("s_waitcnt lgkmcnt(3)")
            mfma(ACC + 16, f["qk"], f["x1"], cz(ACC + 16))
            if n < 31: reads(n + 1, 1)
            mfma(ACC + 32, f["x0"], f["v"], cz(ACC + 32))
            if role == "A" and not cfg.a3:
                mid()
                mfma(ACC + 48, f["x1"], f["v"], cz(ACC + 48))
                mid()

    vOFFK = 8
    def smf(d, va, p):
        a(f"v_smfmac_f32_32x32x32_bf16 {vr(d,16)}, {vr(va,4)}, {vr(p,8)}, v{vIDX}")
    def att_setup(first, ntiles):
        a(f"""
        s_mov_b32 s{sREDO}, 0
        s_lshl_b32 s{sT0}, s{sH}, 17
        v_add_u32 v{vOFFK}, s{sT0}, v{vL16}
        v_lshrrev_b32 v{vT}, 5, v{vLANE}
        v_and_b32 v{vT1}, 15, v{vLANE}
        v_lshlrev_b32 v{vT1}, 4, v{vT1}
        v_lshl_add_u32 v{vOFFV}, v{vT}, 8, v{vT1}
        v_add_u32 v{vOFFV}, s{sT0}, v{vOFFV}
        v_mov_b32 v{vIDX}, 0xdddd
        s_mov_b32 s{sVM}, 0xffff
        s_mov_b32 s{sVM+1}, 0xffff
        s_mov_b32 s{sNIT}, {ntiles}
        """)
        if cfg.kvrot:
            a(f"s_and_b32 s{sKV0}, s{sRB}, 7\ns_lshl_b32 s{sKV0}, s{sKV0}, 14\ns_add_u32 s{sKV0}, s{sKV0}, {first*2048}\ns_and_b32 s{sKV0}, s{sKV0}, 0x1ffff")
        else:
            a(f"s_mov_b32 s{sKV0}, {first*2048}")
    class Stream:
        def __init__(self, depth, ntiles, init=()):
            self.d, self.n, self.q = depth, ntiles, list(init)
        def ring(self, t):
            b = RING + 12 * (t % self.d)
            return b, b + 4, b + 8
        def push(self, tag, n=1):
            self.q.extend([tag] * n)
        def wait(self, tag):
            idx = [i for i, t in enumerate(self.q) if t == tag]
            if idx:
                a(f"s_waitcnt vmcnt({len(self.q) - 1 - idx[-1]})")
                self.q = self.q[idx[-1] + 1:]
        def kload(self, t, single=False):
            o = 0 if single else (t % 2) * 2048
            a(f"buffer_load_dwordx4 {vr(self.ring(t)[0],4)}, v{vOFFK}, {sr(rWS,4)}, s{sKV} offen offset:{o} sc1")
            self.push(("k", t))
        def vload(self, t, single=False):
            k, v0, v1 = self.ring(t)
            o = 0 if single else (t % 2) * 2048
            a(f"s_mov_b64 exec, {sr(sVM,2)}")
            a(f"buffer_load_dwordx4 {vr(v0,4)}, v{vOFFV}, {sr(rWS,4)}, s{sKV} offen offset:{o+1024} sc1")
            a(f"buffer_load_dwordx4 {vr(v1,4)}, v{vOFFV}, {sr(rWS,4)}, s{sKV} offen offset:{o+1536} sc1")
            a(f"s_mov_b64 exec, -1")
            if single or t % 2 == 1:
                a(f"s_add_u32 s{sKV}, s{sKV}, {2048 if single else 4096}\ns_and_b32 s{sKV}, s{sKV}, 0x1ffff")
            self.push(("kv", t), 2)
        def kvload(self, t, single=False):
            self.kload(t, single); self.vload(t, single)
        def setup(self, single=False):
            a(f"s_mov_b32 s{sKV}, s{sKV0}")
            a(f"v_and_b32 v{vT}, 27, v{vLANE}\nv_cmp_eq_u32 vcc, 16, v{vT}\nv_mov_b32 v{vT}, 0x3f803f80\nv_cndmask_b32 v{vT}, 0, v{vT}, vcc")
            for t in range(self.d):
                for i in range(4, 12):
                    a(f"v_mov_b32 v{RING+12*t+i}, v{vT}")
        def zero(self, single=False):
            for i in range(32):
                a(f"v_mov_b32 v{O+i}, 0")
            if single:
                for i in range(8):
                    a(f"v_mov_b32 v{S+16+8+i}, 0")
        def first(self, single=False):
            for t in range(self.d - 1): self.kvload(t, single)
            if cfg.split_ld and not single: self.kload(self.d - 1)
        def start(self, single=False):
            self.wait(("k", 0) if (cfg.split_ld and not single) else ("kv", 0))
            mfma(S, self.ring(0)[0], Qf, NM)
        def prologue(self, single=False):
            self.setup(single); self.first(single); self.zero(single); self.start(single)
        def tile(self, t, looped=False, extra=None):
            k, v0, v1 = self.ring(t)
            split = cfg.split_ld and not looped
            for qb in range(2):
                cur, oth = S + 16 * qb, S + 16 * (1 - qb)
                def ex(i): a(f"v_exp_f32 v{cur+i}, v{cur+i}")
                ex(0); ex(1)
                if qb == 0:
                    if looped or t > 0: smf(O + 16, self.ring(t - 1)[2], oth + 8)
                    ex(2)
                    if looped or t + self.d - 1 < self.n:
                        if split: self.vload(t + self.d - 1)
                        else: self.kvload(t + self.d - 1, looped)
                    ex(3); ex(4)
                    mfma(oth, k, Qf + 4, NM + 16)
                    ex(5)
                    if split and t + self.d < self.n: self.kload(t + self.d)
                    for i in range(6, 10): ex(i)
                    if split: self.wait(("k", t + 1) if (cfg.split_ld == 2 and t + 1 < self.n) else ("kv", t))
                else:
                    smf(O, v1, oth + 8)
                    ex(2); ex(3)
                    if looped: a(f"s_waitcnt vmcnt({3 * (self.d - 2)})")
                    elif t + 1 < self.n: self.wait(("k" if split else "kv", t + 1))
                    ex(4)
                    if looped or t + 1 < self.n: mfma(oth, self.ring(t + 1)[0], Qf, NM)
                    for i in range(5, 10): ex(i)
                smf(O + 16 * qb, v0, cur)
                ex(10)
                if extra and qb == 1: extra()
                for i in range(11, 16): ex(i)
        def run(self, jobs, prio):
            pr = dict(prio) if cfg.prio else {}
            for t in range(self.n):
                if t in pr: a(f"s_setprio {pr[t]}")
                if cfg.tprof: a(f"s_memtime s[98:99]\ns_waitcnt lgkmcnt(0)\nv_writelane_b32 v252, s98, {t}")
                self.tile(t, extra=(lambda: [f() for f in jobs.get(t, [])]))
            smf(O + 16, self.ring(self.n - 1)[2], S + 16 + 8)

    if cfg.prof: stamp(4)
    vq = []
    def issue(c):
        issue_chunk(c); vq.extend([c] * 8)
    def wait_for(tag):
        n = len(vq) - 1 - max(i for i, t in enumerate(vq) if t == tag)
        a(f"s_waitcnt vmcnt({n})")
    for c in range(cfg.nfirst):
        issue(c)
    late_setup()
    if cfg.gprio[0]: a(f"s_setprio {cfg.gprio[0]}")
    srd(rXA, kAX, 2048 * 1024)
    srd(rWA, kAW, 512 * 3072)
    srd(rWS, kWS, WS_SIZE)
    srd(rOUT, kOUT, 2048 * 2048)
    srd(rMISC, kAP, 32 * 512)
    WP, IDP = 248, 40
    vMASK = 252
    def gather():
        a(f"""
        v_lshrrev_b32 v{vT}, 5, v{vLANE}
        v_and_b32 v{vT1}, 15, v{vLANE}
        v_lshlrev_b32 v{vT1}, 1, v{vT1}
        v_lshl_add_u32 v{vT}, v{vT}, {8 if cfg.m16 else 7}, v{vT1}
        s_lshl_b32 s{sT0}, s{sH}, 9
        """)
        for jj in range(8):
            a(f"buffer_load_ushort v{48+jj}, v{vT}, {sr(rMISC,4)}, s{sT0} offen offset:{(jj if cfg.m16 else 8*(jj>>2)+(jj&3))*32}")
        vq.extend(["g"] * 8)
    if cfg.gat_at < 0: gather()
    compute_addrs("A")
    a(f"""
    v_bfe_u32 v{vT}, v{vLANE}, 2, 1
    v_lshrrev_b32 v{vT1}, 5, v{vLANE}
    v_xor_b32 v{vT}, v{vT}, v{vT1}
    v_lshlrev_b32 v{vT}, 3, v{vT}
    v_bfe_u32 v{vT1}, v{vLANE}, 3, 2
    v_lshl_add_u32 v{vT}, v{vT1}, 1, v{vT}
    v_bfe_u32 v{vT1}, v{vLANE}, 1, 1
    v_add_u32 v{vT}, v{vT}, v{vT1}
    v_and_b32 v{vT1}, 1, v{vLANE}
    v_lshlrev_b32 v{vT1}, 4, v{vT1}
    v_mov_b32 v{vT2}, 0x3f80
    v_lshlrev_b32 v{vT1}, v{vT1}, v{vT2}
    """)
    for q in range(8):
        a(f"v_cmp_eq_u32 vcc, {q}, v{vT}\nv_cndmask_b32 v{IDP+q}, 0, v{vT1}, vcc")
    if not cfg.m16: a(f"v_bfe_u32 v{vT}, v{vLANE}, 4, 1\nv_add_u32 v{vMASK}, -1, v{vT}")
    def spf_setup():
        assert cfg.mapping == "N"
        a(f"""
        s_lshr_b32 s{sT0}, s2, 3
        s_lshl_b32 s{sT0}, s{sT0}, 2
        s_add_u32 s{sT0}, s{sT0}, s{sJ}
        s_bfe_u32 s{sT1}, s2, 0x20001
        s_and_b32 s{sT2}, s2, 1
        s_mul_i32 s84, s{sT1}, {384*1024}
        s_mul_i32 s85, s{sT0}, 3072
        s_add_u32 s84, s84, s85
        s_lshl_b32 s85, s{sT2}, 9
        s_add_u32 s84, s84, s85
        s_add_u32 s84, s{kAW}, s84
        s_addc_u32 s85, s{kAW+1}, 0
        s_lshl_b32 s86, s{sT1}, 19
        s_lshl_b32 s87, s{sT2}, 18
        s_add_u32 s86, s86, s87
        s_lshl_b32 s87, s{sT0}, 11
        s_add_u32 s86, s86, s87
        s_add_u32 s86, s{kAX}, s86
        s_addc_u32 s87, s{kAX+1}, 0
        """)
        spf = [f"s_load_dword s88, s[84:85], {b*1024 + i*64}" for b in range(3) for i in range(8)]
        spf += [f"s_load_dword s88, s[86:87], {i*64}" for i in range(32)]
        return spf
    spf = spf_setup() if cfg.spref else []
    if cfg.sslowA:
        a(f"""
        s_lshr_b32 s{sT0}, s2, 3
        s_lshl_b32 s{sT0}, s{sT0}, 2
        s_add_u32 s{sT0}, s{sT0}, s{sJ}
        s_mul_i32 s{sT0}, s{sT0}, {12*1024}
        s_and_b32 s{sT1}, s2, 1
        s_lshl_b32 s{sT1}, s{sT1}, 9
        s_add_u32 s{sT0}, s{sT0}, s{sT1}
        s_add_u32 s{sT0}, s{sT0}, 384
        s_add_u32 s86, s{kAW}, s{sT0}
        s_addc_u32 s87, s{kAW+1}, 0
        """)
        spf = [f"s_load_dword s{88+h}, s[86:87], {i*1024+64*h}" for i in range(12) for h in range(2)]
        if cfg.sslowAx:
            xslow(84, kAX)
            spf += [f"s_load_dword s{88+h}, s[84:85], {i*1024+64*h}" for i in range(4) for h in range(2)]
        cfg.spref = cfg.sslowA
    for c in range(cfg.nfirst, cfg.ninit):
        issue(c)
    if cfg.prof: stamp(5)
    nxt = cfg.ninit
    lastA = cfg.lastA if cfg.coupled else (7 if cfg.hold8 else (8 if cfg.hold9 else 9))
    for c in range(8):
        wait_for(c)
        a("s_barrier")
        while nxt <= min(c + cfg.look, lastA):
            issue(nxt); nxt += 1
        if spf and c >= cfg.spref[0]:
            for t in spf[:cfg.spref[1]]: a(t)
            spf = spf[cfg.spref[1]:]
        if c == cfg.gat_at: gather()
        if c == 7:
            if cfg.gat_at >= 0: wait_for("g")
            a(f"v_bfe_u32 v{vT}, v{vLANE}, 4, 1\nv_lshlrev_b32 v{vT1}, 15, v{vT}\nv_lshl_or_b32 v{vT}, v{vT}, 31, v{vT1}")
            for q in range(4):
                a(f"v_lshl_or_b32 v{WP+q}, v{49+2*q}, 16, v{48+2*q}\nv_xor_b32 v{WP+q}, v{WP+q}, v{vT}")
    nxtA = [nxt]
    pend = []
    def preA(c):
        while pend and pend[0][0] <= c: midA()
        if c <= (lastA if cfg.coupled else 15): wait_for(c)
    def postA(c):
        while not cfg.coupled and nxtA[0] <= min(c + cfg.look, 15):
            pend.extend((nxtA[0], t) for t in chunk_pieces(nxtA[0])); nxtA[0] += 1
    def midA():
        for _ in range(2 if len(set(c for c, t in pend)) > 1 else 1):
            if pend:
                c, t = pend.pop(0)
                a(t); vq.append(c)
    if cfg.hold8 and not cfg.coupled:
        await_cnt(C_WO, 4)
        for c in range(8, 8 + cfg.hold8):
            issue(c)
        nxtA[0] = 8 + cfg.hold8
    assert not spf
    a("s_waitcnt lgkmcnt(0)")
    if cfg.prio: a(f"s_setprio {cfg.gprio[1]}")
    stamp(1)
    gemm("A", preA, postA, midA)
    stamp(2)
    if cfg.prio and cfg.gprio[1] != 3: a("s_setprio 3")
    assert cfg.coupled and cfg.kvB < 15
    srd(rMISC, kAO, 512 * 1024)
    srd(rXB, kBO, 512 * 1024)
    if cfg.wopref:
        a(f"""
        s_and_b32 s{sT0}, s{sRB}, 7
        s_lshl_b32 s{sT0}, s{sT0}, 2
        s_add_u32 s{sT0}, s{sT0}, s{sJ}
        s_lshl_b32 s{sT0}, s{sT0}, 14
        s_lshl_b32 s{sT1}, s{sHG}, 7
        s_add_u32 s{sT0}, s{sT0}, s{sT1}
        v_lshlrev_b32 v3, 10, v{vLANE}
        s_mov_b64 exec, 0xffff
        buffer_load_dword v4, v3, {sr(rMISC,4)}, s{sT0} offen
        buffer_load_dword v5, v3, {sr(rXB,4)}, s{sT0} offen
        s_mov_b64 exec, -1
        """)
    X = [48, 64, 80, 96]
    KF, QF2, VP, PK, TT, PT, TM = 112, 120, 128, 144, 152, 168, 176
    L2E = math.log2(math.e)
    a(f"s_mov_b32 s{sC}, {f2u(L2E)}\ns_mov_b32 s{sC+1}, {f2u(L2E)}\ns_mov_b32 s{sT3}, 0x3f803f80")
    for ri in range(2):
        cvt(KF + 4 * ri, (ACC + 16 + 8 * ri) if cfg.m16 else (ACC + 16 * ri + 8), 4)
    if cfg.m16: swap16(KF); swap16(KF + 4)
    for ri in range(2):
        mfma(X[ri], WP, KF + 4 * ri, "0")
    for ri in range(2):
        cvt(QF2 + 4 * ri, (ACC + 8 * ri) if cfg.m16 else (ACC + 16 * ri), 4)
    if cfg.m16: swap16(QF2); swap16(QF2 + 4)
    for ri in range(2):
        mfma(X[2 + ri], WP, QF2 + 4 * ri, "0")
    if cfg.a3:
        cvt(VP, ACC + 32, 8)
        a(f"""
        s_lshl_b32 s{sT0}, s{sJ}, 11
        s_add_u32 s{sT0}, s{sT0}, {L_XV}
        v_add_u32 v{vT}, s{sT0}, v{vL16}
        ds_write_b128 v{vT}, {vr(VP,4)}
        ds_write_b128 v{vT}, {vr(VP+4,4)} offset:1024
        s_and_b32 s{sT1}, s{sJ}, 1
        s_lshl_b32 s{sT1}, s{sT1}, 8
        s_add_u32 s{sT0}, s{sT0}, s{sT1}
        v_and_b32 v{vT}, 0x2f, v{vLANE}
        v_lshl_add_u32 v9, v{vT}, 4, s{sT0}
        v_xor_b32 v10, 0x800, v9
        s_waitcnt lgkmcnt(0)
        """)
        assert L_XV % 4096 == 0
        arrive(4 * 16)
    elif cfg.m16:
        for T in range(4):
            cvt(VP + 4 * T, ACC + 32 + 4 * T, 2)
            a(f"v_mov_b32 v{VP+4*T+2}, s{sT3}\nv_mov_b32 v{VP+4*T+3}, s{sT3}")
        for T in range(4): swap16(VP + 4 * T)
        for T in range(4):
            a(f"v_permlane32_swap_b32 v{VP+4*T}, v{VP+4*T+2}\nv_permlane32_swap_b32 v{VP+4*T+1}, v{VP+4*T+3}")
    else:
        for ri in range(2):
            cvt(VP + 8 * ri, ACC + 32 + 16 * ri, 8)
            for i in range(8):
                a(f"v_bfi_b32 v{VP+8*ri+i}, v{vMASK}, v{VP+8*ri+i}, s{sT3}")
    def getv():
        if not cfg.a3: return
        await_cnt(4 * 16, 4)
        for aa in range(2):
            a(f"ds_read_b128 {vr(VP+8*aa,4)}, v{9+aa}\nds_read_b128 {vr(VP+8*aa+4,4)}, v{9+aa} offset:1024")
    def fixv():
        if not cfg.a3: return
        a("s_waitcnt lgkmcnt(0)")
        for i in range(16):
            a(f"v_bfi_b32 v{VP+i}, v{vMASK}, v{VP+i}, s{sT3}")
    def softmax_list(x, dst, tm):
        L = []
        t, u, p, q = tm, tm + 1, tm + 2, tm + 4
        for k in range(4):
            for base, r in ((x, t), (x + 8, u)):
                L.append([f"v_max3_f32 v{r}, v{base}, v{base+1}, v{base+2}", f"v_max3_f32 v{r}, v{r}, v{base+3}, v{base+4}",
                          f"v_max3_f32 v{r}, v{r}, v{base+5}, v{base+6}", f"v_max_f32 v{r}, v{r}, v{base+7}"][k])
        L += [f"v_permlane32_swap_b32 v{t}, v{u}", f"v_max_f32 v{t}, v{t}, v{u}", f"v_mul_f32 v{t}, {f2u(-L2E)}, v{t}",
              f"v_mov_b32 v{u}, v{t}", f"v_permlane32_swap_b32 v{t}, v{u}"]
        for i in range(8):
            sel = "op_sel:[0,0,0] op_sel_hi:[1,1,0]" if i < 4 else "op_sel:[0,0,1] op_sel_hi:[1,1,1]"
            L.append(f"v_pk_fma_f32 {vr(x+2*i,2)}, {vr(x+2*i,2)}, {sr(sC,2)}, {vr(t,2)} {sel}")
        L += [f"v_exp_f32 v{x+i}, v{x+i}" for i in range(16)]
        L += [f"v_pk_add_f32 {vr(p,2)}, {vr(x,2)}, {vr(x+2,2)}", f"v_pk_add_f32 {vr(q,2)}, {vr(x+8,2)}, {vr(x+10,2)}",
              f"v_pk_add_f32 {vr(p,2)}, {vr(p,2)}, {vr(x+4,2)}", f"v_pk_add_f32 {vr(q,2)}, {vr(q,2)}, {vr(x+12,2)}",
              f"v_pk_add_f32 {vr(p,2)}, {vr(p,2)}, {vr(x+6,2)}", f"v_pk_add_f32 {vr(q,2)}, {vr(q,2)}, {vr(x+14,2)}",
              f"v_add_f32 v{t}, v{p}, v{p+1}", f"v_add_f32 v{u}, v{q}, v{q+1}",
              f"v_permlane32_swap_b32 v{t}, v{u}", f"v_add_f32 v{t}, v{t}, v{u}", f"v_rcp_f32 v{t}, v{t}",
              f"v_mov_b32 v{u}, v{t}", f"v_permlane32_swap_b32 v{t}, v{u}"]
        for i in range(8):
            sel = "op_sel:[0,0] op_sel_hi:[1,0]" if i < 4 else "op_sel:[0,1] op_sel_hi:[1,1]"
            L.append(f"v_pk_mul_f32 {vr(x+2*i,2)}, {vr(x+2*i,2)}, {vr(t,2)} {sel}")
        L += [f"v_cvt_pk_bf16_f32 v{dst+i}, v{x+2*i}, v{x+2*i+1}" for i in range(8)]
        return L
    def weave(l1, l2, lead=2):
        out, l2 = l1[:lead], list(l2)
        for ins in l1[lead:]:
            out += [l2.pop(0), ins]
        return out + l2
    KVA = ACC
    def pstore():
        a(f"""
        v_lshrrev_b32 v{vT}, 5, v{vLANE}
        v_mul_u32_u24 v{vT}, {32*384}, v{vT}
        v_and_b32 v{vT1}, 31, v{vLANE}
        v_lshl_add_u32 v{vT}, v{vT1}, 4, v{vT}
        s_mul_i32 s{sT0}, s{sH}, {8*32*384}
        s_mul_i32 s{sT1}, s{sRB}, 384
        s_add_u32 s{sT0}, s{sT0}, s{sT1}
        s_add_u32 s{sT0}, s{sT0}, {WS_P}
        s_mov_b32 exec_lo, 0x1ffff
        s_mov_b32 exec_hi, 0x1ffff
        """)
        for r4 in range(4):
            a(f"buffer_store_dwordx4 {vr(KVA+4*r4,4)}, v{vT}, {sr(rWS,4)}, s{sT0} offen sc1")
            if r4 < 3: a(f"s_add_u32 s{sT0}, s{sT0}, {2*32*384}")
        a("s_mov_b64 exec, -1")
    if cfg.weave:
        assert cfg.m16
        TM2, TT2, PT2 = Qf, X[0], X[1]
        for ins in weave(softmax_list(X[0], PK, TM), softmax_list(X[1], PHI, TM2)): a(ins)
        mfma(TT, PK, IDP, "0")
        mfma(TT2, PHI, IDP, "0")
        mfma(TT, PK + 4, IDP + 4, TT)
        mfma(TT2, PHI + 4, IDP + 4, TT2)
        qs_ = weave(softmax_list(X[2], PHI, TM), softmax_list(X[3], PHI + 8, TM2))
        for ins in qs_[:26]: a(ins)
        cvt(PT, TT, 8)
        mfma(KVA, PT, VP, "0")
        mfma(KVA, PT + 4, VP + 4, KVA)
        cvt(PT2, TT2, 8)
        mfma(KVA, PT2, VP + 8, KVA)
        mfma(KVA, PT2 + 4, VP + 12, KVA)
        for ins in qs_[26:50]: a(ins)
        pstore()
        for ins in qs_[50:]: a(ins)
    else:
        def softmax2(x, dst):
            for ins in softmax_list(x, dst, TM): a(ins)
        softmax2(X[0], PK)
        mfma(TT, PK, IDP, "0")
        mfma(TT, PK + 4, IDP + 4, TT)
        getv()
        softmax2(X[1], PK)
        fixv()
        cvt(PT, TT, 8)
        mfma(TT, PK, IDP, "0")
        mfma(TT, PK + 4, IDP + 4, TT)
        mfma(KVA, PT, VP, "0")
        mfma(KVA, PT + 4, VP + 4, KVA)
        softmax2(X[2], PHI)
        cvt(PT, TT, 8)
        mfma(KVA, PT, VP + 8, KVA)
        mfma(KVA, PT + 4, VP + 12, KVA)
        pstore()
        softmax2(X[3], PHI + 8)
    a(f"""
    s_lshl_b32 s{sT0}, s{sJ}, 11
    s_add_u32 s{sT0}, s{sT0}, {L_X}
    v_add_u32 v{vT}, s{sT0}, v{vL16}
    ds_read_b128 {vr(Qf,4)}, v{vT}
    ds_read_b128 {vr(Qf+4,4)}, v{vT} offset:1024
    s_lshl_b32 s{sT0}, s{sJ}, 9
    s_add_u32 s{sT0}, s{sT0}, {L_XM}
    v_lshl_add_u32 v{vT}, v{vLANE}, 3, s{sT0}
    ds_read_b64 {vr(TM,2)}, v{vT}
    s_waitcnt vmcnt(4)
    """)
    if cfg.a3: a("s_waitcnt lgkmcnt(0)")
    else: await_cnt(4 * 16, 4)
    nmfill(TM)
    stamp(3)
    a("s_branch L_attA")

    a.label("L_roleB")
    if not cfg.bnear:
        code_prefetch("B")
        binit()
    jit(20)
    late_setup()
    loader_addrs()
    srd(rXA, kAX, 2048 * 1024)
    srd(rWA, kAW, 512 * 3072)
    srd(rWS, kWS, WS_SIZE)
    srd(rOUT, kOUT, 2048 * 2048)
    srd(rDBG, kDBG, 256)
    if cfg.pref and cfg.prefA[0] < 0:
        a(f"buffer_load_dword v38, v{vPW}, {sr(rWA,4)}, 0 offen {cfg.pref_sc}")
        a(f"buffer_load_dword v36, v{vPX}, {sr(rXA,4)}, 0 offen {cfg.pref_sc}")
    if cfg.slowpref:
        a(f"""
        s_lshr_b32 s{sT0}, s2, 3
        s_lshl_b32 s{sT0}, s{sT0}, 2
        s_add_u32 s{sT0}, s{sT0}, s{sJ}
        s_mul_i32 s{sT1}, s{sT0}, {12*1024}
        s_and_b32 s{sT2}, s2, 1
        s_lshl_b32 s{sT2}, s{sT2}, 9
        s_add_u32 s{sT1}, s{sT1}, s{sT2}
        s_add_u32 s{sT1}, s{sT1}, 384
        v_lshlrev_b32 v{vT}, 10, v{vLANE}
        s_lshl_b32 s{sT0}, s{sT0}, 12
        s_bfe_u32 s{sT2}, s2, 0x20001
        s_lshl_b32 s{sT2}, s{sT2}, 19
        s_add_u32 s{sT0}, s{sT0}, s{sT2}
        s_add_u32 s{sT0}, s{sT0}, 384
        s_mov_b64 exec, 0xfff
        """)
        if "b" in cfg.slowpref: a(f"buffer_load_dword v36, v{vT}, {sr(rWB,4)}, s{sT1} offen")
        if "a" in cfg.slowpref: a(f"buffer_load_dword v38, v{vT}, {sr(rWA,4)}, s{sT1} offen")
        a("s_mov_b64 exec, 15")
        if "x" in cfg.slowpref:
            if "b" in cfg.slowpref: a(f"buffer_load_dword v37, v{vT}, {sr(rXB,4)}, s{sT0} offen")
            if "a" in cfg.slowpref: a(f"buffer_load_dword v36, v{vT}, {sr(rXA,4)}, s{sT0} offen")
        a("s_mov_b64 exec, -1")
    if cfg.sslow:
        l = lab("noss")
        a(f"""
        s_bitcmp1_b32 s2, 0
        s_cbranch_scc1 {l}
        s_lshr_b32 s{sT0}, s2, 3
        s_lshl_b32 s{sT0}, s{sT0}, 2
        s_add_u32 s{sT0}, s{sT0}, s{sJ}
        s_mul_i32 s{sT0}, s{sT0}, {12*1024}
        s_add_u32 s{sT0}, s{sT0}, 384
        s_add_u32 s84, s{kBW}, s{sT0}
        s_addc_u32 s85, s{kBW+1}, 0
        s_add_u32 s86, s{kAW}, s{sT0}
        s_addc_u32 s87, s{kAW+1}, 0
        """)
        for ch, reg in (("b", 84), ("a", 86)):
            if ch in cfg.sslow:
                for i in range(12):
                    a(f"s_load_dword s88, s[{reg}:{reg+1}], {i*1024}\ns_load_dword s89, s[{reg}:{reg+1}], {i*1024+64}")
        a.label(l)
        if "x" in cfg.sslow:
            xslow(84, kBX)
            for i in range(4):
                a(f"s_load_dword s88, s[84:85], {i*1024}\ns_load_dword s89, s[84:85], {i*1024+64}")
    if cfg.sprefB:
        for t in spf_setup()[:cfg.sprefB]: a(t)
    compute_addrs("B")
    a(f"s_cmp_lt_u32 s2, 8\ns_cselect_b32 s{sREDO}, s{sW}, 0")
    a(f"s_cmp_lg_u32 s{sREDO}, 1\ns_cbranch_scc1 L_noreset")
    a(f"v_mov_b32 v16, 0\nv_mov_b32 v17, 0\nv_mov_b32 v18, 0\nv_mov_b32 v19, 0")
    assert cfg.nrep == 8
    nres = -(-(FL_OB + 1024 * cfg.hs - WS_FL) // 8192)
    a(f"s_mul_i32 s{sT1}, s2, {nres*1024}\ns_add_u32 s{sT1}, s{sT1}, {WS_FL}")
    for i in range(nres):
        a(f"buffer_store_dwordx4 v[16:19], v{vL16}, {sr(rWS,4)}, s{sT1} offen offset:{(i%4)*1024} sc1")
        if i % 4 == 3: a(f"s_add_u32 s{sT1}, s{sT1}, 4096")
    a.label("L_noreset")
    a(f"v_lshl_add_u32 v{vT}, v{vLANE}, 2, v{vCNT}\nv_mov_b32 v{vT1}, 0\nds_write_b32 v{vT}, v{vT1}")
    vKST, vVST = 28, 29
    if cfg.m16:
        a(f"""
        v_and_b32 v{vKST}, 0x23, v{vLANE}
        v_bfe_u32 v{vT}, v{vLANE}, 2, 2
        v_lshl_or_b32 v{vKST}, v{vT}, 3, v{vKST}
        v_bfe_u32 v{vT}, v{vLANE}, 4, 1
        v_lshl_or_b32 v{vKST}, v{vT}, 2, v{vKST}
        v_lshlrev_b32 v{vKST}, 4, v{vKST}
        s_waitcnt lgkmcnt(0)
        """)
    else: a(f"""
    v_and_b32 v{vKST}, 0x33, v{vLANE}
    v_and_b32 v{vT}, 4, v{vLANE}
    v_lshl_or_b32 v{vKST}, v{vT}, 1, v{vKST}
    v_bfe_u32 v{vT}, v{vLANE}, 3, 1
    v_lshl_or_b32 v{vKST}, v{vT}, 2, v{vKST}
    v_lshlrev_b32 v{vKST}, 4, v{vKST}
    v_bfe_u32 v{vT}, v{vLANE}, 4, 1
    v_lshlrev_b32 v{vVST}, 17, v{vT}
    v_lshrrev_b32 v{vT}, 5, v{vLANE}
    v_lshl_add_u32 v{vVST}, v{vT}, 8, v{vVST}
    v_and_b32 v{vT}, 15, v{vLANE}
    v_lshl_add_u32 v{vVST}, v{vT}, 4, v{vVST}
    s_waitcnt lgkmcnt(0)
    """)
    def bst(c):
        if cfg.tprof: a(f"s_memtime s[98:99]\ns_waitcnt lgkmcnt(0)\nv_writelane_b32 v252, s98, {48+c}")
    def postB(c):
        if c > 0: bst(c)
        if c == 5:
            l = lab("nogate")
            a(f"s_cmp_lg_u32 s{sREDO}, 1\ns_cbranch_scc1 {l}")
            a(f"s_lshl_b32 s{sT0}, s2, 2\nv_mov_b32 v{vT}, s{sT0}\ns_waitcnt vmcnt(0)")
            flag(vT, "1", srdr=rDBG)
            a.label(l)
        if cfg.l2A and cfg.l2A[0] <= c < cfg.l2A[0] + cfg.l2A[1]:
            nb, b = cfg.l2A[1], c - cfg.l2A[0]
            nw, nx = 48 // nb, 32 // nb
            if b == 0:
                a(f"""
                s_lshr_b32 s{sT0}, s2, 3
                s_lshl_b32 s{sT0}, s{sT0}, 2
                s_add_u32 s{sT0}, s{sT0}, s{sJ}
                s_mul_i32 s84, s{sT0}, {12*1024}
                s_and_b32 s{sT1}, s2, 1
                s_lshl_b32 s{sT1}, s{sT1}, 9
                s_add_u32 s84, s84, s{sT1}
                s_lshl_b32 s85, s{sT0}, 12
                s_bfe_u32 s{sT1}, s2, 0x20001
                s_lshl_b32 s{sT1}, s{sT1}, 19
                s_add_u32 s85, s85, s{sT1}
                v_lshrrev_b32 v{vPW}, 2, v{vLANE}
                v_lshlrev_b32 v{vPW}, 10, v{vPW}
                v_and_b32 v{vPX}, 3, v{vLANE}
                v_lshl_add_u32 v{vPW}, v{vPX}, 7, v{vPW}
                v_lshlrev_b32 v{vPX}, 7, v{vLANE}
                """)
            a(f"""
            s_mov_b32 exec_hi, {((1 << nw) - 1) >> 32}
            s_mov_b32 exec_lo, {((1 << nw) - 1) & 0xffffffff}
            buffer_load_dword v38, v{vPW}, {sr(rWA,4)}, s84 offen
            s_mov_b32 exec_hi, 0
            s_mov_b32 exec_lo, {(1 << nx) - 1}
            buffer_load_dword v36, v{vPX}, {sr(rXA,4)}, s85 offen
            s_mov_b64 exec, -1
            s_add_u32 s84, s84, {nw // 4 * 1024}
            s_add_u32 s85, s85, {nx * 128}
            """)
        if c == 0: stamp(1)
        if cfg.pref and c == cfg.prefA[0]:
            a(f"buffer_load_dword v38, v{vPW}, {sr(rWA,4)}, 0 offen {cfg.pref_sc}")
        if cfg.pref and c == cfg.prefA[1]:
            a(f"buffer_load_dword v36, v{vPX}, {sr(rXA,4)}, 0 offen {cfg.pref_sc}")
    gemm("B", lambda c: None, postB)
    stamp(2)
    KOWN, VPK = 232, 240
    if cfg.gprio[2]: a(f"s_setprio {cfg.gprio[2]}")
    vG, vGA = 30, 31
    a(f"v_lshlrev_b32 v{vGA}, 2, v{vLANE}\ns_mov_b64 exec, 0xff\nbuffer_load_dword v{vG}, v{vGA}, {sr(rDBG,4)}, 0 offen sc1\ns_mov_b64 exec, -1")
    if cfg.m16:
        a(f"s_lshl_b32 s{sT0}, s{sRB}, 12\ns_lshl_b32 s{sT1}, s{sH}, 17\ns_add_u32 s{sT1}, s{sT1}, s{sT0}")
        for ri in range(2):
            cvt(KOWN + 4 * ri, ACC + 16 + 8 * ri, 4)
            cvt(VPK + 4 * ri, ACC + 32 + 8 * ri, 4)
            swap16(KOWN + 4 * ri)
            a(f"buffer_store_dwordx4 {vr(VPK+4*ri,4)}, v{vL16}, {sr(rWS,4)}, s{sT1} offen offset:{ri*2048+1024} sc1")
            a(f"buffer_store_dwordx4 {vr(KOWN+4*ri,4)}, v{vKST}, {sr(rWS,4)}, s{sT1} offen offset:{ri*2048} sc1")
    else:
        a(f"""
        s_and_b32 s{sT2}, s{sJ}, 1
        s_lshl_b32 s{sT0}, s{sRB}, 1
        s_add_u32 s{sT0}, s{sT0}, s{sT2}
        s_lshl_b32 s{sT0}, s{sT0}, 11
        s_lshl_b32 s{sT1}, s{sH}, 17
        s_add_u32 s{sT1}, s{sT1}, s{sT0}
        s_xor_b32 s{sT2}, s{sT1}, 0x800
        s_and_b32 s{sT3}, s{sH}, -2
        s_lshl_b32 s{sT3}, s{sT3}, 17
        s_add_u32 s{sT3}, s{sT3}, s{sT0}
        """)
        assert WS_KV == 0
        cvt(KOWN, ACC + 8, 4)
        a(f"buffer_store_dwordx4 {vr(KOWN,4)}, v{vKST}, {sr(rWS,4)}, s{sT1} offen sc1")
        cvt(KOWN + 4, ACC + 16 + 8, 4)
        a(f"buffer_store_dwordx4 {vr(KOWN+4,4)}, v{vKST}, {sr(rWS,4)}, s{sT2} offen sc1")
        cvt(VPK, ACC + 32, 4)
        a(f"buffer_store_dwordx4 {vr(VPK,4)}, v{vVST}, {sr(rWS,4)}, s{sT3} offen offset:1024 sc1")
        cvt(VPK + 4, ACC + 40, 4)
        a(f"buffer_store_dwordx4 {vr(VPK+4,4)}, v{vVST}, {sr(rWS,4)}, s{sT3} offen offset:1536 sc1")
    vq[:] = ["st"] * 4
    nxtB = [lastA + 1]
    def barB(c):
        if c > lastA: wait_for(c)
        a("s_barrier")
        bst(c)
    def loadB(c):
        while nxtB[0] <= min(c + cfg.look, 15):
            issue(nxtB[0]); nxtB[0] += 1
    def flagKV():
        stamp(3)
        l = lab("noflag")
        a(f"s_cmp_lg_u32 s{sW}, 0\ns_cbranch_scc1 {l}")
        poll(vGA, vG, 0xff, srdr=rDBG, first_issued=True)
        a(f"""
        s_mul_i32 s{sT0}, s{sHG}, {128*cfg.nrep}
        s_lshl_b32 s{sT1}, s{sRB}, 2
        s_add_u32 s{sT0}, s{sT0}, s{sT1}
        s_add_u32 s{sT0}, s{sT0}, {FL_KV}
        v_lshl_add_u32 v{vT}, v{vLANE}, 7, s{sT0}
        """)
        flag(vT, str((1 << cfg.nrep) - 1))
        a.label(l)
    assert cfg.coupled
    if cfg.flag_at == 9:
        if cfg.pre9: loadB(7 + cfg.pre9 - 1)
        barB(8); loadB(8)
    qs = 0.25 * math.log2(math.e)
    a(f"s_mov_b32 s{sC}, {f2u(qs)}\ns_mov_b32 s{sC+1}, {f2u(qs)}")
    for qb in range(2):
        qa = ACC + (8 if cfg.m16 else 16) * qb
        for i in range(4):
            a(f"v_pk_mul_f32 {vr(qa+2*i,2)}, {vr(qa+2*i,2)}, {sr(sC,2)}")
        cvt(Qf + 4 * qb, qa, 4)
        if cfg.m16: swap16(Qf + 4 * qb)
    a(f"""
    s_lshl_b32 s{sT0}, s{sJ}, 11
    s_add_u32 s{sT0}, s{sT0}, {L_X}
    v_add_u32 v{vT}, s{sT0}, v{vL16}
    ds_write_b128 v{vT}, {vr(Qf,4)}
    ds_write_b128 v{vT}, {vr(Qf+4,4)} offset:1024
    """)
    for qb in range(2):
        mfma(72 + 32 * qb, KOWN, Qf + 4 * qb, "0")
        mfma(88 + 32 * qb, KOWN + 4, Qf + 4 * qb, "0")
    TMB = 32
    def maxtree(dst, base, n, init=None):
        i = 0
        if init is None:
            a(f"v_max3_f32 v{dst}, v{base}, v{base+1}, v{base+2}"); i = 3
        while i + 1 < n:
            a(f"v_max3_f32 v{dst}, v{dst}, v{base+i}, v{base+i+1}"); i += 2
        if i < n:
            a(f"v_max_f32 v{dst}, v{dst}, v{base+i}")
    maxtree(TMB, 72, 32)
    maxtree(TMB + 1, 104, 32)
    def crossmax(t):
        a(f"v_permlane32_swap_b32 v{t}, v{t+1}\nv_max_f32 v{t}, v{t}, v{t+1}")
    crossmax(TMB)
    a(f"v_sub_f32 v{TMB}, {f2u(-cfg.bias)}, v{TMB}\nv_mov_b32 v{TMB+1}, v{TMB}\nv_permlane32_swap_b32 v{TMB}, v{TMB+1}")
    a(f"""
    s_lshl_b32 s{sT0}, s{sJ}, 9
    s_add_u32 s{sT0}, s{sT0}, {L_XM}
    v_lshl_add_u32 v{vT}, v{vLANE}, 3, s{sT0}
    ds_write_b64 v{vT}, {vr(TMB,2)}
    """)
    def flagKV2():
        a(f"""
        s_mul_i32 s{sT0}, s{sHG}, {128*cfg.nrep}
        s_lshl_b32 s{sT1}, s{sRB}, 2
        s_add_u32 s{sT1}, s{sT0}, s{sT1}
        s_add_u32 s{sT1}, s{sT1}, {FL_KV}
        v_lshl_add_u32 v{vT}, v{vLANE}, 7, s{sT1}
        s_and_b32 s{sT1}, s{sRB}, {cfg.nrep-1}
        s_lshl_b32 s{sT1}, s{sT1}, 7
        s_add_u32 s{sT0}, s{sT0}, s{sT1}
        s_add_u32 s{sT0}, s{sT0}, {FL_KV}
        s_waitcnt lgkmcnt(0)
        """)
        wait_for("st")
        poll(vGA, vG, 0xff, srdr=rDBG, first_issued=True)
        l = lab("noflag")
        a(f"""
        v_lshl_add_u32 v{vGA}, v{vLANE}, 2, s{sT0}
        s_mov_b64 exec, 1
        ds_add_rtn_u32 v{vT1}, v{vCNT}, v{vONE} offset:{C_KV}
        s_waitcnt lgkmcnt(0)
        v_cmp_eq_u32 vcc, 3, v{vT1}
        s_mov_b64 exec, -1
        s_cbranch_vccz {l}
        """)
        flag(vT, str((1 << cfg.nrep) - 1))
        a.label(l)
        stamp(3)
    sb = Stream(cfg.depB, cfg.nB)
    if cfg.flag_at == 8:
        flagKV2()
        barB(8); loadB(8)
        nmfill(TMB)
    elif cfg.flag_at == 9:
        flagKV2()
        nmfill(TMB)
    elif cfg.flag_at == 10:
        nmfill(TMB)
        loadB(7)
        a("s_waitcnt lgkmcnt(0)")
        barB(8)
        if cfg.pre9 == 0:
            loadB(8); flagKV2()
        else:
            flagKV2(); loadB(8)
    for c in range(9, cfg.pollB + 1):
        if c == cfg.pollB:
            a(f"s_mov_b32 exec_hi, 0\nbuffer_load_dword v{vG}, v{vGA}, {sr(rWS,4)}, 0 offen sc1\ns_mov_b64 exec, -1")
            vq.append("kvf")
        barB(c)
        loadB(c)
        if cfg.swo and c == 9:
            a(f"""
            s_lshr_b32 s{sT0}, s2, 3
            s_lshl_b32 s{sT0}, s{sT0}, 2
            s_add_u32 s{sT0}, s{sT0}, s{sJ}
            s_lshl_b32 s{sT0}, s{sT0}, 12
            s_and_b32 s{sT1}, s2, 1
            s_lshl_b32 s{sT1}, s{sT1}, 9
            s_add_u32 s{sT0}, s{sT0}, s{sT1}
            s_add_u32 s{sT0}, s{sT0}, 384
            s_add_u32 s84, s{kAO}, s{sT0}
            s_addc_u32 s85, s{kAO+1}, 0
            s_add_u32 s86, s{kBO}, s{sT0}
            s_addc_u32 s87, s{kBO+1}, 0
            """)
        if cfg.swo and 9 <= c <= 12:
            for reg in (84, 86):
                a(f"s_load_dword s88, s[{reg}:{reg+1}], {(c-9)*1024}\ns_load_dword s89, s[{reg}:{reg+1}], {(c-9)*1024+64}")
        if c == 10 and cfg.earlyset:
            att_setup(0, cfg.nB); sb.setup()
        if c == 11 and cfg.earlyset:
            sb.zero()
    sb.q = list(vq)

    WFB = 184
    vWR = 12
    def woaddr():
        a(f"""
        v_bfe_u32 v{vT1}, v{vLANE}, 2, 2
        v_lshrrev_b32 v{vT2}, 5, v{vLANE}
        v_lshl_add_u32 v{vT1}, v{vT2}, 2, v{vT1}
        v_lshlrev_b32 v{vWR}, 7, v{vT1}
        s_lshr_b32 s{sT1}, s{sJ}, 1
        v_bfe_u32 v{vT1}, v{vLANE}, 3, 1
        v_xor_b32 v{vT1}, s{sT1}, v{vT1}
        v_lshl_add_u32 v{vWR}, v{vT1}, 6, v{vWR}
        v_and_b32 v{vT1}, 1, v{vLANE}
        v_lshl_add_u32 v{vWR}, v{vT1}, 5, v{vWR}
        s_and_b32 s{sT1}, s{sJ}, 1
        v_bfe_u32 v{vT1}, v{vLANE}, 4, 1
        v_xor_b32 v{vT1}, s{sT1}, v{vT1}
        v_lshl_add_u32 v{vWR}, v{vT1}, 4, v{vWR}
        v_bfe_u32 v{vT1}, v{vLANE}, 1, 1
        v_lshl_add_u32 v{vWR}, v{vT1}, 3, v{vWR}
        s_lshl_b32 s{sT1}, s{sJ}, 14
        s_add_u32 s{sT1}, s{sT1}, {L_WB}
        v_add_u32 v{vWR}, s{sT1}, v{vWR}
        v_xor_b32 v{vWR+1}, 64, v{vWR}
        """)
    def wofrags(base, g2):
        for hh in range(8):
            a(f"ds_read_b64_tr_b16 {vr(base+32*g2+4*hh,2)}, v{vWR+g2} offset:{hh*2048}")
            a(f"ds_read_b64_tr_b16 {vr(base+32*g2+4*hh+2,2)}, v{vWR+g2} offset:{hh*2048+1024}")
    def upper(base):
        def f0():
            woaddr()
            await_cnt(C_WO, 4)
            wofrags(WFB, 0)
        def f1():
            wofrags(WFB, 1)
        def f2():
            a("s_waitcnt lgkmcnt(0)")
            arrive(C_UP)
        return f0, f1, f2

    def wosetup():
        a(f"""
        v_lshrrev_b32 v{vT}, 3, v{vLANE}
        v_bfe_u32 v{vT1}, v{vLANE}, 4, 1
        v_lshlrev_b32 v{vT1}, 2, v{vT1}
        v_and_b32 v{vT2}, 7, v{vLANE}
        v_xor_b32 v{vT1}, v{vT1}, v{vT2}
        v_lshlrev_b32 v{vT1}, 4, v{vT1}
        v_lshl_add_u32 v{vWOA}, v{vT}, 10, v{vT1}
        s_lshl_b32 s{sT0}, s{sHG}, 7
        s_lshl_b32 s{sT1}, s{sJ}, 17
        s_add_u32 s{sT0}, s{sT0}, s{sT1}
        v_add_u32 v{vWOA}, s{sT0}, v{vWOA}
        s_and_b32 s{sWO}, s{sRB}, 7
        s_lshl_b32 s{sWO}, s{sWO}, 1
        s_lshl_b32 s{sWOM}, s{sJ}, 14
        """)
    def wopiece(st):
        a(f"""
        s_lshl_b32 s{sT0}, s{sWO}, 10
        s_add_u32 m0, s{sT0}, s{sWOM}
        s_lshl_b32 s{sT1}, s{sWO}, 13
        s_add_u32 s{sT0}, s{sT0}, {L_WB}
        buffer_load_dwordx4 v{vWOA}, {sr(rMISC,4)}, s{sT1} offen lds
        s_add_u32 m0, s{sT0}, s{sWOM}
        s_add_u32 s{sWO}, s{sWO}, 1
        s_and_b32 s{sWO}, s{sWO}, 15
        buffer_load_dwordx4 v{vWOA}, {sr(rXB,4)}, s{sT1} offen lds
        """)
        st.push("wo", 2)
    def wodone(st):
        st.wait("wo")
        arrive(C_WO)
    vC4, vC1 = 6, 7
    vH, vHA = 248, 249
    sOB, sOB1, sOWN = 61, 62, 63
    def pretail():
        a(f"s_mul_i32 s{sT0}, s{sJ}, 4608\ns_add_u32 s{sT0}, s{sT0}, {L_XC}\nv_add_u32 v{vC4}, s{sT0}, v{vL16}\nv_lshl_add_u32 v{vC1}, v{vLANE}, 2, s{sT0}")
    def pretailA():
        pretail()
        assert cfg.m16
        a(f"""
        s_lshl_b32 s{sT0}, s{sRB}, 6
        s_add_u32 s{sT0}, s{sT0}, s{sH}
        s_lshl_b32 s{sT0}, s{sT0}, 10
        s_add_u32 s{sOB}, s{sT0}, {WS_OB}
        s_add_u32 s{sOB1}, s{sOB}, 0x8000
        s_mul_i32 s{sT0}, s{sRB}, {32*cfg.hs}
        s_lshr_b32 s{sT1}, s{sHG}, 1
        s_mul_i32 s{sT1}, s{sT1}, {cfg.hs}
        s_add_u32 s{sT0}, s{sT0}, s{sT1}
        s_and_b32 s{sT1}, s{sHG}, 1
        s_lshl_b32 s{sT1}, s{sT1}, 2
        s_add_u32 s{sT0}, s{sT0}, s{sT1}
        s_add_u32 s{sT0}, s{sT0}, {FL_OB}
        v_mul_u32_u24 v{vHA}, {4*cfg.hs}, v{vLANE}
        v_add_u32 v{vHA}, s{sT0}, v{vHA}
        """)
    def hint():
        l = lab("nohint")
        a(f"s_cmp_lg_u32 s{sW}, {cfg.hintw}\ns_cbranch_scc1 {l}")
        flag(vHA, "0xff")
        a.label(l)
    def pretailB():
        pretail()
        a(f"""
        s_lshl_b32 s{sT0}, s{sRB}, 3
        s_add_u32 s{sT0}, s{sT0}, s{sHG}
        s_lshl_b32 s{sT0}, s{sT0}, 2
        s_add_u32 s{sT0}, s{sT0}, s{sJ}
        s_mul_i32 s{sT0}, s{sT0}, {cfg.hs}
        s_add_u32 s{sT0}, s{sT0}, {FL_OB}
        v_lshl_add_u32 v{vHA}, v{vLANE}, 2, s{sT0}
        s_lshl_b32 s{sT0}, s{sRB}, 16
        s_lshl_b32 s{sT1}, s{sJ}, 13
        s_add_u32 s{sOB}, s{sT0}, s{sT1}
        s_add_u32 s{sOB}, s{sOB}, {WS_OB}
        s_lshr_b32 s{sT0}, s{sHG}, 1
        s_and_b32 s{sT1}, s{sHG}, 1
        s_lshl_b32 s{sT1}, 1, s{sT1}
        s_cmp_eq_u32 s{sT0}, s{sJ}
        s_cselect_b32 s{sOWN}, s{sT1}, 0
        """)

    def barS(c):
        sb.wait(c)
        a("s_barrier")
        bst(c)
        while nxtB[0] <= min(c + cfg.look, 15):
            issue_chunk(nxtB[0]); sb.push(nxtB[0], 8); nxtB[0] += 1
    for c in range(cfg.pollB + 1, cfg.kvB + 1): barS(c)
    sb.wait("kvf")
    stamp(4)
    poll(vGA, vG, 0xffffffff, first_issued=True)
    barT = cfg.barT
    assert len(barT) == 15 - cfg.kvB
    if not cfg.earlyset:
        att_setup(0, cfg.nB); sb.setup()
    sb.first()
    if not cfg.earlyset: sb.zero()
    for i, t in enumerate(barT):
        if t == 0: barS(cfg.kvB + 1 + i)
    sb.start()
    stamp(5)
    vJ0, vJ1, vJ2 = 9, 10, 11
    def stB(): stamp(6)
    def stB2(): stamp(14)
    assert cfg.depB <= 4
    jobs = {7: [stB], 11: [stB2]}
    for i, t in enumerate(barT):
        if t: jobs.setdefault(t - 1, []).append(lambda c=cfg.kvB + 1 + i: barS(c))
    for i, f in enumerate(upper(L_WB)):
        if f.__name__ not in cfg.skip: jobs.setdefault(cfg.upB + i, []).append(f)
    if cfg.woB:
        def wo0():
            srd(rMISC, kAO, 512 * 1024); srd(rXB, kBO, 512 * 1024)
            wosetup()
            await_cnt(4 * 16, 4)
        t0_, per = cfg.woB
        jobs.setdefault(t0_, []).append(wo0)
        for i in range(16): jobs.setdefault(t0_ + i // per, []).append(lambda: wopiece(sb))
        assert cfg.upB >= t0_ + 16 // per + 1
        jobs.setdefault(cfg.upB, []).insert(0, lambda: wodone(sb))
    jobs.setdefault(cfg.nB - 2, []).append(pretailB)
    sb.run(jobs, cfg.prioB)
    a("s_branch L_tail")

    a.label("L_attA")
    nA = 64 - cfg.nB
    att_setup(cfg.nB, nA)
    sa = Stream(cfg.depA, nA, init=["pst"] * 4)
    if not cfg.woB: wosetup()
    PZ = 240
    def poison():
        a(f"""
        v_mov_b32 v{PZ}, -1
        v_mov_b32 v{PZ+1}, -1
        v_mov_b32 v{PZ+2}, -1
        v_mov_b32 v{PZ+3}, -1
        s_lshl_b32 s{sT0}, s{sRB}, 6
        s_add_u32 s{sT0}, s{sT0}, s{sH}
        s_lshl_b32 s{sT0}, s{sT0}, 10
        s_add_u32 s{sT0}, s{sT0}, {WS_OB}
        s_add_u32 s{sT1}, s{sT0}, 32768
        buffer_store_dwordx4 {vr(PZ,4)}, v{vL16}, {sr(rWS,4)}, s{sT0} offen sc1
        buffer_store_dwordx4 {vr(PZ,4)}, v{vL16}, {sr(rWS,4)}, s{sT1} offen sc1
        """)
        sa.push("poison", 2)
    if cfg.poisT < 0: poison()
    sa.prologue()
    JD = RING + 12 * cfg.depA
    KT = JD + 32
    assert KT + 8 <= 248
    RD = JD
    assert RD + 16 <= 248
    def red0():
        a(f"""
        s_lshr_b32 s{sT0}, s{sRB}, 3
        s_lshl_b32 s{sT1}, s{sHG}, 2
        s_add_u32 s{sJB}, s{sT0}, s{sT1}
        s_lshl_b32 s{sT1}, s{sJB}, 7
        s_lshl_b32 s{sT0}, s{sJ}, 5
        s_add_u32 s{sT1}, s{sT1}, s{sT0}
        s_add_u32 s{sT1}, s{sT1}, {FL_P}
        v_lshl_add_u32 v{vJ0}, v{vLANE}, 2, s{sT1}
        s_mov_b64 exec, 0xff
        buffer_load_dword v{vJ1}, v{vJ0}, {sr(rWS,4)}, 0 offen sc1
        s_mov_b64 exec, -1
        """)
        sa.push("fp")
    def red1():
        sa.wait("fp")
        poll(vJ0, vJ1, 0xff, first_issued=True)
        a(f"""
        s_lshl_b32 s{sJB}, s{sJB}, 3
        s_and_b32 s{sT1}, s{sRB}, 7
        s_add_u32 s{sJB}, s{sJB}, s{sT1}
        s_mul_i32 s{sT1}, s{sJB}, {32*384}
        s_mul_i32 s{sT0}, s{sJ}, {8*384}
        s_add_u32 s{sT1}, s{sT1}, s{sT0}
        s_add_u32 s{sT1}, s{sT1}, {WS_P}
        v_lshrrev_b32 v{vJ1}, 5, v{vLANE}
        v_mul_u32_u24 v{vJ0}, 384, v{vJ1}
        v_and_b32 v{vJ2}, 31, v{vLANE}
        v_lshl_add_u32 v{vJ0}, v{vJ2}, 4, v{vJ0}
        v_lshlrev_b32 v{vJ1}, 2, v{vJ1}
        v_lshl_add_u32 v{vJ1}, v{vJ2}, 3, v{vJ1}
        s_mov_b32 exec_lo, 0x1ffff
        s_mov_b32 exec_hi, 0x1ffff
        """)
        for i in range(4):
            a(f"buffer_load_dwordx4 {vr(RD+4*i,4)}, v{vJ0}, {sr(rWS,4)}, s{sT1} offen offset:{i*768} sc1")
        a("s_mov_b64 exec, -1")
        sa.push("part", 4)
    def red2():
        sa.wait("part")
        a(f"v_pk_add_f32 {vr(RD,2)}, {vr(RD,2)}, {vr(RD+4,2)}\nv_pk_add_f32 {vr(RD+2,2)}, {vr(RD+2,2)}, {vr(RD+6,2)}")
        a(f"v_pk_add_f32 {vr(RD+8,2)}, {vr(RD+8,2)}, {vr(RD+12,2)}\nv_pk_add_f32 {vr(RD+10,2)}, {vr(RD+10,2)}, {vr(RD+14,2)}")
        a(f"v_pk_add_f32 {vr(RD,2)}, {vr(RD,2)}, {vr(RD+8,2)}\nv_pk_add_f32 {vr(RD+2,2)}, {vr(RD+2,2)}, {vr(RD+10,2)}")
        l = lab("notlast")
        a(f"""
        s_mul_i32 s{sT0}, s{sJ}, 800
        s_add_u32 s{sT0}, s{sT0}, {L_XR}
        v_add_u32 v{vJ0}, s{sT0}, v{vL16}
        s_mov_b32 exec_lo, 0x1ffff
        s_mov_b32 exec_hi, 0x1ffff
        ds_write_b128 v{vJ0}, {vr(RD,4)}
        s_mov_b32 s{sJL}, 0
        s_waitcnt lgkmcnt(0)
        s_mov_b64 exec, 1
        ds_add_rtn_u32 v{vJ2}, v{vCNT}, v{vONE} offset:{C_RD}
        s_waitcnt lgkmcnt(0)
        v_cmp_eq_u32 vcc, 3, v{vJ2}
        s_mov_b64 exec, -1
        s_cbranch_vccz {l}
        s_mov_b32 s{sJL}, 1
        v_add_u32 v{vJ0}, {L_XR}, v{vL16}
        """)
        for i in range(4):
            a(f"ds_read_b128 {vr(RD+4*i,4)}, v{vJ0} offset:{i*800}")
        a("s_waitcnt lgkmcnt(0)")
        a(f"v_pk_add_f32 {vr(RD,2)}, {vr(RD,2)}, {vr(RD+4,2)}\nv_pk_add_f32 {vr(RD+2,2)}, {vr(RD+2,2)}, {vr(RD+6,2)}")
        a(f"v_pk_add_f32 {vr(RD+8,2)}, {vr(RD+8,2)}, {vr(RD+12,2)}\nv_pk_add_f32 {vr(RD+10,2)}, {vr(RD+10,2)}, {vr(RD+14,2)}")
        a(f"v_pk_add_f32 {vr(RD,2)}, {vr(RD,2)}, {vr(RD+8,2)}\nv_pk_add_f32 {vr(RD+2,2)}, {vr(RD+2,2)}, {vr(RD+10,2)}")
        a(f"""
        v_permlane32_swap_b32 v{RD}, v{RD+2}
        v_permlane32_swap_b32 v{RD+1}, v{RD+3}
        v_pk_add_f32 {vr(RD,2)}, {vr(RD,2)}, {vr(RD+2,2)}
        v_cvt_pk_bf16_f32 v{RD}, v{RD}, v{RD+1}
        s_lshl_b32 s{sT1}, s{sJB}, 8
        s_add_u32 s{sT1}, s{sT1}, {WS_F}
        s_mov_b32 exec_lo, 0x1ffff
        s_mov_b32 exec_hi, 0x1ffff
        buffer_store_dword v{RD}, v{vJ1}, {sr(rWS,4)}, s{sT1} offen sc1
        s_mov_b64 exec, -1
        """)
        a.label(l)
        sa.mark = len(sa.q)
        sa.push("after", 0)
        sa.stored_at = list(sa.q)
    def red3():
        n_new = sum(1 for t in sa.q if t not in sa.stored_at)
        l = lab("noffl")
        a(f"s_cmp_lg_u32 s{sJL}, 1\ns_cbranch_scc1 {l}")
        a(f"""
        s_lshr_b32 s{sT1}, s{sJB}, 3
        s_lshl_b32 s{sT1}, s{sT1}, 7
        s_and_b32 s{sT0}, s{sJB}, 7
        s_lshl_b32 s{sT0}, s{sT0}, 2
        s_add_u32 s{sT0}, s{sT0}, s{sT1}
        s_add_u32 s{sT0}, s{sT0}, {FL_F}
        v_mov_b32 v{vJ0}, s{sT0}
        s_waitcnt vmcnt({n_new})
        """)
        flag(vJ0, "1")
        a.label(l)
    def oa0():
        a(f"""
        s_lshl_b32 s{sT0}, s{sRB}, 7
        s_lshl_b32 s{sT1}, s{sJ}, 5
        s_add_u32 s{sT0}, s{sT0}, s{sT1}
        s_add_u32 s{sT0}, s{sT0}, {FL_OA}
        v_lshl_add_u32 v{vJ0}, v{vLANE}, 2, s{sT0}
        s_mov_b64 exec, 0xff
        buffer_load_dword v{vJ1}, v{vJ0}, {sr(rWS,4)}, 0 offen sc1
        s_mov_b64 exec, -1
        """)
        sa.push("foa")
    def oa1(part):
        def f():
            if part == 0:
                sa.wait("foa")
                poll(vJ0, vJ1, 0xff, first_issued=True)
                await_cnt(C_UP, 4)
            off = (part >> 1) * 32768 + (part & 1) * 4096
            loff = L_WB + off
            a(f"""
            s_lshl_b32 s{sT0}, s{sRB}, 16
            s_lshl_b32 s{sT1}, s{sJ}, 13
            s_add_u32 s{sT0}, s{sT0}, s{sT1}
            s_add_u32 s{sT0}, s{sT0}, {WS_OA + off}
            s_add_u32 m0, s{sT1}, {loff}
            """)
            for i in range(4):
                a(f"buffer_load_dwordx4 v{vL16}, {sr(rWS,4)}, s{sT0} offen offset:{i*1024} sc1 lds")
            sa.push("wo", 4)
        return f
    def job0():
        sa.wait("pst")
        a(f"s_lshl_b32 s{sT0}, s{sH}, 7\ns_lshl_b32 s{sT1}, s{sRB}, 2\ns_add_u32 s{sT0}, s{sT0}, s{sT1}\ns_add_u32 s{sT0}, s{sT0}, {FL_P}\nv_mov_b32 v{vJ0}, s{sT0}")
        flag(vJ0, "1"); sa.push("fl")
    def job1():
        a(f"s_lshl_b32 s{sT0}, s{sH}, 7\ns_add_u32 s{sT0}, s{sT0}, {FL_F}\nv_lshl_add_u32 v{vJ0}, v{vLANE}, 2, s{sT0}")
        a(f"s_mov_b64 exec, 0xff\nbuffer_load_dword v{vJ1}, v{vJ0}, {sr(rWS,4)}, 0 offen sc1\ns_mov_b64 exec, -1")
        sa.push("ff")
        stamp(6)
    def job2():
        sa.wait("ff")
        poll(vJ0, vJ1, 0xff, first_issued=True)
        a(f"""
        v_and_b32 v{vJ0}, 31, v{vLANE}
        v_min_u32 v{vJ0}, 16, v{vJ0}
        v_lshlrev_b32 v{vJ0}, 3, v{vJ0}
        v_lshrrev_b32 v{vJ1}, 5, v{vLANE}
        v_lshl_add_u32 v{vJ0}, v{vJ1}, 8, v{vJ0}
        s_lshl_b32 s{sT0}, s{sH}, 11
        s_add_u32 s{sT0}, s{sT0}, {WS_F}
        """)
        for r4 in range(4):
            a(f"buffer_load_dwordx2 {vr(KT+2*r4,2)}, v{vJ0}, {sr(rWS,4)}, s{sT0} offen offset:{r4*512} sc1")
        sa.push("kt", 4)
        stamp(14)
    def job3a():
        sa.wait("kt")
        for ri in range(2):
            mfma(JD + 16 * ri, KT, PHI + 8 * ri, "0")
        for ri in range(2):
            mfma(JD + 16 * ri, KT + 4, PHI + 8 * ri + 4, JD + 16 * ri)
    def job3b():
        a(f"s_lshl_b32 s{sT0}, s{sRB}, 6\ns_add_u32 s{sT0}, s{sT0}, s{sH}\ns_lshl_b32 s{sT0}, s{sT0}, 10\ns_add_u32 s{sT0}, s{sT0}, {WS_OA}\ns_add_u32 s{sT1}, s{sT0}, 32768")
        if cfg.a3:
            a(f"s_and_b32 s{sT2}, s{sJ}, 1\ns_lshl_b32 s{sT2}, s{sT2}, 15\ns_add_u32 s{sT0}, s{sT0}, s{sT2}\ns_sub_u32 s{sT1}, s{sT1}, s{sT2}")
        for ri in range(2):
            d = JD + 16 * ri
            a(f"v_add_f32 v{d+8}, {f2u(1e-6)}, v{d+8}\nv_rcp_f32 v{d+8}, v{d+8}")
        for ri in range(2):
            d = JD + 16 * ri
            for i in range(4):
                a(f"v_pk_mul_f32 {vr(d+2*i,2)}, {vr(d+2*i,2)}, {vr(d+8,2)} op_sel:[0,0] op_sel_hi:[1,0]")
            cvt(d + 12, d, 4)
            a(f"buffer_store_dwordx4 {vr(d+12,4)}, v{vL16}, {sr(rWS,4)}, s{sT0+ri} offen sc1")
        sa.push("oa", 2)
    def job4():
        sa.wait("oa")
        a(f"s_lshl_b32 s{sT0}, s{sRB}, 7\ns_lshl_b32 s{sT1}, s{sH}, 2\ns_add_u32 s{sT0}, s{sT0}, s{sT1}\ns_add_u32 s{sT0}, s{sT0}, {FL_OA}\nv_mov_b32 v{vJ0}, s{sT0}")
        flag(vJ0, "1"); sa.push("fl")
    jobs = {}
    t0, t1, t2, t3, t4 = cfg.jobT
    for t, f in ((t0, job0), (t1, job1), (t2, job2), (t3, job3a), (t3 + 1, job3b), (t4, job4)): jobs.setdefault(t, []).append(f)
    for t, f in zip(cfg.redT, (red0, red1, red2, red3)): jobs.setdefault(t, []).append(f)
    if not cfg.woB:
        for t in range(16): jobs.setdefault(t + cfg.woT, []).append(lambda: wopiece(sa))
    if not cfg.woB: jobs.setdefault(cfg.woT + 18, []).append(lambda: wodone(sa))
    jobs.setdefault(nA - 2 + min(0, cfg.hintpos + 2), []).append(pretailA)
    if cfg.hintpos <= -2: jobs.setdefault(nA + 1 + cfg.hintpos, []).append(hint)
    if cfg.poisT >= 0: jobs.setdefault(cfg.poisT, []).append(poison)
    jobs.setdefault(cfg.oaT[0], []).append(oa0)
    for p in range(4): jobs.setdefault(cfg.oaT[1] + p, []).append(oa1(p))
    assert max(jobs) < nA
    if cfg.skip:
        for t in list(jobs):
            jobs[t] = [f for f in jobs[t] if f.__name__ not in cfg.skip]
    sa.run(jobs, cfg.prioA)
    sa.wait("wo")
    a("; ======== tail: join the two key ranges, publish o, output projections")
    a.label("L_tail")
    stamp(7)

    CK = NM
    def check():
        for q in range(2):
            b = O + 16 * q
            a(f"v_maximum3_f32 v{CK+q}, abs(v{b}), abs(v{b+1}), abs(v{b+2})\nv_maximum3_f32 v{CK+2+q}, abs(v{b+3}), abs(v{b+4}), abs(v{b+5})")
            a(f"v_maximum3_f32 v{CK+q}, v{CK+q}, abs(v{b+6}), abs(v{b+7})\nv_maximum3_f32 v{CK+q}, v{CK+q}, v{CK+2+q}, v{CK+2+q}")
        a(f"""
        s_mov_b32 s{sT2}, {f2u(2.0 ** -(cfg.bias + 2))}
        s_mov_b32 s{sT3}, {f2u(2.0 ** -112)}
        v_maximum3_f32 v{CK+4}, v{CK}, v{CK+1}, v{O+8}
        v_cmp_le_f32 s[84:85], s{sT2}, v{O+8}
        v_cmp_gt_f32 s[86:87], s{sT3}, v{CK}
        v_maximum3_f32 v{CK+4}, v{CK+4}, v{O+24}, v{O+24}
        v_cmp_le_f32 s[88:89], s{sT2}, v{O+24}
        v_cmp_gt_f32 s[90:91], s{sT3}, v{CK+1}
        v_cmp_ngt_f32 vcc, {f2u(2.0 ** 125)}, v{CK+4}
        s_and_b64 s[84:85], s[84:85], s[86:87]
        s_and_b64 s[88:89], s[88:89], s[90:91]
        s_or_b64 s[84:85], s[84:85], s[88:89]
        s_or_b64 vcc, vcc, s[84:85]
        """)
    def badflag():
        l = lab("good")
        if cfg.force_redo:
            a(f"s_mov_b64 vcc, -1")
        a(f"s_cbranch_vccz {l}\nds_write_b32 v{vCNT}, v{vONE}")
        a.label(l)
    def rowaddr(dst, ri):
        a(f"""
        v_and_b32 v{vT1}, 31, v{vLANE}
        s_lshl_b32 s{sT0}, s{sRB}, 1
        s_add_u32 s{sT0}, s{sT0}, {ri}
        s_lshl_b32 s{sT0}, s{sT0}, 5
        v_add_u32 v{vT1}, s{sT0}, v{vT1}
        v_lshlrev_b32 v{dst}, 11, v{vT1}
        v_lshrrev_b32 v{vT1}, 5, v{vLANE}
        v_lshl_add_u32 v{dst}, v{vT1}, 5, v{dst}
        """)
    a(f"s_cmp_lt_u32 s{sW}, 4\ns_cbranch_scc1 L_tailB")
    if cfg.hintpos == -1: hint()
    check()
    badflag()
    a("s_waitcnt lgkmcnt(0)\ns_barrier")
    PB = 104
    a(f"""
    ds_read_b32 v{PB+16}, v{vC1} offset:4096
    ds_read_b32 v{PB+17}, v{vC1} offset:4352
    ds_read_b32 v{CK}, v{vCNT}
    ds_read_b128 {vr(PB,4)}, v{vC4}
    ds_read_b128 {vr(PB+4,4)}, v{vC4} offset:1024
    ds_read_b128 {vr(PB+8,4)}, v{vC4} offset:2048
    ds_read_b128 {vr(PB+12,4)}, v{vC4} offset:3072
    s_waitcnt lgkmcnt(4)
    v_add_f32 v{O+8}, v{O+8}, v{PB+16}
    v_add_f32 v{O+24}, v{O+24}, v{PB+17}
    v_readfirstlane_b32 s{sT1}, v{CK}
    v_rcp_f32 v{O+10}, v{O+8}
    v_rcp_f32 v{O+26}, v{O+24}
    s_andn2_b32 s{sT1}, s{sT1}, s{sREDO}
    s_cmp_lg_u32 s{sT1}, 0
    s_cbranch_scc1 L_slow
    """)
    OS = 124
    for q in range(2):
        if cfg.hintpos == q: hint()
        b = O + 16 * q
        a(f"s_waitcnt lgkmcnt({2 - 2*q})")
        for i in range(4):
            a(f"v_pk_add_f32 {vr(b+2*i,2)}, {vr(b+2*i,2)}, {vr(PB+8*q+2*i,2)}")
        for i in range(4):
            a(f"v_pk_mul_f32 {vr(b+2*i,2)}, {vr(b+2*i,2)}, {vr(b+10,2)} op_sel:[0,0] op_sel_hi:[1,0]")
        cvt(OS + 4 * q, b, 4)
        for i in range(4):
            a(f"v_min_u32 v{OS+4*q+i}, -2, v{OS+4*q+i}")
        a(f"buffer_store_dwordx4 {vr(OS+4*q,4)}, v{vL16}, {sr(rWS,4)}, s{sOB+q} offen {cfg.ob_st}")
    if cfg.hintpos == 2: hint()
    stamp(8)
    vOR, vOST = 5, 7
    PA, PW, PO, PS = 80, 136, 16, 48
    a(f"""
    s_and_b32 s{sT2}, s{sJ}, 1
    s_lshl_b32 s{sT0}, s{sJ}, 10
    s_add_u32 s{sT0}, s{sT0}, {L_X}
    v_add_u32 v{vT}, s{sT0}, v{vL16}
    ds_write_b128 v{vT}, {vr(OS,4)}
    v_xor_b32 v{vT}, 0x1000, v{vT}
    ds_write_b128 v{vT}, {vr(OS+4,4)}
    v_bfe_u32 v{vT1}, v{vLANE}, 2, 2
    v_lshrrev_b32 v{vT2}, 5, v{vLANE}
    v_lshl_add_u32 v{vT1}, v{vT2}, 2, v{vT1}
    v_lshlrev_b32 v{vWR}, 7, v{vT1}
    s_lshr_b32 s{sT1}, s{sJ}, 1
    v_bfe_u32 v{vT1}, v{vLANE}, 3, 1
    v_xor_b32 v{vT1}, s{sT1}, v{vT1}
    v_lshl_add_u32 v{vWR}, v{vT1}, 6, v{vWR}
    v_and_b32 v{vT1}, 1, v{vLANE}
    v_lshl_add_u32 v{vWR}, v{vT1}, 5, v{vWR}
    v_bfe_u32 v{vT1}, v{vLANE}, 4, 1
    v_lshl_add_u32 v{vWR}, v{vT1}, 4, v{vWR}
    v_bfe_u32 v{vT1}, v{vLANE}, 1, 1
    v_lshl_add_u32 v{vWR}, v{vT1}, 3, v{vWR}
    s_lshl_b32 s{sT0}, s{sT2}, 15
    s_add_u32 s{sT0}, s{sT0}, {L_WB}
    v_add_u32 v{vOR}, s{sT0}, v{vL16}
    s_waitcnt lgkmcnt(0)
    """)
    arrive(C_OB)
    if cfg.tailprio: a("s_setprio 0")
    assert L_WA == 0
    DP = 4
    def rd(q):
        a(f"ds_read_b64_tr_b16 {vr(PW+4*(q%8),2)}, v{vWR} offset:{q*2048}")
        a(f"ds_read_b64_tr_b16 {vr(PW+4*(q%8)+2,2)}, v{vWR} offset:{q*2048+1024}")
        a(f"ds_read_b128 {vr(PO+4*(q%8),4)}, v{vOR} offset:{q*1024}")
    for q in range(DP): rd(q)
    for q in range(32):
        a(f"s_waitcnt lgkmcnt({3*min(DP-1, 31-q)})")
        mfma(PA, PW + 4 * (q % 8), PO + 4 * (q % 8), "0" if q == 0 else PA)
        if q + DP < 32: rd(q + DP)
        if cfg.hintpos == 10 + q: hint()
        if q == 31 - DP:
            if cfg.outA_t:
                a(f"""
                v_lshrrev_b32 v{vT1}, 2, v{vLANE}
                s_lshl_b32 s{sT0}, s{sRB}, 1
                s_add_u32 s{sT0}, s{sT0}, s{sT2}
                s_lshl_b32 s{sT0}, s{sT0}, 5
                v_add_u32 v{vT1}, s{sT0}, v{vT1}
                v_lshlrev_b32 v{vOST}, 11, v{vT1}
                v_and_b32 v{vT1}, 3, v{vLANE}
                v_lshl_add_u32 v{vOST}, v{vT1}, 4, v{vOST}
                v_and_b32 v{vT1}, 31, v{vLANE}
                v_lshlrev_b32 v{vT1}, 6, v{vT1}
                v_lshrrev_b32 v{vT2}, 5, v{vLANE}
                v_lshl_add_u32 v{vT1}, v{vT2}, 5, v{vT1}
                s_mul_i32 s{sT0}, s{sJ}, 4608
                s_add_u32 s{sT0}, s{sT0}, {L_XC}
                v_add_u32 v9, s{sT0}, v{vT1}
                """)
            else:
                rowaddr(vOST, f"s{sT2}")
            a(f"s_lshl_b32 s{sT0}, s{sHG}, 7\ns_lshr_b32 s{sT1}, s{sJ}, 1\ns_lshl_b32 s{sT1}, s{sT1}, 6\ns_add_u32 s{sT0}, s{sT0}, s{sT1}\nv_add_u32 v{vOST}, s{sT0}, v{vOST}")
    arrive(C_OA)
    stamp(9)
    cvt(PS, PA, 8)
    if cfg.outA_t:
        a(f"""
        ds_write_b128 v9, {vr(PS,4)}
        ds_write_b128 v9, {vr(PS+4,4)} offset:16
        v_add_u32 v10, 0x8000, v{vOST}
        s_waitcnt lgkmcnt(0)
        ds_read_b128 {vr(PS+8,4)}, v{vC4}
        ds_read_b128 {vr(PS+12,4)}, v{vC4} offset:1024
        s_waitcnt lgkmcnt(1)
        buffer_store_dwordx4 {vr(PS+8,4)}, v{vOST}, {sr(rOUT,4)}, 0 offen {cfg.outA_sc}
        s_waitcnt lgkmcnt(0)
        buffer_store_dwordx4 {vr(PS+12,4)}, v10, {sr(rOUT,4)}, 0 offen {cfg.outA_sc}
        """)
    else:
        a(f"buffer_store_dwordx4 {vr(PS,4)}, v{vOST}, {sr(rOUT,4)}, 0 offen {cfg.outA_sc}")
        a(f"buffer_store_dwordx4 {vr(PS+4,4)}, v{vOST}, {sr(rOUT,4)}, 0 offen offset:16 {cfg.outA_sc}")
    stamp(10); stamp(11); stamp(12)
    if cfg.fin8:
        a("s_branch L_fin8")
    elif cfg.abar:
        a("s_barrier" + ("\ns_barrier" if cfg.outB_t else ""))
    a("s_branch L_fin")

    a.label("L_tailB")
    if cfg.tailprio > 1: a("s_setprio 3")
    a(f"""
    ds_write_b128 v{vC4}, {vr(O,4)}
    ds_write_b128 v{vC4}, {vr(O+4,4)} offset:1024
    ds_write_b32 v{vC1}, v{O+8} offset:4096
    ds_write_b128 v{vC4}, {vr(O+16,4)} offset:2048
    ds_write_b128 v{vC4}, {vr(O+20,4)} offset:3072
    ds_write_b32 v{vC1}, v{O+24} offset:4352
    """)
    check()
    badflag()
    OFB, AB = 16, 104
    vXW, vXR, vOWN = 9, 10, 11
    sTODO, sREQ, sNEW = 84, 85, 88
    a(f"""
    s_waitcnt lgkmcnt(0)
    s_barrier
    ds_read_b32 v{CK}, v{vCNT}
    s_mov_b64 exec, 3
    buffer_load_dword v{vH}, v{vHA}, {sr(rWS,4)}, 0 offen sc1
    s_mov_b64 exec, -1
    v_pk_mov_b32 {vr(168,2)}, 0, 0
    v_pk_mov_b32 {vr(170,2)}, 0, 0
    s_waitcnt lgkmcnt(0)
    v_readfirstlane_b32 s{sT1}, v{CK}
    s_andn2_b32 s{sT1}, s{sT1}, s{sREDO}
    s_cmp_lg_u32 s{sT1}, 0
    s_cbranch_scc1 L_slow
    """)
    stamp(8)
    if cfg.tailprio: a("s_setprio 2")
    for i in range(4):
        mfma(AB + 16 * i, 168, 168, "0")
    rowaddr(vOST, 0)
    a(f"""
    s_lshl_b32 s{sT0}, s{sHG}, 7
    s_lshr_b32 s{sT1}, s{sJ}, 1
    s_lshl_b32 s{sT1}, s{sT1}, 6
    s_add_u32 s{sT0}, s{sT0}, s{sT1}
    s_and_b32 s{sT1}, s{sJ}, 1
    s_lshl_b32 s{sT1}, s{sT1}, 4
    s_add_u32 s{sT0}, s{sT0}, s{sT1}
    v_add_u32 v{vOST}, s{sT0}, v{vOST}
    v_add_u32 v{vOWN}, {L_X}, v{vL16}
    """)
    if cfg.fin8:
        a(f"""
        s_lshr_b32 s{sT0}, s{sJ}, 1
        s_lshl_b32 s{sT0}, s{sT0}, 2
        s_and_b32 s{sT1}, s{sJ}, 1
        s_add_u32 s{sT0}, s{sT0}, s{sT1}
        v_lshrrev_b32 v{vT1}, 5, v{vLANE}
        v_lshl_add_u32 v{vT1}, v{vT1}, 1, s{sT0}
        v_and_b32 v{vT2}, 7, v{vLANE}
        v_xor_b32 v{vT1}, v{vT1}, v{vT2}
        v_and_b32 v{vT2}, 31, v{vLANE}
        v_lshlrev_b32 v{vT2}, 7, v{vT2}
        v_lshl_add_u32 v{vXR}, v{vT1}, 4, v{vT2}
        s_lshl_b32 s{sT0}, s{sJ}, 14
        v_add_u32 v{vXR}, s{sT0}, v{vXR}
        """)
    else:
        a(f"s_mul_i32 s{sT0}, s{sJ}, 12288\nv_add_u32 v{vXR}, s{sT0}, v{vL16}")
    a(f"""
    s_andn2_b32 s{sTODO}, 3, s{sOWN}
    s_mov_b32 s{sREQ}, 0
    s_mov_b32 s{sCNT}, {cfg.spin}
    """)
    def mm(g):
        for ri in range(2):
            for i in range(4):
                for g2 in range(2):
                    d = AB + 32 * ri + 16 * g2
                    mfma(d, WFB + 32 * g2 + 4 * (4 * g + i), OFB + 32 * g + 16 * ri + 4 * i, d)
    def oload(g):
        l = lab("nol")
        a(f"s_bitcmp1_b32 s{sNEW}, {g}\ns_cbranch_scc0 {l}")
        for ri in range(2):
            a(f"s_add_u32 s{sT0}, s{sOB}, {g*4096 + ri*32768}")
            for i in range(4):
                a(f"buffer_load_dwordx4 {vr(OFB+32*g+16*ri+4*i,4)}, v{vL16}, {sr(rWS,4)}, s{sT0} offen offset:{i*1024} {cfg.ob_ld}")
        a.label(l)
    def look():
        a(f"""
        s_mov_b64 exec, 3
        v_cmp_ne_u32 vcc, 0, v{vH}
        s_mov_b64 exec, -1
        s_cmp_eq_u32 s{sCNT}, 0
        s_cselect_b32 s{sNEW}, 3, vcc_lo
        s_and_b32 s{sNEW}, s{sNEW}, s{sTODO}
        s_andn2_b32 s{sNEW}, s{sNEW}, s{sREQ}
        """)
        oload(0); oload(1)
    def use(g):
        l, l2 = lab("og"), lab("og")
        b = OFB + 32 * g
        a(f"v_max3_u32 v{vT}, v{b}, v{b+1}, v{b+2}\nv_max3_u32 v{vT1}, v{b+3}, v{b+4}, v{b+5}")
        for i in range(6, 30, 4):
            a(f"v_max3_u32 v{vT}, v{vT}, v{b+i}, v{b+i+1}\nv_max3_u32 v{vT1}, v{vT1}, v{b+i+2}, v{b+i+3}")
        a(f"v_max3_u32 v{vT}, v{vT}, v{b+30}, v{b+31}\nv_max_u32 v{vT}, v{vT}, v{vT1}\nv_cmp_eq_u32 vcc, -1, v{vT}")
        a(f"s_cmp_eq_u32 s{sCNT}, 0\ns_cbranch_scc1 {l2}\ns_cbranch_vccnz {l}")
        a.label(l2)
        mm(g)
        a(f"s_bitset0_b32 s{sTODO}, {g}")
        a.label(l)
    a("s_waitcnt vmcnt(0)")
    look()
    a(f"s_mov_b32 s{sREQ}, s{sNEW}")
    l = lab("noown")
    a(f"s_cmp_eq_u32 s{sOWN}, 0\ns_cbranch_scc1 {l}")
    await_cnt(C_OB, 4)
    for g in range(2):
        l2 = lab("own")
        a(f"s_bitcmp1_b32 s{sOWN}, {g}\ns_cbranch_scc0 {l2}")
        for i in range(8):
            a(f"ds_read_b128 {vr(OFB+32*g+4*i,4)}, v{vOWN} offset:{i*1024}")
        a("s_waitcnt lgkmcnt(0)")
        mm(g)
        a.label(l2)
    a.label(l)
    stamp(9)
    if cfg.prof: a("s_mov_b32 s70, 0")
    a.label("L_otry")
    if cfg.prof:
        a("s_memtime s[98:99]\ns_add_u32 s70, s70, 1\ns_add_u32 s71, s70, 40\ns_min_u32 s71, s71, 47\ns_waitcnt lgkmcnt(0)\ns_mov_b32 m0, s71\nv_writelane_b32 v255, s98, m0")
    if cfg.peek:
        a(f"ds_read_b32 v{vT2}, v{vCNT} offset:{C_OA}")
    a(f"s_cmp_lg_u32 s{sREQ}, 3\ns_cbranch_scc1 L_oone")
    a("s_waitcnt vmcnt(8)")
    use(0)
    a("s_waitcnt vmcnt(0)")
    use(1)
    a(f"s_mov_b32 s{sREQ}, 0\ns_branch L_onext")
    a.label("L_oone")
    l = lab("nopoll")
    a(f"s_andn2_b32 s{sT0}, s{sTODO}, s{sREQ}\ns_cbranch_scc0 {l}")
    if cfg.tsleep: a(f"s_sleep {cfg.tsleep}")
    a(f"s_mov_b64 exec, 3\nbuffer_load_dword v{vH}, v{vHA}, {sr(rWS,4)}, 0 offen sc1\ns_mov_b64 exec, -1")
    a(f"s_max_u32 s{sCNT}, s{sCNT}, 1\ns_sub_u32 s{sCNT}, s{sCNT}, 1")
    a.label(l)
    a("s_waitcnt vmcnt(0)")
    look()
    for g in range(2):
        l = lab("nouse")
        a(f"s_bitcmp1_b32 s{sREQ}, {g}\ns_cbranch_scc0 {l}")
        use(g)
        a.label(l)
    a(f"s_mov_b32 s{sREQ}, s{sNEW}")
    a.label("L_onext")
    a(f"s_cmp_lg_u32 s{sTODO}, 0\ns_cbranch_scc1 L_otry")
    if cfg.prof: a(f"v_writelane_b32 v255, s70, 33\nv_writelane_b32 v255, s{sCNT}, 34")
    stamp(10)
    if cfg.peek:
        l = lab("seen")
        a(f"s_waitcnt lgkmcnt(0)\nv_cmp_gt_u32 vcc, 4, v{vT2}\ns_cbranch_vccz {l}")
        await_cnt(C_OA, 4)
        a.label(l)
    else:
        await_cnt(C_OA, 4)
    stamp(11)
    def grp(ri, g):
        return AB + 32 * ri + 16 * (g >> 1) + 8 * (g & 1)
    if cfg.fin8:
        for g in range(1, 4):
            a(f"v_xor_b32 v{168+g}, {(4*(g>>1) + (g&1))*16}, v{vXR}")
        for ri in range(2):
            for g in range(4):
                for i in range(2):
                    a(f"ds_write_b128 v{168+g if g else vXR}, {vr(grp(ri,g)+4*i,4)} offset:{ri*4096 + i*8192}")
        a.label("L_fin8")
        a(f"""
        v_lshrrev_b32 v{vT1}, 3, v{vLANE}
        v_and_b32 v{vT2}, 7, v{vLANE}
        v_lshlrev_b32 v{vOST}, 11, v{vT1}
        v_lshl_add_u32 v{vOST}, v{vT2}, 4, v{vOST}
        v_xor_b32 v{vT2}, v{vT2}, v{vT1}
        v_lshlrev_b32 v{vT2}, 4, v{vT2}
        v_lshl_add_u32 v{vT2}, v{vT1}, 7, v{vT2}
        s_lshl_b32 s{sT0}, s{sW}, 10
        v_add_u32 v{vT}, s{sT0}, v{vT2}
        s_lshl_b32 s{sT0}, s{sRB}, 3
        s_add_u32 s{sT0}, s{sT0}, s{sW}
        s_lshl_b32 s{sT0}, s{sT0}, 14
        s_lshl_b32 s{sT1}, s{sHG}, 7
        s_add_u32 s{sT0}, s{sT0}, s{sT1}
        s_waitcnt lgkmcnt(0)
        s_barrier
        """)
        stamp(12)
        for p in range(4):
            for i in range(2):
                a(f"ds_read_b128 {vr(64+8*p+4*i,4)}, v{vT} offset:{p*16384 + i*8192}")
        for p in range(1, 4):
            a(f"s_waitcnt lgkmcnt({6-2*p})")
            for i in range(4):
                a(f"v_pk_add_f32 {vr(64+2*i,2)}, {vr(64+2*i,2)}, {vr(64+8*p+2*i,2)}")
        cvt(96, 64, 4)
        a(f"buffer_store_dwordx4 {vr(96,4)}, v{vOST}, {sr(rOUT,4)}, s{sT0} offen offset:1024 {cfg.out_sc}")
    else:
        for g in range(1, 4):
            a(f"s_xor_b32 s{sT0}, s{sJ}, {g}\ns_mul_i32 s{sT0}, s{sT0}, 12288\ns_add_u32 s{sT0}, s{sT0}, {(g-1)*4096}\nv_add_u32 v{vXW}, s{sT0}, v{vL16}")
            for ri in range(2):
                a(f"ds_write_b128 v{vXW}, {vr(grp(ri,g),4)} offset:{ri*2048}\nds_write_b128 v{vXW}, {vr(grp(ri,g)+4,4)} offset:{ri*2048+1024}")
        a("s_waitcnt lgkmcnt(0)\ns_barrier")
        stamp(12)
        tmp = 16
        for ri in range(2):
            for g in range(3):
                for i in range(2):
                    a(f"ds_read_b128 {vr(tmp+24*ri+8*g+4*i,4)}, v{vXR} offset:{g*4096 + ri*2048 + i*1024}")
        if cfg.outB_t:
            a(f"""
            v_and_b32 v{vT1}, 31, v{vLANE}
            v_lshlrev_b32 v{vXW}, 7, v{vT1}
            v_lshrrev_b32 v{vT1}, 5, v{vLANE}
            v_lshl_add_u32 v{vXW}, v{vT1}, 5, v{vXW}
            s_lshr_b32 s{sT0}, s{sJ}, 1
            s_lshl_b32 s{sT0}, s{sT0}, 6
            s_and_b32 s{sT1}, s{sJ}, 1
            s_lshl_b32 s{sT1}, s{sT1}, 4
            s_add_u32 s{sT0}, s{sT0}, s{sT1}
            s_add_u32 s{sT0}, s{sT0}, {L_X}
            v_add_u32 v{vXW}, s{sT0}, v{vXW}
            """)
        else:
            a(f"v_add_u32 v{vXW}, 0x10000, v{vOST}")
        for ri in range(2):
            d = grp(ri, 0)
            for g in range(3):
                a(f"s_waitcnt lgkmcnt({10 - 6*ri - 2*g + (1 if (cfg.outB_t and ri) else 0)})")
                for i in range(4):
                    a(f"v_pk_add_f32 {vr(d+2*i,2)}, {vr(d+2*i,2)}, {vr(tmp+24*ri+8*g+2*i,2)}")
            cvt(64 + 4 * ri, d, 4)
            if cfg.outB_t:
                a(f"ds_write_b128 v{vXW}, {vr(64+4*ri,4)} offset:{ri*4096}")
            else:
                a(f"buffer_store_dwordx4 {vr(64+4*ri,4)}, v{vXW if ri else vOST}, {sr(rOUT,4)}, 0 offen offset:1024 {cfg.out_sc}")
        if cfg.outB_t:
            a(f"""
            s_lshl_b32 s{sT0}, s{sJ}, 11
            v_add_u32 v{vOWN}, s{sT0}, v{vOWN}
            v_lshrrev_b32 v{vT1}, 3, v{vLANE}
            v_lshlrev_b32 v{vOST}, 11, v{vT1}
            v_and_b32 v{vT1}, 7, v{vLANE}
            v_lshl_add_u32 v{vOST}, v{vT1}, 4, v{vOST}
            s_lshl_b32 s{sT0}, s{sRB}, 2
            s_add_u32 s{sT0}, s{sT0}, s{sJ}
            s_lshl_b32 s{sT0}, s{sT0}, 15
            s_lshl_b32 s{sT1}, s{sHG}, 7
            s_add_u32 s{sT0}, s{sT0}, s{sT1}
            s_add_u32 s{sT1}, s{sT0}, 0x4000
            s_waitcnt lgkmcnt(0)
            s_barrier
            ds_read_b128 {vr(72,4)}, v{vOWN}
            ds_read_b128 {vr(76,4)}, v{vOWN} offset:1024
            s_waitcnt lgkmcnt(1)
            buffer_store_dwordx4 {vr(72,4)}, v{vOST}, {sr(rOUT,4)}, s{sT0} offen offset:1024 {cfg.out_sc}
            s_waitcnt lgkmcnt(0)
            buffer_store_dwordx4 {vr(76,4)}, v{vOST}, {sr(rOUT,4)}, s{sT1} offen offset:1024 {cfg.out_sc}
            """)
    a.label("L_fin")
    stamp(13)
    if cfg.diag:
        da, db, base = cfg.diag
        ra = sPROF if da == 0 else 92
        if db == 0:
            a(f"s_mov_b32 s{sT2}, 0")
        elif db == 15:
            a(f"s_waitcnt vmcnt(0)\ns_memrealtime s[{sT0}:{sT1}]\ns_waitcnt lgkmcnt(0)\ns_sub_u32 s{sT2}, s{sT0}, s{ra}")
        elif db == 16:
            a(f"s_waitcnt vmcnt(0)\ns_memtime s[{sT0}:{sT1}]\ns_waitcnt lgkmcnt(0)\ns_sub_u32 s{sT2}, s{sT0}, s100\ns_lshr_b32 s{sT2}, s{sT2}, 4")
        else:
            a(f"s_sub_u32 s{sT2}, s94, s{ra}")
        a(f"s_add_u32 s{sT2}, s{sT2}, {base}\ns_min_u32 s{sT2}, s{sT2}, 30000")
        a(f"s_cmp_lg_u32 s{sW}, 0\ns_cbranch_scc1 L_end")
        if cfg.diag_wb: a("s_waitcnt vmcnt(0)\ns_sleep 100\nbuffer_wbl2 sc1\ns_waitcnt vmcnt(0)")
        a.label("L_diag")
        a(f"s_memrealtime s[{sT0}:{sT1}]\ns_waitcnt lgkmcnt(0)\ns_sub_u32 s{sT0}, s{sT0}, s{sPROF}\ns_cmp_lt_u32 s{sT0}, s{sT2}\ns_cbranch_scc1 L_diag")
    if cfg.prof:
        a("s_waitcnt vmcnt(0)")
        stamp(15)
        a(f"s_getreg_b32 s{sT2}, hwreg(HW_REG_XCC_ID)\nv_writelane_b32 v255, s{sT2}, 32")
        a(f"s_lshl_b32 s{sT0}, s2, 3\ns_add_u32 s{sT0}, s{sT0}, s{sW}\ns_lshl_b32 s{sT0}, s{sT0}, 8\ns_add_u32 s{sT0}, s{sT0}, {WS_PROF}")
        a(f"v_lshlrev_b32 v{vT}, 2, v{vLANE}")
        a(f"buffer_store_dword v255, v{vT}, {sr(rWS,4)}, s{sT0} offen")
        if cfg.tprof:
            a(f"s_add_u32 s{sT0}, s{sT0}, {WS_DBG - WS_PROF}\nbuffer_store_dword v252, v{vT}, {sr(rWS,4)}, s{sT0} offen")
    a("s_endpgm")

    SL = O
    a.label("L_slow")
    a("s_waitcnt vmcnt(0) lgkmcnt(0)")
    a(f"s_mov_b32 s{sREDO}, 1\ns_mov_b32 s{sKV}, s{sKV0}\ns_mov_b32 s{sCNT}, s{sNIT}")
    a(f"v_mov_b32 v{SL}, 0xff800000\nv_mov_b32 v{SL+1}, 0xff800000")
    a.label("L_slow_loop")
    a(f"buffer_load_dwordx4 {vr(RING,4)}, v{vOFFK}, {sr(rWS,4)}, s{sKV} offen sc1\ns_add_u32 s{sKV}, s{sKV}, 2048\ns_and_b32 s{sKV}, s{sKV}, 0x1ffff\ns_waitcnt vmcnt(0)")
    mfma(S, RING, Qf, "0")
    mfma(S + 16, RING, Qf + 4, "0")
    maxtree(SL, S, 16, init=True)
    maxtree(SL + 1, S + 16, 16, init=True)
    a(f"s_sub_u32 s{sCNT}, s{sCNT}, 1\ns_cmp_lg_u32 s{sCNT}, 0\ns_cbranch_scc1 L_slow_loop")
    crossmax(SL)
    a(f"""
    s_lshl_b32 s{sT0}, s{sW}, 8
    s_add_u32 s{sT0}, s{sT0}, {L_X + 28672}
    v_lshl_add_u32 v{vT}, v{vLANE}, 2, s{sT0}
    ds_write_b32 v{vT}, v{SL}
    v_xor_b32 v{vT}, 0x400, v{vT}
    s_waitcnt lgkmcnt(0)
    s_barrier
    ds_read_b32 v{SL+1}, v{vT}
    s_waitcnt lgkmcnt(0)
    v_max_f32 v{SL}, v{SL}, v{SL+1}
    v_sub_f32 v{SL}, 0, v{SL}
    v_mov_b32 v{SL+1}, v{SL}
    v_permlane32_swap_b32 v{SL}, v{SL+1}
    """)
    nmfill(SL)
    sr2 = Stream(2, 2)
    sr2.prologue(single=True)
    a(f"s_lshr_b32 s{sCNT}, s{sNIT}, 1\ns_nop 7\ns_nop 3")
    a.label("L_redo_loop")
    sr2.tile(0, looped=True)
    sr2.tile(1, looped=True)
    a(f"s_sub_u32 s{sCNT}, s{sCNT}, 1\ns_cmp_lg_u32 s{sCNT}, 0\ns_cbranch_scc1 L_redo_loop")
    smf(O + 16, sr2.ring(1)[2], S + 16 + 8)
    a("s_waitcnt vmcnt(0)\ns_branch L_tail")
    a.label("L_end")
    a("s_endpgm")
    npad = a.pad()
    head = open(f"cdna_kernels/{NAME}.s.ref").read().split("; Override launch")[0]
    txt = head + f"""; Written with a generator script of my own (gen/gen.py); no compiler output.
;
; One persistent launch, 256 workgroups x 8 waves, one workgroup per CU.  Workgroup (rb, hg) owns rows
; 64*rb..64*rb+63 and heads 4*hg..4*hg+3 of both branches; wave j and wave j+4 share head 4*hg+j.
;   waves 0-3 (role B): qkv projection of the softmax branch, publish K/V, stage operands for role A,
;                       24 of the 64 key tiles of the attention, output projection of the softmax branch
;   waves 4-7 (role A): stage operands for role B, qkv projection and feature maps of the linear branch,
;                       40 key tiles, kv reduction and o of the linear branch, its output projection
; Attention: S^T = K Q^T - offset (offset in the MFMA's C operand), v_exp_f32 in place, and P V through the
; 2:4-sparse MFMA, whose index picks the high halves of the fp32 P registers (bf16 by truncation); a row of
; ones in the V operand gives the row sums from the same P.
; Softmax offset: maximum over the workgroup's own 64 keys, +{cfg.bias:.0f} in log2 units.  That maximum is a lower
; bound of the row maximum, so a term can only underflow if it is below 2^-{126-cfg.bias:.0f} of the row's largest term
; (less than half an fp32 ulp of it).  After the loop every wave checks its sums; on overflow, NaN or a row
; about to underflow the whole workgroup recomputes with the true row maximum (L_slow).
; Hand-offs between workgroups go through d_ws with sc1 stores and sc1 loads.  Flags are cleared in-launch by
; workgroups 0-7, which then set d_debug[0..7]; nobody touches a flag before seeing all eight.  o of the
; softmax branch carries its own validity: its words are first set to all ones (never a data value) and a
; consumer uses a block only when none of its words is all ones.  Every wait loop is bounded.
; @launch grid=(256,1,1) block=(512,1,1) lds={LDS_SIZE}
.amdgcn_target "amdgcn-amd-amdhsa--gfx950"
.text
.globl {NAME}_kernel
.p2align 8
.type {NAME}_kernel,@function
{NAME}_kernel:
""" + a.text() + f""".section .rodata,"a"
.p2align 6
.amdhsa_kernel {NAME}_kernel
  .amdhsa_next_free_vgpr 256
  .amdhsa_next_free_sgpr 102
  .amdhsa_accum_offset 256
  .amdhsa_group_segment_fixed_size 0
  .amdhsa_kernarg_size 80
  .amdhsa_user_sgpr_count 2
  .amdhsa_user_sgpr_kernarg_segment_ptr 1
  .amdhsa_system_sgpr_workgroup_id_x 1
.end_amdhsa_kernel
"""
    return txt, npad

if __name__ == "__main__":
    kw = {}
    out = f"cdna_kernels/{NAME}.s"
    for arg in sys.argv[1:]:
        k, v = arg.split("=", 1)
        if k == "out":
            out = v
        else:
            kw[k] = eval(v)
    txt, npad = gen(Cfg(**kw))
    open(out, "w").write(txt)
    print("wrote", out, "nop states inserted:", npad, "lines:", txt.count("\n"))
```

```python
import math, struct, sys
from asmlib import Asm, vr, sr

NAME = "concat_heads__linear_kernel_hedgehog__softmax_full_mha__prompt"

def f2u(x):
    return struct.unpack("<I", struct.pack("<f", x))[0]

class Cfg:
    prof = False
    stop = 99
    mapping = "N"
    force_redo = False
    nrep = 8
    bias = 100.0
    out_sc = "sc1"
    prio = True
    pref_sc = ''
    rot = (4, 4, 2)
    rotA = (1, 2, 1)
    sprefB = 0
    look = 2
    nB = 24
    depB, depA = 4, 4
    redT = (8, 10, 12, 15)
    jobT = (0, 20, 22, 24, 27)
    prioB = ((0, 0),)
    prioA = ((0, 3),)
    kvrot = True
    diag_wb = False
    split_ld = False
    earlyset = True
    woB = None
    poisT = 18
    fin8 = True
    peek = True
    hintpos = 2
    gprio = (2, 0, 2)
    abar = True
    swo = False
    sslowAx = True
    outB_t = True
    hs = 32
    prebar = 0
    m16 = True
    tailprio = 1
    ob_st = 'sc1'
    ob_ld = 'sc1'
    l2A = None
    pre9 = 1
    bnear = False
    sslow = 'b'
    sslowA = (0, 6)
    outA_t = True
    outA_sc = 'sc1'
    nfirst = 1
    gat_at = -1
    a3 = True
    slowpref = ''
    tprof = False
    skip = ()
    tailmode = 0
    drq = 4
    aload = 10
    hintw = 7
    tsleep = 0
    coupled = True
    lastA = 9
    flag_at = 10
    pollB = 13
    kvB = 14
    barT = (0,)
    woT = 1
    upA, upB = 26, 17
    oaT = (35, 36)
    itB = 9
    redB = 5
    hold8 = 1
    onepoll = True
    psleep = 2
    hold9 = False
    prB = (4, 1)
    prA = (3, 1)
    wopref = False
    oa_first = True
    spref = None
    codepref = 'xcd'
    ninit = 2
    pref = 'uniq'
    prefA = (99, 99)
    spin = 1 << 21
    diag = None
    def __init__(self, **kw):
        for k, v in kw.items():
            assert hasattr(self, k), k
            setattr(self, k, v)
        if self.m16: self.a3 = False

WS_KV = 0
WS_OA = 4 << 20
WS_OB = 6 << 20
WS_P = 8 << 20
WS_F = 11 << 20
WS_FL = (11 << 20) + 65536
FL_P = WS_FL
FL_F = FL_P + 4096
FL_OA = FL_F + 4096
FL_KV = FL_OA + 4096
FL_OB = FL_KV + 8192
WS_PROF = 12 << 20
WS_DBG = 13 << 20
WS_SIZE = 16 << 20

L_WA = 0
L_WB = 65536
L_X = 131072
L_XM = L_X + 8192
L_XC = L_X + 10240
L_XV = L_X + 12288
L_XR = L_X + 28672
L_BAD = L_X + 32512
C_KV, C_WO, C_GO, C_RD, C_OA, C_OB, C_UP, C_DR = 4, 8, 12, 16, 20, 24, 28, 68
LDS_SIZE = 163840

sW, sJ, sRB, sHG, sH = 3, 4, 5, 6, 7
rXB, rWB, rXA, rWA, rWS, rOUT, rMISC, rDBG = 8, 12, 16, 20, 24, 28, 32, 36
kAX, kAW, kAP, kAO, kBX, kBW, kBO, kOUT, kDBG, kWS = range(40, 60, 2)
sM, sO0, sO1, sO2 = 60, 61, 62, 63
sC = 64
sVM = 66
sCNT, sKV, sKVMAX, sWO, sWOM, sREDO = 68, 69, 70, 71, 72, 73
sT0, sT1, sT2, sT3 = 74, 75, 76, 77
sSPIN = 78
sKV0 = 79
sROT = 82
sROTA = 70
sNIT = 83
sJB, sJL = 90, 91
sPROF = 80

vL16, vLANE = 0, 1
vT = 2
vX0, vX1, vWq, vWk, vWv = 3, 4, 5, 6, 7
vXA = 8
vQK, vV = 12, 13
vPX, vPW = 34, 35
vXB = 24
vT1, vT2 = 14, 15
vCNT, vONE = 254, 253
vOFFV, vIDX = 250, 251
vWOA = 5
Qf = 16
PHI = 24
NM = 40
O = 72
S = 104
RING = 136
SCR = 184
FR = 104
ACC = 184

def gen(cfg):
    a = Asm()
    uid = [0]
    def lab(p):
        uid[0] += 1
        return f"L_{p}_{uid[0]}"
    nstamp = [0]
    def stamp(idx):
        if cfg.prof:
            a(f"s_memrealtime s[96:97]\ns_memtime s[98:99]\ns_waitcnt lgkmcnt(0)\nv_writelane_b32 v255, s96, {idx}\nv_writelane_b32 v255, s98, {16+idx}")
        elif cfg.diag and idx in cfg.diag[:2]:
            a(f"s_memrealtime {sr(92 if idx == cfg.diag[0] else 94, 2)}\ns_waitcnt lgkmcnt(0)")
    def srd(r, k, size):
        a(f"s_mov_b32 s{r}, s{k}\ns_mov_b32 s{r+1}, s{k+1}\ns_mov_b32 s{r+2}, {size}\ns_mov_b32 s{r+3}, 0x00020000")
    def mfma(d, x, y, c):
        cc = c if isinstance(c, str) else vr(c, 16)
        a(f"v_mfma_f32_32x32x16_bf16 {vr(d,16)}, {vr(x,4)}, {vr(y,4)}, {cc}")
    def cvt(d, s0, n):
        for i in range(n):
            a(f"v_cvt_pk_bf16_f32 v{d+i}, v{s0+2*i}, v{s0+2*i+1}")
    def poll(vaddr, vdst, mask, srdr=rWS, soff="0", first_issued=False, sleep=0):
        lp, dn = lab("poll"), lab("polld")
        a(f"s_mov_b64 exec, {mask}" if isinstance(mask, str) else f"s_mov_b32 exec_lo, {mask & 0xffffffff}\ns_mov_b32 exec_hi, {mask >> 32}")
        a(f"s_mov_b32 s{sSPIN}, {cfg.spin}")
        if first_issued:
            a(f"v_cmp_eq_u32 vcc, 0, v{vdst}\ns_cbranch_vccz {dn}")
        a.label(lp)
        if sleep: a(f"s_sleep {sleep}")
        a(f"buffer_load_dword v{vdst}, v{vaddr}, {sr(srdr,4)}, {soff} offen sc1")
        a(f"s_sub_u32 s{sSPIN}, s{sSPIN}, 1\ns_cbranch_scc1 {dn}")
        a(f"s_waitcnt vmcnt(0)\nv_cmp_eq_u32 vcc, 0, v{vdst}\ns_cbranch_vccnz {lp}")
        a.label(dn)
        a("s_mov_b64 exec, -1")
    def flag(vaddr, mask, soff="0", srdr=rWS):
        a(f"v_mov_b32 v{vT2}, 1")
        mask = int(mask, 0)
        a(f"s_mov_b32 exec_lo, {mask & 0xffffffff}\ns_mov_b32 exec_hi, {mask >> 32}")
        a(f"buffer_store_dword v{vT2}, v{vaddr}, {sr(srdr,4)}, {soff} offen sc1")
        a("s_mov_b64 exec, -1")

    def nmfill(src):
        assert src % 2 == 0
        for i in range(0, 16, 2):
            a(f"v_pk_mov_b32 {vr(NM+i,2)}, {vr(src,2)}, {vr(src,2)} op_sel:[0,0]\nv_pk_mov_b32 {vr(NM+16+i,2)}, {vr(src,2)}, {vr(src,2)} op_sel:[1,1]")
    def arrive(off):
        a(f"s_mov_b64 exec, 1\nds_add_u32 v{vCNT}, v{vONE} offset:{off}\ns_mov_b64 exec, -1")
    def await_cnt(off, target):
        lp, dn = lab("cw"), lab("cwd")
        a(f"s_mov_b64 exec, 1\ns_mov_b32 s{sSPIN}, {cfg.spin * 16}")
        a.label(lp)
        a(f"ds_read_b32 v{vT2}, v{vCNT} offset:{off}\ns_sub_u32 s{sSPIN}, s{sSPIN}, 1\ns_cbranch_scc1 {dn}")
        a(f"s_waitcnt lgkmcnt(0)\nv_cmp_gt_u32 vcc, {target}, v{vT2}\ns_cbranch_vccnz {lp}")
        a.label(dn)
        a("s_mov_b64 exec, -1")

    a(f"s_cmp_ge_u32 s2, 256\ns_cbranch_scc1 L_end")
    a(f"s_load_dwordx2 {sr(rXB,2)}, s[0:1], 32\ns_load_dwordx2 {sr(rWB,2)}, s[0:1], 40")
    a(f"s_load_dwordx16 s[40:55], s[0:1], 0\ns_load_dwordx4 s[56:59], s[0:1], 64")
    if cfg.prof or cfg.diag:
        a(f"s_memrealtime {sr(sPROF,2)}\ns_memtime s[100:101]")
    def code_prefetch(tag):
        a(f"s_getpc_b64 s[{sT0}:{sT1}]")
        a.label(f"L_pc{tag}")
        a(f"s_sub_u32 s{sT0}, s{sT0}, L_pc{tag}-{NAME}_kernel\ns_subb_u32 s{sT1}, s{sT1}, 0")
        a(f"s_lshr_b32 s{sT2}, s2, 3\ns_lshl_b32 s{sT2}, s{sT2}, 2\ns_add_u32 s{sT2}, s{sT2}, s{sJ}\ns_mul_i32 s{sT2}, s{sT2}, 3")
        a(f"v_min_u32 v{vT}, 2, v{vLANE}\nv_add_u32 v{vT}, s{sT2}, v{vT}")
        a(f"v_lshlrev_b32 v{vT}, 7, v{vT}\nv_min_u32 v{vT}, L_end-{NAME}_kernel, v{vT}")
        a(f"global_load_dword v39, v{vT}, s[{sT0}:{sT1}]")
    a(f"v_lshrrev_b32 v{vT}, 6, v0\nv_and_b32 v{vLANE}, 63, v0\nv_readfirstlane_b32 s{sW}, v{vT}")
    if cfg.mapping == "R":
        a(f"s_and_b32 s{sT0}, s2, 7\ns_lshl_b32 s{sT0}, s{sT0}, 2\ns_bfe_u32 s{sT1}, s2, 0x20003\ns_add_u32 s{sRB}, s{sT0}, s{sT1}\ns_lshr_b32 s{sHG}, s2, 5")
    elif cfg.mapping == "H":
        a(f"s_and_b32 s{sHG}, s2, 7\ns_lshr_b32 s{sRB}, s2, 3")
    elif cfg.mapping == "M":
        a(f"s_and_b32 s{sT0}, s2, 3\ns_lshl_b32 s{sT0}, s{sT0}, 1\ns_bfe_u32 s{sT1}, s2, 0x10003\ns_add_u32 s{sHG}, s{sT0}, s{sT1}")
        a(f"s_bfe_u32 s{sT0}, s2, 0x10002\ns_lshl_b32 s{sT0}, s{sT0}, 4\ns_lshr_b32 s{sT1}, s2, 4\ns_add_u32 s{sRB}, s{sT0}, s{sT1}")
    elif cfg.mapping == "N":
        a(f"s_and_b32 s{sT0}, s2, 1\ns_lshl_b32 s{sT0}, s{sT0}, 2\ns_bfe_u32 s{sT1}, s2, 0x20003\ns_add_u32 s{sHG}, s{sT0}, s{sT1}")
        a(f"s_bfe_u32 s{sT0}, s2, 0x20001\ns_lshl_b32 s{sT0}, s{sT0}, 3\ns_lshr_b32 s{sT1}, s2, 5\ns_add_u32 s{sRB}, s{sT0}, s{sT1}")
    a(f"s_and_b32 s{sJ}, s{sW}, 3")
    def rotation(reg, rot):
        if rot:
            a(f"s_mul_i32 s{reg}, s{sHG}, {rot[1]}\ns_mul_i32 s{sT0}, s{sRB}, {rot[0]}\ns_add_u32 s{reg}, s{reg}, s{sT0}")
            a(f"s_lshr_b32 s{sT0}, s{sHG}, 2\ns_mul_i32 s{sT0}, s{sT0}, {rot[2]}\ns_add_u32 s{reg}, s{reg}, s{sT0}")
    def late_setup():
        a(f"s_lshl_b32 s{sH}, s{sHG}, 2\ns_add_u32 s{sH}, s{sH}, s{sJ}")
        a(f"v_lshlrev_b32 v{vL16}, 4, v{vLANE}\nv_mov_b32 v{vCNT}, {L_BAD}\nv_mov_b32 v{vONE}, 1")
        rotation(sROTA, cfg.rotA)
    def xslow(reg, k):
        a(f"""
        s_lshr_b32 s{sT0}, s2, 3
        s_lshl_b32 s{sT0}, s{sT0}, 2
        s_add_u32 s{sT0}, s{sT0}, s{sJ}
        s_lshl_b32 s{sT0}, s{sT0}, 12
        s_bfe_u32 s{sT1}, s2, 0x20001
        s_lshl_b32 s{sT1}, s{sT1}, 19
        s_add_u32 s{sT0}, s{sT0}, s{sT1}
        s_add_u32 s{sT0}, s{sT0}, 384
        s_add_u32 s{reg}, s{k}, s{sT0}
        s_addc_u32 s{reg+1}, s{k+1}, 0
        """)
    def loader_addrs():
        a(f"s_lshl_b32 s{sM}, s{sJ}, 11")
        a(f"""
        v_lshrrev_b32 v{vT1}, 3, v{vLANE}
        v_and_b32 v{vT2}, 7, v{vLANE}
        s_lshl_b32 s{sT0}, s{sRB}, 6
        s_lshl_b32 s{sT1}, s{sJ}, 4
        s_add_u32 s{sT0}, s{sT0}, s{sT1}
        v_add_u32 v{vT}, s{sT0}, v{vT1}
        v_lshlrev_b32 v{vT}, 10, v{vT}
        v_lshrrev_b32 v{vX0}, 1, v{vT1}
        v_xor_b32 v{vX0}, v{vX0}, v{vT2}
        v_lshl_add_u32 v{vX0}, v{vX0}, 4, v{vT}
        v_add_u32 v{vX1}, 0x2000, v{vX0}
        v_xor_b32 v{vX1}, 64, v{vX1}
        v_add_u32 v{vT}, s{sT1}, v{vT1}
        v_mul_u32_u24 v{vT}, 0xc00, v{vT}
        s_lshl_b32 s{sT2}, s{sHG}, 7
        v_add_u32 v{vT}, s{sT2}, v{vT}
        v_bfe_u32 v{vT1}, v{vLANE}, 4, 1
        v_lshlrev_b32 v{vWq}, 1, v{vT1}
        v_xor_b32 v{vWq}, v{vWq}, v{vT2}
        v_xor_b32 v{vWk}, 4, v{vWq}
        """)
        if cfg.m16:
            a(f"v_lshl_add_u32 v{vWq}, v{vWq}, 4, v{vT}\nv_lshl_add_u32 v{vWk}, v{vWk}, 4, v{vT}")
        else:
            a(f"""
            v_lshlrev_b32 v{vWv}, 2, v{vT1}
            v_xor_b32 v{vWv}, v{vWv}, v{vT2}
            v_lshl_add_u32 v{vWq}, v{vWq}, 4, v{vT}
            v_lshl_add_u32 v{vWk}, v{vWk}, 4, v{vT}
            v_lshl_add_u32 v{vWv}, v{vWv}, 4, v{vT}
            v_add_u32 v{vWk}, 0x400, v{vWk}
            v_add_u32 v{vWv}, 0x800, v{vWv}
            """)
    def kernargs():
        a(f"s_mov_b32 s{rXB+2}, {2048*1024}\ns_mov_b32 s{rXB+3}, 0x00020000\ns_mov_b32 s{rWB+2}, {512*3072}\ns_mov_b32 s{rWB+3}, 0x00020000")
        a("s_waitcnt lgkmcnt(0)")
        if cfg.prof:
            a(f"v_writelane_b32 v255, s{sPROF}, 0\nv_writelane_b32 v255, s100, 16")
    def binit():
        if cfg.pref:
            assert cfg.mapping == "N"
            nw, nx = (48, 32) if cfg.pref == "xcd" else (12, 16)
            a(f"""
            s_lshr_b32 s{sT0}, s2, 3
            s_lshl_b32 s{sT1}, s{sT0}, 2
            s_add_u32 s{sT1}, s{sT1}, s{sJ}
            s_mul_i32 s{sT2}, s{sT1}, {nw}
            s_bfe_u32 s{sT3}, s2, 0x20001
            """)
            if cfg.pref != "xcd":
                a(f"s_mul_i32 s{sT0}, s{sT3}, 1536\ns_add_u32 s{sT2}, s{sT2}, s{sT0}")
            a(f"""
            v_min_u32 v{vT}, {nw-1}, v{vLANE}
            v_add_u32 v{vT}, s{sT2}, v{vT}
            v_lshrrev_b32 v{vT1}, 2, v{vT}
            v_and_b32 v{vT}, 3, v{vT}
            v_lshlrev_b32 v{vT}, 7, v{vT}
            v_lshl_add_u32 v{vPW}, v{vT1}, 10, v{vT}
            s_and_b32 s{sT2}, s2, 1
            s_lshl_b32 s{sT0}, s{sT2}, 9
            v_add_u32 v{vPW}, s{sT0}, v{vPW}
            s_mul_i32 s{sT1}, s{sT1}, {nx*128}
            s_lshl_b32 s{sT3}, s{sT3}, 19
            s_add_u32 s{sT1}, s{sT1}, s{sT3}
            """)
            if cfg.pref != "xcd":
                a(f"s_lshl_b32 s{sT2}, s{sT2}, 18\ns_add_u32 s{sT1}, s{sT1}, s{sT2}")
            a(f"""
            v_min_u32 v{vT}, {nx-1}, v{vLANE}
            v_lshl_add_u32 v{vPX}, v{vT}, 7, s{sT1}
            """)
        kernargs()
        if cfg.pref:
            a(f"buffer_load_dword v36, v{vPW}, {sr(rWB,4)}, 0 offen {cfg.pref_sc}\nbuffer_load_dword v37, v{vPX}, {sr(rXB,4)}, 0 offen {cfg.pref_sc}")
    if cfg.bnear:
        a(f"s_cmp_ge_u32 s{sW}, 4\ns_cbranch_scc1 L_roleA")
        binit()
        code_prefetch("B")
        a("s_branch L_roleB")
        a.label("L_roleA")
    else:
        a(f"s_cmp_lt_u32 s{sW}, 4\ns_cbranch_scc1 L_roleB")
    loader_addrs()
    rotation(sROT, cfg.rot)
    kernargs()

    def chunk_pieces(c):
        rx, rw = (rXB, rWB) if c < 8 else (rXA, rWA)
        cc = c % 8
        slot = (c % 4) * 32768
        if (cfg.rot if c < 8 else cfg.rotA):
            head = f"s_add_u32 s{sO0}, s{sROT if c < 8 else sROTA}, {cc}\ns_and_b32 s{sO0}, s{sO0}, 7\ns_mul_i32 s{sO1}, s{sO0}, {64*3072}\n"
            head += f"s_lshl_b32 s{sO0}, s{sO0}, 7\ns_add_u32 s{sO2}, s{sO1}, {8*3072}\n"
        else:
            head = f"s_mov_b32 s{sO0}, {128*cc}\ns_mov_b32 s{sO1}, {cc*64*3072}\ns_mov_b32 s{sO2}, {cc*64*3072+8*3072}\n"
        ld = []
        for par in range(2):
            ld.append(f"s_add_u32 m0, s{sM}, {slot + par*1024}\nbuffer_load_dwordx4 v{vX0+par}, {sr(rx,4)}, s{sO0} offen lds\n")
            for seg in range(3):
                if cfg.m16:
                    ld.append(f"s_add_u32 m0, s{sM}, {slot + 8192*(1+seg) + par*1024 - seg*1024}\nbuffer_load_dwordx4 v{vWq+par}, {sr(rw,4)}, s{sO1+par} offen offset:{seg*1024} lds\n")
                else:
                    ld.append(f"s_add_u32 m0, s{sM}, {slot + 8192*(1+seg) + par*1024}\nbuffer_load_dwordx4 v{vWq+seg}, {sr(rw,4)}, s{sO1+par} offen lds\n")
        ld[0] = head + ld[0]
        return ld
    def issue_chunk(c):
        for t in chunk_pieces(c): a(t)

    def compute_addrs(role):
        if cfg.m16:
            a(f"""
            v_and_b32 v{vT}, 15, v{vLANE}
            v_lshrrev_b32 v{vT1}, 4, v{vLANE}
            v_lshrrev_b32 v{vT2}, 1, v{vT}
            v_xor_b32 v{vT2}, v{vT2}, v{vT1}
            v_lshlrev_b32 v{vT2}, 4, v{vT2}
            v_lshl_add_u32 v{vXA}, v{vT}, 7, v{vT2}
            v_xor_b32 v{vXA+1}, 64, v{vXA}
            v_bfe_u32 v{vT}, v{vLANE}, 2, 2
            v_lshl_add_u32 v{vT}, v{vT1}, 3, v{vT}
            v_lshlrev_b32 v{vT}, 7, v{vT}
            v_and_b32 v{vT2}, 3, v{vLANE}
            v_lshl_add_u32 v{vT}, v{vT2}, 3, v{vT}
            v_bfe_u32 v{vT1}, v{vLANE}, 3, 2
            v_xor_b32 v{vT1}, s{sJ}, v{vT1}
            v_lshl_add_u32 v{vQK}, v{vT1}, 5, v{vT}
            v_add_u32 v{vQK}, 0x2000, v{vQK}
            """)
            return
        a(f"""
        v_and_b32 v{vT}, 31, v{vLANE}
        v_lshrrev_b32 v{vT1}, 5, v{vLANE}
        v_bfe_u32 v{vT2}, v{vLANE}, 1, 3
        v_xor_b32 v{vT2}, v{vT2}, v{vT1}
        v_lshlrev_b32 v{vT2}, 4, v{vT2}
        v_lshl_add_u32 v{vXA}, v{vT}, 7, v{vT2}
        v_xor_b32 v{vXA+1}, 32, v{vXA}
        v_xor_b32 v{vXA+2}, 64, v{vXA}
        v_xor_b32 v{vXA+3}, 0x60, v{vXA}
        v_bfe_u32 v{vT}, v{vLANE}, 2, 2
        v_lshl_add_u32 v{vT}, v{vT1}, 3, v{vT}
        v_lshlrev_b32 v{vT}, 7, v{vT}
        v_and_b32 v{vT1}, 3, v{vLANE}
        v_lshl_add_u32 v{vT}, v{vT1}, 3, v{vT}
        v_bfe_u32 v{vT1}, v{vLANE}, 4, 1
        v_bfe_u32 v{vT2}, v{vLANE}, 3, 1
        v_lshl_add_u32 v{vQK}, v{vT1}, 1, v{vT2}
        v_xor_b32 v{vQK}, s{sJ}, v{vQK}
        v_lshl_add_u32 v{vQK}, v{vQK}, 5, v{vT}
        v_lshl_add_u32 v{vQK}, v{vT1}, 13, v{vQK}
        v_add_u32 v{vQK}, 0x2000, v{vQK}
        v_lshlrev_b32 v{vT2}, 1, v{vT2}
        """)
        if role == "B" or cfg.a3:
            a(f"s_and_b32 s{sT0}, s{sJ}, 2\nv_add_u32 v{vT1}, s{sT0}, v{vT1}\nv_xor_b32 v{vV}, v{vT1}, v{vT2}")
        else:
            a(f"v_xor_b32 v{vV}, s{sJ}, v{vT2}")
        a(f"v_lshl_add_u32 v{vV}, v{vV}, 5, v{vT}\nv_add_u32 v{vV}, 0x6000, v{vV}")
        if role == "B" or cfg.a3:
            a(f"s_and_b32 s{sT0}, s{sJ}, 1\ns_lshl_b32 s{sT0}, s{sT0}, 12")
            for i in range(4):
                a(f"v_add_u32 v{vXA+i}, s{sT0}, v{vXA+i}\nv_xor_b32 v{vXB+i}, 0x1000, v{vXA+i}")

    def gemm16(role, pre_barrier, post_barrier):
        c0 = 0 if role == "B" else 8
        def m16(d, x, y, first):
            a(f"v_mfma_f32_16x16x32_bf16 {vr(d,4)}, {vr(x,4)}, {vr(y,4)}, {'0' if first else vr(d,4)}")
        def fr(buf):
            b = FR + 28 * buf
            return dict(x=b, q=b + 16, k=b + 20, v=b + 24)
        def reads(n, part):
            c, ks, f = c0 + n // 2, n % 2, fr(n % 2)
            so = (c % 2) * 32768
            nm, seg = (("k", 1), ("q", 0), ("v", 2))[part]
            a(f"ds_read_b64_tr_b16 {vr(f[nm],2)}, v{vQK} offset:{so + seg*8192 + ks*4096}")
            a(f"ds_read_b64_tr_b16 {vr(f[nm]+2,2)}, v{vQK} offset:{so + seg*8192 + ks*4096 + 512}")
            if part < 2:
                for T in (2 * part, 2 * part + 1):
                    a(f"ds_read_b128 {vr(f['x']+4*T,4)}, v{vXA+ks} offset:{so + T*2048}")
        pre_barrier(c0)
        a("s_barrier")
        for p in range(3): reads(0, p)
        post_barrier(c0)
        for n in range(16):
            c, ks, f = c0 + n // 2, n % 2, fr(n % 2)
            z = n == 0
            Q = lambda T: m16(ACC + 4 * T, f["q"], f["x"] + 4 * T, z)
            K = lambda T: m16(ACC + 16 + 4 * T, f["k"], f["x"] + 4 * T, z)
            V = lambda T: m16(ACC + 32 + 4 * T, f["x"] + 4 * T, f["v"], z)
            nx = (lambda p: reads(n + 1, p)) if n < 15 else (lambda p: None)
            w = (lambda k: a(f"s_waitcnt lgkmcnt({k})")) if ks == 0 else (lambda k: None)
            if ks == 1:
                a("s_waitcnt lgkmcnt(0)")
                allm = [lambda: K(0), lambda: K(1), lambda: Q(0), lambda: Q(1), lambda: K(2), lambda: K(3), lambda: Q(2), lambda: Q(3),
                        lambda: V(0), lambda: V(1), lambda: V(2), lambda: V(3)]
                if n == 15 and role == "A": arrive(4 * 16)
                for m_ in allm[:cfg.prebar]: m_()
                if n < 15:
                    pre_barrier(c + 1)
                    a("s_barrier")
                    post_barrier(c + 1)
                    if (c + 1) % 2 == 0:
                        for r in (vQK, vXA, vXA + 1):
                            a(f"v_xor_b32 v{r}, 0x10000, v{r}")
                rest = allm[cfg.prebar:]
                per = max(1, len(rest) // 4)
                for p in range(3):
                    nx(p)
                    for m_ in rest[:per]: m_()
                    rest = rest[per:]
                for m_ in rest: m_()
                continue
            w(6); K(0); K(1); nx(0)
            w(6); Q(0); Q(1); K(2); K(3); nx(1); Q(2); Q(3)
            w(8); V(0); V(1); nx(2); V(2); V(3)
    def swap16(r):
        a(f"v_permlane16_swap_b32 v{r}, v{r+2}\nv_permlane16_swap_b32 v{r+1}, v{r+3}")
    def gemm(role, pre_barrier, post_barrier, mid=lambda: None):
        if cfg.m16: return gemm16(role, pre_barrier, post_barrier)
        c0 = 0 if role == "B" else 8
        def fr(buf):
            b = FR + 16 * buf
            return dict(x0=b, x1=b + 4, qk=b + 8, v=b + 12)
        def reads(n, part):
            c, kk, f = c0 + n // 4, n % 4, fr(n % 2)
            so = (c % 2) * 32768
            if part == 0:
                a(f"ds_read_b64_tr_b16 {vr(f['qk'],2)}, v{vQK} offset:{so + kk*2048}")
                a(f"ds_read_b64_tr_b16 {vr(f['qk']+2,2)}, v{vQK} offset:{so + kk*2048 + 512}")
                a(f"ds_read_b128 {vr(f['x0'],4)}, v{vXA+kk} offset:{so}")
            else:
                if role == "B" or cfg.a3:
                    a(f"ds_read_b128 {vr(f['x1'],4)}, v{vXB+kk} offset:{so}")
                else:
                    a(f"ds_read_b128 {vr(f['x1'],4)}, v{vXA+kk} offset:{so + 4096}")
                a(f"ds_read_b64_tr_b16 {vr(f['v'],2)}, v{vV} offset:{so + kk*2048}")
                a(f"ds_read_b64_tr_b16 {vr(f['v']+2,2)}, v{vV} offset:{so + kk*2048 + 512}")
        def tgt(c): return 8 if (c == 9 and not cfg.hold8) else 4
        pre_barrier(c0)
        if role == "B" or cfg.coupled:
            a("s_barrier")
        else:
            arrive(4 * c0); await_cnt(4 * c0, tgt(c0))
        reads(0, 0); reads(0, 1)
        post_barrier(c0)
        for n in range(32):
            c, kk, f = c0 + n // 4, n % 4, fr(n % 2)
            cz = (lambda r: "0") if n == 0 else (lambda r: r)
            def toggle():
                if (c + 1) % 2 == 0 and n < 31:
                    for r in [vQK, vXA, vV, vXA + 1, vXA + 2, vXA + 3] + ([vXB + i for i in range(4)] if (role == "B" or cfg.a3) else []):
                        a(f"v_xor_b32 v{r}, 0x10000, v{r}")
            if kk == 3 and role == "A" and not cfg.coupled:
                a("s_waitcnt lgkmcnt(0)")
                pre_barrier(c + 1)
                arrive(4 * (c + 1))
                mfma(ACC, f["qk"], f["x0"], ACC)
                mfma(ACC + 16, f["qk"], f["x1"], ACC + 16)
                toggle()
                if n < 31:
                    await_cnt(4 * (c + 1), tgt(c + 1))
                    reads(n + 1, 0); reads(n + 1, 1)
                post_barrier(c + 1)
                mfma(ACC + 32, f["x0"], f["v"], ACC + 32)
                mid()
                mfma(ACC + 48, f["x1"], f["v"], ACC + 48)
                mid()
                continue
            if kk == 3:
                a("s_waitcnt lgkmcnt(0)")
                if n < 31:
                    pre_barrier(c + 1)
                    a("s_barrier")
                    post_barrier(c + 1)
                elif role == "A" and not cfg.a3:
                    arrive(4 * 16)
                elif not cfg.hold8 and not cfg.coupled:
                    arrive(4 * 9)
                toggle()
            else:
                a("s_waitcnt lgkmcnt(3)")
            mfma(ACC, f["qk"], f["x0"], cz(ACC))
            if n < 31: reads(n + 1, 0)
            if kk != 3: a("s_waitcnt lgkmcnt(3)")
            mfma(ACC + 16, f["qk"], f["x1"], cz(ACC + 16))
            if n < 31: reads(n + 1, 1)
            mfma(ACC + 32, f["x0"], f["v"], cz(ACC + 32))
            if role == "A" and not cfg.a3:
                mid()
                mfma(ACC + 48, f["x1"], f["v"], cz(ACC + 48))
                mid()

    vOFFK = 8
    def smf(d, va, p):
        a(f"v_smfmac_f32_32x32x32_bf16 {vr(d,16)}, {vr(va,4)}, {vr(p,8)}, v{vIDX}")
    def att_setup(first, ntiles):
        a(f"""
        s_mov_b32 s{sREDO}, 0
        s_lshl_b32 s{sT0}, s{sH}, 17
        v_add_u32 v{vOFFK}, s{sT0}, v{vL16}
        v_lshrrev_b32 v{vT}, 5, v{vLANE}
        v_and_b32 v{vT1}, 15, v{vLANE}
        v_lshlrev_b32 v{vT1}, 4, v{vT1}
        v_lshl_add_u32 v{vOFFV}, v{vT}, 8, v{vT1}
        v_add_u32 v{vOFFV}, s{sT0}, v{vOFFV}
        v_mov_b32 v{vIDX}, 0xdddd
        s_mov_b32 s{sVM}, 0xffff
        s_mov_b32 s{sVM+1}, 0xffff
        s_mov_b32 s{sNIT}, {ntiles}
        """)
        if cfg.kvrot:
            a(f"s_and_b32 s{sKV0}, s{sRB}, 7\ns_lshl_b32 s{sKV0}, s{sKV0}, 14\ns_add_u32 s{sKV0}, s{sKV0}, {first*2048}\ns_and_b32 s{sKV0}, s{sKV0}, 0x1ffff")
        else:
            a(f"s_mov_b32 s{sKV0}, {first*2048}")
    class Stream:
        def __init__(self, depth, ntiles, init=()):
            self.d, self.n, self.q = depth, ntiles, list(init)
        def ring(self, t):
            b = RING + 12 * (t % self.d)
            return b, b + 4, b + 8
        def push(self, tag, n=1):
            self.q.extend([tag] * n)
        def wait(self, tag):
            idx = [i for i, t in enumerate(self.q) if t == tag]
            if idx:
                a(f"s_waitcnt vmcnt({len(self.q) - 1 - idx[-1]})")
                self.q = self.q[idx[-1] + 1:]
        def kload(self, t, single=False):
            o = 0 if single else (t % 2) * 2048
            a(f"buffer_load_dwordx4 {vr(self.ring(t)[0],4)}, v{vOFFK}, {sr(rWS,4)}, s{sKV} offen offset:{o} sc1")
            self.push(("k", t))
        def vload(self, t, single=False):
            k, v0, v1 = self.ring(t)
            o = 0 if single else (t % 2) * 2048
            a(f"s_mov_b64 exec, {sr(sVM,2)}")
            a(f"buffer_load_dwordx4 {vr(v0,4)}, v{vOFFV}, {sr(rWS,4)}, s{sKV} offen offset:{o+1024} sc1")
            a(f"buffer_load_dwordx4 {vr(v1,4)}, v{vOFFV}, {sr(rWS,4)}, s{sKV} offen offset:{o+1536} sc1")
            a(f"s_mov_b64 exec, -1")
            if single or t % 2 == 1:
                a(f"s_add_u32 s{sKV}, s{sKV}, {2048 if single else 4096}\ns_and_b32 s{sKV}, s{sKV}, 0x1ffff")
            self.push(("kv", t), 2)
        def kvload(self, t, single=False):
            self.kload(t, single); self.vload(t, single)
        def setup(self, single=False):
            a(f"s_mov_b32 s{sKV}, s{sKV0}")
            a(f"v_and_b32 v{vT}, 27, v{vLANE}\nv_cmp_eq_u32 vcc, 16, v{vT}\nv_mov_b32 v{vT}, 0x3f803f80\nv_cndmask_b32 v{vT}, 0, v{vT}, vcc")
            for t in range(self.d):
                for i in range(4, 12):
                    a(f"v_mov_b32 v{RING+12*t+i}, v{vT}")
        def zero(self, single=False):
            for i in range(32):
                a(f"v_mov_b32 v{O+i}, 0")
            if single:
                for i in range(8):
                    a(f"v_mov_b32 v{S+16+8+i}, 0")
        def first(self, single=False):
            for t in range(self.d - 1): self.kvload(t, single)
            if cfg.split_ld and not single: self.kload(self.d - 1)
        def start(self, single=False):
            self.wait(("k", 0) if (cfg.split_ld and not single) else ("kv", 0))
            mfma(S, self.ring(0)[0], Qf, NM)
        def prologue(self, single=False):
            self.setup(single); self.first(single); self.zero(single); self.start(single)
        def tile(self, t, looped=False, extra=None):
            k, v0, v1 = self.ring(t)
            split = cfg.split_ld and not looped
            for qb in range(2):
                cur, oth = S + 16 * qb, S + 16 * (1 - qb)
                def ex(i): a(f"v_exp_f32 v{cur+i}, v{cur+i}")
                ex(0); ex(1)
                if qb == 0:
                    if looped or t > 0: smf(O + 16, self.ring(t - 1)[2], oth + 8)
                    ex(2)
                    if looped or t + self.d - 1 < self.n:
                        if split: self.vload(t + self.d - 1)
                        else: self.kvload(t + self.d - 1, looped)
                    ex(3); ex(4)
                    mfma(oth, k, Qf + 4, NM + 16)
                    ex(5)
                    if split and t + self.d < self.n: self.kload(t + self.d)
                    for i in range(6, 10): ex(i)
                    if split: self.wait(("k", t + 1) if (cfg.split_ld == 2 and t + 1 < self.n) else ("kv", t))
                else:
                    smf(O, v1, oth + 8)
                    ex(2); ex(3)
                    if looped: a(f"s_waitcnt vmcnt({3 * (self.d - 2)})")
                    elif t + 1 < self.n: self.wait(("k" if split else "kv", t + 1))
                    ex(4)
                    if looped or t + 1 < self.n: mfma(oth, self.ring(t + 1)[0], Qf, NM)
                    for i in range(5, 10): ex(i)
                smf(O + 16 * qb, v0, cur)
                ex(10)
                if extra and qb == 1: extra()
                for i in range(11, 16): ex(i)
        def run(self, jobs, prio):
            pr = dict(prio) if cfg.prio else {}
            for t in range(self.n):
                if t in pr: a(f"s_setprio {pr[t]}")
                if cfg.tprof: a(f"s_memtime s[98:99]\ns_waitcnt lgkmcnt(0)\nv_writelane_b32 v252, s98, {t}")
                self.tile(t, extra=(lambda: [f() for f in jobs.get(t, [])]))
            smf(O + 16, self.ring(self.n - 1)[2], S + 16 + 8)

    if cfg.prof: stamp(4)
    vq = []
    def issue(c):
        issue_chunk(c); vq.extend([c] * 8)
    def wait_for(tag):
        n = len(vq) - 1 - max(i for i, t in enumerate(vq) if t == tag)
        a(f"s_waitcnt vmcnt({n})")
    for c in range(cfg.nfirst):
        issue(c)
    late_setup()
    if cfg.gprio[0]: a(f"s_setprio {cfg.gprio[0]}")
    srd(rXA, kAX, 2048 * 1024)
    srd(rWA, kAW, 512 * 3072)
    srd(rWS, kWS, WS_SIZE)
    srd(rOUT, kOUT, 2048 * 2048)
    srd(rMISC, kAP, 32 * 512)
    WP, IDP = 248, 40
    vMASK = 252
    def gather():
        a(f"""
        v_lshrrev_b32 v{vT}, 5, v{vLANE}
        v_and_b32 v{vT1}, 15, v{vLANE}
        v_lshlrev_b32 v{vT1}, 1, v{vT1}
        v_lshl_add_u32 v{vT}, v{vT}, {8 if cfg.m16 else 7}, v{vT1}
        s_lshl_b32 s{sT0}, s{sH}, 9
        """)
        for jj in range(8):
            a(f"buffer_load_ushort v{48+jj}, v{vT}, {sr(rMISC,4)}, s{sT0} offen offset:{(jj if cfg.m16 else 8*(jj>>2)+(jj&3))*32}")
        vq.extend(["g"] * 8)
    if cfg.gat_at < 0: gather()
    compute_addrs("A")
    a(f"""
    v_bfe_u32 v{vT}, v{vLANE}, 2, 1
    v_lshrrev_b32 v{vT1}, 5, v{vLANE}
    v_xor_b32 v{vT}, v{vT}, v{vT1}
    v_lshlrev_b32 v{vT}, 3, v{vT}
    v_bfe_u32 v{vT1}, v{vLANE}, 3, 2
    v_lshl_add_u32 v{vT}, v{vT1}, 1, v{vT}
    v_bfe_u32 v{vT1}, v{vLANE}, 1, 1
    v_add_u32 v{vT}, v{vT}, v{vT1}
    v_and_b32 v{vT1}, 1, v{vLANE}
    v_lshlrev_b32 v{vT1}, 4, v{vT1}
    v_mov_b32 v{vT2}, 0x3f80
    v_lshlrev_b32 v{vT1}, v{vT1}, v{vT2}
    """)
    for q in range(8):
        a(f"v_cmp_eq_u32 vcc, {q}, v{vT}\nv_cndmask_b32 v{IDP+q}, 0, v{vT1}, vcc")
    if not cfg.m16: a(f"v_bfe_u32 v{vT}, v{vLANE}, 4, 1\nv_add_u32 v{vMASK}, -1, v{vT}")
    def spf_setup():
        assert cfg.mapping == "N"
        a(f"""
        s_lshr_b32 s{sT0}, s2, 3
        s_lshl_b32 s{sT0}, s{sT0}, 2
        s_add_u32 s{sT0}, s{sT0}, s{sJ}
        s_bfe_u32 s{sT1}, s2, 0x20001
        s_and_b32 s{sT2}, s2, 1
        s_mul_i32 s84, s{sT1}, {384*1024}
        s_mul_i32 s85, s{sT0}, 3072
        s_add_u32 s84, s84, s85
        s_lshl_b32 s85, s{sT2}, 9
        s_add_u32 s84, s84, s85
        s_add_u32 s84, s{kAW}, s84
        s_addc_u32 s85, s{kAW+1}, 0
        s_lshl_b32 s86, s{sT1}, 19
        s_lshl_b32 s87, s{sT2}, 18
        s_add_u32 s86, s86, s87
        s_lshl_b32 s87, s{sT0}, 11
        s_add_u32 s86, s86, s87
        s_add_u32 s86, s{kAX}, s86
        s_addc_u32 s87, s{kAX+1}, 0
        """)
        spf = [f"s_load_dword s88, s[84:85], {b*1024 + i*64}" for b in range(3) for i in range(8)]
        spf += [f"s_load_dword s88, s[86:87], {i*64}" for i in range(32)]
        return spf
    spf = spf_setup() if cfg.spref else []
    if cfg.sslowA:
        a(f"""
        s_lshr_b32 s{sT0}, s2, 3
        s_lshl_b32 s{sT0}, s{sT0}, 2
        s_add_u32 s{sT0}, s{sT0}, s{sJ}
        s_mul_i32 s{sT0}, s{sT0}, {12*1024}
        s_and_b32 s{sT1}, s2, 1
        s_lshl_b32 s{sT1}, s{sT1}, 9
        s_add_u32 s{sT0}, s{sT0}, s{sT1}
        s_add_u32 s{sT0}, s{sT0}, 384
        s_add_u32 s86, s{kAW}, s{sT0}
        s_addc_u32 s87, s{kAW+1}, 0
        """)
        spf = [f"s_load_dword s{88+h}, s[86:87], {i*1024+64*h}" for i in range(12) for h in range(2)]
        if cfg.sslowAx:
            xslow(84, kAX)
            spf += [f"s_load_dword s{88+h}, s[84:85], {i*1024+64*h}" for i in range(4) for h in range(2)]
        cfg.spref = cfg.sslowA
    for c in range(cfg.nfirst, cfg.ninit):
        issue(c)
    if cfg.prof: stamp(5)
    nxt = cfg.ninit
    lastA = cfg.lastA if cfg.coupled else (7 if cfg.hold8 else (8 if cfg.hold9 else 9))
    for c in range(8):
        wait_for(c)
        a("s_barrier")
        while nxt <= min(c + cfg.look, lastA):
            issue(nxt); nxt += 1
        if spf and c >= cfg.spref[0]:
            for t in spf[:cfg.spref[1]]: a(t)
            spf = spf[cfg.spref[1]:]
        if c == cfg.gat_at: gather()
        if c == 7:
            if cfg.gat_at >= 0: wait_for("g")
            a(f"v_bfe_u32 v{vT}, v{vLANE}, 4, 1\nv_lshlrev_b32 v{vT1}, 15, v{vT}\nv_lshl_or_b32 v{vT}, v{vT}, 31, v{vT1}")
            for q in range(4):
                a(f"v_lshl_or_b32 v{WP+q}, v{49+2*q}, 16, v{48+2*q}\nv_xor_b32 v{WP+q}, v{WP+q}, v{vT}")
    nxtA = [nxt]
    pend = []
    def preA(c):
        while pend and pend[0][0] <= c: midA()
        if c <= (lastA if cfg.coupled else 15): wait_for(c)
    def postA(c):
        while not cfg.coupled and nxtA[0] <= min(c + cfg.look, 15):
            pend.extend((nxtA[0], t) for t in chunk_pieces(nxtA[0])); nxtA[0] += 1
    def midA():
        for _ in range(2 if len(set(c for c, t in pend)) > 1 else 1):
            if pend:
                c, t = pend.pop(0)
                a(t); vq.append(c)
    if cfg.hold8 and not cfg.coupled:
        await_cnt(C_WO, 4)
        for c in range(8, 8 + cfg.hold8):
            issue(c)
        nxtA[0] = 8 + cfg.hold8
    assert not spf
    a("s_waitcnt lgkmcnt(0)")
    if cfg.prio: a(f"s_setprio {cfg.gprio[1]}")
    stamp(1)
    gemm("A", preA, postA, midA)
    stamp(2)
    if cfg.prio and cfg.gprio[1] != 3: a("s_setprio 3")
    assert cfg.coupled and cfg.kvB < 15
    srd(rMISC, kAO, 512 * 1024)
    srd(rXB, kBO, 512 * 1024)
    if cfg.wopref:
        a(f"""
        s_and_b32 s{sT0}, s{sRB}, 7
        s_lshl_b32 s{sT0}, s{sT0}, 2
        s_add_u32 s{sT0}, s{sT0}, s{sJ}
        s_lshl_b32 s{sT0}, s{sT0}, 14
        s_lshl_b32 s{sT1}, s{sHG}, 7
        s_add_u32 s{sT0}, s{sT0}, s{sT1}
        v_lshlrev_b32 v3, 10, v{vLANE}
        s_mov_b64 exec, 0xffff
        buffer_load_dword v4, v3, {sr(rMISC,4)}, s{sT0} offen
        buffer_load_dword v5, v3, {sr(rXB,4)}, s{sT0} offen
        s_mov_b64 exec, -1
        """)
    X = [48, 64, 80, 96]
    KF, QF2, VP, PK, TT, PT, TM = 112, 120, 128, 144, 152, 168, 176
    L2E = math.log2(math.e)
    a(f"s_mov_b32 s{sC}, {f2u(L2E)}\ns_mov_b32 s{sC+1}, {f2u(L2E)}\ns_mov_b32 s{sT3}, 0x3f803f80")
    for ri in range(2):
        cvt(KF + 4 * ri, (ACC + 16 + 8 * ri) if cfg.m16 else (ACC + 16 * ri + 8), 4)
    if cfg.m16: swap16(KF); swap16(KF + 4)
    for ri in range(2):
        mfma(X[ri], WP, KF + 4 * ri, "0")
    for ri in range(2):
        cvt(QF2 + 4 * ri, (ACC + 8 * ri) if cfg.m16 else (ACC + 16 * ri), 4)
    if cfg.m16: swap16(QF2); swap16(QF2 + 4)
    for ri in range(2):
        mfma(X[2 + ri], WP, QF2 + 4 * ri, "0")
    if cfg.a3:
        cvt(VP, ACC + 32, 8)
        a(f"""
        s_lshl_b32 s{sT0}, s{sJ}, 11
        s_add_u32 s{sT0}, s{sT0}, {L_XV}
        v_add_u32 v{vT}, s{sT0}, v{vL16}
        ds_write_b128 v{vT}, {vr(VP,4)}
        ds_write_b128 v{vT}, {vr(VP+4,4)} offset:1024
        s_and_b32 s{sT1}, s{sJ}, 1
        s_lshl_b32 s{sT1}, s{sT1}, 8
        s_add_u32 s{sT0}, s{sT0}, s{sT1}
        v_and_b32 v{vT}, 0x2f, v{vLANE}
        v_lshl_add_u32 v9, v{vT}, 4, s{sT0}
        v_xor_b32 v10, 0x800, v9
        s_waitcnt lgkmcnt(0)
        """)
        assert L_XV % 4096 == 0
        arrive(4 * 16)
    elif cfg.m16:
        for T in range(4):
            cvt(VP + 4 * T, ACC + 32 + 4 * T, 2)
            a(f"v_mov_b32 v{VP+4*T+2}, s{sT3}\nv_mov_b32 v{VP+4*T+3}, s{sT3}")
        for T in range(4): swap16(VP + 4 * T)
        for T in range(4):
            a(f"v_permlane32_swap_b32 v{VP+4*T}, v{VP+4*T+2}\nv_permlane32_swap_b32 v{VP+4*T+1}, v{VP+4*T+3}")
    else:
        for ri in range(2):
            cvt(VP + 8 * ri, ACC + 32 + 16 * ri, 8)
            for i in range(8):
                a(f"v_bfi_b32 v{VP+8*ri+i}, v{vMASK}, v{VP+8*ri+i}, s{sT3}")
    def getv():
        if not cfg.a3: return
        await_cnt(4 * 16, 4)
        for aa in range(2):
            a(f"ds_read_b128 {vr(VP+8*aa,4)}, v{9+aa}\nds_read_b128 {vr(VP+8*aa+4,4)}, v{9+aa} offset:1024")
    def fixv():
        if not cfg.a3: return
        a("s_waitcnt lgkmcnt(0)")
        for i in range(16):
            a(f"v_bfi_b32 v{VP+i}, v{vMASK}, v{VP+i}, s{sT3}")
    def softmax2(x, dst):
        t, u = TM, TM + 1
        for base, r in ((x, t), (x + 8, u)):
            a(f"v_max3_f32 v{r}, v{base}, v{base+1}, v{base+2}\nv_max3_f32 v{r}, v{r}, v{base+3}, v{base+4}")
            a(f"v_max3_f32 v{r}, v{r}, v{base+5}, v{base+6}\nv_max_f32 v{r}, v{r}, v{base+7}")
        a(f"v_permlane32_swap_b32 v{t}, v{u}\nv_max_f32 v{t}, v{t}, v{u}")
        a(f"v_mul_f32 v{t}, {f2u(-L2E)}, v{t}\nv_mov_b32 v{u}, v{t}\nv_permlane32_swap_b32 v{t}, v{u}")
        for i in range(8):
            sel = "op_sel:[0,0,0] op_sel_hi:[1,1,0]" if i < 4 else "op_sel:[0,0,1] op_sel_hi:[1,1,1]"
            a(f"v_pk_fma_f32 {vr(x+2*i,2)}, {vr(x+2*i,2)}, {sr(sC,2)}, {vr(t,2)} {sel}")
        for i in range(16):
            a(f"v_exp_f32 v{x+i}, v{x+i}")
        p, q = TM + 2, TM + 4
        a(f"v_pk_add_f32 {vr(p,2)}, {vr(x,2)}, {vr(x+2,2)}\nv_pk_add_f32 {vr(q,2)}, {vr(x+8,2)}, {vr(x+10,2)}")
        a(f"v_pk_add_f32 {vr(p,2)}, {vr(p,2)}, {vr(x+4,2)}\nv_pk_add_f32 {vr(q,2)}, {vr(q,2)}, {vr(x+12,2)}")
        a(f"v_pk_add_f32 {vr(p,2)}, {vr(p,2)}, {vr(x+6,2)}\nv_pk_add_f32 {vr(q,2)}, {vr(q,2)}, {vr(x+14,2)}")
        a(f"v_add_f32 v{t}, v{p}, v{p+1}\nv_add_f32 v{u}, v{q}, v{q+1}")
        a(f"v_permlane32_swap_b32 v{t}, v{u}\nv_add_f32 v{t}, v{t}, v{u}\nv_rcp_f32 v{t}, v{t}")
        a(f"v_mov_b32 v{u}, v{t}\nv_permlane32_swap_b32 v{t}, v{u}")
        for i in range(8):
            sel = "op_sel:[0,0] op_sel_hi:[1,0]" if i < 4 else "op_sel:[0,1] op_sel_hi:[1,1]"
            a(f"v_pk_mul_f32 {vr(x+2*i,2)}, {vr(x+2*i,2)}, {vr(t,2)} {sel}")
        cvt(dst, x, 8)
    KVA = ACC
    softmax2(X[0], PK)
    mfma(TT, PK, IDP, "0")
    mfma(TT, PK + 4, IDP + 4, TT)
    getv()
    softmax2(X[1], PK)
    fixv()
    cvt(PT, TT, 8)
    mfma(TT, PK, IDP, "0")
    mfma(TT, PK + 4, IDP + 4, TT)
    mfma(KVA, PT, VP, "0")
    mfma(KVA, PT + 4, VP + 4, KVA)
    softmax2(X[2], PHI)
    cvt(PT, TT, 8)
    mfma(KVA, PT, VP + 8, KVA)
    mfma(KVA, PT + 4, VP + 12, KVA)
    a(f"""
    v_lshrrev_b32 v{vT}, 5, v{vLANE}
    v_mul_u32_u24 v{vT}, {32*384}, v{vT}
    v_and_b32 v{vT1}, 31, v{vLANE}
    v_lshl_add_u32 v{vT}, v{vT1}, 4, v{vT}
    s_mul_i32 s{sT0}, s{sH}, {8*32*384}
    s_mul_i32 s{sT1}, s{sRB}, 384
    s_add_u32 s{sT0}, s{sT0}, s{sT1}
    s_add_u32 s{sT0}, s{sT0}, {WS_P}
    s_mov_b32 exec_lo, 0x1ffff
    s_mov_b32 exec_hi, 0x1ffff
    """)
    for r4 in range(4):
        a(f"buffer_store_dwordx4 {vr(KVA+4*r4,4)}, v{vT}, {sr(rWS,4)}, s{sT0} offen sc1")
        if r4 < 3: a(f"s_add_u32 s{sT0}, s{sT0}, {2*32*384}")
    a("s_mov_b64 exec, -1")
    softmax2(X[3], PHI + 8)
    a(f"""
    s_lshl_b32 s{sT0}, s{sJ}, 11
    s_add_u32 s{sT0}, s{sT0}, {L_X}
    v_add_u32 v{vT}, s{sT0}, v{vL16}
    ds_read_b128 {vr(Qf,4)}, v{vT}
    ds_read_b128 {vr(Qf+4,4)}, v{vT} offset:1024
    s_lshl_b32 s{sT0}, s{sJ}, 9
    s_add_u32 s{sT0}, s{sT0}, {L_XM}
    v_lshl_add_u32 v{vT}, v{vLANE}, 3, s{sT0}
    ds_read_b64 {vr(TM,2)}, v{vT}
    s_waitcnt vmcnt(4)
    """)
    if cfg.a3: a("s_waitcnt lgkmcnt(0)")
    else: await_cnt(4 * 16, 4)
    nmfill(TM)
    stamp(3)
    a("s_branch L_attA")

    a.label("L_roleB")
    if not cfg.bnear:
        code_prefetch("B")
        binit()
    late_setup()
    loader_addrs()
    srd(rXA, kAX, 2048 * 1024)
    srd(rWA, kAW, 512 * 3072)
    srd(rWS, kWS, WS_SIZE)
    srd(rOUT, kOUT, 2048 * 2048)
    srd(rDBG, kDBG, 256)
    if cfg.pref and cfg.prefA[0] < 0:
        a(f"buffer_load_dword v38, v{vPW}, {sr(rWA,4)}, 0 offen {cfg.pref_sc}")
        a(f"buffer_load_dword v36, v{vPX}, {sr(rXA,4)}, 0 offen {cfg.pref_sc}")
    if cfg.slowpref:
        a(f"""
        s_lshr_b32 s{sT0}, s2, 3
        s_lshl_b32 s{sT0}, s{sT0}, 2
        s_add_u32 s{sT0}, s{sT0}, s{sJ}
        s_mul_i32 s{sT1}, s{sT0}, {12*1024}
        s_and_b32 s{sT2}, s2, 1
        s_lshl_b32 s{sT2}, s{sT2}, 9
        s_add_u32 s{sT1}, s{sT1}, s{sT2}
        s_add_u32 s{sT1}, s{sT1}, 384
        v_lshlrev_b32 v{vT}, 10, v{vLANE}
        s_lshl_b32 s{sT0}, s{sT0}, 12
        s_bfe_u32 s{sT2}, s2, 0x20001
        s_lshl_b32 s{sT2}, s{sT2}, 19
        s_add_u32 s{sT0}, s{sT0}, s{sT2}
        s_add_u32 s{sT0}, s{sT0}, 384
        s_mov_b64 exec, 0xfff
        """)
        if "b" in cfg.slowpref: a(f"buffer_load_dword v36, v{vT}, {sr(rWB,4)}, s{sT1} offen")
        if "a" in cfg.slowpref: a(f"buffer_load_dword v38, v{vT}, {sr(rWA,4)}, s{sT1} offen")
        a("s_mov_b64 exec, 15")
        if "x" in cfg.slowpref:
            if "b" in cfg.slowpref: a(f"buffer_load_dword v37, v{vT}, {sr(rXB,4)}, s{sT0} offen")
            if "a" in cfg.slowpref: a(f"buffer_load_dword v36, v{vT}, {sr(rXA,4)}, s{sT0} offen")
        a("s_mov_b64 exec, -1")
    if cfg.sslow:
        l = lab("noss")
        a(f"""
        s_bitcmp1_b32 s2, 0
        s_cbranch_scc1 {l}
        s_lshr_b32 s{sT0}, s2, 3
        s_lshl_b32 s{sT0}, s{sT0}, 2
        s_add_u32 s{sT0}, s{sT0}, s{sJ}
        s_mul_i32 s{sT0}, s{sT0}, {12*1024}
        s_add_u32 s{sT0}, s{sT0}, 384
        s_add_u32 s84, s{kBW}, s{sT0}
        s_addc_u32 s85, s{kBW+1}, 0
        s_add_u32 s86, s{kAW}, s{sT0}
        s_addc_u32 s87, s{kAW+1}, 0
        """)
        for ch, reg in (("b", 84), ("a", 86)):
            if ch in cfg.sslow:
                for i in range(12):
                    a(f"s_load_dword s88, s[{reg}:{reg+1}], {i*1024}\ns_load_dword s89, s[{reg}:{reg+1}], {i*1024+64}")
        a.label(l)
        if "x" in cfg.sslow:
            xslow(84, kBX)
            for i in range(4):
                a(f"s_load_dword s88, s[84:85], {i*1024}\ns_load_dword s89, s[84:85], {i*1024+64}")
    if cfg.sprefB:
        for t in spf_setup()[:cfg.sprefB]: a(t)
    compute_addrs("B")
    a(f"s_cmp_lt_u32 s2, 8\ns_cselect_b32 s{sREDO}, s{sW}, 0")
    a(f"s_cmp_lg_u32 s{sREDO}, 1\ns_cbranch_scc1 L_noreset")
    a(f"v_mov_b32 v16, 0\nv_mov_b32 v17, 0\nv_mov_b32 v18, 0\nv_mov_b32 v19, 0")
    assert cfg.nrep == 8
    nres = -(-(FL_OB + 1024 * cfg.hs - WS_FL) // 8192)
    a(f"s_mul_i32 s{sT1}, s2, {nres*1024}\ns_add_u32 s{sT1}, s{sT1}, {WS_FL}")
    for i in range(nres):
        a(f"buffer_store_dwordx4 v[16:19], v{vL16}, {sr(rWS,4)}, s{sT1} offen offset:{(i%4)*1024} sc1")
        if i % 4 == 3: a(f"s_add_u32 s{sT1}, s{sT1}, 4096")
    a.label("L_noreset")
    a(f"v_lshl_add_u32 v{vT}, v{vLANE}, 2, v{vCNT}\nv_mov_b32 v{vT1}, 0\nds_write_b32 v{vT}, v{vT1}")
    vKST, vVST = 28, 29
    if cfg.m16:
        a(f"""
        v_and_b32 v{vKST}, 0x23, v{vLANE}
        v_bfe_u32 v{vT}, v{vLANE}, 2, 2
        v_lshl_or_b32 v{vKST}, v{vT}, 3, v{vKST}
        v_bfe_u32 v{vT}, v{vLANE}, 4, 1
        v_lshl_or_b32 v{vKST}, v{vT}, 2, v{vKST}
        v_lshlrev_b32 v{vKST}, 4, v{vKST}
        s_waitcnt lgkmcnt(0)
        """)
    else: a(f"""
    v_and_b32 v{vKST}, 0x33, v{vLANE}
    v_and_b32 v{vT}, 4, v{vLANE}
    v_lshl_or_b32 v{vKST}, v{vT}, 1, v{vKST}
    v_bfe_u32 v{vT}, v{vLANE}, 3, 1
    v_lshl_or_b32 v{vKST}, v{vT}, 2, v{vKST}
    v_lshlrev_b32 v{vKST}, 4, v{vKST}
    v_bfe_u32 v{vT}, v{vLANE}, 4, 1
    v_lshlrev_b32 v{vVST}, 17, v{vT}
    v_lshrrev_b32 v{vT}, 5, v{vLANE}
    v_lshl_add_u32 v{vVST}, v{vT}, 8, v{vVST}
    v_and_b32 v{vT}, 15, v{vLANE}
    v_lshl_add_u32 v{vVST}, v{vT}, 4, v{vVST}
    s_waitcnt lgkmcnt(0)
    """)
    def bst(c):
        if cfg.tprof: a(f"s_memtime s[98:99]\ns_waitcnt lgkmcnt(0)\nv_writelane_b32 v252, s98, {48+c}")
    def postB(c):
        if c > 0: bst(c)
        if c == 5:
            l = lab("nogate")
            a(f"s_cmp_lg_u32 s{sREDO}, 1\ns_cbranch_scc1 {l}")
            a(f"s_lshl_b32 s{sT0}, s2, 2\nv_mov_b32 v{vT}, s{sT0}\ns_waitcnt vmcnt(0)")
            flag(vT, "1", srdr=rDBG)
            a.label(l)
        if cfg.l2A and cfg.l2A[0] <= c < cfg.l2A[0] + cfg.l2A[1]:
            nb, b = cfg.l2A[1], c - cfg.l2A[0]
            nw, nx = 48 // nb, 32 // nb
            if b == 0:
                a(f"""
                s_lshr_b32 s{sT0}, s2, 3
                s_lshl_b32 s{sT0}, s{sT0}, 2
                s_add_u32 s{sT0}, s{sT0}, s{sJ}
                s_mul_i32 s84, s{sT0}, {12*1024}
                s_and_b32 s{sT1}, s2, 1
                s_lshl_b32 s{sT1}, s{sT1}, 9
                s_add_u32 s84, s84, s{sT1}
                s_lshl_b32 s85, s{sT0}, 12
                s_bfe_u32 s{sT1}, s2, 0x20001
                s_lshl_b32 s{sT1}, s{sT1}, 19
                s_add_u32 s85, s85, s{sT1}
                v_lshrrev_b32 v{vPW}, 2, v{vLANE}
                v_lshlrev_b32 v{vPW}, 10, v{vPW}
                v_and_b32 v{vPX}, 3, v{vLANE}
                v_lshl_add_u32 v{vPW}, v{vPX}, 7, v{vPW}
                v_lshlrev_b32 v{vPX}, 7, v{vLANE}
                """)
            a(f"""
            s_mov_b32 exec_hi, {((1 << nw) - 1) >> 32}
            s_mov_b32 exec_lo, {((1 << nw) - 1) & 0xffffffff}
            buffer_load_dword v38, v{vPW}, {sr(rWA,4)}, s84 offen
            s_mov_b32 exec_hi, 0
            s_mov_b32 exec_lo, {(1 << nx) - 1}
            buffer_load_dword v36, v{vPX}, {sr(rXA,4)}, s85 offen
            s_mov_b64 exec, -1
            s_add_u32 s84, s84, {nw // 4 * 1024}
            s_add_u32 s85, s85, {nx * 128}
            """)
        if c == 0: stamp(1)
        if cfg.pref and c == cfg.prefA[0]:
            a(f"buffer_load_dword v38, v{vPW}, {sr(rWA,4)}, 0 offen {cfg.pref_sc}")
        if cfg.pref and c == cfg.prefA[1]:
            a(f"buffer_load_dword v36, v{vPX}, {sr(rXA,4)}, 0 offen {cfg.pref_sc}")
    gemm("B", lambda c: None, postB)
    stamp(2)
    KOWN, VPK = 232, 240
    if cfg.gprio[2]: a(f"s_setprio {cfg.gprio[2]}")
    vG, vGA = 30, 31
    a(f"v_lshlrev_b32 v{vGA}, 2, v{vLANE}\ns_mov_b64 exec, 0xff\nbuffer_load_dword v{vG}, v{vGA}, {sr(rDBG,4)}, 0 offen sc1\ns_mov_b64 exec, -1")
    if cfg.m16:
        a(f"s_lshl_b32 s{sT0}, s{sRB}, 12\ns_lshl_b32 s{sT1}, s{sH}, 17\ns_add_u32 s{sT1}, s{sT1}, s{sT0}")
        for ri in range(2):
            cvt(KOWN + 4 * ri, ACC + 16 + 8 * ri, 4)
            cvt(VPK + 4 * ri, ACC + 32 + 8 * ri, 4)
            swap16(KOWN + 4 * ri)
            a(f"buffer_store_dwordx4 {vr(VPK+4*ri,4)}, v{vL16}, {sr(rWS,4)}, s{sT1} offen offset:{ri*2048+1024} sc1")
            a(f"buffer_store_dwordx4 {vr(KOWN+4*ri,4)}, v{vKST}, {sr(rWS,4)}, s{sT1} offen offset:{ri*2048} sc1")
    else:
        a(f"""
        s_and_b32 s{sT2}, s{sJ}, 1
        s_lshl_b32 s{sT0}, s{sRB}, 1
        s_add_u32 s{sT0}, s{sT0}, s{sT2}
        s_lshl_b32 s{sT0}, s{sT0}, 11
        s_lshl_b32 s{sT1}, s{sH}, 17
        s_add_u32 s{sT1}, s{sT1}, s{sT0}
        s_xor_b32 s{sT2}, s{sT1}, 0x800
        s_and_b32 s{sT3}, s{sH}, -2
        s_lshl_b32 s{sT3}, s{sT3}, 17
        s_add_u32 s{sT3}, s{sT3}, s{sT0}
        """)
        assert WS_KV == 0
        cvt(KOWN, ACC + 8, 4)
        a(f"buffer_store_dwordx4 {vr(KOWN,4)}, v{vKST}, {sr(rWS,4)}, s{sT1} offen sc1")
        cvt(KOWN + 4, ACC + 16 + 8, 4)
        a(f"buffer_store_dwordx4 {vr(KOWN+4,4)}, v{vKST}, {sr(rWS,4)}, s{sT2} offen sc1")
        cvt(VPK, ACC + 32, 4)
        a(f"buffer_store_dwordx4 {vr(VPK,4)}, v{vVST}, {sr(rWS,4)}, s{sT3} offen offset:1024 sc1")
        cvt(VPK + 4, ACC + 40, 4)
        a(f"buffer_store_dwordx4 {vr(VPK+4,4)}, v{vVST}, {sr(rWS,4)}, s{sT3} offen offset:1536 sc1")
    vq[:] = ["st"] * 4
    nxtB = [lastA + 1]
    def barB(c):
        if c > lastA: wait_for(c)
        a("s_barrier")
        bst(c)
    def loadB(c):
        while nxtB[0] <= min(c + cfg.look, 15):
            issue(nxtB[0]); nxtB[0] += 1
    def flagKV():
        stamp(3)
        l = lab("noflag")
        a(f"s_cmp_lg_u32 s{sW}, 0\ns_cbranch_scc1 {l}")
        poll(vGA, vG, 0xff, srdr=rDBG, first_issued=True)
        a(f"""
        s_mul_i32 s{sT0}, s{sHG}, {128*cfg.nrep}
        s_lshl_b32 s{sT1}, s{sRB}, 2
        s_add_u32 s{sT0}, s{sT0}, s{sT1}
        s_add_u32 s{sT0}, s{sT0}, {FL_KV}
        v_lshl_add_u32 v{vT}, v{vLANE}, 7, s{sT0}
        """)
        flag(vT, str((1 << cfg.nrep) - 1))
        a.label(l)
    assert cfg.coupled
    if cfg.flag_at == 9:
        if cfg.pre9: loadB(7 + cfg.pre9 - 1)
        barB(8); loadB(8)
    qs = 0.25 * math.log2(math.e)
    a(f"s_mov_b32 s{sC}, {f2u(qs)}\ns_mov_b32 s{sC+1}, {f2u(qs)}")
    for qb in range(2):
        qa = ACC + (8 if cfg.m16 else 16) * qb
        for i in range(4):
            a(f"v_pk_mul_f32 {vr(qa+2*i,2)}, {vr(qa+2*i,2)}, {sr(sC,2)}")
        cvt(Qf + 4 * qb, qa, 4)
        if cfg.m16: swap16(Qf + 4 * qb)
    a(f"""
    s_lshl_b32 s{sT0}, s{sJ}, 11
    s_add_u32 s{sT0}, s{sT0}, {L_X}
    v_add_u32 v{vT}, s{sT0}, v{vL16}
    ds_write_b128 v{vT}, {vr(Qf,4)}
    ds_write_b128 v{vT}, {vr(Qf+4,4)} offset:1024
    """)
    for qb in range(2):
        mfma(72 + 32 * qb, KOWN, Qf + 4 * qb, "0")
        mfma(88 + 32 * qb, KOWN + 4, Qf + 4 * qb, "0")
    TMB = 32
    def maxtree(dst, base, n, init=None):
        i = 0
        if init is None:
            a(f"v_max3_f32 v{dst}, v{base}, v{base+1}, v{base+2}"); i = 3
        while i + 1 < n:
            a(f"v_max3_f32 v{dst}, v{dst}, v{base+i}, v{base+i+1}"); i += 2
        if i < n:
            a(f"v_max_f32 v{dst}, v{dst}, v{base+i}")
    maxtree(TMB, 72, 32)
    maxtree(TMB + 1, 104, 32)
    def crossmax(t):
        a(f"v_permlane32_swap_b32 v{t}, v{t+1}\nv_max_f32 v{t}, v{t}, v{t+1}")
    crossmax(TMB)
    a(f"v_sub_f32 v{TMB}, {f2u(-cfg.bias)}, v{TMB}\nv_mov_b32 v{TMB+1}, v{TMB}\nv_permlane32_swap_b32 v{TMB}, v{TMB+1}")
    a(f"""
    s_lshl_b32 s{sT0}, s{sJ}, 9
    s_add_u32 s{sT0}, s{sT0}, {L_XM}
    v_lshl_add_u32 v{vT}, v{vLANE}, 3, s{sT0}
    ds_write_b64 v{vT}, {vr(TMB,2)}
    """)
    def flagKV2():
        a(f"""
        s_mul_i32 s{sT0}, s{sHG}, {128*cfg.nrep}
        s_lshl_b32 s{sT1}, s{sRB}, 2
        s_add_u32 s{sT1}, s{sT0}, s{sT1}
        s_add_u32 s{sT1}, s{sT1}, {FL_KV}
        v_lshl_add_u32 v{vT}, v{vLANE}, 7, s{sT1}
        s_and_b32 s{sT1}, s{sRB}, {cfg.nrep-1}
        s_lshl_b32 s{sT1}, s{sT1}, 7
        s_add_u32 s{sT0}, s{sT0}, s{sT1}
        s_add_u32 s{sT0}, s{sT0}, {FL_KV}
        s_waitcnt lgkmcnt(0)
        """)
        wait_for("st")
        poll(vGA, vG, 0xff, srdr=rDBG, first_issued=True)
        l = lab("noflag")
        a(f"""
        v_lshl_add_u32 v{vGA}, v{vLANE}, 2, s{sT0}
        s_mov_b64 exec, 1
        ds_add_rtn_u32 v{vT1}, v{vCNT}, v{vONE} offset:{C_KV}
        s_waitcnt lgkmcnt(0)
        v_cmp_eq_u32 vcc, 3, v{vT1}
        s_mov_b64 exec, -1
        s_cbranch_vccz {l}
        """)
        flag(vT, str((1 << cfg.nrep) - 1))
        a.label(l)
        stamp(3)
    sb = Stream(cfg.depB, cfg.nB)
    if cfg.flag_at == 8:
        flagKV2()
        barB(8); loadB(8)
        nmfill(TMB)
    elif cfg.flag_at == 9:
        flagKV2()
        nmfill(TMB)
    elif cfg.flag_at == 10:
        nmfill(TMB)
        loadB(7)
        a("s_waitcnt lgkmcnt(0)")
        barB(8)
        if cfg.pre9 == 0:
            loadB(8); flagKV2()
        else:
            flagKV2(); loadB(8)
    for c in range(9, cfg.pollB + 1):
        if c == cfg.pollB:
            a(f"s_mov_b32 exec_hi, 0\nbuffer_load_dword v{vG}, v{vGA}, {sr(rWS,4)}, 0 offen sc1\ns_mov_b64 exec, -1")
            vq.append("kvf")
        barB(c)
        loadB(c)
        if cfg.swo and c == 9:
            a(f"""
            s_lshr_b32 s{sT0}, s2, 3
            s_lshl_b32 s{sT0}, s{sT0}, 2
            s_add_u32 s{sT0}, s{sT0}, s{sJ}
            s_lshl_b32 s{sT0}, s{sT0}, 12
            s_and_b32 s{sT1}, s2, 1
            s_lshl_b32 s{sT1}, s{sT1}, 9
            s_add_u32 s{sT0}, s{sT0}, s{sT1}
            s_add_u32 s{sT0}, s{sT0}, 384
            s_add_u32 s84, s{kAO}, s{sT0}
            s_addc_u32 s85, s{kAO+1}, 0
            s_add_u32 s86, s{kBO}, s{sT0}
            s_addc_u32 s87, s{kBO+1}, 0
            """)
        if cfg.swo and 9 <= c <= 12:
            for reg in (84, 86):
                a(f"s_load_dword s88, s[{reg}:{reg+1}], {(c-9)*1024}\ns_load_dword s89, s[{reg}:{reg+1}], {(c-9)*1024+64}")
        if c == 10 and cfg.earlyset:
            att_setup(0, cfg.nB); sb.setup()
        if c == 11 and cfg.earlyset:
            sb.zero()
    sb.q = list(vq)

    WFB = 184
    vWR = 12
    def woaddr():
        a(f"""
        v_bfe_u32 v{vT1}, v{vLANE}, 2, 2
        v_lshrrev_b32 v{vT2}, 5, v{vLANE}
        v_lshl_add_u32 v{vT1}, v{vT2}, 2, v{vT1}
        v_lshlrev_b32 v{vWR}, 7, v{vT1}
        s_lshr_b32 s{sT1}, s{sJ}, 1
        v_bfe_u32 v{vT1}, v{vLANE}, 3, 1
        v_xor_b32 v{vT1}, s{sT1}, v{vT1}
        v_lshl_add_u32 v{vWR}, v{vT1}, 6, v{vWR}
        v_and_b32 v{vT1}, 1, v{vLANE}
        v_lshl_add_u32 v{vWR}, v{vT1}, 5, v{vWR}
        s_and_b32 s{sT1}, s{sJ}, 1
        v_bfe_u32 v{vT1}, v{vLANE}, 4, 1
        v_xor_b32 v{vT1}, s{sT1}, v{vT1}
        v_lshl_add_u32 v{vWR}, v{vT1}, 4, v{vWR}
        v_bfe_u32 v{vT1}, v{vLANE}, 1, 1
        v_lshl_add_u32 v{vWR}, v{vT1}, 3, v{vWR}
        s_lshl_b32 s{sT1}, s{sJ}, 14
        s_add_u32 s{sT1}, s{sT1}, {L_WB}
        v_add_u32 v{vWR}, s{sT1}, v{vWR}
        v_xor_b32 v{vWR+1}, 64, v{vWR}
        """)
    def wofrags(base, g2):
        for hh in range(8):
            a(f"ds_read_b64_tr_b16 {vr(base+32*g2+4*hh,2)}, v{vWR+g2} offset:{hh*2048}")
            a(f"ds_read_b64_tr_b16 {vr(base+32*g2+4*hh+2,2)}, v{vWR+g2} offset:{hh*2048+1024}")
    def upper(base):
        def f0():
            woaddr()
            await_cnt(C_WO, 4)
            wofrags(WFB, 0)
        def f1():
            wofrags(WFB, 1)
        def f2():
            a("s_waitcnt lgkmcnt(0)")
            arrive(C_UP)
        return f0, f1, f2

    def wosetup():
        a(f"""
        v_lshrrev_b32 v{vT}, 3, v{vLANE}
        v_bfe_u32 v{vT1}, v{vLANE}, 4, 1
        v_lshlrev_b32 v{vT1}, 2, v{vT1}
        v_and_b32 v{vT2}, 7, v{vLANE}
        v_xor_b32 v{vT1}, v{vT1}, v{vT2}
        v_lshlrev_b32 v{vT1}, 4, v{vT1}
        v_lshl_add_u32 v{vWOA}, v{vT}, 10, v{vT1}
        s_lshl_b32 s{sT0}, s{sHG}, 7
        s_lshl_b32 s{sT1}, s{sJ}, 17
        s_add_u32 s{sT0}, s{sT0}, s{sT1}
        v_add_u32 v{vWOA}, s{sT0}, v{vWOA}
        s_and_b32 s{sWO}, s{sRB}, 7
        s_lshl_b32 s{sWO}, s{sWO}, 1
        s_lshl_b32 s{sWOM}, s{sJ}, 14
        """)
    def wopiece(st):
        a(f"""
        s_lshl_b32 s{sT0}, s{sWO}, 10
        s_add_u32 m0, s{sT0}, s{sWOM}
        s_lshl_b32 s{sT1}, s{sWO}, 13
        s_add_u32 s{sT0}, s{sT0}, {L_WB}
        buffer_load_dwordx4 v{vWOA}, {sr(rMISC,4)}, s{sT1} offen lds
        s_add_u32 m0, s{sT0}, s{sWOM}
        s_add_u32 s{sWO}, s{sWO}, 1
        s_and_b32 s{sWO}, s{sWO}, 15
        buffer_load_dwordx4 v{vWOA}, {sr(rXB,4)}, s{sT1} offen lds
        """)
        st.push("wo", 2)
    def wodone(st):
        st.wait("wo")
        arrive(C_WO)
    vC4, vC1 = 6, 7
    vH, vHA = 248, 249
    sOB, sOB1, sOWN = 61, 62, 63
    def pretail():
        a(f"s_mul_i32 s{sT0}, s{sJ}, 4608\ns_add_u32 s{sT0}, s{sT0}, {L_XC}\nv_add_u32 v{vC4}, s{sT0}, v{vL16}\nv_lshl_add_u32 v{vC1}, v{vLANE}, 2, s{sT0}")
    def pretailA():
        pretail()
        assert cfg.m16
        a(f"""
        s_lshl_b32 s{sT0}, s{sRB}, 6
        s_add_u32 s{sT0}, s{sT0}, s{sH}
        s_lshl_b32 s{sT0}, s{sT0}, 10
        s_add_u32 s{sOB}, s{sT0}, {WS_OB}
        s_add_u32 s{sOB1}, s{sOB}, 0x8000
        s_mul_i32 s{sT0}, s{sRB}, {32*cfg.hs}
        s_lshr_b32 s{sT1}, s{sHG}, 1
        s_mul_i32 s{sT1}, s{sT1}, {cfg.hs}
        s_add_u32 s{sT0}, s{sT0}, s{sT1}
        s_and_b32 s{sT1}, s{sHG}, 1
        s_lshl_b32 s{sT1}, s{sT1}, 2
        s_add_u32 s{sT0}, s{sT0}, s{sT1}
        s_add_u32 s{sT0}, s{sT0}, {FL_OB}
        v_mul_u32_u24 v{vHA}, {4*cfg.hs}, v{vLANE}
        v_add_u32 v{vHA}, s{sT0}, v{vHA}
        """)
    def hint():
        l = lab("nohint")
        a(f"s_cmp_lg_u32 s{sW}, {cfg.hintw}\ns_cbranch_scc1 {l}")
        flag(vHA, "0xff")
        a.label(l)
    def pretailB():
        pretail()
        a(f"""
        s_lshl_b32 s{sT0}, s{sRB}, 3
        s_add_u32 s{sT0}, s{sT0}, s{sHG}
        s_lshl_b32 s{sT0}, s{sT0}, 2
        s_add_u32 s{sT0}, s{sT0}, s{sJ}
        s_mul_i32 s{sT0}, s{sT0}, {cfg.hs}
        s_add_u32 s{sT0}, s{sT0}, {FL_OB}
        v_lshl_add_u32 v{vHA}, v{vLANE}, 2, s{sT0}
        s_lshl_b32 s{sT0}, s{sRB}, 16
        s_lshl_b32 s{sT1}, s{sJ}, 13
        s_add_u32 s{sOB}, s{sT0}, s{sT1}
        s_add_u32 s{sOB}, s{sOB}, {WS_OB}
        s_lshr_b32 s{sT0}, s{sHG}, 1
        s_and_b32 s{sT1}, s{sHG}, 1
        s_lshl_b32 s{sT1}, 1, s{sT1}
        s_cmp_eq_u32 s{sT0}, s{sJ}
        s_cselect_b32 s{sOWN}, s{sT1}, 0
        """)

    def barS(c):
        sb.wait(c)
        a("s_barrier")
        bst(c)
        while nxtB[0] <= min(c + cfg.look, 15):
            issue_chunk(nxtB[0]); sb.push(nxtB[0], 8); nxtB[0] += 1
    for c in range(cfg.pollB + 1, cfg.kvB + 1): barS(c)
    sb.wait("kvf")
    stamp(4)
    poll(vGA, vG, 0xffffffff, first_issued=True)
    barT = cfg.barT
    assert len(barT) == 15 - cfg.kvB
    if not cfg.earlyset:
        att_setup(0, cfg.nB); sb.setup()
    sb.first()
    if not cfg.earlyset: sb.zero()
    for i, t in enumerate(barT):
        if t == 0: barS(cfg.kvB + 1 + i)
    sb.start()
    stamp(5)
    vJ0, vJ1, vJ2 = 9, 10, 11
    def stB(): stamp(6)
    def stB2(): stamp(14)
    assert cfg.depB <= 4
    jobs = {7: [stB], 11: [stB2]}
    for i, t in enumerate(barT):
        if t: jobs.setdefault(t - 1, []).append(lambda c=cfg.kvB + 1 + i: barS(c))
    for i, f in enumerate(upper(L_WB)):
        if f.__name__ not in cfg.skip: jobs.setdefault(cfg.upB + i, []).append(f)
    if cfg.woB:
        def wo0():
            srd(rMISC, kAO, 512 * 1024); srd(rXB, kBO, 512 * 1024)
            wosetup()
            await_cnt(4 * 16, 4)
        t0_, per = cfg.woB
        jobs.setdefault(t0_, []).append(wo0)
        for i in range(16): jobs.setdefault(t0_ + i // per, []).append(lambda: wopiece(sb))
        assert cfg.upB >= t0_ + 16 // per + 1
        jobs.setdefault(cfg.upB, []).insert(0, lambda: wodone(sb))
    jobs.setdefault(cfg.nB - 2, []).append(pretailB)
    sb.run(jobs, cfg.prioB)
    a("s_branch L_tail")

    a.label("L_attA")
    nA = 64 - cfg.nB
    att_setup(cfg.nB, nA)
    sa = Stream(cfg.depA, nA, init=["pst"] * 4)
    if not cfg.woB: wosetup()
    PZ = 240
    def poison():
        a(f"""
        v_mov_b32 v{PZ}, -1
        v_mov_b32 v{PZ+1}, -1
        v_mov_b32 v{PZ+2}, -1
        v_mov_b32 v{PZ+3}, -1
        s_lshl_b32 s{sT0}, s{sRB}, 6
        s_add_u32 s{sT0}, s{sT0}, s{sH}
        s_lshl_b32 s{sT0}, s{sT0}, 10
        s_add_u32 s{sT0}, s{sT0}, {WS_OB}
        s_add_u32 s{sT1}, s{sT0}, 32768
        buffer_store_dwordx4 {vr(PZ,4)}, v{vL16}, {sr(rWS,4)}, s{sT0} offen sc1
        buffer_store_dwordx4 {vr(PZ,4)}, v{vL16}, {sr(rWS,4)}, s{sT1} offen sc1
        """)
        sa.push("poison", 2)
    if cfg.poisT < 0: poison()
    sa.prologue()
    JD = RING + 12 * cfg.depA
    KT = JD + 32
    assert KT + 8 <= 248
    RD = JD
    assert RD + 16 <= 248
    def red0():
        a(f"""
        s_lshr_b32 s{sT0}, s{sRB}, 3
        s_lshl_b32 s{sT1}, s{sHG}, 2
        s_add_u32 s{sJB}, s{sT0}, s{sT1}
        s_lshl_b32 s{sT1}, s{sJB}, 7
        s_lshl_b32 s{sT0}, s{sJ}, 5
        s_add_u32 s{sT1}, s{sT1}, s{sT0}
        s_add_u32 s{sT1}, s{sT1}, {FL_P}
        v_lshl_add_u32 v{vJ0}, v{vLANE}, 2, s{sT1}
        s_mov_b64 exec, 0xff
        buffer_load_dword v{vJ1}, v{vJ0}, {sr(rWS,4)}, 0 offen sc1
        s_mov_b64 exec, -1
        """)
        sa.push("fp")
    def red1():
        sa.wait("fp")
        poll(vJ0, vJ1, 0xff, first_issued=True)
        a(f"""
        s_lshl_b32 s{sJB}, s{sJB}, 3
        s_and_b32 s{sT1}, s{sRB}, 7
        s_add_u32 s{sJB}, s{sJB}, s{sT1}
        s_mul_i32 s{sT1}, s{sJB}, {32*384}
        s_mul_i32 s{sT0}, s{sJ}, {8*384}
        s_add_u32 s{sT1}, s{sT1}, s{sT0}
        s_add_u32 s{sT1}, s{sT1}, {WS_P}
        v_lshrrev_b32 v{vJ1}, 5, v{vLANE}
        v_mul_u32_u24 v{vJ0}, 384, v{vJ1}
        v_and_b32 v{vJ2}, 31, v{vLANE}
        v_lshl_add_u32 v{vJ0}, v{vJ2}, 4, v{vJ0}
        v_lshlrev_b32 v{vJ1}, 2, v{vJ1}
        v_lshl_add_u32 v{vJ1}, v{vJ2}, 3, v{vJ1}
        s_mov_b32 exec_lo, 0x1ffff
        s_mov_b32 exec_hi, 0x1ffff
        """)
        for i in range(4):
            a(f"buffer_load_dwordx4 {vr(RD+4*i,4)}, v{vJ0}, {sr(rWS,4)}, s{sT1} offen offset:{i*768} sc1")
        a("s_mov_b64 exec, -1")
        sa.push("part", 4)
    def red2():
        sa.wait("part")
        a(f"v_pk_add_f32 {vr(RD,2)}, {vr(RD,2)}, {vr(RD+4,2)}\nv_pk_add_f32 {vr(RD+2,2)}, {vr(RD+2,2)}, {vr(RD+6,2)}")
        a(f"v_pk_add_f32 {vr(RD+8,2)}, {vr(RD+8,2)}, {vr(RD+12,2)}\nv_pk_add_f32 {vr(RD+10,2)}, {vr(RD+10,2)}, {vr(RD+14,2)}")
        a(f"v_pk_add_f32 {vr(RD,2)}, {vr(RD,2)}, {vr(RD+8,2)}\nv_pk_add_f32 {vr(RD+2,2)}, {vr(RD+2,2)}, {vr(RD+10,2)}")
        l = lab("notlast")
        a(f"""
        s_mul_i32 s{sT0}, s{sJ}, 800
        s_add_u32 s{sT0}, s{sT0}, {L_XR}
        v_add_u32 v{vJ0}, s{sT0}, v{vL16}
        s_mov_b32 exec_lo, 0x1ffff
        s_mov_b32 exec_hi, 0x1ffff
        ds_write_b128 v{vJ0}, {vr(RD,4)}
        s_mov_b32 s{sJL}, 0
        s_waitcnt lgkmcnt(0)
        s_mov_b64 exec, 1
        ds_add_rtn_u32 v{vJ2}, v{vCNT}, v{vONE} offset:{C_RD}
        s_waitcnt lgkmcnt(0)
        v_cmp_eq_u32 vcc, 3, v{vJ2}
        s_mov_b64 exec, -1
        s_cbranch_vccz {l}
        s_mov_b32 s{sJL}, 1
        v_add_u32 v{vJ0}, {L_XR}, v{vL16}
        """)
        for i in range(4):
            a(f"ds_read_b128 {vr(RD+4*i,4)}, v{vJ0} offset:{i*800}")
        a("s_waitcnt lgkmcnt(0)")
        a(f"v_pk_add_f32 {vr(RD,2)}, {vr(RD,2)}, {vr(RD+4,2)}\nv_pk_add_f32 {vr(RD+2,2)}, {vr(RD+2,2)}, {vr(RD+6,2)}")
        a(f"v_pk_add_f32 {vr(RD+8,2)}, {vr(RD+8,2)}, {vr(RD+12,2)}\nv_pk_add_f32 {vr(RD+10,2)}, {vr(RD+10,2)}, {vr(RD+14,2)}")
        a(f"v_pk_add_f32 {vr(RD,2)}, {vr(RD,2)}, {vr(RD+8,2)}\nv_pk_add_f32 {vr(RD+2,2)}, {vr(RD+2,2)}, {vr(RD+10,2)}")
        a(f"""
        v_permlane32_swap_b32 v{RD}, v{RD+2}
        v_permlane32_swap_b32 v{RD+1}, v{RD+3}
        v_pk_add_f32 {vr(RD,2)}, {vr(RD,2)}, {vr(RD+2,2)}
        v_cvt_pk_bf16_f32 v{RD}, v{RD}, v{RD+1}
        s_lshl_b32 s{sT1}, s{sJB}, 8
        s_add_u32 s{sT1}, s{sT1}, {WS_F}
        s_mov_b32 exec_lo, 0x1ffff
        s_mov_b32 exec_hi, 0x1ffff
        buffer_store_dword v{RD}, v{vJ1}, {sr(rWS,4)}, s{sT1} offen sc1
        s_mov_b64 exec, -1
        """)
        a.label(l)
        sa.mark = len(sa.q)
        sa.push("after", 0)
        sa.stored_at = list(sa.q)
    def red3():
        n_new = sum(1 for t in sa.q if t not in sa.stored_at)
        l = lab("noffl")
        a(f"s_cmp_lg_u32 s{sJL}, 1\ns_cbranch_scc1 {l}")
        a(f"""
        s_lshr_b32 s{sT1}, s{sJB}, 3
        s_lshl_b32 s{sT1}, s{sT1}, 7
        s_and_b32 s{sT0}, s{sJB}, 7
        s_lshl_b32 s{sT0}, s{sT0}, 2
        s_add_u32 s{sT0}, s{sT0}, s{sT1}
        s_add_u32 s{sT0}, s{sT0}, {FL_F}
        v_mov_b32 v{vJ0}, s{sT0}
        s_waitcnt vmcnt({n_new})
        """)
        flag(vJ0, "1")
        a.label(l)
    def oa0():
        a(f"""
        s_lshl_b32 s{sT0}, s{sRB}, 7
        s_lshl_b32 s{sT1}, s{sJ}, 5
        s_add_u32 s{sT0}, s{sT0}, s{sT1}
        s_add_u32 s{sT0}, s{sT0}, {FL_OA}
        v_lshl_add_u32 v{vJ0}, v{vLANE}, 2, s{sT0}
        s_mov_b64 exec, 0xff
        buffer_load_dword v{vJ1}, v{vJ0}, {sr(rWS,4)}, 0 offen sc1
        s_mov_b64 exec, -1
        """)
        sa.push("foa")
    def oa1(part):
        def f():
            if part == 0:
                sa.wait("foa")
                poll(vJ0, vJ1, 0xff, first_issued=True)
                await_cnt(C_UP, 4)
            off = (part >> 1) * 32768 + (part & 1) * 4096
            loff = L_WB + off
            a(f"""
            s_lshl_b32 s{sT0}, s{sRB}, 16
            s_lshl_b32 s{sT1}, s{sJ}, 13
            s_add_u32 s{sT0}, s{sT0}, s{sT1}
            s_add_u32 s{sT0}, s{sT0}, {WS_OA + off}
            s_add_u32 m0, s{sT1}, {loff}
            """)
            for i in range(4):
                a(f"buffer_load_dwordx4 v{vL16}, {sr(rWS,4)}, s{sT0} offen offset:{i*1024} sc1 lds")
            sa.push("wo", 4)
        return f
    def job0():
        sa.wait("pst")
        a(f"s_lshl_b32 s{sT0}, s{sH}, 7\ns_lshl_b32 s{sT1}, s{sRB}, 2\ns_add_u32 s{sT0}, s{sT0}, s{sT1}\ns_add_u32 s{sT0}, s{sT0}, {FL_P}\nv_mov_b32 v{vJ0}, s{sT0}")
        flag(vJ0, "1"); sa.push("fl")
    def job1():
        a(f"s_lshl_b32 s{sT0}, s{sH}, 7\ns_add_u32 s{sT0}, s{sT0}, {FL_F}\nv_lshl_add_u32 v{vJ0}, v{vLANE}, 2, s{sT0}")
        a(f"s_mov_b64 exec, 0xff\nbuffer_load_dword v{vJ1}, v{vJ0}, {sr(rWS,4)}, 0 offen sc1\ns_mov_b64 exec, -1")
        sa.push("ff")
        stamp(6)
    def job2():
        sa.wait("ff")
        poll(vJ0, vJ1, 0xff, first_issued=True)
        a(f"""
        v_and_b32 v{vJ0}, 31, v{vLANE}
        v_min_u32 v{vJ0}, 16, v{vJ0}
        v_lshlrev_b32 v{vJ0}, 3, v{vJ0}
        v_lshrrev_b32 v{vJ1}, 5, v{vLANE}
        v_lshl_add_u32 v{vJ0}, v{vJ1}, 8, v{vJ0}
        s_lshl_b32 s{sT0}, s{sH}, 11
        s_add_u32 s{sT0}, s{sT0}, {WS_F}
        """)
        for r4 in range(4):
            a(f"buffer_load_dwordx2 {vr(KT+2*r4,2)}, v{vJ0}, {sr(rWS,4)}, s{sT0} offen offset:{r4*512} sc1")
        sa.push("kt", 4)
        stamp(14)
    def job3a():
        sa.wait("kt")
        for ri in range(2):
            mfma(JD + 16 * ri, KT, PHI + 8 * ri, "0")
        for ri in range(2):
            mfma(JD + 16 * ri, KT + 4, PHI + 8 * ri + 4, JD + 16 * ri)
    def job3b():
        a(f"s_lshl_b32 s{sT0}, s{sRB}, 6\ns_add_u32 s{sT0}, s{sT0}, s{sH}\ns_lshl_b32 s{sT0}, s{sT0}, 10\ns_add_u32 s{sT0}, s{sT0}, {WS_OA}\ns_add_u32 s{sT1}, s{sT0}, 32768")
        if cfg.a3:
            a(f"s_and_b32 s{sT2}, s{sJ}, 1\ns_lshl_b32 s{sT2}, s{sT2}, 15\ns_add_u32 s{sT0}, s{sT0}, s{sT2}\ns_sub_u32 s{sT1}, s{sT1}, s{sT2}")
        for ri in range(2):
            d = JD + 16 * ri
            a(f"v_add_f32 v{d+8}, {f2u(1e-6)}, v{d+8}\nv_rcp_f32 v{d+8}, v{d+8}")
        for ri in range(2):
            d = JD + 16 * ri
            for i in range(4):
                a(f"v_pk_mul_f32 {vr(d+2*i,2)}, {vr(d+2*i,2)}, {vr(d+8,2)} op_sel:[0,0] op_sel_hi:[1,0]")
            cvt(d + 12, d, 4)
            a(f"buffer_store_dwordx4 {vr(d+12,4)}, v{vL16}, {sr(rWS,4)}, s{sT0+ri} offen sc1")
        sa.push("oa", 2)
    def job4():
        sa.wait("oa")
        a(f"s_lshl_b32 s{sT0}, s{sRB}, 7\ns_lshl_b32 s{sT1}, s{sH}, 2\ns_add_u32 s{sT0}, s{sT0}, s{sT1}\ns_add_u32 s{sT0}, s{sT0}, {FL_OA}\nv_mov_b32 v{vJ0}, s{sT0}")
        flag(vJ0, "1"); sa.push("fl")
    jobs = {}
    t0, t1, t2, t3, t4 = cfg.jobT
    for t, f in ((t0, job0), (t1, job1), (t2, job2), (t3, job3a), (t3 + 1, job3b), (t4, job4)): jobs.setdefault(t, []).append(f)
    for t, f in zip(cfg.redT, (red0, red1, red2, red3)): jobs.setdefault(t, []).append(f)
    if not cfg.woB:
        for t in range(16): jobs.setdefault(t + cfg.woT, []).append(lambda: wopiece(sa))
    if not cfg.woB: jobs.setdefault(cfg.woT + 18, []).append(lambda: wodone(sa))
    jobs.setdefault(nA - 2 + min(0, cfg.hintpos + 2), []).append(pretailA)
    if cfg.hintpos <= -2: jobs.setdefault(nA + 1 + cfg.hintpos, []).append(hint)
    if cfg.poisT >= 0: jobs.setdefault(cfg.poisT, []).append(poison)
    jobs.setdefault(cfg.oaT[0], []).append(oa0)
    for p in range(4): jobs.setdefault(cfg.oaT[1] + p, []).append(oa1(p))
    assert max(jobs) < nA
    if cfg.skip:
        for t in list(jobs):
            jobs[t] = [f for f in jobs[t] if f.__name__ not in cfg.skip]
    sa.run(jobs, cfg.prioA)
    sa.wait("wo")
    a("; ======== tail: join the two key ranges, publish o, output projections")
    a.label("L_tail")
    stamp(7)

    CK = NM
    def check():
        for q in range(2):
            b = O + 16 * q
            a(f"v_maximum3_f32 v{CK+q}, abs(v{b}), abs(v{b+1}), abs(v{b+2})\nv_maximum3_f32 v{CK+2+q}, abs(v{b+3}), abs(v{b+4}), abs(v{b+5})")
            a(f"v_maximum3_f32 v{CK+q}, v{CK+q}, abs(v{b+6}), abs(v{b+7})\nv_maximum3_f32 v{CK+q}, v{CK+q}, v{CK+2+q}, v{CK+2+q}")
        a(f"""
        s_mov_b32 s{sT2}, {f2u(2.0 ** -(cfg.bias + 2))}
        s_mov_b32 s{sT3}, {f2u(2.0 ** -112)}
        v_maximum3_f32 v{CK+4}, v{CK}, v{CK+1}, v{O+8}
        v_cmp_le_f32 s[84:85], s{sT2}, v{O+8}
        v_cmp_gt_f32 s[86:87], s{sT3}, v{CK}
        v_maximum3_f32 v{CK+4}, v{CK+4}, v{O+24}, v{O+24}
        v_cmp_le_f32 s[88:89], s{sT2}, v{O+24}
        v_cmp_gt_f32 s[90:91], s{sT3}, v{CK+1}
        v_cmp_ngt_f32 vcc, {f2u(2.0 ** 125)}, v{CK+4}
        s_and_b64 s[84:85], s[84:85], s[86:87]
        s_and_b64 s[88:89], s[88:89], s[90:91]
        s_or_b64 s[84:85], s[84:85], s[88:89]
        s_or_b64 vcc, vcc, s[84:85]
        """)
    def badflag():
        l = lab("good")
        if cfg.force_redo:
            a(f"s_mov_b64 vcc, -1")
        a(f"s_cbranch_vccz {l}\nds_write_b32 v{vCNT}, v{vONE}")
        a.label(l)
    def rowaddr(dst, ri):
        a(f"""
        v_and_b32 v{vT1}, 31, v{vLANE}
        s_lshl_b32 s{sT0}, s{sRB}, 1
        s_add_u32 s{sT0}, s{sT0}, {ri}
        s_lshl_b32 s{sT0}, s{sT0}, 5
        v_add_u32 v{vT1}, s{sT0}, v{vT1}
        v_lshlrev_b32 v{dst}, 11, v{vT1}
        v_lshrrev_b32 v{vT1}, 5, v{vLANE}
        v_lshl_add_u32 v{dst}, v{vT1}, 5, v{dst}
        """)
    a(f"s_cmp_lt_u32 s{sW}, 4\ns_cbranch_scc1 L_tailB")
    if cfg.hintpos == -1: hint()
    check()
    badflag()
    a("s_waitcnt lgkmcnt(0)\ns_barrier")
    PB = 104
    a(f"""
    ds_read_b32 v{PB+16}, v{vC1} offset:4096
    ds_read_b32 v{PB+17}, v{vC1} offset:4352
    ds_read_b32 v{CK}, v{vCNT}
    ds_read_b128 {vr(PB,4)}, v{vC4}
    ds_read_b128 {vr(PB+4,4)}, v{vC4} offset:1024
    ds_read_b128 {vr(PB+8,4)}, v{vC4} offset:2048
    ds_read_b128 {vr(PB+12,4)}, v{vC4} offset:3072
    s_waitcnt lgkmcnt(4)
    v_add_f32 v{O+8}, v{O+8}, v{PB+16}
    v_add_f32 v{O+24}, v{O+24}, v{PB+17}
    v_readfirstlane_b32 s{sT1}, v{CK}
    v_rcp_f32 v{O+10}, v{O+8}
    v_rcp_f32 v{O+26}, v{O+24}
    s_andn2_b32 s{sT1}, s{sT1}, s{sREDO}
    s_cmp_lg_u32 s{sT1}, 0
    s_cbranch_scc1 L_slow
    """)
    OS = 124
    for q in range(2):
        if cfg.hintpos == q: hint()
        b = O + 16 * q
        a(f"s_waitcnt lgkmcnt({2 - 2*q})")
        for i in range(4):
            a(f"v_pk_add_f32 {vr(b+2*i,2)}, {vr(b+2*i,2)}, {vr(PB+8*q+2*i,2)}")
        for i in range(4):
            a(f"v_pk_mul_f32 {vr(b+2*i,2)}, {vr(b+2*i,2)}, {vr(b+10,2)} op_sel:[0,0] op_sel_hi:[1,0]")
        cvt(OS + 4 * q, b, 4)
        for i in range(4):
            a(f"v_min_u32 v{OS+4*q+i}, -2, v{OS+4*q+i}")
        a(f"buffer_store_dwordx4 {vr(OS+4*q,4)}, v{vL16}, {sr(rWS,4)}, s{sOB+q} offen {cfg.ob_st}")
    if cfg.hintpos == 2: hint()
    stamp(8)
    vOR, vOST = 5, 7
    PA, PW, PO, PS = 80, 136, 16, 48
    a(f"""
    s_and_b32 s{sT2}, s{sJ}, 1
    s_lshl_b32 s{sT0}, s{sJ}, 10
    s_add_u32 s{sT0}, s{sT0}, {L_X}
    v_add_u32 v{vT}, s{sT0}, v{vL16}
    ds_write_b128 v{vT}, {vr(OS,4)}
    v_xor_b32 v{vT}, 0x1000, v{vT}
    ds_write_b128 v{vT}, {vr(OS+4,4)}
    v_bfe_u32 v{vT1}, v{vLANE}, 2, 2
    v_lshrrev_b32 v{vT2}, 5, v{vLANE}
    v_lshl_add_u32 v{vT1}, v{vT2}, 2, v{vT1}
    v_lshlrev_b32 v{vWR}, 7, v{vT1}
    s_lshr_b32 s{sT1}, s{sJ}, 1
    v_bfe_u32 v{vT1}, v{vLANE}, 3, 1
    v_xor_b32 v{vT1}, s{sT1}, v{vT1}
    v_lshl_add_u32 v{vWR}, v{vT1}, 6, v{vWR}
    v_and_b32 v{vT1}, 1, v{vLANE}
    v_lshl_add_u32 v{vWR}, v{vT1}, 5, v{vWR}
    v_bfe_u32 v{vT1}, v{vLANE}, 4, 1
    v_lshl_add_u32 v{vWR}, v{vT1}, 4, v{vWR}
    v_bfe_u32 v{vT1}, v{vLANE}, 1, 1
    v_lshl_add_u32 v{vWR}, v{vT1}, 3, v{vWR}
    s_lshl_b32 s{sT0}, s{sT2}, 15
    s_add_u32 s{sT0}, s{sT0}, {L_WB}
    v_add_u32 v{vOR}, s{sT0}, v{vL16}
    s_waitcnt lgkmcnt(0)
    """)
    arrive(C_OB)
    if cfg.tailprio: a("s_setprio 0")
    assert L_WA == 0
    DP = 4
    def rd(q):
        a(f"ds_read_b64_tr_b16 {vr(PW+4*(q%8),2)}, v{vWR} offset:{q*2048}")
        a(f"ds_read_b64_tr_b16 {vr(PW+4*(q%8)+2,2)}, v{vWR} offset:{q*2048+1024}")
        a(f"ds_read_b128 {vr(PO+4*(q%8),4)}, v{vOR} offset:{q*1024}")
    for q in range(DP): rd(q)
    for q in range(32):
        a(f"s_waitcnt lgkmcnt({3*min(DP-1, 31-q)})")
        mfma(PA, PW + 4 * (q % 8), PO + 4 * (q % 8), "0" if q == 0 else PA)
        if q + DP < 32: rd(q + DP)
        if cfg.hintpos == 10 + q: hint()
        if q == 31 - DP:
            if cfg.outA_t:
                a(f"""
                v_lshrrev_b32 v{vT1}, 2, v{vLANE}
                s_lshl_b32 s{sT0}, s{sRB}, 1
                s_add_u32 s{sT0}, s{sT0}, s{sT2}
                s_lshl_b32 s{sT0}, s{sT0}, 5
                v_add_u32 v{vT1}, s{sT0}, v{vT1}
                v_lshlrev_b32 v{vOST}, 11, v{vT1}
                v_and_b32 v{vT1}, 3, v{vLANE}
                v_lshl_add_u32 v{vOST}, v{vT1}, 4, v{vOST}
                v_and_b32 v{vT1}, 31, v{vLANE}
                v_lshlrev_b32 v{vT1}, 6, v{vT1}
                v_lshrrev_b32 v{vT2}, 5, v{vLANE}
                v_lshl_add_u32 v{vT1}, v{vT2}, 5, v{vT1}
                s_mul_i32 s{sT0}, s{sJ}, 4608
                s_add_u32 s{sT0}, s{sT0}, {L_XC}
                v_add_u32 v9, s{sT0}, v{vT1}
                """)
            else:
                rowaddr(vOST, f"s{sT2}")
            a(f"s_lshl_b32 s{sT0}, s{sHG}, 7\ns_lshr_b32 s{sT1}, s{sJ}, 1\ns_lshl_b32 s{sT1}, s{sT1}, 6\ns_add_u32 s{sT0}, s{sT0}, s{sT1}\nv_add_u32 v{vOST}, s{sT0}, v{vOST}")
    arrive(C_OA)
    stamp(9)
    cvt(PS, PA, 8)
    if cfg.outA_t:
        a(f"""
        ds_write_b128 v9, {vr(PS,4)}
        ds_write_b128 v9, {vr(PS+4,4)} offset:16
        v_add_u32 v10, 0x8000, v{vOST}
        s_waitcnt lgkmcnt(0)
        ds_read_b128 {vr(PS+8,4)}, v{vC4}
        ds_read_b128 {vr(PS+12,4)}, v{vC4} offset:1024
        s_waitcnt lgkmcnt(1)
        buffer_store_dwordx4 {vr(PS+8,4)}, v{vOST}, {sr(rOUT,4)}, 0 offen {cfg.outA_sc}
        s_waitcnt lgkmcnt(0)
        buffer_store_dwordx4 {vr(PS+12,4)}, v10, {sr(rOUT,4)}, 0 offen {cfg.outA_sc}
        """)
    else:
        a(f"buffer_store_dwordx4 {vr(PS,4)}, v{vOST}, {sr(rOUT,4)}, 0 offen {cfg.outA_sc}")
        a(f"buffer_store_dwordx4 {vr(PS+4,4)}, v{vOST}, {sr(rOUT,4)}, 0 offen offset:16 {cfg.outA_sc}")
    stamp(10); stamp(11); stamp(12)
    if cfg.fin8:
        a("s_branch L_fin8")
    elif cfg.abar:
        a("s_barrier" + ("\ns_barrier" if cfg.outB_t else ""))
    a("s_branch L_fin")

    a.label("L_tailB")
    if cfg.tailprio > 1: a("s_setprio 3")
    a(f"""
    ds_write_b128 v{vC4}, {vr(O,4)}
    ds_write_b128 v{vC4}, {vr(O+4,4)} offset:1024
    ds_write_b32 v{vC1}, v{O+8} offset:4096
    ds_write_b128 v{vC4}, {vr(O+16,4)} offset:2048
    ds_write_b128 v{vC4}, {vr(O+20,4)} offset:3072
    ds_write_b32 v{vC1}, v{O+24} offset:4352
    """)
    check()
    badflag()
    OFB, AB = 16, 104
    vXW, vXR, vOWN = 9, 10, 11
    sTODO, sREQ, sNEW = 84, 85, 88
    a(f"""
    s_waitcnt lgkmcnt(0)
    s_barrier
    ds_read_b32 v{CK}, v{vCNT}
    s_mov_b64 exec, 3
    buffer_load_dword v{vH}, v{vHA}, {sr(rWS,4)}, 0 offen sc1
    s_mov_b64 exec, -1
    v_pk_mov_b32 {vr(168,2)}, 0, 0
    v_pk_mov_b32 {vr(170,2)}, 0, 0
    s_waitcnt lgkmcnt(0)
    v_readfirstlane_b32 s{sT1}, v{CK}
    s_andn2_b32 s{sT1}, s{sT1}, s{sREDO}
    s_cmp_lg_u32 s{sT1}, 0
    s_cbranch_scc1 L_slow
    """)
    stamp(8)
    if cfg.tailprio: a("s_setprio 2")
    for i in range(4):
        mfma(AB + 16 * i, 168, 168, "0")
    rowaddr(vOST, 0)
    a(f"""
    s_lshl_b32 s{sT0}, s{sHG}, 7
    s_lshr_b32 s{sT1}, s{sJ}, 1
    s_lshl_b32 s{sT1}, s{sT1}, 6
    s_add_u32 s{sT0}, s{sT0}, s{sT1}
    s_and_b32 s{sT1}, s{sJ}, 1
    s_lshl_b32 s{sT1}, s{sT1}, 4
    s_add_u32 s{sT0}, s{sT0}, s{sT1}
    v_add_u32 v{vOST}, s{sT0}, v{vOST}
    v_add_u32 v{vOWN}, {L_X}, v{vL16}
    """)
    if cfg.fin8:
        a(f"""
        s_lshr_b32 s{sT0}, s{sJ}, 1
        s_lshl_b32 s{sT0}, s{sT0}, 2
        s_and_b32 s{sT1}, s{sJ}, 1
        s_add_u32 s{sT0}, s{sT0}, s{sT1}
        v_lshrrev_b32 v{vT1}, 5, v{vLANE}
        v_lshl_add_u32 v{vT1}, v{vT1}, 1, s{sT0}
        v_and_b32 v{vT2}, 7, v{vLANE}
        v_xor_b32 v{vT1}, v{vT1}, v{vT2}
        v_and_b32 v{vT2}, 31, v{vLANE}
        v_lshlrev_b32 v{vT2}, 7, v{vT2}
        v_lshl_add_u32 v{vXR}, v{vT1}, 4, v{vT2}
        s_lshl_b32 s{sT0}, s{sJ}, 14
        v_add_u32 v{vXR}, s{sT0}, v{vXR}
        """)
    else:
        a(f"s_mul_i32 s{sT0}, s{sJ}, 12288\nv_add_u32 v{vXR}, s{sT0}, v{vL16}")
    a(f"""
    s_andn2_b32 s{sTODO}, 3, s{sOWN}
    s_mov_b32 s{sREQ}, 0
    s_mov_b32 s{sCNT}, {cfg.spin}
    """)
    def mm(g):
        for ri in range(2):
            for i in range(4):
                for g2 in range(2):
                    d = AB + 32 * ri + 16 * g2
                    mfma(d, WFB + 32 * g2 + 4 * (4 * g + i), OFB + 32 * g + 16 * ri + 4 * i, d)
    def oload(g):
        l = lab("nol")
        a(f"s_bitcmp1_b32 s{sNEW}, {g}\ns_cbranch_scc0 {l}")
        for ri in range(2):
            a(f"s_add_u32 s{sT0}, s{sOB}, {g*4096 + ri*32768}")
            for i in range(4):
                a(f"buffer_load_dwordx4 {vr(OFB+32*g+16*ri+4*i,4)}, v{vL16}, {sr(rWS,4)}, s{sT0} offen offset:{i*1024} {cfg.ob_ld}")
        a.label(l)
    def look():
        a(f"""
        s_mov_b64 exec, 3
        v_cmp_ne_u32 vcc, 0, v{vH}
        s_mov_b64 exec, -1
        s_cmp_eq_u32 s{sCNT}, 0
        s_cselect_b32 s{sNEW}, 3, vcc_lo
        s_and_b32 s{sNEW}, s{sNEW}, s{sTODO}
        s_andn2_b32 s{sNEW}, s{sNEW}, s{sREQ}
        """)
        oload(0); oload(1)
    def use(g):
        l, l2 = lab("og"), lab("og")
        b = OFB + 32 * g
        a(f"v_max3_u32 v{vT}, v{b}, v{b+1}, v{b+2}\nv_max3_u32 v{vT1}, v{b+3}, v{b+4}, v{b+5}")
        for i in range(6, 30, 4):
            a(f"v_max3_u32 v{vT}, v{vT}, v{b+i}, v{b+i+1}\nv_max3_u32 v{vT1}, v{vT1}, v{b+i+2}, v{b+i+3}")
        a(f"v_max3_u32 v{vT}, v{vT}, v{b+30}, v{b+31}\nv_max_u32 v{vT}, v{vT}, v{vT1}\nv_cmp_eq_u32 vcc, -1, v{vT}")
        a(f"s_cmp_eq_u32 s{sCNT}, 0\ns_cbranch_scc1 {l2}\ns_cbranch_vccnz {l}")
        a.label(l2)
        mm(g)
        a(f"s_bitset0_b32 s{sTODO}, {g}")
        a.label(l)
    a("s_waitcnt vmcnt(0)")
    look()
    a(f"s_mov_b32 s{sREQ}, s{sNEW}")
    l = lab("noown")
    a(f"s_cmp_eq_u32 s{sOWN}, 0\ns_cbranch_scc1 {l}")
    await_cnt(C_OB, 4)
    for g in range(2):
        l2 = lab("own")
        a(f"s_bitcmp1_b32 s{sOWN}, {g}\ns_cbranch_scc0 {l2}")
        for i in range(8):
            a(f"ds_read_b128 {vr(OFB+32*g+4*i,4)}, v{vOWN} offset:{i*1024}")
        a("s_waitcnt lgkmcnt(0)")
        mm(g)
        a.label(l2)
    a.label(l)
    stamp(9)
    if cfg.prof: a("s_mov_b32 s70, 0")
    a.label("L_otry")
    if cfg.prof:
        a("s_memtime s[98:99]\ns_add_u32 s70, s70, 1\ns_add_u32 s71, s70, 40\ns_min_u32 s71, s71, 47\ns_waitcnt lgkmcnt(0)\ns_mov_b32 m0, s71\nv_writelane_b32 v255, s98, m0")
    if cfg.peek:
        a(f"ds_read_b32 v{vT2}, v{vCNT} offset:{C_OA}")
    a(f"s_cmp_lg_u32 s{sREQ}, 3\ns_cbranch_scc1 L_oone")
    a("s_waitcnt vmcnt(8)")
    use(0)
    a("s_waitcnt vmcnt(0)")
    use(1)
    a(f"s_mov_b32 s{sREQ}, 0\ns_branch L_onext")
    a.label("L_oone")
    l = lab("nopoll")
    a(f"s_andn2_b32 s{sT0}, s{sTODO}, s{sREQ}\ns_cbranch_scc0 {l}")
    if cfg.tsleep: a(f"s_sleep {cfg.tsleep}")
    a(f"s_mov_b64 exec, 3\nbuffer_load_dword v{vH}, v{vHA}, {sr(rWS,4)}, 0 offen sc1\ns_mov_b64 exec, -1")
    a(f"s_max_u32 s{sCNT}, s{sCNT}, 1\ns_sub_u32 s{sCNT}, s{sCNT}, 1")
    a.label(l)
    a("s_waitcnt vmcnt(0)")
    look()
    for g in range(2):
        l = lab("nouse")
        a(f"s_bitcmp1_b32 s{sREQ}, {g}\ns_cbranch_scc0 {l}")
        use(g)
        a.label(l)
    a(f"s_mov_b32 s{sREQ}, s{sNEW}")
    a.label("L_onext")
    a(f"s_cmp_lg_u32 s{sTODO}, 0\ns_cbranch_scc1 L_otry")
    if cfg.prof: a(f"v_writelane_b32 v255, s70, 33\nv_writelane_b32 v255, s{sCNT}, 34")
    stamp(10)
    if cfg.peek:
        l = lab("seen")
        a(f"s_waitcnt lgkmcnt(0)\nv_cmp_gt_u32 vcc, 4, v{vT2}\ns_cbranch_vccz {l}")
        await_cnt(C_OA, 4)
        a.label(l)
    else:
        await_cnt(C_OA, 4)
    stamp(11)
    def grp(ri, g):
        return AB + 32 * ri + 16 * (g >> 1) + 8 * (g & 1)
    if cfg.fin8:
        for g in range(1, 4):
            a(f"v_xor_b32 v{168+g}, {(4*(g>>1) + (g&1))*16}, v{vXR}")
        for ri in range(2):
            for g in range(4):
                for i in range(2):
                    a(f"ds_write_b128 v{168+g if g else vXR}, {vr(grp(ri,g)+4*i,4)} offset:{ri*4096 + i*8192}")
        a.label("L_fin8")
        a(f"""
        v_lshrrev_b32 v{vT1}, 3, v{vLANE}
        v_and_b32 v{vT2}, 7, v{vLANE}
        v_lshlrev_b32 v{vOST}, 11, v{vT1}
        v_lshl_add_u32 v{vOST}, v{vT2}, 4, v{vOST}
        v_xor_b32 v{vT2}, v{vT2}, v{vT1}
        v_lshlrev_b32 v{vT2}, 4, v{vT2}
        v_lshl_add_u32 v{vT2}, v{vT1}, 7, v{vT2}
        s_lshl_b32 s{sT0}, s{sW}, 10
        v_add_u32 v{vT}, s{sT0}, v{vT2}
        s_lshl_b32 s{sT0}, s{sRB}, 3
        s_add_u32 s{sT0}, s{sT0}, s{sW}
        s_lshl_b32 s{sT0}, s{sT0}, 14
        s_lshl_b32 s{sT1}, s{sHG}, 7
        s_add_u32 s{sT0}, s{sT0}, s{sT1}
        s_waitcnt lgkmcnt(0)
        s_barrier
        """)
        stamp(12)
        for p in range(4):
            for i in range(2):
                a(f"ds_read_b128 {vr(64+8*p+4*i,4)}, v{vT} offset:{p*16384 + i*8192}")
        for p in range(1, 4):
            a(f"s_waitcnt lgkmcnt({6-2*p})")
            for i in range(4):
                a(f"v_pk_add_f32 {vr(64+2*i,2)}, {vr(64+2*i,2)}, {vr(64+8*p+2*i,2)}")
        cvt(96, 64, 4)
        a(f"buffer_store_dwordx4 {vr(96,4)}, v{vOST}, {sr(rOUT,4)}, s{sT0} offen offset:1024 {cfg.out_sc}")
    else:
        for g in range(1, 4):
            a(f"s_xor_b32 s{sT0}, s{sJ}, {g}\ns_mul_i32 s{sT0}, s{sT0}, 12288\ns_add_u32 s{sT0}, s{sT0}, {(g-1)*4096}\nv_add_u32 v{vXW}, s{sT0}, v{vL16}")
            for ri in range(2):
                a(f"ds_write_b128 v{vXW}, {vr(grp(ri,g),4)} offset:{ri*2048}\nds_write_b128 v{vXW}, {vr(grp(ri,g)+4,4)} offset:{ri*2048+1024}")
        a("s_waitcnt lgkmcnt(0)\ns_barrier")
        stamp(12)
        tmp = 16
        for ri in range(2):
            for g in range(3):
                for i in range(2):
                    a(f"ds_read_b128 {vr(tmp+24*ri+8*g+4*i,4)}, v{vXR} offset:{g*4096 + ri*2048 + i*1024}")
        if cfg.outB_t:
            a(f"""
            v_and_b32 v{vT1}, 31, v{vLANE}
            v_lshlrev_b32 v{vXW}, 7, v{vT1}
            v_lshrrev_b32 v{vT1}, 5, v{vLANE}
            v_lshl_add_u32 v{vXW}, v{vT1}, 5, v{vXW}
            s_lshr_b32 s{sT0}, s{sJ}, 1
            s_lshl_b32 s{sT0}, s{sT0}, 6
            s_and_b32 s{sT1}, s{sJ}, 1
            s_lshl_b32 s{sT1}, s{sT1}, 4
            s_add_u32 s{sT0}, s{sT0}, s{sT1}
            s_add_u32 s{sT0}, s{sT0}, {L_X}
            v_add_u32 v{vXW}, s{sT0}, v{vXW}
            """)
        else:
            a(f"v_add_u32 v{vXW}, 0x10000, v{vOST}")
        for ri in range(2):
            d = grp(ri, 0)
            for g in range(3):
                a(f"s_waitcnt lgkmcnt({10 - 6*ri - 2*g + (1 if (cfg.outB_t and ri) else 0)})")
                for i in range(4):
                    a(f"v_pk_add_f32 {vr(d+2*i,2)}, {vr(d+2*i,2)}, {vr(tmp+24*ri+8*g+2*i,2)}")
            cvt(64 + 4 * ri, d, 4)
            if cfg.outB_t:
                a(f"ds_write_b128 v{vXW}, {vr(64+4*ri,4)} offset:{ri*4096}")
            else:
                a(f"buffer_store_dwordx4 {vr(64+4*ri,4)}, v{vXW if ri else vOST}, {sr(rOUT,4)}, 0 offen offset:1024 {cfg.out_sc}")
        if cfg.outB_t:
            a(f"""
            s_lshl_b32 s{sT0}, s{sJ}, 11
            v_add_u32 v{vOWN}, s{sT0}, v{vOWN}
            v_lshrrev_b32 v{vT1}, 3, v{vLANE}
            v_lshlrev_b32 v{vOST}, 11, v{vT1}
            v_and_b32 v{vT1}, 7, v{vLANE}
            v_lshl_add_u32 v{vOST}, v{vT1}, 4, v{vOST}
            s_lshl_b32 s{sT0}, s{sRB}, 2
            s_add_u32 s{sT0}, s{sT0}, s{sJ}
            s_lshl_b32 s{sT0}, s{sT0}, 15
            s_lshl_b32 s{sT1}, s{sHG}, 7
            s_add_u32 s{sT0}, s{sT0}, s{sT1}
            s_add_u32 s{sT1}, s{sT0}, 0x4000
            s_waitcnt lgkmcnt(0)
            s_barrier
            ds_read_b128 {vr(72,4)}, v{vOWN}
            ds_read_b128 {vr(76,4)}, v{vOWN} offset:1024
            s_waitcnt lgkmcnt(1)
            buffer_store_dwordx4 {vr(72,4)}, v{vOST}, {sr(rOUT,4)}, s{sT0} offen offset:1024 {cfg.out_sc}
            s_waitcnt lgkmcnt(0)
            buffer_store_dwordx4 {vr(76,4)}, v{vOST}, {sr(rOUT,4)}, s{sT1} offen offset:1024 {cfg.out_sc}
            """)
    a.label("L_fin")
    stamp(13)
    if cfg.diag:
        da, db, base = cfg.diag
        ra = sPROF if da == 0 else 92
        if db == 0:
            a(f"s_mov_b32 s{sT2}, 0")
        elif db == 15:
            a(f"s_waitcnt vmcnt(0)\ns_memrealtime s[{sT0}:{sT1}]\ns_waitcnt lgkmcnt(0)\ns_sub_u32 s{sT2}, s{sT0}, s{ra}")
        elif db == 16:
            a(f"s_waitcnt vmcnt(0)\ns_memtime s[{sT0}:{sT1}]\ns_waitcnt lgkmcnt(0)\ns_sub_u32 s{sT2}, s{sT0}, s100\ns_lshr_b32 s{sT2}, s{sT2}, 4")
        else:
            a(f"s_sub_u32 s{sT2}, s94, s{ra}")
        a(f"s_add_u32 s{sT2}, s{sT2}, {base}\ns_min_u32 s{sT2}, s{sT2}, 30000")
        a(f"s_cmp_lg_u32 s{sW}, 0\ns_cbranch_scc1 L_end")
        if cfg.diag_wb: a("s_waitcnt vmcnt(0)\ns_sleep 100\nbuffer_wbl2 sc1\ns_waitcnt vmcnt(0)")
        a.label("L_diag")
        a(f"s_memrealtime s[{sT0}:{sT1}]\ns_waitcnt lgkmcnt(0)\ns_sub_u32 s{sT0}, s{sT0}, s{sPROF}\ns_cmp_lt_u32 s{sT0}, s{sT2}\ns_cbranch_scc1 L_diag")
    if cfg.prof:
        a("s_waitcnt vmcnt(0)")
        stamp(15)
        a(f"s_getreg_b32 s{sT2}, hwreg(HW_REG_XCC_ID)\nv_writelane_b32 v255, s{sT2}, 32")
        a(f"s_lshl_b32 s{sT0}, s2, 3\ns_add_u32 s{sT0}, s{sT0}, s{sW}\ns_lshl_b32 s{sT0}, s{sT0}, 8\ns_add_u32 s{sT0}, s{sT0}, {WS_PROF}")
        a(f"v_lshlrev_b32 v{vT}, 2, v{vLANE}")
        a(f"buffer_store_dword v255, v{vT}, {sr(rWS,4)}, s{sT0} offen")
        if cfg.tprof:
            a(f"s_add_u32 s{sT0}, s{sT0}, {WS_DBG - WS_PROF}\nbuffer_store_dword v252, v{vT}, {sr(rWS,4)}, s{sT0} offen")
    a("s_endpgm")

    SL = O
    a.label("L_slow")
    a("s_waitcnt vmcnt(0) lgkmcnt(0)")
    a(f"s_mov_b32 s{sREDO}, 1\ns_mov_b32 s{sKV}, s{sKV0}\ns_mov_b32 s{sCNT}, s{sNIT}")
    a(f"v_mov_b32 v{SL}, 0xff800000\nv_mov_b32 v{SL+1}, 0xff800000")
    a.label("L_slow_loop")
    a(f"buffer_load_dwordx4 {vr(RING,4)}, v{vOFFK}, {sr(rWS,4)}, s{sKV} offen sc1\ns_add_u32 s{sKV}, s{sKV}, 2048\ns_and_b32 s{sKV}, s{sKV}, 0x1ffff\ns_waitcnt vmcnt(0)")
    mfma(S, RING, Qf, "0")
    mfma(S + 16, RING, Qf + 4, "0")
    maxtree(SL, S, 16, init=True)
    maxtree(SL + 1, S + 16, 16, init=True)
    a(f"s_sub_u32 s{sCNT}, s{sCNT}, 1\ns_cmp_lg_u32 s{sCNT}, 0\ns_cbranch_scc1 L_slow_loop")
    crossmax(SL)
    a(f"""
    s_lshl_b32 s{sT0}, s{sW}, 8
    s_add_u32 s{sT0}, s{sT0}, {L_X + 28672}
    v_lshl_add_u32 v{vT}, v{vLANE}, 2, s{sT0}
    ds_write_b32 v{vT}, v{SL}
    v_xor_b32 v{vT}, 0x400, v{vT}
    s_waitcnt lgkmcnt(0)
    s_barrier
    ds_read_b32 v{SL+1}, v{vT}
    s_waitcnt lgkmcnt(0)
    v_max_f32 v{SL}, v{SL}, v{SL+1}
    v_sub_f32 v{SL}, 0, v{SL}
    v_mov_b32 v{SL+1}, v{SL}
    v_permlane32_swap_b32 v{SL}, v{SL+1}
    """)
    nmfill(SL)
    sr2 = Stream(2, 2)
    sr2.prologue(single=True)
    a(f"s_lshr_b32 s{sCNT}, s{sNIT}, 1\ns_nop 7\ns_nop 3")
    a.label("L_redo_loop")
    sr2.tile(0, looped=True)
    sr2.tile(1, looped=True)
    a(f"s_sub_u32 s{sCNT}, s{sCNT}, 1\ns_cmp_lg_u32 s{sCNT}, 0\ns_cbranch_scc1 L_redo_loop")
    smf(O + 16, sr2.ring(1)[2], S + 16 + 8)
    a("s_waitcnt vmcnt(0)\ns_branch L_tail")
    a.label("L_end")
    a("s_endpgm")
    npad = a.pad()
    head = open(f"cdna_kernels/{NAME}.s.ref").read().split("; Override launch")[0]
    txt = head + f"""; Written with a generator script of my own (gen/gen.py); no compiler output.
;
; One persistent launch, 256 workgroups x 8 waves, one workgroup per CU.  Workgroup (rb, hg) owns rows
; 64*rb..64*rb+63 and heads 4*hg..4*hg+3 of both branches; wave j and wave j+4 share head 4*hg+j.
;   waves 0-3 (role B): qkv projection of the softmax branch, publish K/V, stage operands for role A,
;                       24 of the 64 key tiles of the attention, output projection of the softmax branch
;   waves 4-7 (role A): stage operands for role B, qkv projection and feature maps of the linear branch,
;                       40 key tiles, kv reduction and o of the linear branch, its output projection
; Attention: S^T = K Q^T - offset (offset in the MFMA's C operand), v_exp_f32 in place, and P V through the
; 2:4-sparse MFMA, whose index picks the high halves of the fp32 P registers (bf16 by truncation); a row of
; ones in the V operand gives the row sums from the same P.
; Softmax offset: maximum over the workgroup's own 64 keys, +{cfg.bias:.0f} in log2 units.  That maximum is a lower
; bound of the row maximum, so a term can only underflow if it is below 2^-{126-cfg.bias:.0f} of the row's largest term
; (less than half an fp32 ulp of it).  After the loop every wave checks its sums; on overflow, NaN or a row
; about to underflow the whole workgroup recomputes with the true row maximum (L_slow).
; Hand-offs between workgroups go through d_ws with sc1 stores and sc1 loads.  Flags are cleared in-launch by
; workgroups 0-7, which then set d_debug[0..7]; nobody touches a flag before seeing all eight.  o of the
; softmax branch carries its own validity: its words are first set to all ones (never a data value) and a
; consumer uses a block only when none of its words is all ones.  Every wait loop is bounded.
; @launch grid=(256,1,1) block=(512,1,1) lds={LDS_SIZE}
.amdgcn_target "amdgcn-amd-amdhsa--gfx950"
.text
.globl {NAME}_kernel
.p2align 8
.type {NAME}_kernel,@function
{NAME}_kernel:
""" + a.text() + f""".section .rodata,"a"
.p2align 6
.amdhsa_kernel {NAME}_kernel
  .amdhsa_next_free_vgpr 256
  .amdhsa_next_free_sgpr 102
  .amdhsa_accum_offset 256
  .amdhsa_group_segment_fixed_size 0
  .amdhsa_kernarg_size 80
  .amdhsa_user_sgpr_count 2
  .amdhsa_user_sgpr_kernarg_segment_ptr 1
  .amdhsa_system_sgpr_workgroup_id_x 1
.end_amdhsa_kernel
"""
    return txt, npad

if __name__ == "__main__":
    kw = {}
    out = f"cdna_kernels/{NAME}.s"
    for arg in sys.argv[1:]:
        k, v = arg.split("=", 1)
        if k == "out":
            out = v
        else:
            kw[k] = eval(v)
    txt, npad = gen(Cfg(**kw))
    open(out, "w").write(txt)
    print("wrote", out, "nop states inserted:", npad, "lines:", txt.count("\n"))
```
